```python
import torch

def _softmax(x, axis=-1):
    return torch.softmax(x, dim=axis)
def _gelu(x):
    return torch.nn.functional.gelu(x, approximate="tanh")
def _silu(x):
    return torch.nn.functional.silu(x)
def _sigmoid(x):
    return torch.sigmoid(x)
def _layernorm(x, axis=-1, eps=1e-5):
    m = x.mean(dim=axis, keepdim=True)
    v = x.var(dim=axis, keepdim=True, unbiased=False)
    return (x - m) / torch.sqrt(v + eps)
def _scatter_add(tgt, idx, src, axis=0):
    return tgt.clone().index_add_(axis, idx, src)
def _segment_sum(src, seg, n):
    out = torch.zeros((n,) + src.shape[1:], dtype=src.dtype)
    return out.index_add_(0, seg, src)
def _pad(x, pw):
    flat = tuple(v for pair in reversed(pw) for v in pair)
    return torch.nn.functional.pad(x, flat)

kernel_name = 'recurrent_scan__gqa_block_cached__dense_activation_gelu__prompt'

def setup_inputs():

    _w = (lambda a: (lambda t: t.to(torch.bfloat16) if t.is_floating_point() else t)(torch.as_tensor(a)))
    def _A_setup():
        B, Sq, D = 1, 2048, 512
        Hq, Hkv, Sk, Dh = 32, 32, 2048, 128
        assert Hq % Hkv == 0, (Hq, Hkv)
        return {
            "x": _w((lambda *s: torch.randn(*s, dtype=torch.bfloat16) * 0.05)(B, Sq, D)),
            "k_cache": _w((lambda *s: torch.randn(*s, dtype=torch.bfloat16) * 3.2)(B, Hkv, Sk, Dh)),
            "v_cache": _w((lambda *s: torch.randn(*s, dtype=torch.bfloat16) * 3.2)(B, Hkv, Sk, Dh)),
            "wq": _w((lambda *s: torch.randn(*s, dtype=torch.bfloat16) * 3.2)(D, Hq * Dh) * (D ** -0.5)),
            "wo": _w((lambda *s: torch.randn(*s, dtype=torch.bfloat16) * 3.2)(Hq * Dh, D) * ((Hq * Dh) ** -0.5)),
        }
    _A_in = _A_setup()

    def _B_setup():
        B, S, D, F = 1, 2048, 512, 1376
        return {
            "x": _w((lambda *s: torch.randn(*s, dtype=torch.bfloat16) * 0.05)(B, S, D)),
            "w1": _w((lambda *s: torch.randn(*s, dtype=torch.bfloat16) * 3.2)(D, F) * (D ** -0.5)),
            "b1": _w((lambda *s: torch.randn(*s, dtype=torch.bfloat16) * 3.2)(F) * 0.01),
            "w2": _w((lambda *s: torch.randn(*s, dtype=torch.bfloat16) * 0.8)(F, D) * (F ** -0.5)),
            "b2": _w((lambda *s: torch.randn(*s, dtype=torch.bfloat16) * 0.8)(D) * 0.01),
        }
    _B_in = _B_setup()

    return {
        "A_x": _A_in["x"],
        "A_k_cache": _A_in["k_cache"],
        "A_v_cache": _A_in["v_cache"],
        "A_wq": _A_in["wq"],
        "A_wo": _A_in["wo"],
        "B_x": _B_in["x"],
        "B_w1": _B_in["w1"],
        "B_b1": _B_in["b1"],
        "B_w2": _B_in["w2"],
        "B_b2": _B_in["b2"],
    }

def reference(A_x, A_k_cache, A_v_cache, A_wq, A_wo, B_x, B_w1, B_b1, B_w2, B_b2):
    def _A_ref(x, k_cache, v_cache, wq, wo):
        B, Sq, D = x.shape
        Hq, Dh = 32, 128
        Hkv = k_cache.shape[1]
        rep = Hq // Hkv
        q = (lambda x, *d: x.permute(*d))((x @ wq).reshape(B, Sq, Hq, Dh), 0, 2, 1, 3)
        k = (lambda x, n, axis: torch.repeat_interleave(x, n, dim=axis))(k_cache, rep, axis=1)
        v = (lambda x, n, axis: torch.repeat_interleave(x, n, dim=axis))(v_cache, rep, axis=1)
        scores = torch.einsum("bhqd,bhkd->bhqk", q, k) * (Dh ** -0.5)
        p = _softmax(scores, axis=-1)
        o = torch.einsum("bhqk,bhkd->bhqd", p, v)
        return (lambda x, *d: x.permute(*d))(o, 0, 2, 1, 3).reshape(B, Sq, Hq * Dh) @ wo

    def _B_ref(x, w1, b1, w2, b2):
        h = torch.einsum("bsd,df->bsf", x, w1) + b1
        h = _gelu(h)
        return torch.einsum("bsf,fd->bsd", h, w2) + b2

    x = A_x
    xn = _layernorm(x, axis=-1)
    s = _A_ref(xn, A_k_cache, A_v_cache, A_wq, A_wo)
    g = _silu(_B_ref(xn, B_w1, B_b1, B_w2, B_b2))
    return x + s * g
```

```python
import re

class Asm:
    def __init__(self):
        self.lines = []
    def __call__(self, s):
        for ln in s.split("\n"):
            ln = ln.strip()
            if ln:
                self.lines.append(ln if ln.endswith(":") or ln.startswith(".") or ln.startswith(";") else "    " + ln)
    def text(self):
        return "\n".join(self.lines) + "\n"

def vr(b, n=1, k="v"):
    return f"{k}{b}" if n == 1 else f"{k}[{b}:{b+n-1}]"
def ar(b, n=1):
    return vr(b, n, "a")

def kdesc(name, nvgpr, accum, nsgpr=102):
    return f""".amdhsa_kernel {name}
  .amdhsa_next_free_vgpr {nvgpr}
  .amdhsa_next_free_sgpr {nsgpr}
  .amdhsa_accum_offset {accum}
  .amdhsa_group_segment_fixed_size 0
  .amdhsa_kernarg_size 104
  .amdhsa_user_sgpr_count 2
  .amdhsa_user_sgpr_kernarg_segment_ptr 1
  .amdhsa_system_sgpr_workgroup_id_x 1
.end_amdhsa_kernel"""

_reg = re.compile(r"\b([va])(?:(\d+)|\[(\d+):(\d+)\])")
def regs(tok):
    out = []
    for m in _reg.finditer(tok):
        k = m.group(1)
        if m.group(2) is not None: out.append((k, int(m.group(2))))
        else: out += [(k, i) for i in range(int(m.group(3)), int(m.group(4)) + 1)]
    return out

_sreg = re.compile(r"\b(?:s(\d+)|s\[(\d+):(\d+)\]|(vcc))")
def sregs(tok):
    out = set()
    for m in _sreg.finditer(tok):
        if m.group(1): out.add(int(m.group(1)))
        elif m.group(2): out |= set(range(int(m.group(2)), int(m.group(3)) + 1))
        else: out.add("vcc")
    return out

TRANS = ("v_exp_f32", "v_log_f32", "v_rcp_f32", "v_rsq_f32", "v_sqrt_f32", "v_sin_f32", "v_cos_f32")
def parse(line):
    line = line.split(";")[0].strip()
    if not line or line.endswith(":") or line.startswith((".", "@")): return None
    parts = line.split(None, 1)
    op = parts[0]; ops = [o.strip() for o in parts[1].split(",")] if len(parts) > 1 else []
    d = dict(op=op, line=line, w=[], r=[], kind="other", states=1)
    if op == "s_nop": d["states"] = int(ops[0], 0) + 1
    if op.startswith("v_smfmac"):
        d["kind"] = "mfma"; d["w"] = regs(ops[0]); d["A"] = regs(ops[1]) + regs(ops[3]); d["B"] = regs(ops[2]); d["C"] = regs(ops[0])
        d["r"] = d["A"] + d["B"] + d["C"]; d["passes"] = 8
    elif op.startswith("v_mfma"):
        d["kind"] = "mfma"; d["w"] = regs(ops[0]); d["A"] = regs(ops[1]); d["B"] = regs(ops[2]); d["C"] = regs(ops[3])
        d["r"] = d["A"] + d["B"] + d["C"]
        d["passes"] = 8 if "32x32x16" in op else 4 if "16x16x32" in op else 16
    elif op.startswith("v_"):
        d["kind"] = "valu"
        if op.startswith("v_cmp") or op.startswith("v_readfirstlane") or op.startswith("v_readlane"):
            d["r"] = sum((regs(o) for o in ops[1:]), [])
        else:
            d["w"] = regs(ops[0]); d["r"] = sum((regs(o) for o in ops[1:]), [])
            if op.startswith(("v_fmac", "v_dot2c", "v_permlane", "v_writelane")): d["r"] += d["w"]
            if op.startswith("v_permlane"): d["w"] = d["w"] + regs(ops[1])
        d["trans"] = op.startswith(TRANS)
        d["dot"] = op.startswith("v_dot")
    elif op.startswith("ds_read"):
        d["kind"] = "mem"; d["w"] = regs(ops[0]); d["r"] = regs(ops[1])
    elif op.startswith("ds_"):
        d["kind"] = "mem"; d["r"] = sum((regs(o) for o in ops), [])
    elif op.startswith(("buffer_load", "global_load")):
        d["kind"] = "mem"
        if " lds" in line or "_lds_" in op: d["r"] = sum((regs(o) for o in ops), [])
        else: d["w"] = regs(ops[0]); d["r"] = sum((regs(o) for o in ops[1:]), [])
    elif op.startswith(("buffer_store", "global_store", "buffer_atomic", "global_atomic")):
        d["kind"] = "mem"; d["r"] = sum((regs(o) for o in ops), []); d["store"] = True
        d["wide"] = "x4" in op or "x3" in op
        d["data"] = regs(ops[0]) if op.startswith("buffer") else regs(ops[1])
    return d

def check_hazards(lines, window=24, only_last=False):
    ins = [p for p in map(parse, lines) if p]
    probs = []
    for i, c in enumerate(ins):
        if only_last and i != len(ins) - 1: continue
        dist = 0
        for j in range(i - 1, max(-1, i - window - 1), -1):
            p = ins[j]
            need = 0
            pw, cr, cw = set(p["w"]), set(c["r"]), set(c["w"])
            if p["kind"] == "mfma":
                n = {4: 8, 8: 12, 16: 20}[p["passes"]]
                if c["kind"] == "mfma":
                    if pw & (set(c["A"]) | set(c["B"])): need = n
                    elif pw & set(c["C"]):
                        need = 0 if (p["w"] == c["C"] and p["passes"] == c["passes"]) else n - 2
                    elif pw & cw and p["w"] != c["w"]: need = n - 2
                elif c["kind"] in ("valu", "mem"):
                    if pw & (cr | cw): need = n
                if c["kind"] == "valu" and set(p["C"]) & cw: need = max(need, {4: 3, 8: 7, 16: 15}[p["passes"]])
            elif p["kind"] == "valu":
                if c["kind"] == "mfma" and pw & cr: need = 3 if p.get("dot") else 2
                if c["kind"] == "valu":
                    if p.get("trans") and pw & cr: need = max(need, 1)
                    if c["op"].startswith("v_permlane") and pw & cr: need = max(need, 2)
                    if c["op"].startswith(("v_readfirstlane", "v_readlane")) and pw & cr: need = max(need, 1)
                    if "dpp" in c["line"] or "row_" in c["line"] or "quad_perm" in c["line"]:
                        if pw & cr: need = max(need, 2)
                    if "sdwa" in p["op"] and "dst_sel:DWORD" not in p["line"] and pw & (cr | cw): need = max(need, 1)
                    if p.get("dot") and pw & (cr | cw):
                        same = p["op"] == c["op"]
                        srcs = c["line"].split(",")
                        if not (same and c["op"].startswith("v_dot2c") and not (pw & set(sum((regs(o) for o in srcs[1:]), [])))) and \
                           not (same and len(srcs) == 4 and not (pw & set(regs(srcs[1]) + regs(srcs[2])))):
                            need = max(need, 3)
                if c["kind"] == "mem" and p.get("dot") and pw & cr: need = max(need, 3)
            elif p["kind"] == "mem" and p.get("store") and p.get("wide"):
                if set(p["data"]) & cw: need = 2 if c["kind"] == "valu" else 1
            if p["kind"] == "valu" and p["op"].startswith(("v_cmp", "v_readfirstlane", "v_readlane")):
                dst = sregs(p["line"].split(None, 1)[1].split(",")[0])
                src = sregs(",".join(c["line"].split(None, 1)[1].split(",")[(0 if c["kind"] == "mem" else 1):])) if " " in c["line"] else set()
                if dst & src:
                    if c["kind"] == "valu": need = max(need, 2)
                    elif c["kind"] == "mem": need = max(need, 5)
                    else: need = max(need, 1)
            if p["op"].startswith("s_") and "m0" in p["line"].split(",")[0] and c["kind"] == "mem" and (" lds" in c["line"] or "_lds_" in c["op"]):
                need = max(need, 1)
            if need > dist:
                probs.append(f"need {need} have {dist}: [{p['line']}] -> [{c['line']}]")
            dist += p["states"]
            if dist > 20: break
    return probs

def icost(l):
    op = l.split()[0]
    if op.startswith(TRANS) or op.startswith(("buffer_", "global_", "v_permlane")): return 8
    if op.startswith("s_"): return 0
    return 4

class Sched:
    def __init__(self):
        self.mf = []; self.sal = []; self.mem = []; self.valu = []; self.post = []
    def add(self, mfma):
        self.mf.append(mfma); self.sal.append([]); self.mem.append([]); self.valu.append([]); self.post.append([])
        return len(self.mf) - 1
    def n(self): return len(self.mf)
    def budget(self, g):
        m = self.mf[g]
        return 4 if (m and m.startswith("v_smfmac")) else 8
    def cost(self, g):
        c = sum(icost(l) for l in self.mem[g] + self.valu[g])
        if len(self.mem[g]) >= 2 and not self.valu[g]: c += 4
        return c + 4 * max(0, len(self.sal[g]) - 1) + 4 * len(self.post[g])
    def place_mem(self, line, lo, hi=None):
        hi = self.n() - 1 if hi is None else min(hi, self.n() - 1)
        assert lo <= hi, (line, lo, hi)
        w = icost(line)
        for g in range(lo, hi + 1):
            if not self.mem[g] and self.cost(g) + w <= self.budget(g):
                self.mem[g].append(line); return g
        g = min(range(lo, hi + 1), key=lambda g: (len(self.mem[g]), self.cost(g) - self.budget(g), g))
        self.mem[g].append(line); return g
    def est(self):
        return sum((max(16, 16 - self.budget(g) + self.cost(g)) if self.mf[g] else self.cost(g)) for g in range(self.n()))
    def lines(self):
        out = []
        for g in range(self.n()):
            if self.mf[g]: out.append(self.mf[g])
            out += self.sal[g] + self.mem[g] + self.valu[g] + self.post[g]
        return out

_wait = re.compile(r"(vmcnt|lgkmcnt)\((\d+)\)")
def auto_wait(lines, pend_lds=None, pend_vm=None):
    lds = list(pend_lds or []); vm = list(pend_vm or [])
    out = []
    def hoist(kind, k):
        pos = len(out); kk = k
        j = len(out) - 1
        while j >= 0:
            p = parse(out[j])
            if p is None or out[j].split()[0] in ("s_barrier", "s_cbranch_scc1", "s_cbranch_scc0", "s_branch"): break
            if p["kind"] == "mfma":
                pos = j + 1; k = kk; break
            isl = p["op"].startswith("ds_"); isv = p["op"].startswith(("buffer_", "global_"))
            if (kind == "lgkmcnt" and isl) or (kind == "vmcnt" and isv):
                kk -= 1
                if kk < 0: break
            if len(out) - j > 6: break
            j -= 1
        if pos < len(out) and out[pos].startswith("s_waitcnt") and kind not in out[pos]:
            out[pos] = out[pos] + f" {kind}({k})"
        elif pos < len(out) and out[pos].startswith("s_waitcnt"):
            old = int(dict(_wait.findall(out[pos]))[kind])
            out[pos] = out[pos].replace(f"{kind}({old})", f"{kind}({min(old,k)})")
        else:
            out.insert(pos, f"s_waitcnt {kind}({k})")
    for l in lines:
        if l.startswith("@waitvm"):
            parts = l.split(); tags = set(parts[1].split(","))
            idx = [i for i, e in enumerate(vm) if e[1] in tags]
            w = []
            if idx:
                k = len(vm) - 1 - max(idx); k = min(k, 62); w.append(f"vmcnt({k})"); vm = vm[len(vm) - k:] if k else []
            if len(parts) > 2: w.append("lgkmcnt(0)"); lds = []
            if w: out.append("s_waitcnt " + " ".join(w))
            continue
        p = parse(l)
        if p is None: out.append(l); continue
        if p["op"] == "s_waitcnt":
            for kind, k in _wait.findall(l):
                k = int(k)
                if kind == "vmcnt": vm = vm[len(vm) - k:] if 0 < k < len(vm) else ([] if k == 0 else vm)
                else: lds = lds[len(lds) - k:] if 0 < k < len(lds) else ([] if k == 0 else lds)
            out.append(l); continue
        touched = set(p["r"]) | set(p["w"])
        idx = [i for i, e in enumerate(lds) if e & touched]
        if idx:
            k = min(len(lds) - 1 - max(idx), 14); hoist("lgkmcnt", k); lds = lds[len(lds) - k:] if k else []
        idx = [i for i, e in enumerate(vm) if e[0] & touched]
        if idx:
            k = min(len(vm) - 1 - max(idx), 62); hoist("vmcnt", k); vm = vm[len(vm) - k:] if k else []
        if p["op"].startswith("ds_"): lds.append(set(p["w"]))
        elif p["op"].startswith(("buffer_", "global_")):
            m = re.search(r";tag=(\w+)", l)
            vm.append((set(p["w"]), m.group(1) if m else None))
        out.append(l)
    return out, lds, vm

def fix_hazards(lines):
    lines = list(lines)
    i = 0
    while i < len(lines):
        p = parse(lines[i])
        if p is None: i += 1; continue
        lo = max(0, i - 40)
        seg = lines[lo:i + 1]
        need = 0
        for pr in check_hazards(seg, only_last=True):
            m = re.match(r"need (\d+) have (\d+)", pr); need = max(need, int(m.group(1)) - int(m.group(2)))
        if need:
            lines.insert(i, f"s_nop {need-1}"); i += 1
        i += 1
    return lines

def f2u(x):
    import struct
    return "%#x" % struct.unpack("<I", struct.pack("<f", float(x)))[0]

def salu_trace(lines, init):
    R = dict(init); scc = [0]; out = []
    def val(t):
        t = t.strip()
        if t == "m0" or re.fullmatch(r"s\d+", t): return R.get(t)
        try: return int(t, 0) & 0xffffffff
        except ValueError: return None
    for l in lines:
        body = l.split(";")[0].strip()
        if not body or body.startswith(("@", ".")) or body.endswith(":"): continue
        parts = body.split(None, 1); op = parts[0]
        ops = [o.strip() for o in parts[1].split(",")] if len(parts) > 1 else []
        if op.startswith("buffer_") and ";tag=" in l:
            so = ops[-1].split()[0]
            out.append((l.split(";tag=")[1].strip(), R.get("m0") if body.endswith("lds") else None, val(so), body)); continue
        f = {"s_add_u32": lambda a, b: a + b, "s_sub_u32": lambda a, b: a - b, "s_xor_b32": lambda a, b: a ^ b, "s_lshl_b32": lambda a, b: a << b,
             "s_lshr_b32": lambda a, b: a >> b, "s_mul_i32": lambda a, b: a * b, "s_min_u32": min, "s_and_b32": lambda a, b: a & b, "s_or_b32": lambda a, b: a | b}
        if op in f:
            a, b = val(ops[1]), val(ops[2])
            R[ops[0]] = None if a is None or b is None else f[op](a, b) & 0xffffffff
            scc[0] = None
        elif op == "s_mov_b32": R[ops[0]] = val(ops[1])
        elif op == "s_cmp_lt_u32":
            a, b = val(ops[0]), val(ops[1]); scc[0] = None if a is None or b is None else int(a < b)
        elif op == "s_cselect_b32": R[ops[0]] = None if scc[0] is None else val(ops[1] if scc[0] else ops[2])
        elif op.startswith("s_") and ops and re.fullmatch(r"s\d+|m0", ops[0]) and not op.startswith("s_cmp"): R[ops[0]] = None
        elif op.startswith("v_readfirstlane"): R[ops[0]] = R.get("rfl")
    return out
```

```python
import sys, math
from asmlib import *
NAME = "recurrent_scan__gqa_block_cached__dense_activation_gelu__prompt"
M16 = "v_mfma_f32_16x16x32_bf16"
SMF = "v_smfmac_f32_16x16x64_bf16"

class Cfg:
    diag = False
    shift = 102.0
    SM0 = 12
    BAR = 112
    pvorder = "bshare"
    stflags = ""
    ldflags = ""
    D3 = 6
    rot = True
    force_fallback = False
    trace = None
    def __init__(self, **kw):
        for k, v in kw.items():
            assert hasattr(self, k), k
            setattr(self, k, v)

WS_O = 0
WS_H = 0x1000000
H_RT = 43 * 4096
WS_ST = 0x8000000
NS = 4
KSLOT = 16416; VCH = 4128; VSLOT = 4 * VCH
VBASE = NS * KSLOT
XBASE = KSLOT
WCH = 6176; WSLOT = 4 * WCH
WBASE = VBASE + VSLOT
CWBASE = WBASE + 3 * WSLOT
FLBASE = CWBASE + 768
LDS_A = FLBASE + 64
assert XBASE + 65536 <= WBASE and LDS_A <= 163840 and VBASE + NS * VSLOT <= LDS_A
VK, VV, VD, VIDX, VOA, VOB = 2, 3, 4, 5, 6, 7
SMA = 8
VT = 12
NEGM = 16; S0 = 32; P0 = 96; O0 = 128
VX0, VX1, VXR, VWQ, VW1, VWR, VCQ, VCF, VCW = 16, 17, 18, 19, 20, 21, 22, 23, 24
B1R = 26
CWA = 36; SX = 48; GR = 64; HA = 80
def S(par, qt, t=0): return S0 + par * 32 + qt * 8 + t * 4
def P(par, qt): return P0 + qt * 8 + par * 4
def O(dt, qt): return O0 + (dt * 4 + qt) * 4
def ACC(T, qt): return O0 + (T * 4 + qt) * 4 if T < 8 else HA + ((T - 8) * 4 + qt) * 4 if T < 10 else HA + 32 + ((T - 10) * 2 + qt) * 4
def Q(qt, ks): return (qt * 4 + ks) * 4
def KF(u, t, ks): return 64 + (u & 1) * 32 + (t * 4 + ks) * 4
def VF(u, dt): return 128 + (u & 1) * 32 + dt * 4
def LA(qt): return 192 + qt * 4
def XF(kb, qt, s): return 64 + (kb & 1) * 32 + qt * 8 + s * 4
def WF(n, s): return 128 + (n % 4) * 8 + s * 4
def CF(j, s): return 160 + j * 8 + s * 4
sK, sV, sWS, sX, sWQ, sF0, sF1, sB1 = 4, 8, 12, 16, 20, 24, 28, 32
sW, sHEAD, sQB, sPAR, sKM, sVM, sVO, sLOOP, sROT, sKO, sXM, sWM, sP0, sP1, sTRY, sSH = range(36, 52)
sT = 52
def srd(b): return f"s[{b}:{b+3}]"

def stamp(c, a, i):
    if c.diag: a(f"s_memtime s[{64+4*i}:{65+4*i}]\ns_memrealtime s[{66+4*i}:{67+4*i}]\ns_waitcnt lgkmcnt(0)")
def stamp_out(c, a, n, base, ws, wave):
    if not c.diag: return
    a(f"""s_lshl_b32 s{sT}, s2, 2
s_add_u32 s{sT}, s{sT}, s{wave}
s_lshl_b32 s{sT}, s{sT}, 7
s_add_u32 s{sT}, s{sT}, {base}
v_mov_b32 v1, 0""")
    for q in range(n):
        for e in range(4): a(f"v_mov_b32 v{12+e}, s{64+4*q+e}")
        a(f"buffer_store_dwordx4 v[12:15], v1, {srd(ws)}, s{sT} offen offset:{16*q}\ns_nop 1")

def mk_srd(a, d, lo, hi, off, size):
    if off is None: a(f"s_mov_b32 s{d}, s{lo}\ns_mov_b32 s{d+1}, s{hi}")
    else: a(f"s_add_u32 s{d}, s{lo}, {off}\ns_addc_u32 s{d+1}, s{hi}, 0")
    a(f"s_mov_b32 s{d+2}, {size}\ns_mov_b32 s{d+3}, 0x20000")

def setup_A(c):
    a = Asm()
    a(f"""s_load_dwordx8 s[72:79], s[0:1], 0
s_load_dwordx4 s[80:83], s[0:1], 48
s_load_dwordx2 s[84:85], s[0:1], 96
v_lshrrev_b32 v1, 6, v0
v_and_b32 v0, 63, v0
s_and_b32 s{sT}, s2, 7
v_readfirstlane_b32 s{sW}, v1
s_lshr_b32 s{sQB}, s2, 3
s_lshl_b32 s{sHEAD}, s{sT}, 2
s_lshr_b32 s{sT+1}, s{sQB}, 3
s_add_u32 s{sHEAD}, s{sHEAD}, s{sT+1}
s_and_b32 s{sQB}, s{sQB}, 7
s_and_b32 s{sPAR}, s{sHEAD}, 1
s_lshl_b32 s{sROT}, s{sT+1}, 1
s_xor_b32 s{sROT}, s{sROT}, s{sQB}
s_and_b32 s{sT}, s{sT}, 1
s_xor_b32 s{sROT}, s{sROT}, s{sT}""")
    if not c.rot: a(f"s_mov_b32 s{sROT}, 0")
    a(f"""s_lshr_b32 s{sT}, s{sHEAD}, 1
s_mul_i32 s{sT}, s{sT}, 3
s_add_u32 s{sP1}, s{sT}, 1
s_lshl_b32 s{sT+1}, s{sPAR}, 1
s_add_u32 s{sP0}, s{sT}, s{sT+1}
s_add_u32 s{sT+1}, s{sHEAD}, 11
s_cmp_lt_u32 s{sHEAD}, 22
s_cselect_b32 s{sP0}, s{sP0}, s{sT+1}
s_cselect_b32 s{sP1}, s{sP1}, 0
s_lshl_b32 s{sXM}, s{sW}, 13
s_add_u32 s{sXM}, s{sXM}, {XBASE}
s_mul_i32 s{sWM}, s{sW}, {WCH}
s_add_u32 s{sWM}, s{sWM}, {WBASE}
s_lshr_b32 s{sT}, s{sW}, 1
s_lshl_b32 s{sT}, s{sT}, 4
s_lshl_b32 s{sKM}, s{sW}, 12
s_add_u32 s{sKM}, s{sKM}, s{sT}
s_mul_i32 s{sVM}, s{sW}, {VCH}
s_add_u32 s{sVM}, s{sVM}, {VBASE}
s_mov_b32 s{sTRY}, 0
s_mov_b32 s{sSH}, {f2u(c.shift)}
v_and_b32 v12, 3, v0
v_bfe_u32 v13, v0, 2, 2
v_lshrrev_b32 v14, 4, v0
v_and_b32 v1, 1, v14
v_lshlrev_b32 v1, 1, v1
v_xor_b32 v1, v1, v12
v_lshlrev_b32 v1, 4, v1
v_lshrrev_b32 v15, 2, v0
v_lshl_add_u32 v{VX0}, v15, 10, v1
v_add_u32 v{VX1}, 0x4000, v{VX0}
s_lshl_b32 s{sT}, s{sW}, 3
v_add_u32 v1, s{sT}, v13
v_lshlrev_b32 v15, 4, v12
v_lshl_add_u32 v{VD}, v14, 6, v15
v_lshl_add_u32 v{VWQ}, v1, 13, v{VD}
v_lshrrev_b32 v{VW1}, 5, v0
v_lshl_add_u32 v1, v{VW1}, 5, v1
v_and_b32 v{VW1}, 1, v14
v_lshl_add_u32 v1, v{VW1}, 2, v1
v_mul_u32_u24 v1, 2752, v1
v_add_u32 v{VW1}, v1, v15
s_waitcnt lgkmcnt(0)""")
    a(f"""s_lshl_b32 s{sT}, s{sQB}, 2
s_add_u32 s{sT}, s{sT}, s{sW}
s_lshl_b32 s{sT}, s{sT}, 16""")
    mk_srd(a, sX, 72, 73, f"s{sT}", 65536)
    a(f"s_lshl_b32 s{sT}, s{sHEAD}, 8")
    mk_srd(a, sWQ, 78, 79, f"s{sT}", 512 * 8192 - 8192 + 256)
    a(f"s_lshl_b32 s{sT}, s{sP0}, 6")
    mk_srd(a, sF0, 80, 81, f"s{sT}", 512 * 2752 - 2752 + 64)
    a(f"s_lshl_b32 s{sT}, s{sP1}, 6")
    mk_srd(a, sF1, 80, 81, f"s{sT}", 512 * 2752 - 2752 + 64)
    a(f"s_cmp_lt_u32 s{sHEAD}, 22\ns_cselect_b32 s{sF1+2}, s{sF1+2}, 0")
    return a.lines

def setup_A2(c):
    a = Asm()
    a(f"s_lshl_b32 s{sT}, s{sHEAD}, 19")
    mk_srd(a, sK, 74, 75, f"s{sT}", 0x80000)
    mk_srd(a, sV, 76, 77, f"s{sT}", 0x80000)
    mk_srd(a, sWS, 84, 85, None, 0x10000000)
    mk_srd(a, sB1, 82, 83, None, 2752)
    a(f"""; K/V DMA voffset: w*4096 + rk*256 + u*64 + c2*16
v_lshl_add_u32 v{VD}, v13, 8, v{VD}
s_lshl_b32 s{sT}, s{sW}, 12
v_add_u32 v{VD}, s{sT}, v{VD}
v_and_b32 v1, 1, v13
v_lshlrev_b32 v1, 1, v1
v_xor_b32 v1, v1, v14
v_lshlrev_b32 v1, 4, v1
v_and_b32 v15, 15, v0
v_lshl_add_u32 v1, v15, 6, v1
v_add_u32 v{VXR}, s{sXM}, v1
v_lshlrev_b32 v{VCW}, 2, v15
v_lshlrev_b32 v1, 3, v12
v_lshl_add_u32 v1, v13, 6, v1
v_mul_u32_u24 v{VWR}, {WCH}, v14
v_add3_u32 v{VWR}, v{VWR}, v1, 0
v_add_u32 v{VWR}, {WBASE}, v{VWR}
v_mul_u32_u24 v{VV}, {VCH}, v14
v_add3_u32 v{VV}, v{VV}, v1, 0
v_add_u32 v{VV}, {VBASE}, v{VV}
s_lshl_b32 s{sT}, s{sW}, 8
v_add_u32 v{VCQ}, s{sT}, v{VWR}
s_lshr_b32 s{sT}, s{sW}, 1
s_lshl_b32 s{sT}, s{sT}, 10
s_and_b32 s{sT+1}, s{sW}, 1
s_lshl_b32 s{sT+1}, s{sT+1}, 5
s_add_u32 s{sT}, s{sT}, s{sT+1}
v_add_u32 v{VCF}, s{sT}, v{VWR}
v_lshrrev_b32 v1, 1, v13
v_lshlrev_b32 v1, 4, v1
v_lshl_add_u32 v1, v13, 12, v1
v_lshl_add_u32 v1, v12, 6, v1
v_and_b32 v{VK}, 1, v14
v_lshl_add_u32 v1, v{VK}, 5, v1
v_lshrrev_b32 v{VK}, 1, v14
v_lshl_add_u32 v{VK}, v{VK}, 4, v1
s_lshl_b32 s{sT}, s{sPAR}, 11
v_lshlrev_b32 v1, 4, v0
v_add_u32 v{VOA}, s{sT}, v1
v_xor_b32 v{VOB}, 0x800, v{VOA}
; row-sum operand: ones in rows 0,1 mod 4; index picks k%4 in (0,1) / (2,3)
v_cmp_gt_u32 vcc, 2, v12
v_mov_b32 v1, 0x3f803f80
v_cndmask_b32 v{SMA}, 0, v1, vcc
v_cndmask_b32 v{SMA+1}, 0, v1, vcc
v_cndmask_b32 v{SMA+2}, 0, v1, vcc
v_cndmask_b32 v{SMA+3}, 0, v1, vcc
v_cmp_eq_u32 vcc, 1, v12
v_mov_b32 v1, 0x44444444
v_mov_b32 v15, 0xeeeeeeee
v_cndmask_b32 v{VIDX}, v1, v15, vcc
v_lshlrev_b32 v1, 3, v14
s_lshl_b32 s{sT}, s{sP0}, 6
s_lshl_b32 s{sT+1}, s{sP1}, 6
buffer_load_dwordx2 {vr(B1R,2)}, v1, {srd(sB1)}, s{sT} offen
buffer_load_dwordx2 {vr(B1R+2,2)}, v1, {srd(sB1)}, s{sT} offen offset:32
buffer_load_dwordx2 {vr(B1R+4,2)}, v1, {srd(sB1)}, s{sT+1} offen
buffer_load_dwordx2 {vr(B1R+6,2)}, v1, {srd(sB1)}, s{sT+1} offen offset:32""")
    for r in list(range(CWA, CWA + 12)) + list(range(SX, SX + 16)): a(f"v_mov_b32 v{r}, 0")
    return a.lines

def dma_x(kb):
    A, B = sT + 2, sT + 3
    g = []
    for qt in range(4):
        for s in range(2):
            pre = []
            if qt == 0 and s == 0:
                pre += [f"s_xor_b32 s{A}, s{sROT}, {kb}", f"s_lshl_b32 s{A}, s{A}, 7", f"s_lshl_b32 s{B}, s{sPAR}, 15",
                        f"s_add_u32 s{A}, s{A}, s{B}", f"s_xor_b32 s{B}, s{A}, 0x8000"]
            pre.append(f"s_add_u32 m0, s{sXM}, {(kb & 1) * 32768 + (qt * 2 + s) * 1024 - s * 64}")
            g.append((pre, f"buffer_load_dwordx4 v{VX1 if qt & 1 else VX0}, {srd(sX)}, s{B if qt >= 2 else A} offen offset:{s*64} lds ;tag=x{kb}"))
    return g
def dma_w(kb):
    A, B, C = sT + 4, sT + 5, sT + 6
    base = (kb % 3) * WSLOT
    g = []
    for i in range(4):
        s, t = i >> 1, i & 1
        if i == 0:
            pre = [f"s_xor_b32 s{C}, s{sROT}, {kb}", f"s_lshl_b32 s{A}, s{C}, 19", f"s_mul_i32 s{C}, s{C}, {64*2752}", f"s_add_u32 m0, s{sWM}, {base}"]
            so = A
        else:
            pre = [f"s_add_u32 s{B}, s{A}, {(32*s+4*t)*8192 - i*1024}"]; so = B
        g.append((pre, f"buffer_load_dwordx4 v{VWQ}, {srd(sWQ)}, s{so} offen offset:{i*1024} lds ;tag=w{kb}"))
    g.append(([f"s_add_u32 m0, s{sWM}, {base+4096}"], f"buffer_load_dwordx4 v{VW1}, {srd(sF0)}, s{C} offen lds ;tag=w{kb}"))
    g.append(([f"s_add_u32 m0, s{sWM}, {base+5120}"], f"buffer_load_dwordx4 v{VW1}, {srd(sF1)}, s{C} offen lds ;tag=w{kb}"))
    return g
def dma_kv(kind, tile):
    A = sT + 7
    g = []
    for i in range(4):
        pre = [f"s_mov_b32 s{A}, {tile*16384}", f"s_add_u32 m0, s{sKM if kind=='K' else sVM}, {(tile%NS)*(KSLOT if kind=='K' else VSLOT)}"] if i == 0 else []
        g.append((pre, f"buffer_load_dwordx4 v{VD}, {srd(sK if kind=='K' else sV)}, s{A} offen offset:{i*1024} lds ;tag={kind}{tile}"))
    return g
def flat(g):
    out = []
    for pre, l in g: out += pre + [l]
    return out
def place_group(sc, g, lo, hi, sp=4):
    cur = lo
    for n_, (pre, l) in enumerate(g):
        start = cur
        h_ = hi - (len(g) - 1 - n_)
        gp = sc.place_mem(l, min(cur + max(len(pre), sp if n_ else 1), h_), h_)
        assert gp > start
        free = [x for x in range(start, gp) if not sc.sal[x]]
        free = [x for x in free if x > start or not any(m.startswith("buffer_") for m in sc.mem[x])]
        if len(free) >= len(pre):
            for x, s_ in zip(free[-len(pre):] if pre else [], pre): sc.sal[x].append(s_)
        else:
            sc.post[gp - 1] += pre
        cur = gp
    return cur

def x_reads(kb):
    return [f"ds_read_b128 {ar(XF(kb,qt,s),4)}, v{VXR} offset:{(kb&1)*32768+(qt*2+s)*1024}" for qt in range(4) for s in range(2)]
def w_off(kb, T, s, t):
    b = (kb % 3) * WSLOT
    return b + (2*s+t)*1024 + (T >> 1)*256 + (T & 1)*32 if T < 8 else b + 4096 + ((T-8) >> 1)*1024 + (2*s+t)*256 + (T & 1)*32
def w_reads(kb, T, n):
    return [f"ds_read_b64_tr_b16 {ar(WF(n,s)+2*t,2)}, v{VWR} offset:{w_off(kb,T,s,t)}" for s in range(2) for t in range(2)]
def c_reads(kb):
    out = []
    for j in range(3):
        for s in range(2):
            for t in range(2):
                if j < 2: out.append(f"ds_read_b64_tr_b16 {ar(CF(j,s)+2*t,2)}, v{VCQ} offset:{w_off(kb,j,s,t)}")
                else: out.append(f"ds_read_b64_tr_b16 {ar(CF(j,s)+2*t,2)}, v{VCF} offset:{w_off(kb,8,s,t)}")
    return out

def gemm1(c):
    L = []
    L += flat(dma_x(0)) + flat(dma_w(0)) + flat(dma_x(1))
    L += setup_A2(c)
    L += flat(dma_w(1)) + flat(dma_w(2))
    L += ["@waitvm x0"] + x_reads(0) + ["@waitvm w0 lgkm0", "s_barrier"]
    TORD = [0, 1, 2, 10, 3, 4, 5, 11, 6, 7, 8, 9]
    L += w_reads(0, TORD[0], 0) + w_reads(0, TORD[1], 1) + flat(dma_x(2))
    sc = Sched()
    first = {}; last = {}; start = {}; statg = {}
    for kb in range(8):
        start[kb] = sc.n()
        for n, T in enumerate(TORD):
            N = kb * 12 + n
            for qt in range(4 if T < 10 else 2):
                for s in range(2):
                    d = vr(ACC(T, qt), 4)
                    g = sc.add(f"{M16} {d}, {ar(WF(N,s),4)}, {ar(XF(kb,qt,s),4)}, {'0' if kb == 0 and s == 0 else d}")
                    first.setdefault(N, g); last[N] = g
        statg[kb] = sc.n()
        for qt in range(4):
            for s in range(2):
                d = vr(GR + 4 * qt, 4)
                sc.add(f"{M16} {d}, {ar(XF(kb,qt,s),4)}, {ar(XF(kb,qt,s),4)}, {'0' if kb == 0 and s == 0 else d}")
            sc.add(f"{SMF} {vr(SX+4*qt,4)}, {vr(SMA,4)}, {ar(XF(kb,qt,0),8)}, v{VIDX}")
            if qt < 3: sc.add(f"{SMF} {vr(CWA+4*qt,4)}, {vr(SMA,4)}, {ar(CF(qt,0),8)}, v{VIDX}")
    start[8] = sc.n()
    bar = {kb: statg[kb - 1] - 2 for kb in range(1, 9)}
    bar[0] = -1
    for kb in range(8):
        if kb >= 1: sc.sal[bar[kb]] += [f"@waitvm w{kb} lgkm0", "s_barrier"]
        cur = bar[kb] + 1
        for n, T in enumerate(TORD):
            N = kb * 12 + n
            if N < 2: continue
            lo = max(cur, last[N - 4] if N >= 4 else 0)
            for l in w_reads(kb, T, N):
                cur = sc.place_mem(l, lo, min(first[N] - 5, bar[kb + 1] - 5)); lo = cur
    sc.sal[bar[8]] += ["s_waitcnt lgkmcnt(0)", "s_barrier"]
    for kb in range(8):
        cur = start[kb]
        if kb >= 1 and kb + 2 < 8: cur = place_group(sc, dma_w(kb + 2), start[kb], bar[kb + 1] - 30)
        if kb == 0: cur = place_group(sc, dma_kv("K", 0), cur, bar[1] - 30)
        if kb + 1 < 8:
            g = next(x for x in range(cur + 1, sc.n()) if not sc.sal[x])
            sc.sal[g].append(f"@waitvm x{kb+1}"); cur = g
            for l in x_reads(kb + 1): cur = sc.place_mem(l, cur, bar[kb + 1] - 5)
            xr_end = cur
        for l in c_reads(kb): cur = sc.place_mem(l, cur, bar[kb + 1] - 5)
        if kb + 3 < 8:
            g = next(x for x in range(max(cur, xr_end + 5), sc.n()) if not sc.sal[x])
            sc.sal[g].append(f"@waitlds {XF(kb+1,3,1)}")
            place_group(sc, dma_x(kb + 3), g, start[kb + 1] - 1)
        if kb == 7:
            cur = start[7]
            for kind, t in (("K", 1), ("V", 0), ("K", 2), ("K", 3)):
                cur = place_group(sc, dma_kv(kind, t), cur, start[8] - 1)
    print("gemm1 est cycles", sc.est(), file=sys.stderr)
    for l in sc.lines():
        if l.startswith("@waitlds"): L.append(f"v_nop ;dep a{l.split()[1]}".replace("v_nop ;dep", "@dep"))
        else: L.append(l)
    L += flat(dma_kv("V", 1)) + flat(dma_kv("V", 2))
    return L

def epi1(c):
    a = Asm()
    a(f"""s_lshl_b32 s{sT}, s{sW}, 7
s_add_u32 s{sT}, s{sT}, {CWBASE}
s_lshl_b32 s{sT+1}, s{sW}, 6
s_add_u32 s{sT+1}, s{sT+1}, {CWBASE+512}
v_add_u32 v{VCQ}, s{sT}, v{VCW}
v_add_u32 v{VCF}, s{sT+1}, v{VCW}
v_lshrrev_b32 v{VCW}, 4, v0
v_lshlrev_b32 v{VCW}, 4, v{VCW}
v_add_u32 v{VCW}, {CWBASE}, v{VCW}""")
    for r in range(4):
        m = sum(1 << (20 * g + r) for g in range(4))
        a(f"s_mov_b32 s{sT+2+2*r}, {m & 0xffffffff:#x}\ns_mov_b32 s{sT+3+2*r}, {m >> 32:#x}")
    for j in range(3): a(f"v_add_f32 v{CWA+4*j}, v{CWA+4*j}, v{CWA+4*j+1}")
    a(f"""ds_write_b32 v{VCQ}, v{CWA}
ds_write_b32 v{VCQ}, v{CWA+4} offset:64
ds_write_b32 v{VCF}, v{CWA+8}""")
    for qt in range(4):
        g = GR + 4 * qt
        a(f"v_cndmask_b32 v{g}, 0, v{g}, s[{sT+2}:{sT+3}]")
        for r in range(1, 4): a(f"v_cndmask_b32 v{g}, v{g}, v{g+r}, s[{sT+2+2*r}:{sT+3+2*r}]")
        a(f"v_add_f32 v{SX+4*qt}, v{SX+4*qt}, v{SX+4*qt+1}")
    a("s_waitcnt lgkmcnt(0)\ns_barrier")
    CWR = 36
    for sw in ("v_permlane32_swap_b32", "v_permlane16_swap_b32"):
        for qt in range(4): a(f"v_mov_b32 v{GR+4*qt+1}, v{GR+4*qt}")
        for qt in range(4): a(f"{sw} v{GR+4*qt}, v{GR+4*qt+1}")
        for qt in range(4): a(f"v_add_f32 v{GR+4*qt}, v{GR+4*qt}, v{GR+4*qt+1}")
    cs = math.log2(math.e) / math.sqrt(128.0)
    for qt in range(4):
        s_, g = SX + 4 * qt, GR + 4 * qt
        a(f"v_mul_f32 v{s_}, {f2u(-1/512)}, v{s_}")
        a(f"v_mul_f32 v{g}, {f2u(1/512)}, v{g}")
        a(f"v_fma_f32 v{g}, -v{s_}, v{s_}, v{g}")
        a(f"v_max_f32 v{g}, 0, v{g}")
        a(f"v_add_f32 v{g}, {f2u(1e-5)}, v{g}")
        a(f"v_rsq_f32 v{s_+3}, v{g}")
    for qt in range(4): a(f"v_mul_f32 v{SX+4*qt+1}, {f2u(cs)}, v{SX+4*qt+3}")
    def cw(T): return CWR + 4 * (T % 3)
    def rd(T): a(f"ds_read_b128 {vr(cw(T),4)}, v{VCW} offset:{T*64}")
    order = [8, 9, 10, 11, 0, 1, 2, 3, 4, 5, 6, 7]
    pos = {T: i for i, T in enumerate(order)}
    def cwb(T): return CWR + 4 * (pos[T] % 3)
    def rdn(i):
        if i < 12: a(f"ds_read_b128 {vr(CWR+4*(i%3),4)}, v{VCW} offset:{order[i]*64}")
    rdn(0); rdn(1); rdn(2)
    BF = GR
    for i in range(8):
        a(f"v_lshlrev_b32 v{BF+2*i}, 16, v{B1R+i}\nv_and_b32 v{BF+2*i+1}, 0xffff0000, v{B1R+i}")
    k1 = -2.0 * math.sqrt(2.0 / math.pi) * math.log2(math.e); k2 = k1 * 0.044715
    a(f"s_mov_b32 s{sT+2}, {f2u(k2)}\ns_mov_b32 s{sT+3}, {f2u(k1)}")
    kk = f"s[{sT+2}:{sT+3}]"
    for i, T in enumerate(order):
        for qt in range(4 if T < 10 else 2):
            for h in range(2):
                r = vr(ACC(T, qt) + 2 * h, 2)
                a(f"v_pk_fma_f32 {r}, {vr(cwb(T)+2*h,2)}, {vr(SX+4*qt,2)}, {r} op_sel_hi:[1,0,1]")
                if T < 8: a(f"v_pk_mul_f32 {r}, {r}, {vr(SX+4*qt,2)} op_sel:[0,1] op_sel_hi:[1,1]")
                else: a(f"v_pk_fma_f32 {r}, {r}, {vr(SX+4*qt+2,2)}, {vr(BF+(T-8)*4+2*h,2)} op_sel:[0,1,0] op_sel_hi:[1,1,1]")
        rdn(i + 3)
    TQ = 16
    n = 0
    for qt in range(4):
        for ks in range(4):
            t = TQ + 4 * (n % 4); n += 1
            X, Y = ACC(2 * ks, qt), ACC(2 * ks + 1, qt)
            a(f"""v_cvt_pk_bf16_f32 v{t}, v{X}, v{X+1}
v_cvt_pk_bf16_f32 v{t+2}, v{Y}, v{Y+1}
v_cvt_pk_bf16_f32 v{t+1}, v{X+2}, v{X+3}
v_cvt_pk_bf16_f32 v{t+3}, v{Y+2}, v{Y+3}""")
            if n > 1:
                p = TQ + 4 * ((n - 2) % 4)
                for e in range(4): a(f"v_accvgpr_write_b32 a{(n-2)*4+e}, v{p+e}")
            a(f"v_permlane16_swap_b32 v{t}, v{t+2}\nv_permlane16_swap_b32 v{t+1}, v{t+3}")
    for e in range(4): a(f"v_accvgpr_write_b32 a{60+e}, v{TQ+12+e}")
    def gelu(regs, tb):
        prs = [(regs[i], tb + i) for i in range(0, len(regs), 2)]
        for r, t in prs: a(f"v_pk_mul_f32 {vr(t,2)}, {vr(r,2)}, {vr(r,2)}")
        for r, t in prs: a(f"v_pk_fma_f32 {vr(t,2)}, {vr(t,2)}, {kk}, {kk} op_sel:[0,0,1] op_sel_hi:[1,0,1]")
        for r, t in prs: a(f"v_pk_mul_f32 {vr(t,2)}, {vr(t,2)}, {vr(r,2)}")
        for r, t in prs: a(f"v_exp_f32 v{t}, v{t}\nv_exp_f32 v{t+1}, v{t+1}")
        for r, t in prs: a(f"v_pk_add_f32 {vr(t,2)}, {vr(t,2)}, 1.0 op_sel_hi:[1,0]")
        for r, t in prs: a(f"v_rcp_f32 v{t}, v{t}\nv_rcp_f32 v{t+1}, v{t+1}")
        for r, t in prs: a(f"v_pk_mul_f32 {vr(t,2)}, {vr(t,2)}, {vr(r,2)}")
        for i, (r, t) in enumerate(prs): a(f"v_cvt_pk_bf16_f32 v{tb+8+i}, v{t}, v{t+1}")
    a(f"""s_lshl_b32 s{sT}, s{sQB}, 2
s_add_u32 s{sT}, s{sT}, s{sW}
s_mul_i32 s{sT}, s{sT}, {H_RT}
s_add_u32 s{sT}, s{sT}, {WS_H}
s_lshl_b32 s{sT+1}, s{sP1}, 12
s_add_u32 s{sT+1}, s{sT+1}, s{sT}
s_lshl_b32 s{sT+4}, s{sP0}, 12
s_add_u32 s{sT}, s{sT}, s{sT+4}
s_cmp_lt_u32 s{sHEAD}, 22
s_cselect_b32 s{sT+4}, 0, 0x10000000
v_add_u32 v{VT}, s{sT+4}, v{VOA}""")
    tb = O0
    for T0, nq in ((8, 4), (10, 2)):
        for qt in range(nq):
            regs_ = [ACC(T0, qt) + e for e in range(4)] + [ACC(T0 + 1, qt) + e for e in range(4)]
            gelu(regs_, tb)
            vo = VT if T0 == 10 else (VOA if qt < 2 else VOB)
            a(f"buffer_store_dwordx4 {vr(tb+8,4)}, v{vo}, {srd(sWS)}, s{sT if T0 == 8 else sT+1} offen offset:{(qt&1)*1024} {c.stflags} ;tag=hst")
            tb += 12
    return a.lines

def k_reads(u):
    slot = (u >> 1) % NS
    return [f"ds_read_b128 {ar(KF(u,t,ks),4)}, v{VK} offset:{slot*KSLOT + (2*(u&1)+t)*1024 + ks*256}" for t in range(2) for ks in range(4)]
def v_reads(u):
    slot = (u >> 1) % NS
    return [f"ds_read_b64_tr_b16 {ar(VF(u,dt)+2*t,2)}, v{VV} offset:{slot*VSLOT + (2*(u&1)+t)*1024 + (dt>>1)*256 + (dt&1)*32}" for dt in range(8) for t in range(2)]
def qk_mfmas(u, czero=False):
    par = u & 1
    return [f"{M16} {vr(S(par,qt,t),4)}, {ar(KF(u,t,ks),4)}, {ar(Q(qt,ks),4)}, " + (vr(S(par,qt,t),4) if ks else "0" if czero else vr(NEGM+qt*4,4))
            for qt in range(4) for t in range(2) for ks in range(4)]
def pv_mfmas(c, u):
    par = u & 1
    seq = [(dt, qt) for dt in range(8) for qt in range(4)] if c.pvorder == "ashare" else [(dt, qt) for qt in range(4) for dt in range(8)]
    return [f"{M16} {vr(O(dt,qt),4)}, {ar(VF(u,dt),4)}, {vr(P(par,qt),4)}, " + (vr(O(dt,qt),4) if u else "0") for dt, qt in seq]
def sm_ops(u, n):
    par = u & 1; e = n // 2
    if n < 0 or e >= 32: return []
    qt = e // 8; r = S(par, qt) + e % 8
    if n % 2 == 0: return [f"v_exp_f32 v{r}, v{r}"]
    return [f"v_cvt_pk_bf16_f32 v{P(par,qt)+(e%8)//2}, v{r-1}, v{r}"] if e % 2 else []

def attention(c):
    a = Asm()
    a("@waitvm K0")
    for l in k_reads(0) + k_reads(1): a(l)
    for r in range(16): a(f"v_accvgpr_write_b32 a{LA(0)+r}, 0")
    a(f"s_mov_b32 s{sVO}, {(NS-1)*16384}")
    for l in qk_mfmas(0, czero=True): a(l)
    T = P0
    a(f"s_cmp_lg_u32 s{sTRY}, 0\ns_cbranch_scc1 L_have_max")
    a("s_nop 4")
    for qt in range(4):
        b = S(0, qt)
        a(f"v_max3_f32 v{T+qt}, v{b}, v{b+1}, v{b+2}\nv_max3_f32 v{T+qt}, v{T+qt}, v{b+3}, v{b+4}\nv_max3_f32 v{T+qt}, v{T+qt}, v{b+5}, v{b+6}\nv_max_f32 v{T+qt}, v{T+qt}, v{b+7}")
    for sw in ("v_permlane32_swap_b32", "v_permlane16_swap_b32"):
        for qt in range(4): a(f"v_mov_b32 v{T+4+qt}, v{T+qt}")
        for qt in range(4): a(f"{sw} v{T+qt}, v{T+4+qt}")
        for qt in range(4): a(f"v_max_f32 v{T+qt}, v{T+qt}, v{T+4+qt}")
    for qt in range(4): a(f"v_add_f32 v{T+qt}, s{sSH}, v{T+qt}")
    for qt in range(4):
        for k in range(4): a(f"v_sub_f32 v{NEGM+qt*4+k}, 0, v{T+qt}")
    a("L_have_max:\ns_nop 7")
    for qt in range(4):
        for k in range(0, 8, 2): a(f"v_pk_add_f32 {vr(S(0,qt)+k,2)}, {vr(S(0,qt)+k,2)}, {vr(NEGM+qt*4,2)}")
    head = a.lines
    G0 = c.BAR + 1 - 128
    pre = []
    for n in range(0, G0 + 64 - c.SM0): pre += sm_ops(0, n)
    head += pre
    sc = Sched(); idx = {}
    for G in range(G0, 32 * 128):
        I, g = divmod(G, 128); ph, k = divmod(g, 32)
        u = 2 * I + (1, 0, 2, 1)[ph]
        m = None
        if ph in (0, 2):
            if 1 <= u <= 63: m = qk_mfmas(u)[k]
        elif u >= 0: m = pv_mfmas(c, u)[k]
        idx[G] = sc.add(m)
        for uu in (2 * I, 2 * I + 1, 2 * I + 2):
            if 0 <= uu <= 63: sc.valu[idx[G]] += sm_ops(uu, G - (64 * (uu - 1) + c.SM0))
        q = g - (c.SM0 + 20)
        if I >= 0 and q >= 0 and q % 16 == 0 and q // 16 < 4:
            qt = q // 16
            sc.add(f"{SMF} {ar(LA(qt),4)}, {vr(SMA,4)}, {vr(P(0,qt),8)}, v{VIDX}")
    for k in range(32):
        b = 128 * (k - 1) + c.BAR
        nb = b + 128
        lo = idx[b + 1]
        hi = idx[nb] - 5 if k < 31 else sc.n() - 1
        B = 128 * k
        dm = []
        if k + NS - 1 <= 31:
            dm.append([([f"s_add_u32 m0, s{sVM}, {((k+NS-1)%NS)*VSLOT}"] if i == 0 else [], f"buffer_load_dwordx4 v{VD}, {srd(sV)}, s{sVO} offen offset:{i*1024} lds ;tag=V{k+NS-1}") for i in range(4)])
            dm.append([([f"s_add_u32 s{sVO}, s{sVO}, 0x4000", f"s_min_u32 s{sKO}, s{sVO}, {31*16384}", f"s_add_u32 m0, s{sKM}, {(k%NS)*KSLOT}"] if i == 0 else [],
                        f"buffer_load_dwordx4 v{VD}, {srd(sK)}, s{sKO} offen offset:{i*1024} lds ;tag=K{k+NS}") for i in range(4)])
            place_group(sc, dm[0], idx[B + 40], idx[nb] - 1)
            place_group(sc, dm[1], idx[B + 88], idx[nb] - 1)
        cur = lo
        for l in v_reads(2 * k): cur = sc.place_mem(l, cur, idx[B + 32] - 5)
        if k < 31:
            for l in k_reads(2 * k + 2): cur = sc.place_mem(l, cur, idx[B + 64] - 5)
        cur = max(cur, idx[B])
        for l in v_reads(2 * k + 1): cur = sc.place_mem(l, cur, idx[B + 96] - 5)
        if k < 31:
            cur = max(cur, idx[B + 32])
            for l in k_reads(2 * k + 3): cur = sc.place_mem(l, cur, hi)
            sc.sal[idx[nb]] += [f"@waitvm V{k+1},K{k+2} lgkm0", "s_barrier", f"@seg {k+1}"]
    print("attention est cycles", sc.est(), file=sys.stderr)
    return head + ["@waitvm K1,V0 lgkm0", "s_barrier", "@seg 0"] + sc.lines()

def epi2(c):
    a = Asm()
    L0 = VT; T = P0
    a("s_setreg_imm32_b32 hwreg(HW_REG_MODE, 4, 2), 3")
    for qt in range(4):
        a(f"v_accvgpr_read_b32 v{L0+qt}, a{LA(qt)}\nv_accvgpr_read_b32 v{T+qt}, a{LA(qt)+1}")
    for qt in range(4): a(f"v_add_f32 v{L0+qt}, v{L0+qt}, v{T+qt}")
    for qt in range(4): a(f"v_rcp_f32 v{NEGM+2*qt}, v{L0+qt}")
    a(f"""s_lshl_b32 s{sT}, s{sQB}, 2
s_add_u32 s{sT}, s{sT}, s{sW}
s_lshl_b32 s{sT}, s{sT}, 19
s_lshl_b32 s{sT+1}, s{sHEAD}, 14
s_add_u32 s{sT}, s{sT}, s{sT+1}
s_add_u32 s{sT+1}, s{sT}, 4096
s_add_u32 s{sT+2}, s{sT}, 8192
s_add_u32 s{sT+3}, s{sT}, 12288""")
    n = 0
    for qt in range(4):
        mx = T + 4 + qt
        for m in range(4):
            b = S0 + (n % 8) * 4; n += 1
            src = [O(2*m, qt) + e for e in range(4)] + [O(2*m+1, qt) + e for e in range(4)]
            for i in range(0, 8, 2):
                r = src[i]
                a(f"v_maximum3_f32 v{mx}, |v{r}|, |v{r+1}|, " + (f"v{mx}" if m or i else "0"))
                a(f"v_pk_mul_f32 {vr(r,2)}, {vr(r,2)}, {vr(NEGM+2*qt,2)} op_sel_hi:[1,0]")
            for e in range(4): a(f"v_cvt_pk_bf16_f32 v{b+e}, v{src[2*e]}, v{src[2*e+1]}")
            a(f"buffer_store_dwordx4 {vr(b,4)}, v{VOA if qt < 2 else VOB}, {srd(sWS)}, s{sT+m} offen offset:{(qt&1)*1024} {c.stflags} ;tag=ost")
    a(f"s_mov_b32 s{sT+4}, 0x100\ns_mov_b64 s[{sT+6}:{sT+7}], -1")
    for qt in range(4):
        for r in (L0 + qt, T + 4 + qt):
            a(f"v_cmp_class_f32 vcc, v{r}, s{sT+4}\ns_nop 0\ns_and_b64 s[{sT+6}:{sT+7}], s[{sT+6}:{sT+7}], vcc")
        a(f"v_cmp_class_f32 vcc, v{NEGM+2*qt}, s{sT+4}\ns_nop 0\ns_and_b64 s[{sT+6}:{sT+7}], s[{sT+6}:{sT+7}], vcc")
    a(f"""s_cmp_eq_u64 s[{sT+6}:{sT+7}], -1
s_cselect_b32 s{sT+4}, 0, 1""")
    if c.force_fallback: a(f"s_mov_b32 s{sT+4}, 1")
    a(f"""s_lshl_b32 s{sT+5}, s{sW}, 2
s_add_u32 s{sT+5}, s{sT+5}, {FLBASE}
v_mov_b32 v{T}, s{sT+5}
v_mov_b32 v{T+1}, s{sT+4}
ds_write_b32 v{T}, v{T+1}
v_mov_b32 v{T}, {FLBASE}
s_setreg_imm32_b32 hwreg(HW_REG_MODE, 4, 2), 0
s_waitcnt lgkmcnt(0)
s_barrier
ds_read_b128 {vr(T+4,4)}, v{T}
s_waitcnt lgkmcnt(0)
v_or3_b32 v{T+4}, v{T+4}, v{T+5}, v{T+6}
v_or_b32 v{T+4}, v{T+4}, v{T+7}
v_readfirstlane_b32 s{sT+4}, v{T+4}
s_andn2_b32 s{sT+4}, s{sT+4}, s{sTRY}
s_cmp_lg_u32 s{sT+4}, 0
s_cbranch_scc1 L_fallback""")
    return a.lines

def fallback(c):
    a = Asm()
    T = P0
    a(f"L_fallback:\ns_mov_b32 s{sTRY}, 1\ns_mov_b32 s{sLOOP}, 0")
    for qt in range(4): a(f"v_mov_b32 v{T+qt}, 0xff800000")
    a(f"""L_fb_loop:
s_waitcnt vmcnt(0) lgkmcnt(0)
s_barrier
s_mov_b32 m0, s{sKM}
s_nop 0""")
    for i in range(4): a(f"buffer_load_dwordx4 v{VD}, {srd(sK)}, s{sLOOP} offen offset:{i*1024} lds")
    a("s_waitcnt vmcnt(0)\ns_barrier")
    for l in k_reads(0): a(l)
    a("s_waitcnt lgkmcnt(0)")
    for l in k_reads(1): a(l)
    a("s_waitcnt lgkmcnt(0)")
    for l in qk_mfmas(0, True) + qk_mfmas(1, True): a(l)
    a("s_nop 7")
    for par in range(2):
        for qt in range(4):
            for k in range(0, 8, 2): a(f"v_max3_f32 v{T+qt}, v{T+qt}, v{S(par,qt)+k}, v{S(par,qt)+k+1}")
    a(f"s_add_u32 s{sLOOP}, s{sLOOP}, 0x4000\ns_cmp_lt_u32 s{sLOOP}, 0x80000\ns_cbranch_scc1 L_fb_loop")
    for sw in ("v_permlane32_swap_b32", "v_permlane16_swap_b32"):
        for qt in range(4): a(f"v_mov_b32 v{T+4+qt}, v{T+qt}")
        for qt in range(4): a(f"{sw} v{T+qt}, v{T+4+qt}")
        for qt in range(4): a(f"v_max_f32 v{T+qt}, v{T+qt}, v{T+4+qt}")
    for qt in range(4):
        for k in range(4): a(f"v_sub_f32 v{NEGM+qt*4+k}, 0, v{T+qt}")
    a("s_barrier")
    for kind, t in (("K", 0), ("K", 1), ("V", 0), ("K", 2), ("K", 3), ("V", 1), ("V", 2)):
        for l in flat(dma_kv(kind, t)): a(l)
    a("s_waitcnt vmcnt(0)\ns_barrier\ns_branch L_attn")
    return a.lines

def resolve_deps(lines):
    return [f"v_accvgpr_read_b32 v1, {l.split()[1]} ;dep" if l.startswith("@dep") else l for l in lines]

def kernel_A(c):
    L = [l.strip() for l in setup_A(c)]
    L += [l.strip() for l in gemm1(c)]
    L += ["@stamp 1"] + [l.strip() for l in epi1(c)]
    L += ["@stamp 2", "L_attn:"] + [l.strip() for l in attention(c)]
    L += ["@stamp 4"] + [l.strip() for l in epi2(c)]
    L = resolve_deps(L)
    L, _, _ = auto_wait(L)
    L = [l for l in L if not l.endswith(";dep")]
    L = fix_hazards(L)
    if c.trace:
        for t in salu_trace(L, {"s2": c.trace[0], "rfl": c.trace[1]}): print(t, file=sys.stderr)
    pos = {int(l.split()[1]): i for i, l in enumerate(L) if l.startswith("@seg")}
    strip = lambda ls: [l.split(";")[0].strip() for l in ls if not l.startswith("@")]
    seg = {k: strip(L[pos[k]:pos[k + 1]]) for k in range(31)}
    k0, k1 = 1, 29
    if seg[1] != seg[5]:
        for k in range(1, 5):
            assert len(seg[k]) == len(seg[k + 4])
            for x, y in zip(seg[k], seg[k + 4]):
                if x != y:
                    wx, wy = dict(_w.findall(x)), dict(_w.findall(y))
                    assert x.startswith("s_waitcnt") and all(int(wy.get(n, 99)) <= int(v) for n, v in wx.items()), (k, x, y)
    for k in range(5, k1 - 4): assert seg[k] == seg[k + 4], k
    body = sum((seg[k] for k in range(5, 9)), [])
    im = [i for i, l in enumerate(body) if l.startswith("v_mfma")]
    j = max(i for i, l in enumerate(body) if l.startswith(("s_add", "s_min", "s_mul", "s_xor", "s_lshl")))
    cand = [i for i in im if i > j and not body[i + 1].startswith("s_")]
    body.insert(cand[1] + 1, f"s_cmp_lg_u32 s{sLOOP}, 0"); body.insert(cand[0] + 1, f"s_sub_u32 s{sLOOP}, s{sLOOP}, 1")
    head = L[:pos[k0]]
    jb = max(i for i, l in enumerate(head) if l.startswith("v_mfma") and not head[i + 1].startswith("s_"))
    head.insert(jb + 1, f"s_mov_b32 s{sLOOP}, {(k1-k0)//4}")
    out = head + ["L_loop:"] + body + ["s_cbranch_scc1 L_loop"] + L[pos[k1]:]
    a = Asm()
    a("s_cmp_ge_u32 s2, 256\ns_cbranch_scc1 L_endA")
    stamp(c, a, 0)
    for l in out:
        if l.startswith("@stamp"): stamp(c, a, int(l.split()[1]))
        elif l.startswith("@seg 0"): stamp(c, a, 3)
        elif l.startswith("@"): continue
        else: a(l.split(";tag")[0].rstrip())
    if c.diag:
        a("s_waitcnt vmcnt(0)"); stamp(c, a, 5); stamp_out(c, a, 6, WS_ST, sWS, sW)
    a("L_endA:\ns_endpgm")
    for l in fix_hazards([l.strip() for l in fallback(c)]): a(l.split(";tag")[0].rstrip())
    return a.lines
import re
_w = re.compile(r"(vmcnt|lgkmcnt)\((\d+)\)")

def kernel_B(c):
    D = c.D3
    sWO, sW2, sOO, sHH, sXX, sOUT, sB2 = 4, 8, 12, 16, 20, 24, 28
    sW_, sRT, sCT, sM, sRO, sKF, sKO_ = 36, 37, 38, 39, 40, 41, 42
    VDW, VL, VRE, VRO, VXO = 2, 3, 4, 5, 6
    XR = 8; B2R = 16
    AS, AF = 128, 192
    def acc(b, ct, qt): return b + (ct * 4 + qt) * 4
    def BF(n, qt): return (n % (D + 1)) * 16 + qt * 4
    def AFr(n, ct): return 192 + (n & 1) * 16 + ct * 4
    a = Asm()
    a(f"""s_load_dwordx2 s[72:73], s[0:1], 0
s_load_dwordx2 s[74:75], s[0:1], 32
s_load_dwordx4 s[76:79], s[0:1], 64
s_load_dwordx2 s[80:81], s[0:1], 80
s_load_dwordx2 s[82:83], s[0:1], 96
v_lshrrev_b32 v1, 6, v0
v_and_b32 v0, 63, v0
s_and_b32 s{sT}, s2, 7
v_readfirstlane_b32 s{sW_}, v1
s_lshr_b32 s{sCT}, s2, 3
s_lshr_b32 s{sT+1}, s{sCT}, 3
s_lshl_b32 s{sRT}, s{sT}, 2
s_add_u32 s{sRT}, s{sRT}, s{sT+1}
s_and_b32 s{sCT}, s{sCT}, 7
s_lshl_b32 s{sRO}, s{sT+1}, 1
s_xor_b32 s{sRO}, s{sRO}, s{sCT}""")
    if not c.rot: a(f"s_mov_b32 s{sRO}, 0")
    a(f"""s_mul_i32 s{sM}, s{sW_}, {(D+1)*4096}
s_mul_i32 s{sKF}, s{sW_}, 11
s_lshl_b32 s{sKO_}, s{sW_}, 5
v_and_b32 v12, 3, v0
v_bfe_u32 v13, v0, 2, 2
v_lshrrev_b32 v14, 4, v0
v_and_b32 v1, 1, v14
v_lshlrev_b32 v1, 1, v1
v_xor_b32 v1, v1, v12
v_lshlrev_b32 v1, 4, v1
v_lshrrev_b32 v15, 5, v0
v_lshl_add_u32 v1, v15, 6, v1
v_bfe_u32 v15, v0, 2, 3
v_lshl_add_u32 v{VDW}, v15, 10, v1
v_lshlrev_b32 v{VL}, 4, v0
v_lshrrev_b32 v1, 1, v14
v_lshlrev_b32 v1, 10, v1
v_and_b32 v15, 1, v14
v_lshl_add_u32 v1, v15, 8, v1
v_lshl_add_u32 v1, v15, 5, v1
v_lshl_add_u32 v1, v13, 6, v1
v_lshl_add_u32 v1, v12, 3, v1
v_add_u32 v{VRE}, s{sM}, v1
v_xor_b32 v{VRO}, 32, v{VRE}
v_and_b32 v1, 15, v0
v_lshlrev_b32 v1, 10, v1
v_lshl_add_u32 v1, v14, 3, v1
s_lshl_b32 s{sT}, s{sW_}, 14
v_add_u32 v{VXO}, s{sT}, v1
s_waitcnt lgkmcnt(0)
s_lshl_b32 s{sT}, s{sCT}, 7""")
    mk_srd(a, sWO, 74, 75, f"s{sT}", 4096 * 1024 - 1024 + 128)
    mk_srd(a, sW2, 76, 77, f"s{sT}", 1376 * 1024 - 1024 + 128)
    mk_srd(a, sB2, 78, 79, f"s{sT}", 128)
    a(f"s_lshl_b32 s{sT+1}, s{sRT}, 16\ns_add_u32 s{sT}, s{sT}, s{sT+1}")
    mk_srd(a, sXX, 72, 73, f"s{sT}", 65536 - 1024 + 128)
    mk_srd(a, sOUT, 80, 81, f"s{sT}", 65536 - 1024 + 128)
    a(f"s_lshl_b32 s{sT}, s{sRT}, 19")
    mk_srd(a, sOO, 82, 83, f"s{sT}", 0x80000)
    a(f"s_mul_i32 s{sT}, s{sRT}, {H_RT}\ns_add_u32 s{sT}, s{sT}, {WS_H}")
    mk_srd(a, sHH, 82, 83, f"s{sT}", H_RT)
    L = [l.strip() for l in a.lines]
    NST = 43
    def loads(n):
        A, B, C = sT + 2, sT + 3, sT + 4
        g = []
        if n < 11:
            if n < 8: pre = [f"s_xor_b32 s{C}, s{sRO}, {n}", f"s_add_u32 s{C}, s{C}, s{sKF}"]
            else: pre = [f"s_add_u32 s{C}, s{sKF}, {n}"]
            w, o = sW2, sHH
            if n == 10:
                pre += [f"s_cmp_lt_u32 s{C}, 43", f"s_cselect_b32 s{sW2+2}, s{sW2+2}, 0", f"s_min_u32 s{C}, s{C}, 42"]
        else:
            pre = [f"s_xor_b32 s{C}, s{sRO}, {n-11}", f"s_add_u32 s{C}, s{C}, s{sKO_}"]
            w, o = sWO, sOO
        pre += [f"s_lshl_b32 s{A}, s{C}, 15", f"s_lshl_b32 s{C}, s{C}, 12", f"s_add_u32 m0, s{sM}, {(n%(D+1))*4096}"]
        for i in range(4):
            if i: pre = [f"s_add_u32 s{A}, s{A}, 7168"]
            g.append((pre, f"buffer_load_dwordx4 v{VDW}, {srd(w)}, s{A} offen offset:{i*1024} lds ;tag=w{n}"))
        for qt in range(4):
            g.append(([], f"buffer_load_dwordx4 {ar(BF(n,qt),4)}, v{VL}, {srd(o)}, s{C} offen offset:{qt*1024} {c.ldflags}"))
        return g
    def reads(n):
        return [f"ds_read_b64_tr_b16 {ar(AFr(n,ct)+2*t,2)}, v{VRO if ct&1 else VRE} offset:{(n%(D+1))*4096 + t*2048 + (ct>>1)*512}" for ct in range(4) for t in range(2)]
    for n in range(D): L += flat(loads(n))
    L += [f"v_lshlrev_b32 v1, 3, v14"]
    for ct in range(4):
        L.append(f"buffer_load_dwordx2 {vr(XR+2*ct,2)}, v{VXO}, {srd(sXX)}, 0 offen offset:{ct*32}")
        L.append(f"buffer_load_dwordx2 {vr(B2R+2*ct,2)}, v1, {srd(sB2)}, 0 offen offset:{ct*32}")
    L += ["@stamp 1", "@waitvm w0"] + reads(0)
    sc = Sched()
    for n in range(NST):
        b = AF if n < 11 else AS
        st = sc.n()
        for ct in range(4):
            for qt in range(4):
                d = vr(acc(b, ct, qt), 4)
                sc.add(f"{M16} {d}, {ar(AFr(n,ct),4)}, {ar(BF(n,qt),4)}, {'0' if n in (0, 11) else d}")
    for n in range(NST):
        st = 16 * n
        if n + 1 < NST:
            sc.sal[st].append(f"@waitvm w{n+1}")
            for i, l in enumerate(reads(n + 1)): sc.mem[st + i].append(l)
        if n + D < NST:
            g = loads(n + D)
            sc.sal[st + 1] += g[0][0][:-5] if len(g[0][0]) > 5 else []
            for i, s_ in enumerate(g[0][0][-5:]): sc.sal[st + 2 + i].append(s_)
            for i, (pre, l) in enumerate(g):
                if i: sc.sal[st + 8 + i] += pre
                sc.mem[st + 8 + i].append(l)
    L += sc.lines()
    L.append("@stamp 2")
    a = Asm()
    a(f"""s_barrier
s_lshl_b32 s{sT}, s{sW_}, 13
v_add_u32 v{VRE}, s{sT}, v{VL}
s_lshl_b32 s{sT}, s{sW_}, 15
v_add_u32 v{VRO}, s{sT}, v{VL}""")
    for qt in range(4):
        if qt == 2: a(f"v_add_u32 v{VRE}, 0x10000, v{VRE}")
        for si, b in enumerate((AF, AS)):
            for ct in range(4):
                a(f"ds_write_b128 v{VRE}, {vr(acc(b,ct,qt),4)} offset:{(qt&1)*32768 + si*4096 + ct*1024}")
    a("s_waitcnt lgkmcnt(0)\ns_barrier")
    R = 128
    for si in range(2):
        for w in range(4):
            for ct in range(4):
                a(f"ds_read_b128 {vr(R+si*64+w*16+ct*4,4)}, v{VRO} offset:{w*8192 + si*4096 + ct*1024}")
    XF_, BF_ = 32, 48
    for i in range(8):
        a(f"v_lshlrev_b32 v{XF_+2*i}, 16, v{XR+i}\nv_and_b32 v{XF_+2*i+1}, 0xffff0000, v{XR+i}")
        a(f"v_lshlrev_b32 v{BF_+2*i}, 16, v{B2R+i}\nv_and_b32 v{BF_+2*i+1}, 0xffff0000, v{B2R+i}")
    for w in range(4):
        for i in range(0, 16, 2): a(f"v_pk_add_f32 {vr(BF_+i,2)}, {vr(BF_+i,2)}, {vr(R+w*16+i,2)}")
    a(f"s_mov_b32 s{sT}, {f2u(-math.log2(math.e))}")
    G = 64
    for i in range(16): a(f"v_mul_f32 v{G+i}, s{sT}, v{BF_+i}")
    for i in range(16): a(f"v_exp_f32 v{G+i}, v{G+i}")
    for i in range(0, 16, 2): a(f"v_pk_add_f32 {vr(G+i,2)}, {vr(G+i,2)}, 1.0 op_sel_hi:[1,0]")
    for i in range(16): a(f"v_rcp_f32 v{G+i}, v{G+i}")
    for w in range(1, 4):
        for i in range(0, 16, 2): a(f"v_pk_add_f32 {vr(R+64+i,2)}, {vr(R+64+i,2)}, {vr(R+64+w*16+i,2)}")
    for i in range(0, 16, 2): a(f"v_pk_mul_f32 {vr(G+i,2)}, {vr(G+i,2)}, {vr(BF_+i,2)}")
    for i in range(0, 16, 2): a(f"v_pk_fma_f32 {vr(G+i,2)}, {vr(G+i,2)}, {vr(R+64+i,2)}, {vr(XF_+i,2)}")
    for i in range(8): a(f"v_cvt_pk_bf16_f32 v{XR+i}, v{G+2*i}, v{G+2*i+1}")
    for ct in range(4): a(f"buffer_store_dwordx2 {vr(XR+2*ct,2)}, v{VXO}, {srd(sOUT)}, 0 offen offset:{ct*32}")
    L += [l.strip() for l in a.lines]
    L, _, _ = auto_wait(L)
    L = fix_hazards(L)
    if c.trace:
        for t in salu_trace(L, {"s2": c.trace[0], "rfl": c.trace[1]}): print(t, file=sys.stderr)
    a = Asm()
    a("s_cmp_ge_u32 s2, 256\ns_cbranch_scc1 L_endB")
    stamp(c, a, 0)
    for l in L:
        if l.startswith("@stamp"): stamp(c, a, int(l.split()[1]) + 5)
        elif l.startswith("@"): continue
        else: a(l.split(";tag")[0].rstrip())
    if c.diag:
        a("s_waitcnt vmcnt(0)"); stamp(c, a, 1)
        mk_srd(a, sOO, 82, 83, None, 0x10000000)
        stamp_out(c, a, 8, WS_ST + 0x100000, sOO, sW_)
    a("L_endB:\ns_endpgm")
    return a.lines, max(4 * (D + 1) * 4096, 131072)

def gen(c):
    A = kernel_A(c); B, ldsB = kernel_B(c)
    a = Asm()
    a(f"; @launch kernel=attn_kernel grid=(256,1,1) block=(256,1,1) lds={LDS_A}")
    a(f"; @launch kernel=proj_kernel grid=(256,1,1) block=(256,1,1) lds={ldsB}")
    a('.amdgcn_target "amdgcn-amd-amdhsa--gfx950"\n.text')
    for name, body in (("attn_kernel", A), ("proj_kernel", B)):
        a(f".globl {name}\n.p2align 8\n.type {name},@function\n{name}:")
        a.lines += body
    a('.section .rodata,"a"\n.p2align 6')
    a(kdesc("attn_kernel", 512, 256)); a(".p2align 6"); a(kdesc("proj_kernel", 512, 256))
    return a.text()

if __name__ == "__main__":
    kw = {}
    for s in sys.argv[2:]:
        k, v = s.split("=", 1); kw[k] = eval(v)
    open(sys.argv[1], "w").write(gen(Cfg(**kw)))
```

```python
import re

class Asm:
    def __init__(self):
        self.lines = []
    def __call__(self, s):
        for ln in s.split("\n"):
            ln = ln.strip()
            if ln:
                self.lines.append(ln if ln.endswith(":") or ln.startswith(".") or ln.startswith(";") else "    " + ln)
    def text(self):
        return "\n".join(self.lines) + "\n"

def vr(b, n=1, k="v"):
    return f"{k}{b}" if n == 1 else f"{k}[{b}:{b+n-1}]"
def ar(b, n=1):
    return vr(b, n, "a")

def kdesc(name, nvgpr, accum, nsgpr=102):
    return f""".amdhsa_kernel {name}
  .amdhsa_next_free_vgpr {nvgpr}
  .amdhsa_next_free_sgpr {nsgpr}
  .amdhsa_accum_offset {accum}
  .amdhsa_group_segment_fixed_size 0
  .amdhsa_kernarg_size 104
  .amdhsa_user_sgpr_count 2
  .amdhsa_user_sgpr_kernarg_segment_ptr 1
  .amdhsa_system_sgpr_workgroup_id_x 1
.end_amdhsa_kernel"""

_reg = re.compile(r"\b([va])(?:(\d+)|\[(\d+):(\d+)\])")
def regs(tok):
    out = []
    for m in _reg.finditer(tok):
        k = m.group(1)
        if m.group(2) is not None: out.append((k, int(m.group(2))))
        else: out += [(k, i) for i in range(int(m.group(3)), int(m.group(4)) + 1)]
    return out

_sreg = re.compile(r"\b(?:s(\d+)|s\[(\d+):(\d+)\]|(vcc))")
def sregs(tok):
    out = set()
    for m in _sreg.finditer(tok):
        if m.group(1): out.add(int(m.group(1)))
        elif m.group(2): out |= set(range(int(m.group(2)), int(m.group(3)) + 1))
        else: out.add("vcc")
    return out

TRANS = ("v_exp_f32", "v_log_f32", "v_rcp_f32", "v_rsq_f32", "v_sqrt_f32", "v_sin_f32", "v_cos_f32")
def parse(line):
    line = line.split(";")[0].strip()
    if not line or line.endswith(":") or line.startswith((".", "@")): return None
    parts = line.split(None, 1)
    op = parts[0]; ops = [o.strip() for o in parts[1].split(",")] if len(parts) > 1 else []
    d = dict(op=op, line=line, w=[], r=[], kind="other", states=1)
    if op == "s_nop": d["states"] = int(ops[0], 0) + 1
    if op.startswith("v_smfmac"):
        d["kind"] = "mfma"; d["w"] = regs(ops[0]); d["A"] = regs(ops[1]) + regs(ops[3]); d["B"] = regs(ops[2]); d["C"] = regs(ops[0])
        d["r"] = d["A"] + d["B"] + d["C"]; d["passes"] = 8
    elif op.startswith("v_mfma"):
        d["kind"] = "mfma"; d["w"] = regs(ops[0]); d["A"] = regs(ops[1]); d["B"] = regs(ops[2]); d["C"] = regs(ops[3])
        d["r"] = d["A"] + d["B"] + d["C"]
        d["passes"] = 8 if "32x32x16" in op else 4 if "16x16x32" in op else 16
    elif op.startswith("v_"):
        d["kind"] = "valu"
        if op.startswith("v_cmp") or op.startswith("v_readfirstlane") or op.startswith("v_readlane"):
            d["r"] = sum((regs(o) for o in ops[1:]), [])
        else:
            d["w"] = regs(ops[0]); d["r"] = sum((regs(o) for o in ops[1:]), [])
            if op.startswith(("v_fmac", "v_dot2c", "v_permlane", "v_writelane")): d["r"] += d["w"]
            if op.startswith("v_permlane"): d["w"] = d["w"] + regs(ops[1])
        d["trans"] = op.startswith(TRANS)
        d["dot"] = op.startswith("v_dot")
    elif op.startswith("ds_read"):
        d["kind"] = "mem"; d["w"] = regs(ops[0]); d["r"] = regs(ops[1])
    elif op.startswith("ds_"):
        d["kind"] = "mem"; d["r"] = sum((regs(o) for o in ops), [])
    elif op.startswith(("buffer_load", "global_load")):
        d["kind"] = "mem"
        if " lds" in line or "_lds_" in op: d["r"] = sum((regs(o) for o in ops), [])
        else: d["w"] = regs(ops[0]); d["r"] = sum((regs(o) for o in ops[1:]), [])
    elif op.startswith(("buffer_store", "global_store", "buffer_atomic", "global_atomic")):
        d["kind"] = "mem"; d["r"] = sum((regs(o) for o in ops), []); d["store"] = True
        d["wide"] = "x4" in op or "x3" in op
        d["data"] = regs(ops[0]) if op.startswith("buffer") else regs(ops[1])
    return d

def check_hazards(lines, window=24, only_last=False):
    ins = [p for p in map(parse, lines) if p]
    probs = []
    for i, c in enumerate(ins):
        if only_last and i != len(ins) - 1: continue
        dist = 0
        for j in range(i - 1, max(-1, i - window - 1), -1):
            p = ins[j]
            need = 0
            pw, cr, cw = set(p["w"]), set(c["r"]), set(c["w"])
            if p["kind"] == "mfma":
                n = {4: 8, 8: 12, 16: 20}[p["passes"]]
                if c["kind"] == "mfma":
                    if pw & (set(c["A"]) | set(c["B"])): need = n
                    elif pw & set(c["C"]):
                        need = 0 if (p["w"] == c["C"] and p["passes"] == c["passes"]) else n - 2
                    elif pw & cw and p["w"] != c["w"]: need = n - 2
                elif c["kind"] in ("valu", "mem"):
                    if pw & (cr | cw): need = n
                if c["kind"] == "valu" and set(p["C"]) & cw: need = max(need, {4: 3, 8: 7, 16: 15}[p["passes"]])
            elif p["kind"] == "valu":
                if c["kind"] == "mfma" and pw & cr: need = 3 if p.get("dot") else 2
                if c["kind"] == "valu":
                    if p.get("trans") and pw & cr: need = max(need, 1)
                    if c["op"].startswith("v_permlane") and pw & cr: need = max(need, 2)
                    if c["op"].startswith(("v_readfirstlane", "v_readlane")) and pw & cr: need = max(need, 1)
                    if "dpp" in c["line"] or "row_" in c["line"] or "quad_perm" in c["line"]:
                        if pw & cr: need = max(need, 2)
                    if "sdwa" in p["op"] and "dst_sel:DWORD" not in p["line"] and pw & (cr | cw): need = max(need, 1)
                    if p.get("dot") and pw & (cr | cw):
                        same = p["op"] == c["op"]
                        srcs = c["line"].split(",")
                        if not (same and c["op"].startswith("v_dot2c") and not (pw & set(sum((regs(o) for o in srcs[1:]), [])))) and \
                           not (same and len(srcs) == 4 and not (pw & set(regs(srcs[1]) + regs(srcs[2])))):
                            need = max(need, 3)
                if c["kind"] == "mem" and p.get("dot") and pw & cr: need = max(need, 3)
            elif p["kind"] == "mem" and p.get("store") and p.get("wide"):
                if set(p["data"]) & cw: need = 2 if c["kind"] == "valu" else 1
            if p["op"].startswith("v_add_co") and c["op"].startswith("v_addc_co"): need = max(need, 2)
            if p["kind"] == "valu" and p["op"].startswith(("v_cmp", "v_readfirstlane", "v_readlane")):
                dst = sregs(p["line"].split(None, 1)[1].split(",")[0])
                src = sregs(",".join(c["line"].split(None, 1)[1].split(",")[(0 if c["kind"] == "mem" else 1):])) if " " in c["line"] else set()
                if dst & src:
                    if c["kind"] == "valu": need = max(need, 2)
                    elif c["kind"] == "mem": need = max(need, 5)
                    else: need = max(need, 1)
            if p["op"].startswith("s_") and "m0" in p["line"].split(",")[0] and c["kind"] == "mem" and (" lds" in c["line"] or "_lds_" in c["op"]):
                need = max(need, 1)
            if need > dist:
                probs.append(f"need {need} have {dist}: [{p['line']}] -> [{c['line']}]")
            dist += p["states"]
            if dist > 20: break
    return probs

def icost(l):
    op = l.split()[0]
    if op.startswith(TRANS) or op.startswith(("buffer_", "global_", "v_permlane")): return 8
    if op.startswith("s_"): return 0
    return 4

class Sched:
    def __init__(self):
        self.mf = []; self.sal = []; self.mem = []; self.valu = []; self.post = []
    def add(self, mfma):
        self.mf.append(mfma); self.sal.append([]); self.mem.append([]); self.valu.append([]); self.post.append([])
        return len(self.mf) - 1
    def n(self): return len(self.mf)
    def budget(self, g):
        m = self.mf[g]
        return 4 if (m and m.startswith("v_smfmac")) else 8
    def cost(self, g):
        c = sum(icost(l) for l in self.mem[g] + self.valu[g])
        if len(self.mem[g]) >= 2 and not self.valu[g]: c += 4
        return c + 4 * max(0, len([x for x in self.sal[g] if not x.startswith(('@stamp', '@seg')) and not x.endswith(':')]) - 1) + 4 * len(self.post[g])
    def place_mem(self, line, lo, hi=None):
        hi = self.n() - 1 if hi is None else min(hi, self.n() - 1)
        assert lo <= hi, (line, lo, hi)
        w = icost(line)
        for g in range(lo, hi + 1):
            if not self.mem[g] and self.cost(g) + w <= self.budget(g):
                self.mem[g].append(line); return g
        g = min(range(lo, hi + 1), key=lambda g: (len(self.mem[g]), self.cost(g) - self.budget(g), g))
        self.mem[g].append(line); return g
    def place_edf(self, ops):
        todo = {i: o for i, o in enumerate(ops)}
        for i, (l, lo, hi) in todo.items(): assert lo <= hi, (l, lo, hi)
        g0 = min(o[1] for o in ops); g1 = max(o[2] for o in ops)
        free = lambda g: not self.mem[g] and self.cost(g) + 4 <= self.budget(g)
        semi = lambda g: not self.mem[g]
        res = {}
        for g in range(g0, g1 + 1):
            while True:
                av = sorted((o[2], i) for i, o in todo.items() if o[1] <= g)
                if not av: break
                def short(pred):
                    for d in sorted({o[2] for o in todo.values()}):
                        if d >= av[0][0] and sum(1 for o in todo.values() if o[2] <= d) > sum(1 for x in range(g + 1, d + 1) if pred(x)): return True
                    return False
                if free(g) or (semi(g) and short(free)) or short(semi):
                    i = av[0][1]; self.mem[g].append(todo.pop(i)[0]); res[i] = g
                else: break
        assert not todo
        return res
    def est(self):
        return sum((max(16, 16 - self.budget(g) + self.cost(g)) if self.mf[g] else self.cost(g)) for g in range(self.n()))
    def lines(self):
        out = []
        for g in range(self.n()):
            if self.mf[g]: out.append(self.mf[g])
            out += self.sal[g] + self.mem[g] + self.valu[g] + self.post[g]
        return out

_wait = re.compile(r"(vmcnt|lgkmcnt)\((\d+)\)")
def auto_wait(lines, pend_lds=None, pend_vm=None):
    lds = list(pend_lds or []); vm = list(pend_vm or [])
    out = []
    def hoist(kind, k):
        pos = len(out); kk = k
        j = len(out) - 1
        while j >= 0:
            p = parse(out[j])
            if p is None or out[j].split()[0] in ("s_barrier", "s_cbranch_scc1", "s_cbranch_scc0", "s_branch"): break
            if p["kind"] == "mfma":
                pos = j + 1; k = kk; break
            isl = p["op"].startswith("ds_"); isv = p["op"].startswith(("buffer_", "global_"))
            if (kind == "lgkmcnt" and isl) or (kind == "vmcnt" and isv):
                kk -= 1
                if kk < 0: break
            if len(out) - j > 6: break
            j -= 1
        if pos < len(out) and out[pos].startswith("s_waitcnt") and kind not in out[pos]:
            out[pos] = out[pos] + f" {kind}({k})"
        elif pos < len(out) and out[pos].startswith("s_waitcnt"):
            old = int(dict(_wait.findall(out[pos]))[kind])
            out[pos] = out[pos].replace(f"{kind}({old})", f"{kind}({min(old,k)})")
        else:
            out.insert(pos, f"s_waitcnt {kind}({k})")
    for l in lines:
        if l.startswith("@waitvm"):
            parts = l.split(); tags = set(parts[1].split(","))
            idx = [i for i, e in enumerate(vm) if e[1] in tags]
            w = []
            if idx:
                k = len(vm) - 1 - max(idx); k = min(k, 62); w.append(f"vmcnt({k})"); vm = vm[len(vm) - k:] if k else []
            if len(parts) > 2: w.append("lgkmcnt(0)"); lds = []
            if w: out.append("s_waitcnt " + " ".join(w))
            continue
        p = parse(l)
        if p is None: out.append(l); continue
        if p["op"] == "s_waitcnt":
            for kind, k in _wait.findall(l):
                k = int(k)
                if kind == "vmcnt": vm = vm[len(vm) - k:] if 0 < k < len(vm) else ([] if k == 0 else vm)
                else: lds = lds[len(lds) - k:] if 0 < k < len(lds) else ([] if k == 0 else lds)
            out.append(l); continue
        touched = set(p["r"]) | set(p["w"])
        idx = [i for i, e in enumerate(lds) if e & touched]
        if idx:
            nm = 0; young = 0
            for q in reversed(out):
                if q.startswith(("v_mfma", "v_smfmac")):
                    nm += 1
                    if nm >= 7: break
                elif q.startswith("ds_"): young += 1
            k = min(len(lds) - 1 - max(idx), 14, young if nm >= 7 else 99); k = k; hoist("lgkmcnt", k); lds = lds[len(lds) - k:] if k else []
        idx = [i for i, e in enumerate(vm) if e[0] & touched]
        if idx:
            k = min(len(vm) - 1 - max(idx), 62); hoist("vmcnt", k); vm = vm[len(vm) - k:] if k else []
        if p["op"].startswith("ds_"): lds.append(set(p["w"]))
        elif p["op"].startswith(("buffer_", "global_")):
            m = re.search(r";tag=(\w+)", l)
            vm.append((set(p["w"]), m.group(1) if m else None))
        out.append(l)
    return out, lds, vm

def fix_hazards(lines):
    lines = list(lines)
    i = 0
    while i < len(lines):
        p = parse(lines[i])
        if p is None: i += 1; continue
        lo = max(0, i - 40)
        seg = lines[lo:i + 1]
        need = 0
        for pr in check_hazards(seg, only_last=True):
            m = re.match(r"need (\d+) have (\d+)", pr); need = max(need, int(m.group(1)) - int(m.group(2)))
        if need:
            lines.insert(i, f"s_nop {need-1}"); i += 1
        i += 1
    return lines

def f2u(x):
    import struct
    return "%#x" % struct.unpack("<I", struct.pack("<f", float(x)))[0]

def salu_trace(lines, init):
    R = dict(init); scc = [0]; out = []
    def val(t):
        t = t.strip()
        if t == "m0" or re.fullmatch(r"s\d+", t): return R.get(t)
        try: return int(t, 0) & 0xffffffff
        except ValueError: return None
    for l in lines:
        body = l.split(";")[0].strip()
        if not body or body.startswith(("@", ".")) or body.endswith(":"): continue
        parts = body.split(None, 1); op = parts[0]
        ops = [o.strip() for o in parts[1].split(",")] if len(parts) > 1 else []
        if op.startswith("buffer_") and ";tag=" in l:
            so = ops[-1].split()[0]
            out.append((l.split(";tag=")[1].strip(), R.get("m0") if body.endswith("lds") else None, val(so), body)); continue
        f = {"s_add_u32": lambda a, b: a + b, "s_sub_u32": lambda a, b: a - b, "s_xor_b32": lambda a, b: a ^ b, "s_lshl_b32": lambda a, b: a << b,
             "s_lshr_b32": lambda a, b: a >> b, "s_mul_i32": lambda a, b: a * b, "s_min_u32": min, "s_and_b32": lambda a, b: a & b, "s_or_b32": lambda a, b: a | b}
        if op in f:
            a, b = val(ops[1]), val(ops[2])
            R[ops[0]] = None if a is None or b is None else f[op](a, b) & 0xffffffff
            scc[0] = None
        elif op == "s_mov_b32": R[ops[0]] = val(ops[1])
        elif op == "s_cmp_lt_u32":
            a, b = val(ops[0]), val(ops[1]); scc[0] = None if a is None or b is None else int(a < b)
        elif op == "s_cselect_b32": R[ops[0]] = None if scc[0] is None else val(ops[1] if scc[0] else ops[2])
        elif op.startswith("s_") and ops and re.fullmatch(r"s\d+|m0", ops[0]) and not op.startswith("s_cmp"): R[ops[0]] = None
        elif op.startswith("v_readfirstlane"): R[ops[0]] = R.get("rfl")
    return out
```

```python
import sys, math
from asmlib import *
NAME = "recurrent_scan__gqa_block_cached__dense_activation_gelu__prompt"
M16 = "v_mfma_f32_16x16x32_bf16"
SMF = "v_smfmac_f32_16x16x64_bf16"

class Cfg:
    diag = False
    shift = 102.0
    SM0 = 12
    BAR = 113
    pvorder = "bshare"
    stflags = "sc1"
    ldflags = "sc1"
    NR = 14
    DO0 = 3
    DO = 5
    rot = 0
    rot2 = 7
    touch = True
    l2touch = True
    FPOS = (44, 92)
    VPOS = 8
    KPOS = 60
    RS = 0
    H31 = 3
    NB1 = 7
    force_fallback = False
    trace = None
    nostamp = ('issued', 'b1', 'b2', 'b7', 'stats', 'gelu', 'corr')
    codepf = 2
    def __init__(self, **kw):
        for k, v in kw.items():
            assert hasattr(self, k), k
            setattr(self, k, v)

WS_O = 0
WS_H = 0x1000000
H_RT = 43 * 4096
WS_FL = 0x1800000
WS_ST = 0x8000000
NS = 4
KSLOT = 16416; VCH = 4128; VSLOT = 4 * VCH
VBASE = NS * KSLOT
XBASE = KSLOT; XSLOT = 32832
WCH = 6176; WSLOT = 4 * WCH
WBASE = VBASE + VSLOT
CWBASE = WBASE + 3 * WSLOT
FLBASE = CWBASE + 768
LDS_A = FLBASE + 64
assert XBASE + XSLOT + 32768 <= WBASE and XBASE + XSLOT >= 3 * KSLOT and LDS_A <= 163840 and VBASE + NS * VSLOT <= LDS_A
VK, VV, VD, VIDX, VOA, VOB = 2, 3, 4, 5, 6, 7
SMA = 8
VT = 12
NEGM = 16; S0 = 32; P0 = 96; O0 = 128
VX0, VX1, VXR, VWQ, VW1, VWR, VCQ, VCF, VCW = 16, 17, 18, 19, 20, 21, 22, 23, 24
B1R = 26
CWA = 36; SX = 48; GR = 64; HA = 80
def S(par, qt, t=0): return S0 + qt * 8 + t * 4
def P(par, qt): return P0 + qt * 8 + par * 4
def O(dt, qt): return O0 + (dt * 4 + qt) * 4
def ACC(T, qt): return O0 + (T * 4 + qt) * 4 if T < 8 else HA + ((T - 8) * 4 + qt) * 4 if T < 10 else HA + 32 + ((T - 10) * 2 + qt) * 4
def Q(qt, ks): return (qt * 4 + ks) * 4
def KF(u, t, ks): return 64 + (u & 1) * 32 + (t * 4 + ks) * 4
def VF(u, dt): return 128 + (u & 1) * 32 + dt * 4
def LA(qt): return 192 + qt * 4
def XF(kb, qt, s): return 64 + (kb & 1) * 32 + qt * 8 + s * 4
def WF(n, s): return 128 + (n % 4) * 8 + s * 4
def CF(j, s): return 160 + j * 8 + s * 4
sK, sV, sWS, sX, sWQ, sF0, sF1, sB1 = 4, 8, 12, 16, 20, 24, 28, 32
sW, sHEAD, sQB, sPAR, sKM, sVM, sVO, sLOOP, sROT, sKO, sXM, sWM, sP0, sP1, sTRY, sSH = range(36, 52)
sT = 52
def srd(b): return f"s[{b}:{b+3}]"

RTREG = [86, 87, 88, 89, 93, 94, 95, 98, 99, 100, 101]
class Stamps:
    def __init__(self): self.names = []; self.rt = []
    def __call__(self, c, a, name, rt=False):
        if not c.diag or name in c.nostamp: return
        i = len(self.names); self.names.append(name); assert i < 22
        a(f"s_memtime s[96:97]\ns_waitcnt lgkmcnt(0)\ns_mov_b32 s{64+i}, s96")
        if rt:
            a(f"s_memrealtime s[96:97]\ns_waitcnt lgkmcnt(0)\ns_mov_b32 s{RTREG[len(self.rt)]}, s96"); self.rt.append(name)
    def out(self, c, a, base, ws, wave):
        if not c.diag: return
        a(f"""s_lshl_b32 s{sT}, s2, 2
s_add_u32 s{sT}, s{sT}, s{wave}
s_lshl_b32 s{sT}, s{sT}, 8
s_add_u32 s{sT}, s{sT}, {base}
v_mov_b32 v1, 0""")
        regs_ = [64 + i for i in range(len(self.names))] + RTREG[:len(self.rt)]
        for q, r in enumerate(regs_):
            a(f"v_mov_b32 v12, s{r}\nbuffer_store_dword v12, v1, {srd(ws)}, s{sT} offen offset:{4*q}")

def mk_srd(a, d, lo, hi, off, size):
    if off is None: a(f"s_mov_b32 s{d}, s{lo}\ns_mov_b32 s{d+1}, s{hi}")
    else: a(f"s_add_u32 s{d}, s{lo}, {off}\ns_addc_u32 s{d+1}, s{hi}, 0")
    a(f"s_mov_b32 s{d+2}, {size}\ns_mov_b32 s{d+3}, 0x20000")

def code_prefetch(c, a, label, nbytes):
    if not c.codepf: return
    a(f"""s_getpc_b64 s[90:91]
{label}_pc:
s_lshr_b32 s92, s2, 3
s_and_b32 s92, s92, {c.codepf - 1}
s_lshl_b32 s92, s92, 8
v_add_u32 v1, s92, v0
v_lshlrev_b32 v1, 7, v1
v_min_u32 v1, {nbytes}-{label}_pc, v1
global_load_dword v255, v1, s[90:91]""")

def setup_A(c):
    a = Asm()
    code_prefetch(c, a, "LA", "L_last")
    a(f"""s_load_dwordx8 s[72:79], s[0:1], 0
s_load_dwordx4 s[80:83], s[0:1], 48
s_load_dwordx2 s[84:85], s[0:1], 96
v_lshrrev_b32 v1, 6, v0
v_and_b32 v0, 63, v0
s_and_b32 s{sT}, s2, 7
v_readfirstlane_b32 s{sW}, v1
s_lshr_b32 s{sQB}, s2, 3
s_lshl_b32 s{sHEAD}, s{sT}, 2
s_lshr_b32 s{sT+1}, s{sQB}, 3
s_add_u32 s{sHEAD}, s{sHEAD}, s{sT+1}
s_and_b32 s{sQB}, s{sQB}, 7
s_and_b32 s{sPAR}, s{sHEAD}, 1
s_xor_b32 s{sROT}, s{sT+1}, s{sQB}""")
    a(f"s_and_b32 s{sROT}, s{sROT}, {c.rot}")
    a(f"""s_lshr_b32 s{sT}, s{sHEAD}, 1
s_mul_i32 s{sT}, s{sT}, 3
s_add_u32 s{sP1}, s{sT}, 1
s_lshl_b32 s{sT+1}, s{sPAR}, 1
s_add_u32 s{sP0}, s{sT}, s{sT+1}
s_add_u32 s{sT+1}, s{sHEAD}, 11
s_cmp_lt_u32 s{sHEAD}, 22
s_cselect_b32 s{sP0}, s{sP0}, s{sT+1}
s_cselect_b32 s{sP1}, s{sP1}, 0
s_lshl_b32 s{sXM}, s{sW}, 13
s_add_u32 s{sXM}, s{sXM}, {XBASE}
s_mul_i32 s{sWM}, s{sW}, {WCH}
s_add_u32 s{sWM}, s{sWM}, {WBASE}
s_lshr_b32 s{sT}, s{sW}, 1
s_lshl_b32 s{sT}, s{sT}, 4
s_lshl_b32 s{sKM}, s{sW}, 12
s_add_u32 s{sKM}, s{sKM}, s{sT}
s_mul_i32 s{sVM}, s{sW}, {VCH}
s_add_u32 s{sVM}, s{sVM}, {VBASE}
s_mov_b32 s{sTRY}, 0
s_mov_b32 s{sSH}, {f2u(c.shift)}
v_and_b32 v12, 3, v0
v_bfe_u32 v13, v0, 2, 2
v_lshrrev_b32 v14, 4, v0
v_and_b32 v1, 1, v14
v_lshlrev_b32 v1, 1, v1
v_xor_b32 v1, v1, v12
v_lshlrev_b32 v1, 4, v1
v_lshrrev_b32 v15, 2, v0
v_lshl_add_u32 v{VX0}, v15, 10, v1
v_add_u32 v{VX1}, 0x4000, v{VX0}
s_lshl_b32 s{sT}, s{sW}, 3
v_add_u32 v1, s{sT}, v13
v_lshlrev_b32 v15, 4, v12
v_lshl_add_u32 v{VD}, v14, 6, v15
v_lshl_add_u32 v{VWQ}, v1, 13, v{VD}
v_lshrrev_b32 v{VW1}, 5, v0
v_lshl_add_u32 v1, v{VW1}, 5, v1
v_and_b32 v{VW1}, 1, v14
v_lshl_add_u32 v1, v{VW1}, 2, v1
v_mul_u32_u24 v1, 2752, v1
v_add_u32 v{VW1}, v1, v15
s_waitcnt lgkmcnt(0)""")
    a(f"""s_lshl_b32 s{sT}, s{sQB}, 2
s_add_u32 s{sT}, s{sT}, s{sW}
s_lshl_b32 s{sT}, s{sT}, 16""")
    mk_srd(a, sX, 72, 73, f"s{sT}", 65536)
    a(f"s_lshl_b32 s{sT}, s{sHEAD}, 8")
    mk_srd(a, sWQ, 78, 79, f"s{sT}", 512 * 8192 - 8192 + 256)
    a(f"s_lshl_b32 s{sT}, s{sP0}, 6")
    mk_srd(a, sF0, 80, 81, f"s{sT}", 512 * 2752 - 2752 + 64)
    a(f"s_lshl_b32 s{sT}, s{sP1}, 6")
    mk_srd(a, sF1, 80, 81, f"s{sT}", 512 * 2752 - 2752 + 64)
    a(f"s_cmp_lt_u32 s{sHEAD}, 22\ns_cselect_b32 s{sF1+2}, s{sF1+2}, 0")
    return a.lines

def one_lane(a, v, t):
    a(f"""v_or_b32 v{t}, s{sW}, v0
v_cmp_eq_u32 vcc, 0, v{t}
v_mov_b32 v{t}, 0x10000000
v_cndmask_b32 v{v}, v{t}, 0, vcc""")

def setup_A2(c):
    a = Asm()
    a(f"s_lshl_b32 s{sT}, s{sHEAD}, 19")
    mk_srd(a, sK, 74, 75, f"s{sT}", 0x80000)
    mk_srd(a, sV, 76, 77, f"s{sT}", 0x80000)
    mk_srd(a, sWS, 84, 85, None, 0x10000000)
    mk_srd(a, sB1, 82, 83, None, 2752)
    a(f"""; K/V DMA voffset: w*4096 + rk*256 + u*64 + c2*16
v_lshl_add_u32 v{VD}, v13, 8, v{VD}
s_lshl_b32 s{sT}, s{sW}, 12
v_add_u32 v{VD}, s{sT}, v{VD}
v_and_b32 v1, 1, v13
v_lshlrev_b32 v1, 1, v1
v_xor_b32 v1, v1, v14
v_lshlrev_b32 v1, 4, v1
v_and_b32 v15, 15, v0
v_lshl_add_u32 v1, v15, 6, v1
v_add_u32 v{VXR}, s{sXM}, v1
v_lshlrev_b32 v{VCW}, 2, v15
v_lshlrev_b32 v1, 3, v12
v_lshl_add_u32 v1, v13, 6, v1
v_mul_u32_u24 v{VWR}, {WCH}, v14
v_add3_u32 v{VWR}, v{VWR}, v1, 0
v_add_u32 v{VWR}, {WBASE}, v{VWR}
v_mul_u32_u24 v{VV}, {VCH}, v14
v_add3_u32 v{VV}, v{VV}, v1, 0
v_add_u32 v{VV}, {VBASE}, v{VV}
s_lshl_b32 s{sT}, s{sW}, 8
v_add_u32 v{VCQ}, s{sT}, v{VWR}
s_lshr_b32 s{sT}, s{sW}, 1
s_lshl_b32 s{sT}, s{sT}, 10
s_and_b32 s{sT+1}, s{sW}, 1
s_lshl_b32 s{sT+1}, s{sT+1}, 5
s_add_u32 s{sT}, s{sT}, s{sT+1}
v_add_u32 v{VCF}, s{sT}, v{VWR}
v_lshrrev_b32 v1, 1, v13
v_lshlrev_b32 v1, 4, v1
v_lshl_add_u32 v1, v13, 12, v1
v_lshl_add_u32 v1, v12, 6, v1
v_and_b32 v{VK}, 1, v14
v_lshl_add_u32 v1, v{VK}, 5, v1
v_lshrrev_b32 v{VK}, 1, v14
v_lshl_add_u32 v{VK}, v{VK}, 4, v1
s_lshl_b32 s{sT}, s{sPAR}, 11
v_lshlrev_b32 v1, 4, v0
v_add_u32 v{VOA}, s{sT}, v1
v_xor_b32 v{VOB}, 0x800, v{VOA}
; row-sum operand: ones in rows 0,1 mod 4; index picks k%4 in (0,1) / (2,3)
v_cmp_gt_u32 vcc, 2, v12
v_mov_b32 v1, 0x3f803f80
v_cndmask_b32 v{SMA}, 0, v1, vcc
v_cndmask_b32 v{SMA+1}, 0, v1, vcc
v_cndmask_b32 v{SMA+2}, 0, v1, vcc
v_cndmask_b32 v{SMA+3}, 0, v1, vcc
v_cmp_eq_u32 vcc, 1, v12
v_mov_b32 v1, 0x44444444
v_mov_b32 v15, 0xeeeeeeee
v_cndmask_b32 v{VIDX}, v1, v15, vcc
v_lshlrev_b32 v1, 3, v14
s_lshl_b32 s{sT}, s{sP0}, 6
s_lshl_b32 s{sT+1}, s{sP1}, 6
buffer_load_dwordx2 {vr(B1R,2)}, v1, {srd(sB1)}, s{sT} offen
buffer_load_dwordx2 {vr(B1R+2,2)}, v1, {srd(sB1)}, s{sT} offen offset:32
buffer_load_dwordx2 {vr(B1R+4,2)}, v1, {srd(sB1)}, s{sT+1} offen
buffer_load_dwordx2 {vr(B1R+6,2)}, v1, {srd(sB1)}, s{sT+1} offen offset:32""")
    for r in list(range(CWA, CWA + 12)) + list(range(SX, SX + 16)): a(f"v_mov_b32 v{r}, 0")
    one_lane(a, 1, 15)
    a(f"""s_lshl_b32 s{sT}, s{sQB}, 8
s_lshl_b32 s{sT+1}, s{sHEAD}, 2
s_add_u32 s{sT}, s{sT}, s{sT+1}
s_add_u32 s{sT}, s{sT}, {WS_FL}
buffer_store_dword v{CWA}, v1, {srd(sWS)}, s{sT} offen sc1 ;tag=hst""")
    return a.lines

def dma_x(kb):
    A, B = sT + 2, sT + 3
    g = []
    for qt in range(4):
        for s in range(2):
            pre = []
            if qt == 0 and s == 0:
                pre += [f"s_xor_b32 s{A}, s{sROT}, {kb}", f"s_lshl_b32 s{A}, s{A}, 7", f"s_lshl_b32 s{B}, s{sPAR}, 15",
                        f"s_add_u32 s{A}, s{A}, s{B}", f"s_xor_b32 s{B}, s{A}, 0x8000"]
            pre.append(f"s_add_u32 m0, s{sXM}, {(kb & 1) * XSLOT + (qt * 2 + s) * 1024 - s * 64}")
            g.append((pre, f"buffer_load_dwordx4 v{VX1 if qt & 1 else VX0}, {srd(sX)}, s{B if qt >= 2 else A} offen offset:{s*64} lds ;tag=x{kb}"))
    return g
def dma_w(kb):
    A, B, C = sT + 4, sT + 5, sT + 6
    base = (kb % 3) * WSLOT
    g = []
    for i in range(4):
        s, t = i >> 1, i & 1
        if i == 0:
            pre = [f"s_xor_b32 s{C}, s{sROT}, {kb}", f"s_lshl_b32 s{A}, s{C}, 19", f"s_mul_i32 s{C}, s{C}, {64*2752}", f"s_add_u32 m0, s{sWM}, {base}"]
            so = A
        else:
            pre = [f"s_add_u32 s{B}, s{A}, {(32*s+4*t)*8192 - i*1024}"]; so = B
        g.append((pre, f"buffer_load_dwordx4 v{VWQ}, {srd(sWQ)}, s{so} offen offset:{i*1024} lds ;tag=w{kb}"))
    g.append(([f"s_add_u32 m0, s{sWM}, {base+4096}"], f"buffer_load_dwordx4 v{VW1}, {srd(sF0)}, s{C} offen lds ;tag=w{kb}"))
    g.append(([f"s_add_u32 m0, s{sWM}, {base+5120}"], f"buffer_load_dwordx4 v{VW1}, {srd(sF1)}, s{C} offen lds ;tag=w{kb}"))
    return g
def dma_kv(kind, tile):
    A = sT + 7
    g = []
    for i in range(4):
        pre = [f"s_mov_b32 s{A}, {tile*16384}", f"s_add_u32 m0, s{sKM if kind=='K' else sVM}, {(tile%NS)*(KSLOT if kind=='K' else VSLOT)}"] if i == 0 else []
        g.append((pre, f"buffer_load_dwordx4 v{VD}, {srd(sK if kind=='K' else sV)}, s{A} offen offset:{i*1024} lds ;tag={kind}{tile}"))
    return g
def flat(g):
    out = []
    for pre, l in g: out += pre + [l]
    return out
def place_group(sc, g, lo, hi, sp=4):
    cur = lo
    for n_, (pre, l) in enumerate(g):
        start = cur
        h_ = hi - (len(g) - 1 - n_)
        gp = sc.place_mem(l, min(cur + max(len(pre), sp if n_ else 1), h_), h_)
        assert gp > start
        free = [x for x in range(start, gp) if not sc.sal[x]]
        free = [x for x in free if x > start or not any(m.startswith("buffer_") for m in sc.mem[x])]
        if len(free) >= len(pre):
            for x, s_ in zip(free[-len(pre):] if pre else [], pre): sc.sal[x].append(s_)
        else:
            sc.post[gp - 1] += pre
        cur = gp
    return cur

def x_reads(kb):
    return [f"ds_read_b128 {ar(XF(kb,qt,s),4)}, v{VXR} offset:{(kb&1)*XSLOT+(qt*2+s)*1024}" for qt in range(4) for s in range(2)]
def w_off(kb, T, s, t):
    b = (kb % 3) * WSLOT
    return b + (2*s+t)*1024 + (T >> 1)*256 + (T & 1)*32 if T < 8 else b + 4096 + ((T-8) >> 1)*1024 + (2*s+t)*256 + (T & 1)*32
def w_reads(kb, T, n):
    return [f"ds_read_b64_tr_b16 {ar(WF(n,s)+2*t,2)}, v{VWR} offset:{w_off(kb,T,s,t)}" for s in range(2) for t in range(2)]
def c_reads(kb):
    out = []
    for j in range(3):
        for s in range(2):
            for t in range(2):
                if j < 2: out.append(f"ds_read_b64_tr_b16 {ar(CF(j,s)+2*t,2)}, v{VCQ} offset:{w_off(kb,j,s,t)}")
                else: out.append(f"ds_read_b64_tr_b16 {ar(CF(j,s)+2*t,2)}, v{VCF} offset:{w_off(kb,8,s,t)}")
    return out

def gemm1(c):
    L = []
    L += flat(dma_x(0)) + flat(dma_w(0))
    L += setup_A2(c)
    L += flat(dma_x(1))
    L += ["@stamp issued", "@waitvm x0"] + x_reads(0) + ["@waitvm w0 lgkm0", "s_barrier", "@stamp b0 rt"]
    TORD = [0, 1, 2, 10, 3, 4, 5, 11, 6, 7, 8, 9]
    L += w_reads(0, TORD[0], 0) + w_reads(0, TORD[1], 1)
    sc = Sched()
    first = {}; last = {}; start = {}; statg = {}
    for kb in range(8):
        start[kb] = sc.n()
        for n, T in enumerate(TORD):
            N = kb * 12 + n
            for qt in range(4 if T < 10 else 2):
                for s in range(2):
                    d = vr(ACC(T, qt), 4)
                    g = sc.add(f"{M16} {d}, {ar(WF(N,s),4)}, {ar(XF(kb,qt,s),4)}, {'0' if kb == 0 and s == 0 else d}")
                    first.setdefault(N, g); last[N] = g
        statg[kb] = sc.n()
        for qt in range(4):
            for s in range(2):
                d = vr(GR + 4 * qt, 4)
                sc.add(f"{M16} {d}, {ar(XF(kb,qt,s),4)}, {ar(XF(kb,qt,s),4)}, {'0' if kb == 0 and s == 0 else d}")
            sc.add(f"{SMF} {vr(SX+4*qt,4)}, {vr(SMA,4)}, {ar(XF(kb,qt,0),8)}, v{VIDX}")
            if qt < 3: sc.add(f"{SMF} {vr(CWA+4*qt,4)}, {vr(SMA,4)}, {ar(CF(qt,0),8)}, v{VIDX}")
    start[8] = sc.n()
    bar = {kb: statg[kb - 1] - 2 for kb in range(1, 9)}
    bar[0] = -1
    for kb in range(8):
        if kb >= 1: sc.sal[bar[kb]] += [f"@waitvm w{kb} lgkm0", "s_barrier"] + ([f"@stamp b{kb}"] if kb in (1, 2, 7) else [])
        cur = bar[kb] + 1
        for n, T in enumerate(TORD):
            N = kb * 12 + n
            if N < 2: continue
            lo = max(cur, last[N - 4] if N >= 4 else 0)
            for l in w_reads(kb, T, N):
                cur = sc.place_mem(l, lo, min(first[N] - 5, bar[kb + 1] - 5)); lo = cur
    sc.sal[bar[8]] += ["@waitvm K0 lgkm0", "s_barrier"]
    for kb in range(8):
        grp = []
        if kb == 0: grp += dma_w(1)
        if kb + 2 < 8: grp += dma_x(kb + 2) + dma_w(kb + 2)
        if kb == 6: grp += dma_kv("K", 0) + dma_kv("K", 1) + dma_kv("K", 2)
        if kb == 7: grp += dma_kv("V", 0) + dma_kv("K", 3)
        place_group(sc, grp, start[kb], start[kb + 1] - 1, sp=(4 if kb == 0 else 6))
        cur = start[kb]
        for l in c_reads(kb): cur = sc.place_mem(l, cur, bar[kb + 1] - 5)
        if kb + 1 < 8:
            g = next(x for x in range(max(cur, bar[kb + 1] - 30), sc.n()) if not sc.sal[x])
            sc.sal[g].append(f"@waitvm x{kb+1}"); cur = g
            for l in x_reads(kb + 1): cur = sc.place_mem(l, cur, bar[kb + 1] - 3)
    print("gemm1 est cycles", sc.est(), file=sys.stderr)
    return L + sc.lines()

def sprinkle(lines, groups, every):
    out = []; groups = list(groups); k = 0
    for l in lines:
        out.append(l); k += 1
        if groups and k >= every and not l.strip().startswith(("s_cmp", "v_cmp", "s_add", "s_cselect")):
            pre, v = groups.pop(0); out += pre + [v]; k = 0
    return out + flat(groups)

def epi1(c):
    a = Asm()
    a(f"""s_load_dwordx2 s[{sWO}:{sWO+1}], s[0:1], 32
s_load_dwordx2 s[{sW2}:{sW2+1}], s[0:1], 64
s_load_dwordx2 s[{sB2}:{sB2+1}], s[0:1], 72
s_load_dwordx2 s[{sXX}:{sXX+1}], s[0:1], 0
s_load_dwordx2 s[{sOUT}:{sOUT+1}], s[0:1], 80
s_load_dwordx2 s[90:91], s[0:1], 88""")
    a(f"""s_lshl_b32 s{sT}, s{sW}, 7
s_add_u32 s{sT}, s{sT}, {CWBASE}
s_lshl_b32 s{sT+1}, s{sW}, 6
s_add_u32 s{sT+1}, s{sT+1}, {CWBASE+512}
v_add_u32 v{VCQ}, s{sT}, v{VCW}
v_add_u32 v{VCF}, s{sT+1}, v{VCW}
v_lshrrev_b32 v{VCW}, 4, v0
v_lshlrev_b32 v{VCW}, 4, v{VCW}
v_add_u32 v{VCW}, {CWBASE}, v{VCW}""")
    for r in range(4):
        m = sum(1 << (20 * g + r) for g in range(4))
        a(f"s_mov_b32 s{sT+2+2*r}, {m & 0xffffffff:#x}\ns_mov_b32 s{sT+3+2*r}, {m >> 32:#x}")
    for j in range(3): a(f"v_add_f32 v{CWA+4*j}, v{CWA+4*j}, v{CWA+4*j+1}")
    a(f"""ds_write_b32 v{VCQ}, v{CWA}
ds_write_b32 v{VCQ}, v{CWA+4} offset:64
ds_write_b32 v{VCF}, v{CWA+8}""")
    for qt in range(4):
        g = GR + 4 * qt
        a(f"v_cndmask_b32 v{g}, 0, v{g}, s[{sT+2}:{sT+3}]")
        for r in range(1, 4): a(f"v_cndmask_b32 v{g}, v{g}, v{g+r}, s[{sT+2+2*r}:{sT+3+2*r}]")
        a(f"v_add_f32 v{SX+4*qt}, v{SX+4*qt}, v{SX+4*qt+1}")
    a("s_waitcnt lgkmcnt(0)\ns_barrier")
    CWR = 36
    order = [8, 9, 10, 11, 0, 1, 2, 3, 4, 5, 6, 7]
    pos = {T: i for i, T in enumerate(order)}
    def cwb(T): return CWR + 4 * (pos[T] % 3)
    def rdn(i):
        if i < 12: a(f"ds_read_b128 {vr(CWR+4*(i%3),4)}, v{VCW} offset:{order[i]*64}")
    rdn(0); rdn(1); rdn(2)
    for l in k_reads(0) + k_reads(1): a(l)
    for sw in ("v_permlane32_swap_b32", "v_permlane16_swap_b32"):
        for qt in range(4): a(f"v_mov_b32 v{GR+4*qt+1}, v{GR+4*qt}")
        for qt in range(4): a(f"{sw} v{GR+4*qt}, v{GR+4*qt+1}")
        for qt in range(4): a(f"v_add_f32 v{GR+4*qt}, v{GR+4*qt}, v{GR+4*qt+1}")
    cs = math.log2(math.e) / math.sqrt(128.0)
    for op in ("v_mul_f32 v{s}, " + f2u(-1/512) + ", v{s}", "v_mul_f32 v{g}, " + f2u(1/512) + ", v{g}", "v_fma_f32 v{g}, -v{s}, v{s}, v{g}",
               "v_max_f32 v{g}, 0, v{g}", "v_add_f32 v{g}, " + f2u(1e-5) + ", v{g}", "v_rsq_f32 v{r}, v{g}", "v_mul_f32 v{c}, " + f2u(cs) + ", v{r}"):
        for qt in range(4): a(op.format(s=SX+4*qt, g=GR+4*qt, r=SX+4*qt+3, c=SX+4*qt+1))
    a("@stamp stats")
    part1 = a.lines; a = Asm()
    BF = GR
    for i in range(8):
        a(f"v_lshlrev_b32 v{BF+2*i}, 16, v{B1R+i}\nv_and_b32 v{BF+2*i+1}, 0xffff0000, v{B1R+i}")
    k1 = -2.0 * math.sqrt(2.0 / math.pi) * math.log2(math.e); k2 = k1 * 0.044715
    kk = f"s[{sT+2}:{sT+3}]"
    a(f"""s_mov_b32 s{sT+2}, {f2u(k2)}
s_mov_b32 s{sT+3}, {f2u(k1)}
s_lshl_b32 s{sT}, s{sQB}, 2
s_add_u32 s{sT}, s{sT}, s{sW}
s_mul_i32 s{sT}, s{sT}, {H_RT}
s_add_u32 s{sT}, s{sT}, {WS_H}
s_lshl_b32 s{sT+1}, s{sP1}, 12
s_add_u32 s{sT+1}, s{sT+1}, s{sT}
s_lshl_b32 s{sT+4}, s{sP0}, 12
s_add_u32 s{sT}, s{sT}, s{sT+4}
s_cmp_lt_u32 s{sHEAD}, 22
s_cselect_b32 s{sT+4}, 0, 0x10000000
v_add_u32 v1, s{sT+4}, v{VOA}""")
    def corr(i):
        T = order[i]
        items = [(qt, h, vr(ACC(T, qt) + 2 * h, 2)) for qt in range(4 if T < 10 else 2) for h in range(2)]
        for qt, h, r in items: a(f"v_pk_fma_f32 {r}, {vr(cwb(T)+2*h,2)}, {vr(SX+4*qt,2)}, {r} op_sel_hi:[1,0,1]")
        rdn(i + 3)
        for qt, h, r in items:
            if T < 8: a(f"v_pk_mul_f32 {r}, {r}, {vr(SX+4*qt,2)} op_sel:[0,1] op_sel_hi:[1,1]")
            else: a(f"v_pk_fma_f32 {r}, {r}, {vr(SX+4*qt+2,2)}, {vr(BF+(T-8)*4+2*h,2)} op_sel:[0,1,0] op_sel_hi:[1,1,1]")
    for i in range(4): corr(i)
    def gelu(regs, tb):
        prs = [(regs[i], tb + i) for i in range(0, len(regs), 2)]
        for r, t in prs: a(f"v_pk_mul_f32 {vr(t,2)}, {vr(r,2)}, {vr(r,2)}")
        for r, t in prs: a(f"v_pk_fma_f32 {vr(t,2)}, {vr(t,2)}, {kk}, {kk} op_sel:[0,0,1] op_sel_hi:[1,0,1]")
        for r, t in prs: a(f"v_pk_mul_f32 {vr(t,2)}, {vr(t,2)}, {vr(r,2)}")
        for r, t in prs: a(f"v_exp_f32 v{t}, v{t}\nv_exp_f32 v{t+1}, v{t+1}")
        for r, t in prs: a(f"v_pk_add_f32 {vr(t,2)}, {vr(t,2)}, 1.0 op_sel_hi:[1,0]")
        for r, t in prs: a(f"v_rcp_f32 v{t}, v{t}\nv_rcp_f32 v{t+1}, v{t+1}")
        for r, t in prs: a(f"v_pk_mul_f32 {vr(t,2)}, {vr(t,2)}, {vr(r,2)}")
        for i, (r, t) in enumerate(prs): a(f"v_cvt_pk_bf16_f32 v{regs[0]+i}, v{t}, v{t+1}")
    for T0, nq in ((8, 4), (10, 2)):
        for qt in range(nq):
            regs_ = [ACC(T0, qt) + e for e in range(4)] + [ACC(T0 + 1, qt) + e for e in range(4)]
            gelu(regs_, BF + 8 * (qt & 1))
            vo = 1 if T0 == 10 else (VOA if qt < 2 else VOB)
            a(f"buffer_store_dwordx4 {vr(regs_[0],4)}, v{vo}, {srd(sWS)}, s{sT if T0 == 8 else sT+1} offen offset:{(qt&1)*1024} {c.stflags} ;tag=hst")
    a("@stamp gelu")
    part2 = sprinkle(a.lines, dma_kv("V", 1), 20); a = Asm()
    for l in tail_setup(c): a(l)
    for i in range(4, 12): corr(i)
    a("@stamp corr")
    TQ = 16
    n = 0
    for qt in range(4):
        for ks in range(4):
            t = TQ + 4 * (n % 4); n += 1
            X, Y = ACC(2 * ks, qt), ACC(2 * ks + 1, qt)
            a(f"""v_cvt_pk_bf16_f32 v{t}, v{X}, v{X+1}
v_cvt_pk_bf16_f32 v{t+2}, v{Y}, v{Y+1}
v_cvt_pk_bf16_f32 v{t+1}, v{X+2}, v{X+3}
v_cvt_pk_bf16_f32 v{t+3}, v{Y+2}, v{Y+3}""")
            if n > 1:
                p = TQ + 4 * ((n - 2) % 4)
                for e in range(4): a(f"v_accvgpr_write_b32 a{(n-2)*4+e}, v{p+e}")
            a(f"v_permlane16_swap_b32 v{t}, v{t+2}\nv_permlane16_swap_b32 v{t+1}, v{t+3}")
    for e in range(4): a(f"v_accvgpr_write_b32 a{60+e}, v{TQ+12+e}")
    part3 = sprinkle(a.lines, dma_kv("V", 2), 60)
    return part1 + part2 + part3

sWO, sW2, sXX, sOUT, sB2, sDBG = 16, 20, 24, 28, 32, 60
sRO, sFM, sKW, sOB, sHB, sGX = sROT, sXM, sWM, sP0, sP1, 3
sFW, sFH = 90, 91
VDW, VL, VFE, VFO = 12, 13, 14, 15
FA = 64
VRA = 80
VTO, VPA, VPD = 86, 87, 1
XB = VBASE + 4 * VSLOT
def b2_init(a):
    a("v_lshrrev_b32 v1, 4, v0\nv_lshlrev_b32 v1, 3, v1")
    for ct in range(4): a(f"buffer_load_dwordx2 {vr(88+2*ct,2)}, v1, {srd(sB2)}, 0 offen offset:{ct*32}")
def b2_unpack(a):
    for i in range(8): a(f"v_lshlrev_b32 v{FA+2*i}, 16, v{88+i}\nv_and_b32 v{FA+2*i+1}, 0xffff0000, v{88+i}")
def tail_setup(c):
    a = Asm()
    a(f"""s_and_b32 s{sGX}, s2, 7
s_bfe_u32 s{sT}, s2, 0x30003
s_lshr_b32 s{sT+1}, s2, 6
s_lshl_b32 s{sRO}, s{sT+1}, 1
s_xor_b32 s{sRO}, s{sRO}, s{sT}
s_and_b32 s{sRO}, s{sRO}, {c.rot2}
s_lshl_b32 s{sT+4}, s{sGX}, 2
s_add_u32 s{sT+1}, s{sT+1}, s{sT+4}
s_lshl_b32 s{sKW}, s{sW}, 5
s_lshl_b32 s{sT+4}, s{sW}, 10
s_add_u32 s{sFM}, s{sT+4}, {XB}
s_lshl_b32 s{sOB}, s{sT+1}, 19
s_add_u32 s{sOB}, s{sOB}, s{sT+4}
s_mul_i32 s{sHB}, s{sT+1}, {H_RT}
s_add_u32 s{sHB}, s{sHB}, s{sT+4}
s_add_u32 s{sHB}, s{sHB}, {WS_H}
s_lshl_b32 s{sT}, s{sT}, 7""")
    for d, size in ((sWO, 4096 * 1024 - 896), (sW2, 1376 * 1024 - 896), (sB2, 128)): mk_srd(a, d, d, d + 1, f"s{sT}", size)
    a(f"s_lshl_b32 s{sT+1}, s{sT+1}, 16\ns_add_u32 s{sT+1}, s{sT+1}, s{sT}")
    for d in (sXX, sOUT): mk_srd(a, d, d, d + 1, f"s{sT+1}", 65536 - 896)
    mk_srd(a, sDBG, 90, 91, None, 256)
    b2_init(a)
    T = VTO
    a(f"""; W DMA voffset: row r8=(l>>2)&7 (stride 1024), half = l>>5 (64B), chunk (l&3)^(2*(r8>>2))
v_bfe_u32 v1, v0, 4, 1
v_lshlrev_b32 v1, 1, v1
v_and_b32 v{VDW}, 3, v0
v_xor_b32 v1, v1, v{VDW}
v_lshlrev_b32 v1, 4, v1
v_lshrrev_b32 v{VDW}, 5, v0
v_lshl_add_u32 v1, v{VDW}, 6, v1
v_bfe_u32 v{VDW}, v0, 2, 3
v_lshl_add_u32 v{VDW}, v{VDW}, 10, v1
v_lshlrev_b32 v{VL}, 4, v0
v_lshrrev_b32 v1, 5, v0
v_lshlrev_b32 v1, 10, v1
v_bfe_u32 v{T}, v0, 4, 1
v_lshl_add_u32 v1, v{T}, 8, v1
v_lshl_add_u32 v1, v{T}, 5, v1
v_bfe_u32 v{T}, v0, 2, 2
v_lshl_add_u32 v1, v{T}, 6, v1
v_and_b32 v{T}, 3, v0
v_lshl_add_u32 v1, v{T}, 3, v1
v_xor_b32 v{T}, 32, v1
v_add_u32 v{VRA}, s{sKM}, v1
v_add_u32 v{VRA+1}, s{sKM}, v{T}
v_add_u32 v{VRA+2}, s{sVM}, v1
v_add_u32 v{VRA+3}, s{sVM}, v{T}
v_add_u32 v{VRA+4}, {4*VSLOT}, v{VRA+2}
v_add_u32 v{VRA+5}, {4*VSLOT}, v{VRA+3}
v_add_u32 v{VFE}, {XB}, v1
v_add_u32 v{VFO}, {XB}, v{T}
v_and_b32 v{VPA}, 7, v0
v_lshlrev_b32 v{VPA}, 2, v{VPA}
s_lshr_b32 s{sT+4}, s2, 3
s_lshl_b32 s{sT+4}, s{sT+4}, 14
s_lshl_b32 s{sT+5}, s{sW}, 20
s_add_u32 s{sT+4}, s{sT+4}, s{sT+5}
s_add_u32 s{sT+4}, s{sT+4}, 0x80000
s_sub_u32 s{sT+4}, s{sT+4}, s{sT}
v_lshlrev_b32 v{VTO}, 7, v0
v_add_u32 v{VTO}, s{sT+4}, v{VTO}""")
    if c.touch:
        a(f"""s_lshl_b32 s{sT+4}, s2, 2
s_add_u32 s{sT+4}, s{sT+4}, s{sW}
s_lshl_b32 s{sT+5}, s{sT+4}, 12
s_sub_u32 s{sT+5}, s{sT+5}, s{sT}
v_and_b32 v1, 31, v0
v_lshlrev_b32 v1, 7, v1
v_add_u32 v1, s{sT+5}, v1
buffer_load_dword a254, v1, {srd(sWO)}, 0 offen
s_mul_i32 s{sT+5}, s{sT+4}, {11*128}
s_sub_u32 s{sT+5}, s{sT+5}, s{sT}
v_min_u32 v1, 10, v0
v_lshlrev_b32 v1, 7, v1
v_add_u32 v1, s{sT+5}, v1
buffer_load_dword a255, v1, {srd(sW2)}, 0 offen""")
    return a.lines

SLOTS = {"X": ("V", XB)}
for _i in range(4): SLOTS[f"K{_i}"] = ("K", _i * KSLOT); SLOTS[f"V{_i}"] = ("V", VBASE + _i * VSLOT)
def t_wload(n, slot):
    A = sT + 2
    kind, base = SLOTS[slot]
    pre = [f"s_xor_b32 s{A}, s{sRO}, {n}", f"s_add_u32 s{A}, s{A}, s{sKW}", f"s_lshl_b32 s{A}, s{A}, 15",
           f"s_add_u32 m0, s{sKM if kind == 'K' else sVM}, {base if kind == 'K' else base - VBASE}"]
    g = []
    for i in range(4):
        if i: pre = [f"s_add_u32 s{A}, s{A}, 7168"]
        g.append((pre, f"buffer_load_dwordx4 v{VDW}, {srd(sWO)}, s{A} offen offset:{i*1024} lds ;tag=t{n}"))
    return g
def t_bload(c, n, dst):
    B, D = sT + 3, sT + 5
    pre = [f"s_xor_b32 s{B}, s{sRO}, {n}", f"s_add_u32 s{B}, s{B}, s{sKW}", f"s_lshl_b32 s{B}, s{B}, 12", f"s_add_u32 s{B}, s{B}, s{sOB}"]
    g = []
    for j in range(4):
        if j: pre = [f"s_xor_b32 s{D}, s{B}, {j*1024}"]
        g.append((pre, f"buffer_load_dwordx4 {dst(j)}, v{VL}, {srd(sWS)}, s{D if j else B} offen {c.ldflags} ;tag=b{n}"))
    return g
def t_reads(slot, dst):
    kind, base = SLOTS[slot]
    r = VRA + (4 if slot == "X" else 0 if kind == "K" else 2)
    off = 0 if slot == "X" else base if kind == "K" else base - VBASE
    return [f"ds_read_b64_tr_b16 {dst(ct, t)}, v{r + (ct & 1)} offset:{off + t*2048 + (ct>>1)*512}" for ct in range(4) for t in range(2)]
HOLD = [240, 64, 80, 208, 224, 96, 112, 128, 144, 160, 176, 192, 0, 16, 32, 48]
def hold(i): return lambda ct, t=None: ar(HOLD[i] + ct * 4, 4) if t is None else ar(HOLD[i] + ct * 4 + 2 * t, 2)
class WStream:
    def __init__(self): self.slot = {}; self.nxt = 0; self.held = 0
    def fill(self, sl):
        if self.nxt >= 32: return []
        n = self.nxt; self.nxt += 1; self.slot[n] = sl
        return t_wload(n, sl)
    def take(self):
        n = self.held; self.held += 1
        return f"@waitvm t{n}", t_reads(self.slot[n], hold(n)), f"@dep a{HOLD[n] + 15}", self.slot[n]
FAF = 208
def FH(buf, i): return 224 + buf * 8 + i * 4
def f_loads(c, gam, buf, nk):
    g = []
    for i in range(nk):
        g.append(([f"s_add_u32 s{sFW}, s{sFW}, 0x8000", f"s_add_u32 m0, s{sFM}, {buf*8192 + i*4096}"],
                  f"buffer_load_dwordx4 v{VDW}, {srd(sW2)}, s{sFW} offen lds ;tag=f{gam}"))
        g.append(([f"s_add_u32 s{sFH}, s{sFH}, 0x1000"],
                  f"buffer_load_dwordx4 {ar(FH(buf,i),4)}, v{VL}, {srd(sWS)}, s{sFH} offen {c.ldflags} ;tag=f{gam}"))
    return g
def f_reads(buf, i):
    return [f"ds_read_b64_tr_b16 {ar(FAF+ct*4+2*t,2)}, v{VFO if ct & 1 else VFE} offset:{buf*8192 + i*4096 + t*2048 + (ct>>1)*512}" for ct in range(4) for t in range(2)]
def f_mfma(buf, i, ct): return f"{M16} {vr(FA+4*ct,4)}, {ar(FAF+4*ct,4)}, {ar(FH(buf,i),4)}, {vr(FA+4*ct,4)}"
def f_group(k):
    if k == 0: return (-1, 0, 2)
    if k == 29: return (21, 1, 1)
    if 1 <= k <= 28 and (k - 1) % 4: return (3 * ((k - 1) // 4) + (k - 1) % 4 - 1, 1 if (k - 1) % 4 == 2 else 0, 2)
    return None

def spin(name, load, okcmp, back):
    return f"""L_spin_{name}:
s_mov_b32 s{sT+6}, 0x40000
L_spin_{name}_l:
s_sleep 4
{load}
s_waitcnt vmcnt(0)
{okcmp}
s_cbranch_scc1 {back}
s_sub_u32 s{sT+6}, s{sT+6}, 1
s_cmp_lg_u32 s{sT+6}, 0
s_cbranch_scc1 L_spin_{name}_l
s_branch {back}""".split("\n")
CNT_LOAD = f"buffer_load_dword v{VPD}, off, {srd(sDBG)}, s{sT+7} sc1"
CNT_OK = f"v_cmp_le_u32 vcc, 32, v{VPD}\ns_nop 0\ns_cmp_eq_u64 vcc, -1"
FL_LOAD = f"buffer_load_dword v{VPD}, v{VPA}, {srd(sWS)}, s{sT+7} offen sc1"
FL_OK = f"v_cmp_eq_u32 vcc, 1, v{VPD}\ns_nop 0\ns_cmp_eq_u64 vcc, -1"

def k_reads(u):
    slot = (u >> 1) % NS
    return [f"ds_read_b128 {ar(KF(u,t,ks),4)}, v{VK} offset:{slot*KSLOT + (2*(u&1)+t)*1024 + ks*256}" for t in range(2) for ks in range(4)]
def v_reads(u):
    slot = (u >> 1) % NS
    return [f"ds_read_b64_tr_b16 {ar(VF(u,dt)+2*t,2)}, v{VV} offset:{slot*VSLOT + (2*(u&1)+t)*1024 + (dt>>1)*256 + (dt&1)*32}" for dt in range(8) for t in range(2)]
def qk_mfmas(u, czero=False):
    par = u & 1
    return [f"{M16} {vr(S(par,qt,t),4)}, {ar(KF(u,t,ks),4)}, {ar(Q(qt,ks),4)}, " + (vr(S(par,qt,t),4) if ks else "0" if czero else vr(NEGM+qt*4,4))
            for qt in range(4) for t in range(2) for ks in range(4)]
def pv_mfmas(c, u):
    par = u & 1
    seq = [(dt, qt) for dt in range(8) for qt in range(4)] if c.pvorder == "ashare" else [(dt, qt) for qt in range(4) for dt in range(8)]
    return [f"{M16} {vr(O(dt,qt),4)}, {ar(VF(u,dt),4)}, {vr(P(par,qt),4)}, " + (vr(O(dt,qt),4) if u else "0") for dt, qt in seq]
def sm_ops(u, n):
    par = u & 1; e = n // 2
    if n < 0 or e >= 32: return []
    qt = e // 8; r = S(par, qt) + e % 8
    if n % 2 == 0: return [f"v_exp_f32 v{r}, v{r}"]
    return [f"v_cvt_pk_bf16_f32 v{P(par,qt)+(e%8)//2}, v{r-1}, v{r}"] if e % 2 else []

def attention(c, ws):
    a = Asm()
    for r in range(16): a(f"v_accvgpr_write_b32 a{LA(0)+r}, 0")
    for r in range(8): a(f"v_accvgpr_write_b32 a{FH(0,0)+r}, 0")
    a(f"""s_mov_b32 s{sVO}, {(NS-1)*16384}
s_lshl_b32 s{sFW}, s{sW}, 13
s_sub_u32 s{sFW}, s{sFW}, 0x8000
s_sub_u32 s{sFH}, s{sHB}, 0x1000""")
    for l in qk_mfmas(0, czero=True): a(l)
    T = P0
    a(f"s_cmp_lg_u32 s{sTRY}, 0\ns_cbranch_scc1 L_have_max")
    a("s_nop 4")
    for qt in range(4):
        b = S(0, qt)
        a(f"v_max3_f32 v{T+qt}, v{b}, v{b+1}, v{b+2}\nv_max3_f32 v{T+qt}, v{T+qt}, v{b+3}, v{b+4}\nv_max3_f32 v{T+qt}, v{T+qt}, v{b+5}, v{b+6}\nv_max_f32 v{T+qt}, v{T+qt}, v{b+7}")
    for sw in ("v_permlane32_swap_b32", "v_permlane16_swap_b32"):
        for qt in range(4): a(f"v_mov_b32 v{T+4+qt}, v{T+qt}")
        for qt in range(4): a(f"{sw} v{T+qt}, v{T+4+qt}")
        for qt in range(4): a(f"v_max_f32 v{T+qt}, v{T+qt}, v{T+4+qt}")
    for qt in range(4): a(f"v_add_f32 v{T+qt}, s{sSH}, v{T+qt}")
    for qt in range(4):
        for k in range(4): a(f"v_sub_f32 v{NEGM+qt*4+k}, 0, v{T+qt}")
    a("L_have_max:\ns_nop 7")
    for qt in range(4):
        for k in range(0, 8, 2): a(f"v_pk_add_f32 {vr(S(0,qt)+k,2)}, {vr(S(0,qt)+k,2)}, {vr(NEGM+qt*4,2)}")
    head = a.lines
    G0 = c.BAR + 1 - 128
    pre = []
    for n in range(0, G0 + 64 - c.SM0): pre += sm_ops(0, n)
    head += pre
    sc = Sched(); idx = {}; fidx = {}
    for G in range(G0, 32 * 128):
        I, g = divmod(G, 128); ph, k = divmod(g, 32)
        u = 2 * I + (1, 0, 2, 1)[ph]
        m = None
        if ph in (0, 2):
            if 1 <= u <= 63: m = qk_mfmas(u)[k]
        elif u >= 0: m = pv_mfmas(c, u)[k]
        idx[G] = sc.add(m)
        for uu in (2 * I, 2 * I + 1, 2 * I + 2):
            if 0 <= uu <= 63: sc.valu[idx[G]] += sm_ops(uu, G - (64 * (uu - 1) + c.SM0))
        q = g - (c.SM0 + 20)
        if I >= 0 and q >= 0 and q % 16 == 0 and q // 16 < 4:
            qt = q // 16
            sc.add(f"{SMF} {ar(LA(qt),4)}, {vr(SMA,4)}, {vr(P(0,qt),8)}, v{VIDX}")
        fg = f_group(I - 1) if I >= 1 else None
        if fg:
            for i in range(fg[2]):
                q = g - c.FPOS[i]
                if q >= 0 and q % 4 == 0 and q // 4 < 4: fidx[(I, i, q // 4)] = sc.add(f_mfma(fg[1], i, q // 4))
    for k in range(32):
        b = 128 * (k - 1) + c.BAR
        nb = b + 128
        lo = idx[b + 1]
        hi = idx[nb] - 5 if k < 31 else sc.n() - 1
        B = 128 * k
        end = idx[nb] - 1 if k < 31 else sc.n() - 1
        cur = lo
        fg = f_group(k)
        if fg and k == 0:
            cur = place_group(sc, [([f"s_add_u32 m0, s{sFM}, {i*4096}"], f"buffer_load_dwordx4 v{VPD}, {srd(sW2)}, 0 offen lds ;tag=fz") for i in range(2)], cur, end)
        elif fg: cur = place_group(sc, f_loads(c, *fg), cur, end)
        elif k <= 28:
            cur = place_group(sc, [([f"s_lshl_b32 s{sT+7}, s{sGX}, 5"], CNT_LOAD)], idx[B + 30], end)
            sc.post[idx[B + 101]] += CNT_OK.split("\n") + ["s_cbranch_scc0 L_spin_cnt", "L_ok_cnt:"]
        if k + NS - 1 <= 31:
            dv = [([f"s_add_u32 m0, s{sVM}, {((k+NS-1)%NS)*VSLOT}"] if i == 0 else [], f"buffer_load_dwordx4 v{VD}, {srd(sV)}, s{sVO} offen offset:{i*1024} lds ;tag=V{k+NS-1}") for i in range(4)]
            dk = [([f"s_add_u32 s{sVO}, s{sVO}, 0x4000", f"s_min_u32 s{sKO}, s{sVO}, {31*16384}", f"s_add_u32 m0, s{sKM}, {(k%NS)*KSLOT}"] if i == 0 else [],
                   f"buffer_load_dwordx4 v{VD}, {srd(sK)}, s{sKO} offen offset:{i*1024} lds ;tag=K{k+NS}") for i in range(4)]
            cur = place_group(sc, dv, max(cur, idx[B + c.VPOS]), end)
            place_group(sc, dk, max(cur, idx[B + c.KPOS]), end)
        touch = lambda j: [([], f"buffer_load_dword v{88+j}, v{VTO}, {srd(sWO)}, s{sT+6} offen")] if c.l2touch else []
        ops = []
        def hold_in(g0, g1, vm):
            w, rd, dep, sl = ws.take()
            g0 = next(x for x in range(g0, g1) if not sc.sal[x]); sc.sal[g0].append(w)
            ops.extend((l, g0, g1) for l in rd)
            g2 = next(x for x in range(max(g1 + 3, vm), end) if not sc.sal[x]); sc.sal[g2].append(dep)
            return place_group(sc, ws.fill(sl), g2, end)
        if k == 29:
            cur = place_group(sc, ws.fill("K0") + ws.fill("V0") + ws.fill("K1"), cur, end, sp=6)
            if c.l2touch: place_group(sc, [([f"s_mov_b32 s{sT+6}, 0"], touch(0)[0][1])], cur, end)
        if k == 30:
            cur = place_group(sc, ws.fill("V1") + ws.fill("K2"), cur, end, sp=6)
            cur = hold_in(idx[B + 30], idx[B + 70], cur)
            if c.l2touch: place_group(sc, [([f"s_mov_b32 s{sT+6}, 0x2000"], touch(1)[0][1])], cur, end)
        if k == 31:
            cur = place_group(sc, ws.fill("V2") + ws.fill("K3") + ws.fill("X"), cur, end)
            for g0, g1 in ((10, 36), (30, 54), (50, 96), (96, 106))[:c.H31]: cur = hold_in(idx[B + g0], idx[B + g1], cur)
        ops += [(l, lo, idx[B + 32] - 5 + n_ // 2) for n_, l in enumerate(v_reads(2 * k))]
        ops += [(l, idx[B], idx[B + 96] - 5 + n_ // 2) for n_, l in enumerate(v_reads(2 * k + 1))]
        if k < 31:
            ops += [(l, lo, idx[B + 64] - 5 + n_) for n_, l in enumerate(k_reads(2 * k + 2))]
            ops += [(l, idx[B + 32], hi) for l in k_reads(2 * k + 3)]
        fc = f_group(k - 1) if k >= 1 else None
        if fc:
            for i in range(fc[2]):
                ops += [(l, fidx[(k, 0, n_ // 2)] if i else lo, fidx[(k, i, n_ // 2)] - 5) for n_, l in enumerate(f_reads(fc[1], i))]
        sc.place_edf(ops)
        if k < 31:
            tags = f"V{k+1},K{k+2}" + (f",f{fg[0]}" if fg and k else ",fz" if fg else "")
            sc.sal[idx[nb]] += [f"@waitvm {tags} lgkm0", "s_barrier", f"@seg {k+1}"]
    print("attention est cycles", sc.est(), file=sys.stderr)
    a = Asm()
    b2_unpack(a)
    one_lane(a, 88, VPD)
    a(f"""s_lshl_b32 s{sT}, s{sQB}, 5
s_xor_b32 s{sT+1}, s{sTRY}, 1
v_mov_b32 v89, s{sT+1}
@waitvm K1,V0,hst lgkm0
s_barrier
buffer_atomic_add v89, v88, {srd(sDBG)}, s{sT} offen sc1""")
    return head + a.lines + ["@seg 0"] + sc.lines()

def tail(c, ws):
    a = Asm()
    L0 = S0; MX = S0 + 4; T = S0 + 8; RC = NEGM
    SA = 128; AB = P0; XR = 16; G = FA; TT = 48; EX = AB
    def acc(ct, j): return SA + (j * 4 + ct) * 4
    def abuf(n): return lambda ct, t=None: vr(AB + (n & 1) * 16 + ct * 4, 4) if t is None else vr(AB + (n & 1) * 16 + ct * 4 + 2 * t, 2)
    def emit(ls):
        for l in ls: a(l)
    pend = []
    nxt = [None]
    def pump(nload, limit):
        for _ in range(nload):
            if not pend:
                if nxt[0]:
                    dep, sl = nxt[0]; nxt[0] = None
                    g = ws.fill(sl)
                    if g: a(dep); pend.extend(g)
                if ws.held < limit:
                    w, rd, dep, sl = ws.take(); a(w); emit(rd); nxt[0] = (dep, sl)
            if pend:
                pre, l = pend.pop(0); emit(pre + [l])
    a("s_setreg_imm32_b32 hwreg(HW_REG_MODE, 4, 2), 3")
    for qt in range(4):
        a(f"v_accvgpr_read_b32 v{L0+qt}, a{LA(qt)}\nv_accvgpr_read_b32 v{T+qt}, a{LA(qt)+1}")
    pump(1, c.NB1)
    for qt in range(4): a(f"v_add_f32 v{L0+qt}, v{L0+qt}, v{T+qt}")
    for qt in range(4): a(f"v_rcp_f32 v{RC+2*qt}, v{L0+qt}")
    so = [sT, sT + 1, sT + 3, sT + 4]
    a(f"""s_lshl_b32 s{sT}, s{sQB}, 2
s_add_u32 s{sT}, s{sT}, s{sW}
s_lshl_b32 s{sT}, s{sT}, 19
s_lshl_b32 s{sT+1}, s{sHEAD}, 14
s_add_u32 s{sT}, s{sT}, s{sT+1}
s_add_u32 s{so[1]}, s{sT}, 4096
s_add_u32 s{so[2]}, s{sT}, 8192
s_add_u32 s{so[3]}, s{sT}, 12288""")
    for qt in range(4):
        mx = MX + qt
        for m in range(4):
            src = [O(2*m, qt) + e for e in range(4)] + [O(2*m+1, qt) + e for e in range(4)]
            for i in range(0, 8, 2):
                r = src[i]
                a(f"v_maximum3_f32 v{mx}, |v{r}|, |v{r+1}|, " + (f"v{mx}" if m or i else "0"))
                a(f"v_pk_mul_f32 {vr(r,2)}, {vr(r,2)}, {vr(RC+2*qt,2)} op_sel_hi:[1,0]")
            for e in range(4): a(f"v_cvt_pk_bf16_f32 v{src[e]}, v{src[2*e]}, v{src[2*e+1]}")
            a(f"buffer_store_dwordx4 {vr(src[0],4)}, v{VOA if qt < 2 else VOB}, {srd(sWS)}, s{so[m]} offen offset:{(qt&1)*1024} {c.stflags} ;tag=ost")
            if qt * 4 + m < 15: pump(c.RS, c.NB1)
    a("@stamp e1")
    while pend or nxt[0] or ws.held < c.NB1: pump(1, c.NB1)
    a(f"s_mov_b32 s{sT+4}, 0x100\ns_mov_b64 s[{sT+6}:{sT+7}], -1")
    for qt in range(4):
        for r in (L0 + qt, MX + qt, RC + 2 * qt):
            a(f"v_cmp_class_f32 vcc, v{r}, s{sT+4}\ns_and_b64 s[{sT+6}:{sT+7}], s[{sT+6}:{sT+7}], vcc")
    a(f"s_cmp_eq_u64 s[{sT+6}:{sT+7}], -1\ns_cselect_b32 s{sT+4}, 0, 1")
    if c.force_fallback: a(f"s_mov_b32 s{sT+4}, 1")
    a(f"""s_lshl_b32 s{sT+5}, s{sW}, 2
s_add_u32 s{sT+5}, s{sT+5}, {FLBASE}
v_mov_b32 v{T}, s{sT+5}
v_mov_b32 v{T+1}, s{sT+4}
ds_write_b32 v{T}, v{T+1}
s_setreg_imm32_b32 hwreg(HW_REG_MODE, 4, 2), 0
v_mov_b32 v{EX+8}, {FLBASE}""")
    one_lane(a, EX + 10, EX + 9)
    a(f"""v_mov_b32 v{EX+9}, 1
s_lshl_b32 s{sT}, s{sQB}, 8
s_lshl_b32 s{sT+1}, s{sHEAD}, 2
s_add_u32 s{sT}, s{sT}, s{sT+1}
s_add_u32 s{sT}, s{sT}, {WS_FL}
s_lshl_b32 s{sT+7}, s{sGX}, 8
s_add_u32 s{sT+7}, s{sT+7}, s{sKW}
s_add_u32 s{sT+7}, s{sT+7}, {WS_FL}
@waitvm ost lgkm0
s_barrier
ds_read_b128 {vr(EX+12,4)}, v{EX+8}
v_or3_b32 v{EX+12}, v{EX+12}, v{EX+13}, v{EX+14}
v_or_b32 v{EX+12}, v{EX+12}, v{EX+15}
v_readfirstlane_b32 s{sT+4}, v{EX+12}
s_andn2_b32 s{sT+4}, s{sT+4}, s{sTRY}
s_cmp_lg_u32 s{sT+4}, 0
s_cbranch_scc1 L_fallback
buffer_store_dword v{EX+9}, v{EX+10}, {srd(sWS)}, s{sT} offen sc1
@stamp bar1 rt""")
    pend.extend(ws.fill("V3"))
    b = Asm()
    b(f"""v_lshrrev_b32 v31, 4, v0
v_lshlrev_b32 v31, 3, v31
v_and_b32 v30, 15, v0
v_lshl_add_u32 v30, v30, 10, v31
s_lshl_b32 s{sT}, s{sW}, 14
v_add_u32 v30, s{sT}, v30""")
    for i in range(16): b(f"v_mul_f32 v{TT+i}, {f2u(-math.log2(math.e))}, v{G+i}")
    for i in range(16): b(f"v_exp_f32 v{TT+i}, v{TT+i}")
    for i in range(0, 16, 2): b(f"v_pk_add_f32 {vr(TT+i,2)}, {vr(TT+i,2)}, 1.0 op_sel_hi:[1,0]")
    for i in range(16): b(f"v_rcp_f32 v{TT+i}, v{TT+i}")
    for i in range(0, 16, 2): b(f"v_pk_mul_f32 {vr(G+i,2)}, {vr(G+i,2)}, {vr(TT+i,2)}")
    for n_, l in enumerate(b.lines):
        if n_ % 8 == 0: pump(1, c.NR)
        a(l)
    while ws.held < c.NR: pump(1, c.NR)
    a(FL_LOAD)
    while pend or nxt[0]: pump(1, c.NR)
    for ct in range(4): a(f"buffer_load_dwordx2 {vr(XR+2*ct,2)}, v30, {srd(sXX)}, 0 offen offset:{ct*32}")
    a("@stamp held rt")
    a(FL_OK + "\ns_cbranch_scc0 L_spin_fl\nL_ok_fl:")
    a("@stamp flags rt")
    RING = [192, 208, 224, 240, 32, 48]
    assert c.DO < len(RING)
    steps = list(range(c.NR, 32)) + list(range(c.NR))
    def ring(i): return lambda j: vr(RING[i % (c.DO + 1)] + 4 * j, 4)
    for i in range(c.DO0): emit(flat(t_bload(c, steps[i], ring(i))))
    nl = 32 - c.NR
    a(f"@waitvm t{steps[0]}")
    emit(t_reads(ws.slot[steps[0]], abuf(0)))
    L = a.lines
    sc = Sched()
    for i, n in enumerate(steps):
        A = abuf(i) if i < nl else hold(n)
        order = [(ct, j) for ct in range(4) for j in range(4)] if i < 31 else [(ct, j) for j in (1, 2, 3, 0) for ct in range(4)]
        for ct, j in order:
            d = vr(acc(ct, j), 4)
            sc.add(f"{M16} {d}, {A(ct)}, {ring(i)(j)}, {'0' if i == 0 else d}")
    nb = c.DO0
    for i, n in enumerate(steps):
        st = 16 * i
        grp = []
        if nb < 32 and nb <= i + c.DO: grp += t_bload(c, steps[nb], ring(nb)); nb += 1
        if i < nl and ws.nxt < 32:
            sc.sal[st].append(f"@dep v{AB + (i & 1) * 16 + 15}")
            grp += ws.fill(ws.slot[n])
        elif nb < 32 and nb <= i + c.DO: grp += t_bload(c, steps[nb], ring(nb)); nb += 1
        if i in (1, 9, 18): sc.sal[st].append(f"@stamp o{i}")
        if grp: place_group(sc, grp, st, st + 15, sp=(1 if len(grp) > 4 else 3))
        if i + 1 < nl:
            sc.sal[st].append(f"@waitvm t{steps[i+1]}")
            cur = st
            for l in t_reads(ws.slot[steps[i + 1]], abuf(i + 1)): cur = sc.place_mem(l, cur, st + 14)
    b = Asm()
    for j in range(1, 4):
        b(f"""s_add_u32 s{sT}, s{sVM}, {(j-1)*VSLOT}
v_add_u32 v{EX+j-1}, s{sT}, v{VL}
s_xor_b32 s{sT}, s{sW}, {j}
s_mul_i32 s{sT}, s{sT}, {VCH}
s_add_u32 s{sT}, s{sT}, {VBASE+(j-1)*VSLOT}
v_add_u32 v{EX+4+j-1}, s{sT}, v{VL}""")
    XU = EX + 16
    for i in range(8): b(f"v_lshlrev_b32 v{XU+2*i}, 16, v{XR+i}\nv_and_b32 v{XU+2*i+1}, 0xffff0000, v{XR+i}")
    assert nl <= 28
    for n_, l in enumerate(b.lines): sc.valu[16 * 29 + n_].append(l.strip())
    L += sc.lines()
    a = Asm()
    a("@stamp oproj rt")
    for j in range(1, 4):
        for ct in range(4): a(f"ds_write_b128 v{EX+j-1}, {vr(acc(ct,j),4)} offset:{ct*1024}")
    a("s_waitcnt lgkmcnt(0)\ns_barrier")
    for ct in range(4):
        for j in range(1, 4): a(f"ds_read_b128 {vr(acc(ct,j),4)}, v{EX+4+j-1} offset:{ct*1024}")
    for ct in range(4):
        r = SA + 4 * ct
        for j in range(1, 4):
            for h in (0, 2): a(f"v_pk_add_f32 {vr(r+h,2)}, {vr(r+h,2)}, {vr(acc(ct,j)+h,2)}")
        for h in (0, 2): a(f"v_pk_fma_f32 {vr(r+h,2)}, {vr(r+h,2)}, {vr(G+4*ct+h,2)}, {vr(XU+4*ct+h,2)}")
        a(f"v_cvt_pk_bf16_f32 v{r}, v{r}, v{r+1}\nv_cvt_pk_bf16_f32 v{r+1}, v{r+2}, v{r+3}")
        a(f"buffer_store_dwordx2 {vr(r,2)}, v30, {srd(sOUT)}, 0 offen offset:{ct*32}")
    return L + a.lines

def fallback(c):
    a = Asm()
    T = P0
    a(f"L_fallback:\ns_mov_b32 s{sTRY}, 1\ns_mov_b32 s{sLOOP}, 0")
    for qt in range(4): a(f"v_mov_b32 v{T+qt}, 0xff800000")
    a(f"""L_fb_loop:
s_waitcnt vmcnt(0) lgkmcnt(0)
s_barrier
s_mov_b32 m0, s{sKM}
s_nop 0""")
    for i in range(4): a(f"buffer_load_dwordx4 v{VD}, {srd(sK)}, s{sLOOP} offen offset:{i*1024} lds")
    a("s_waitcnt vmcnt(0)\ns_barrier")
    for l in k_reads(0): a(l)
    a("s_waitcnt lgkmcnt(0)")
    for l in k_reads(1): a(l)
    a("s_waitcnt lgkmcnt(0)")
    for par in range(2):
        for l in qk_mfmas(par, True): a(l)
        a("s_nop 7")
        for qt in range(4):
            for k in range(0, 8, 2): a(f"v_max3_f32 v{T+qt}, v{T+qt}, v{S(par,qt)+k}, v{S(par,qt)+k+1}")
    a(f"s_add_u32 s{sLOOP}, s{sLOOP}, 0x4000\ns_cmp_lt_u32 s{sLOOP}, 0x80000\ns_cbranch_scc1 L_fb_loop")
    for sw in ("v_permlane32_swap_b32", "v_permlane16_swap_b32"):
        for qt in range(4): a(f"v_mov_b32 v{T+4+qt}, v{T+qt}")
        for qt in range(4): a(f"{sw} v{T+qt}, v{T+4+qt}")
        for qt in range(4): a(f"v_max_f32 v{T+qt}, v{T+qt}, v{T+4+qt}")
    for qt in range(4):
        for k in range(4): a(f"v_sub_f32 v{NEGM+qt*4+k}, 0, v{T+qt}")
    a("s_barrier")
    for kind, t in (("K", 0), ("K", 1), ("V", 0), ("K", 2), ("K", 3), ("V", 1), ("V", 2)):
        for l in flat(dma_kv(kind, t)): a(l)
    b2_init(a)
    a("s_waitcnt vmcnt(0)\ns_barrier")
    for l in k_reads(0): a(l)
    a("s_waitcnt lgkmcnt(0)")
    for l in k_reads(1): a(l)
    a("s_waitcnt lgkmcnt(0)\ns_branch L_attn")
    return a.lines

def resolve_deps(lines):
    return [f"v_cmp_eq_u32 vcc, {l.split()[1]}, {l.split()[1]} ;dep" if l.startswith("@dep") else l for l in lines]

def kernel_A(c):
    ws = WStream()
    L = [l.strip() for l in setup_A(c)]
    L += [l.strip() for l in gemm1(c)]
    L += ["@stamp gemm_end rt"] + [l.strip() for l in epi1(c)]
    L += ["@stamp epi1_end", "L_attn:"] + [l.strip() for l in attention(c, ws)]
    L += ["@stamp loop_end rt"] + [l.strip() for l in tail(c, ws)]
    L = resolve_deps(L)
    L, _, _ = auto_wait(L)
    L = [l for l in L if not l.endswith(";dep")]
    L = fix_hazards(L)
    if c.trace:
        for t in salu_trace(L, {"s2": c.trace[0], "rfl": c.trace[1]}): print(t, file=sys.stderr)
    pos = {int(l.split()[1]): i for i, l in enumerate(L) if l.startswith("@seg")}
    strip = lambda ls: [l.split(";")[0].strip() for l in ls if not l.startswith("@")]
    seg = {k: strip(L[pos[k]:pos[k + 1]]) for k in range(31)}
    k0, k1 = 1, 29
    if seg[1] != seg[5]:
        for k in range(1, 5):
            assert len(seg[k]) == len(seg[k + 4])
            for x, y in zip(seg[k], seg[k + 4]):
                if x != y:
                    wx, wy = dict(_w.findall(x)), dict(_w.findall(y))
                    assert x.startswith("s_waitcnt") and all(int(wy.get(n, 99)) <= int(v) for n, v in wx.items()), (k, x, y)
    for k in range(5, k1 - 4): assert seg[k] == seg[k + 4], k
    body = sum((seg[k] for k in range(5, 9)), [])
    im = [i for i, l in enumerate(body) if l.startswith("v_mfma")]
    j = max(i for i, l in enumerate(body) if l.startswith(("s_add", "s_min", "s_mul", "s_xor", "s_lshl", "s_cmp")))
    cand = [i for i in im if i > j and not body[i + 1].startswith("s_")]
    body.insert(cand[1] + 1, f"s_cmp_lg_u32 s{sLOOP}, 0"); body.insert(cand[0] + 1, f"s_sub_u32 s{sLOOP}, s{sLOOP}, 1")
    head = L[:pos[k0]]
    jb = max(i for i, l in enumerate(head) if l.startswith("v_mfma") and not head[i + 1].startswith("s_"))
    head.insert(jb + 1, f"s_mov_b32 s{sLOOP}, {(k1-k0)//4}")
    out = head + ["@seg 1", "L_loop:"] + body + ["s_cbranch_scc1 L_loop"] + L[pos[k1]:]
    a = Asm()
    a("s_cmp_ge_u32 s2, 256\ns_cbranch_scc1 L_endA")
    stamp = Stamps()
    stamp(c, a, "start", True)
    for l in out:
        if l.startswith("@stamp"): stamp(c, a, l.split()[1], len(l.split()) > 2)
        elif l.startswith("@seg 0"): stamp(c, a, "loop_start", True)
        elif l.startswith("@seg"): stamp(c, a, "seg" + l.split()[1])
        elif l.startswith("@"): continue
        else: a(l.split(";tag")[0].rstrip())
    if c.diag:
        stamp(c, a, "final"); a("s_waitcnt vmcnt(0)"); stamp(c, a, "end", True); stamp.out(c, a, WS_ST, sWS, sW)
    a("L_endA:\ns_endpgm")
    for l in spin("cnt", CNT_LOAD, CNT_OK, "L_ok_cnt") + spin("fl", FL_LOAD, FL_OK, "L_ok_fl"): a(l)
    for l in fix_hazards([l.strip() for l in fallback(c)]): a(l.split(";tag")[0].rstrip())
    a("L_last:\ns_endpgm")
    return a.lines
import re
_w = re.compile(r"(vmcnt|lgkmcnt)\((\d+)\)")

def gen(c):
    A = kernel_A(c)
    a = Asm()
    k = NAME + "_kernel"
    a(f"; @launch grid=(256,1,1) block=(256,1,1) lds={LDS_A}")
    a('.amdgcn_target "amdgcn-amd-amdhsa--gfx950"\n.text')
    a(f".globl {k}\n.p2align 8\n.type {k},@function\n{k}:")
    a.lines += A
    a('.section .rodata,"a"\n.p2align 6')
    a(kdesc(k, 512, 256))
    return a.text()

if __name__ == "__main__":
    kw = {}
    for s in sys.argv[2:]:
        k, v = s.split("=", 1); kw[k] = eval(v)
    open(sys.argv[1], "w").write(gen(Cfg(**kw)))
```

```python
import sys, math, copy
from asmlib import *
NAME = "recurrent_scan__gqa_block_cached__dense_activation_gelu__prompt"
M16 = "v_mfma_f32_16x16x32_bf16"
SMF = "v_smfmac_f32_16x16x64_bf16"

class Cfg:
    diag = False
    shift = 102.0
    SM0 = 12
    BAR = 113
    pvorder = "bshare"
    stflags = "sc1"
    ldflags = "sc1"
    NR = 14
    DO0 = 3
    mix = True
    WPS = 2
    DO = 3
    rot = 0
    rot2 = 7
    touch = True
    fakew = False
    fakeo = False
    kvflags = 'nt'
    fwflags = ''
    fhflags = 'sc1'
    FPOS = (44, 92)
    VPOS = 8
    KPOS = 60
    RS = 0
    H31 = 3
    NB1 = 7
    force_fallback = False
    trace = None
    nostamp = ('b3', 'b4', 'b5')
    codepf = True
    codepf2 = True
    GBAR = 14
    RSPOS = 0
    GLO = 4
    G0 = 12
    nofb = False
    slp = 8
    recenter = (0, 6)
    l2n = 0
    stagger = 0
    NLATE = 10
    flagmode = 'store'
    pollflags = 'sc1'
    outflags = ''
    GSP = 4
    def __init__(self, **kw):
        for k, v in kw.items():
            assert hasattr(self, k), k
            setattr(self, k, v)

WS_O = 0
WS_H = 0x1000000
H_RT = 43 * 4096
WS_FL = 0x1800000
WS_RS = 0x1810000
WS_ST = 0x8000000
NS = 4
KSLOT = 16416; VCH = 4128; VSLOT = 4 * VCH
VBASE = NS * KSLOT
XBASE = KSLOT; XSLOT = 32832
WCH = 6176; WSLOT = 4 * WCH
WBASE = VBASE + VSLOT
CWBASE = WBASE + 3 * WSLOT
FLBASE = CWBASE + 768
LDS_A = FLBASE + 64
assert XBASE + XSLOT + 32768 <= WBASE and XBASE + XSLOT >= 3 * KSLOT and LDS_A <= 163840 and VBASE + NS * VSLOT <= LDS_A
VK, VV, VD, VIDX, VOA, VOB = 2, 3, 4, 5, 6, 7
SMA = 8
VDW, VL, VFE, VFO = 12, 13, 14, 15
NEGM = 16; S0 = 32; P0 = 96; O0 = 128
FA = 64
VRA = 80
VPA, VONE, VPD, VDG = 86, 87, 1, 95
VX0, VX1, VXR, VWQ, VW1, VWR, VCQ, VCF, VC0, VC1, VCR, VH1 = range(16, 28)
B1F = 32; SX = 48
def S(par, qt, t=0): return S0 + qt * 8 + t * 4
def P(par, qt): return P0 + qt * 8 + par * 4
def O(dt, qt): return O0 + (dt * 4 + qt) * 4
def ACC(T, qt): return O0 + (T * 4 + qt) * 4 if T < 8 else 96 + ((T - 8) * 4 + qt) * 4 if T < 10 else 64 + ((T - 10) * 2 + qt) * 4
def Q(qt, ks): return (qt * 4 + ks) * 4
def KF(u, t, ks): return 64 + (u & 1) * 32 + (t * 4 + ks) * 4
def VF(u, dt): return 128 + (u & 1) * 32 + dt * 4
def LA(qt): return 192 + qt * 4
def XF(kb, qt, s): return 64 + (kb & 1) * 32 + qt * 8 + s * 4
NWR = 6
def WF(n, s): return 128 + (n % NWR) * 8 + s * 4
def CF(j, s): return 176 + j * 8 + s * 4
CWA = 200
sK, sV, sWS, sX, sWQ, sF0, sF1, sDBG = 4, 8, 12, 16, 20, 24, 28, 32
sW, sHEAD, sQB, sPAR, sKM, sVM, sVO, sLOOP, sROT, sKO, sXM, sWM, sP0, sP1, sTRY, sSH = range(36, 52)
sT = 52
sWO, sXX, sW2, sOUT, sB2 = 60, 64, 68, 72, 76
sRO, sFM, sKW, sOB, sHB, sFW, sFH, sHS0, sHS1, sFLO = range(80, 90)
sGX = 3
sXA, sXB = 94, 95
sTO, sTC = 94, 95; VTO = 92
sRC = 93; VCP = 94
XB = VBASE + 4 * VSLOT
def srd(b): return f"s[{b}:{b+3}]"

class Stamps:
    def __init__(self): self.names = []; self.rt = []
    def __call__(self, c, a, name, rt=False):
        if not c.diag or name in c.nostamp: return
        i = len(self.names); self.names.append(name); assert i < 40
        a(f"s_memtime s[96:97]\ns_waitcnt lgkmcnt(0)\nv_writelane_b32 v{VDG}, s96, {i}")
        if rt:
            a(f"s_memrealtime s[96:97]\ns_waitcnt lgkmcnt(0)\nv_writelane_b32 v{VDG}, s96, {40+len(self.rt)}"); self.rt.append(name)
    def out(self, c, a, base, ws, wave):
        if not c.diag: return
        a(f"""s_lshl_b32 s{sT}, s2, 2
s_add_u32 s{sT}, s{sT}, s{wave}
s_lshl_b32 s{sT}, s{sT}, 8
s_add_u32 s{sT}, s{sT}, {base}
v_lshlrev_b32 v1, 2, v0
buffer_store_dword v{VDG}, v1, {srd(ws)}, s{sT} offen""")

def mk_srd(a, d, lo, hi, off, size):
    if off is None: a(f"s_mov_b32 s{d}, s{lo}\ns_mov_b32 s{d+1}, s{hi}")
    else: a(f"s_add_u32 s{d}, s{lo}, {off}\ns_addc_u32 s{d+1}, s{hi}, 0")
    a(f"s_mov_b32 s{d+2}, {size}\ns_mov_b32 s{d+3}, 0x20000")

L3, L23, L4 = 28, 29, 30
RSV = 48
def setup_A(c):
    a = Asm()
    a(f"""s_load_dwordx16 s[64:79], s[0:1], 0
s_load_dwordx8 s[80:87], s[0:1], 64
s_load_dwordx2 s[88:89], s[0:1], 96
v_lshrrev_b32 v1, 6, v0
v_and_b32 v0, 63, v0
s_and_b32 s{sGX}, s2, 7
v_readfirstlane_b32 s{sW}, v1
s_bfe_u32 s{sQB}, s2, 0x30003
s_lshr_b32 s{sT+1}, s2, 6
s_lshl_b32 s{sHEAD}, s{sGX}, 2
s_add_u32 s{sHEAD}, s{sHEAD}, s{sT+1}
s_and_b32 s{sPAR}, s{sHEAD}, 1
s_xor_b32 s{sROT}, s{sT+1}, s{sQB}
s_and_b32 s{sROT}, s{sROT}, {c.rot}
s_lshr_b32 s{sT}, s{sHEAD}, 1
s_mul_i32 s{sT}, s{sT}, 3
s_add_u32 s{sP1}, s{sT}, 1
s_lshl_b32 s{sT+1}, s{sPAR}, 1
s_add_u32 s{sP0}, s{sT}, s{sT+1}
s_add_u32 s{sT+1}, s{sHEAD}, 11
s_cmp_lt_u32 s{sHEAD}, 22
s_cselect_b32 s{sP0}, s{sP0}, s{sT+1}
s_cselect_b32 s{sP1}, s{sP1}, 0
s_lshl_b32 s{sXM}, s{sW}, 13
s_add_u32 s{sXM}, s{sXM}, {XBASE}
s_mul_i32 s{sWM}, s{sW}, {WCH}
s_add_u32 s{sWM}, s{sWM}, {WBASE}
v_and_b32 v{L3}, 3, v0
v_bfe_u32 v{L23}, v0, 2, 2
v_lshrrev_b32 v{L4}, 4, v0
v_lshlrev_b32 v{VL}, 4, v0
s_lshl_b32 s{sT+2}, s{sQB}, 8
s_lshl_b32 s{sT+3}, s{sHEAD}, 3
s_add_u32 s{sT+2}, s{sT+2}, s{sT+3}
s_lshl_b32 s{sT+3}, s{sW}, 1
s_add_u32 s{sKO}, s{sT+2}, s{sT+3}
s_lshl_b32 s{sT+2}, s{sKO}, 10
v_add_u32 v91, s{sT+2}, v{VL}
v_and_b32 v1, 1, v{L4}
v_lshlrev_b32 v1, 1, v1
v_xor_b32 v1, v1, v{L3}
v_lshlrev_b32 v{VDW}, 4, v1
v_lshrrev_b32 v31, 2, v0
v_lshl_add_u32 v{VX0}, v31, 10, v{VDW}
s_bfe_u32 s{sT}, s{sHEAD}, 0x10001
s_lshl_b32 s{sT+1}, s{sT}, 14
v_add_u32 v{VX0}, s{sT+1}, v{VX0}
v_xor_b32 v{VX1}, 0x4000, v{VX0}
s_lshl_b32 s{sT}, s{sT}, 11
s_add_u32 s{sXA}, s{sXM}, s{sT}
s_xor_b32 s{sT}, s{sT}, 0x800
s_add_u32 s{sXB}, s{sXM}, s{sT}
s_lshl_b32 s{sT}, s{sW}, 3
v_add_u32 v1, s{sT}, v{L23}
v_lshlrev_b32 v31, 4, v{L3}
v_lshl_add_u32 v{VD}, v{L4}, 6, v31
v_lshl_add_u32 v{VWQ}, v1, 13, v{VD}
v_lshrrev_b32 v{VW1}, 5, v0
v_lshl_add_u32 v1, v{VW1}, 5, v1
v_and_b32 v{VW1}, 1, v{L4}
v_lshl_add_u32 v1, v{VW1}, 2, v1
v_mul_u32_u24 v1, 2752, v1
v_add_u32 v{VW1}, v1, v31
s_lshl_b32 s{sT}, s{sQB}, 2
s_add_u32 s{sT+1}, s{sT}, s{sW}
s_lshl_b32 s{sT}, s{sT+1}, 16""")
    a("s_waitcnt lgkmcnt(0)")
    a("@stamp karg")
    mk_srd(a, sX, 64, 65, f"s{sT}", 65536)
    L = a.lines + flat(dma_x(0)[:2])
    a = Asm()
    a(f"s_lshl_b32 s{sT}, s{sHEAD}, 8")
    mk_srd(a, sWQ, 70, 71, f"s{sT}", 512 * 8192 - 8192 + 256)
    a(f"s_lshl_b32 s{sT}, s{sP0}, 6")
    mk_srd(a, sF0, 76, 77, f"s{sT}", 512 * 2752 - 2752 + 64)
    a(f"s_lshl_b32 s{sT}, s{sP1}, 6")
    mk_srd(a, sF1, 76, 77, f"s{sT}", 512 * 2752 - 2752 + 64)
    a(f"s_cmp_lt_u32 s{sHEAD}, 22\ns_cselect_b32 s{sF1+2}, s{sF1+2}, 0\ns_mov_b64 s[98:99], s[64:65]")
    return L + a.lines + flat(dma_w(0))

B1R = [28, 30, 60, 62]
def side_loads():
    return [([], f"global_load_dwordx4 {vr(RSV+4*i,4)}, v91, s[98:99] offset:{i*1024}") for i in range(2)] + \
           [([], f"global_load_dwordx2 {vr(B1R[i],2)}, v{88 + i//2}, s[92:93] offset:{(i&1)*32}") for i in range(4)]

def setup_A2(c):
    a = Asm()
    if c.codepf:
        a(f"""s_getpc_b64 s[90:91]
L_pc:
s_lshr_b32 s{sT}, s2, 3
s_lshl_b32 s{sT}, s{sT}, 2
s_add_u32 s{sT}, s{sT}, s{sW}
s_lshl_b32 s{sT}, s{sT}, 9
v_lshl_add_u32 v{VCP}, v{L3}, 7, s{sT}
v_min_u32 v{VCP}, L_last-L_pc, v{VCP}
global_load_dword v255, v{VCP}, s[90:91]""")
    a(f"""; b1 (D layout): 4 bf16 at (pair*32 + 16a + 4g)
s_lshl_b32 s{sT}, s{sP0}, 6
s_lshl_b32 s{sT+1}, s{sP1}, 6
v_lshl_add_u32 v88, v{L4}, 3, s{sT}
v_lshl_add_u32 v89, v{L4}, 3, s{sT+1}
s_mov_b64 s[92:93], s[78:79]
s_lshl_b32 s{sT}, s{sHEAD}, 19""")
    mk_srd(a, sK, 66, 67, f"s{sT}", 0x80000)
    mk_srd(a, sV, 68, 69, f"s{sT}", 0x80000)
    mk_srd(a, sWS, 88, 89, None, 0x10000000)
    mk_srd(a, sDBG, 86, 87, None, 256)
    a(f"s_lshl_b32 s{sT}, s{sQB}, 7")
    mk_srd(a, sWO, 72, 73, f"s{sT}", 4096 * 1024 - 896)
    mk_srd(a, sW2, 80, 81, f"s{sT}", 1376 * 1024 - 896)
    mk_srd(a, sB2, 82, 83, f"s{sT}", 128)
    a(f"s_lshl_b32 s{sT+1}, s{sHEAD}, 16\ns_add_u32 s{sT+1}, s{sT+1}, s{sT}")
    mk_srd(a, sXX, 64, 65, f"s{sT+1}", 65536 - 896)
    mk_srd(a, sOUT, 84, 85, f"s{sT+1}", 65536 - 896)
    T = 31
    a(f"""s_lshr_b32 s{sRO}, s2, 6
s_lshl_b32 s{sRO}, s{sRO}, 1
s_xor_b32 s{sRO}, s{sRO}, s{sQB}
s_and_b32 s{sRO}, s{sRO}, {c.rot2}
s_lshl_b32 s{sKW}, s{sW}, 5
s_lshl_b32 s{sT+4}, s{sW}, 10
s_add_u32 s{sFM}, s{sT+4}, {XB}
s_lshl_b32 s{sOB}, s{sHEAD}, 19
s_add_u32 s{sOB}, s{sOB}, s{sT+4}
s_mul_i32 s{sHB}, s{sHEAD}, {H_RT}
s_add_u32 s{sHB}, s{sHB}, s{sT+4}
s_add_u32 s{sHB}, s{sHB}, {WS_H}
s_lshl_b32 s{sT+4}, s{sQB}, 2
s_add_u32 s{sT+4}, s{sT+4}, s{sW}
s_mul_i32 s{sT+4}, s{sT+4}, {H_RT}
s_add_u32 s{sT+4}, s{sT+4}, {WS_H}
s_lshl_b32 s{sHS0}, s{sP0}, 12
s_add_u32 s{sHS0}, s{sHS0}, s{sT+4}
s_lshl_b32 s{sHS1}, s{sP1}, 12
s_add_u32 s{sHS1}, s{sHS1}, s{sT+4}
s_lshl_b32 s{sFLO}, s{sQB}, 8
s_lshl_b32 s{sT+4}, s{sHEAD}, 2
s_add_u32 s{sFLO}, s{sFLO}, s{sT+4}
s_add_u32 s{sFLO}, s{sFLO}, {WS_FL}
s_lshr_b32 s{sT+4}, s{sW}, 1
s_lshl_b32 s{sT+4}, s{sT+4}, 4
s_lshl_b32 s{sKM}, s{sW}, 12
s_add_u32 s{sKM}, s{sKM}, s{sT+4}
s_mul_i32 s{sVM}, s{sW}, {VCH}
s_add_u32 s{sVM}, s{sVM}, {VBASE}
s_mov_b32 s{sTRY}, 0
s_mov_b32 s{sSH}, {f2u(c.shift)}
v_lshl_add_u32 v{VD}, v{L23}, 8, v{VD}
s_lshl_b32 s{sT+4}, s{sW}, 12
v_add_u32 v{VD}, s{sT+4}, v{VD}
v_and_b32 v1, 1, v{L23}
v_lshlrev_b32 v1, 1, v1
v_xor_b32 v1, v1, v{L4}
v_lshlrev_b32 v1, 4, v1
v_and_b32 v{T}, 15, v0
v_lshl_add_u32 v1, v{T}, 6, v1
v_add_u32 v{VXR}, s{sXM}, v1
s_lshl_b32 s{sT+4}, s{sW}, 7
s_add_u32 s{sT+4}, s{sT+4}, {CWBASE}
s_lshl_b32 s{sT+5}, s{sW}, 6
s_add_u32 s{sT+5}, s{sT+5}, {CWBASE+512}
v_lshl_add_u32 v{VC0}, v{T}, 2, s{sT+4}
v_lshl_add_u32 v{VC1}, v{T}, 2, s{sT+5}
v_lshlrev_b32 v{VCR}, 4, v{L4}
v_add_u32 v{VCR}, {CWBASE}, v{VCR}
s_lshl_b32 s{sT+4}, s{sPAR}, 8
v_lshl_add_u32 v92, v{T}, 3, s{sT+4}
v_xor_b32 v93, 0x100, v92
v_lshlrev_b32 v1, 3, v{L3}
v_lshl_add_u32 v1, v{L23}, 6, v1
v_mul_u32_u24 v{VWR}, {WCH}, v{L4}
v_add_u32 v{VWR}, v{VWR}, v1
v_add_u32 v{VWR}, {WBASE}, v{VWR}
v_mul_u32_u24 v{VV}, {VCH}, v{L4}
v_add_u32 v{VV}, v{VV}, v1
v_add_u32 v{VV}, {VBASE}, v{VV}
s_lshl_b32 s{sT+4}, s{sW}, 8
v_add_u32 v{VCQ}, s{sT+4}, v{VWR}
s_lshr_b32 s{sT+4}, s{sW}, 1
s_lshl_b32 s{sT+4}, s{sT+4}, 10
s_and_b32 s{sT+5}, s{sW}, 1
s_lshl_b32 s{sT+5}, s{sT+5}, 5
s_add_u32 s{sT+4}, s{sT+4}, s{sT+5}
v_add_u32 v{VCF}, s{sT+4}, v{VWR}
v_lshrrev_b32 v{T}, 1, v{L4}
v_lshl_add_u32 v1, v{T}, 10, v1
v_lshl_add_u32 v{VDW}, v{T}, 6, v{VDW}
v_and_b32 v{T}, 1, v{L4}
v_lshl_add_u32 v1, v{T}, 8, v1
v_lshl_add_u32 v1, v{T}, 5, v1
v_xor_b32 v{T}, 32, v1
v_add_u32 v{VRA}, s{sKM}, v1
v_add_u32 v{VRA+1}, s{sKM}, v{T}
v_add_u32 v{VRA+2}, s{sVM}, v1
v_add_u32 v{VRA+3}, s{sVM}, v{T}
v_add_u32 v{VRA+4}, {4*VSLOT}, v{VRA+2}
v_add_u32 v{VRA+5}, {4*VSLOT}, v{VRA+3}
v_add_u32 v{VFE}, {XB}, v1
v_add_u32 v{VFO}, {XB}, v{T}
v_bfe_u32 v{T}, v0, 2, 3
v_lshl_add_u32 v{VDW}, v{T}, 10, v{VDW}
v_and_b32 v{VPA}, 7, v0
v_lshlrev_b32 v{VPA}, 2, v{VPA}
v_lshrrev_b32 v1, 1, v{L23}
v_lshlrev_b32 v1, 4, v1
v_lshl_add_u32 v1, v{L23}, 12, v1
v_lshl_add_u32 v1, v{L3}, 6, v1
v_and_b32 v{VK}, 1, v{L4}
v_lshl_add_u32 v1, v{VK}, 5, v1
v_lshrrev_b32 v{VK}, 1, v{L4}
v_lshl_add_u32 v{VK}, v{VK}, 4, v1
; store voffsets (workgroups without an extra FFN pair send those stores out of range)
s_lshl_b32 s{sT+4}, s{sPAR}, 11
v_add_u32 v{VOA}, s{sT+4}, v{VL}
v_xor_b32 v{VOB}, 0x800, v{VOA}
s_cmp_lt_u32 s{sHEAD}, 22
s_cselect_b32 s{sT+4}, 0, 0x10000000
v_add_u32 v{VH1}, s{sT+4}, v{VOA}
v_or_b32 v1, s{sW}, v0
v_cmp_eq_u32 vcc, 0, v1
v_mov_b32 v1, 0x10000000
v_cndmask_b32 v{VONE}, v1, 0, vcc
; row-sum operand: ones in rows 0,1 mod 4; index picks k%4 in (0,1) / (2,3)
v_cmp_gt_u32 vcc, 2, v{L3}
v_mov_b32 v1, 0x3f803f80
v_mov_b32 v{T}, 0x44444444
v_cndmask_b32 v{SMA}, 0, v1, vcc
v_cndmask_b32 v{SMA+1}, 0, v1, vcc
v_cndmask_b32 v{SMA+2}, 0, v1, vcc
v_cndmask_b32 v{SMA+3}, 0, v1, vcc
v_cmp_eq_u32 vcc, 1, v{L3}
v_mov_b32 v{VIDX}, 0xeeeeeeee
v_cndmask_b32 v{VIDX}, v{T}, v{VIDX}, vcc""")
    for r in range(12): a(f"v_accvgpr_write_b32 a{CWA+r}, 0")
    return a.lines

def row_stats(c):
    a = Asm()
    s0, s1, q0, q1 = RSV + 8, RSV + 9, RSV + 10, RSV + 11
    a(f"v_mov_b32 v{s0}, 0\nv_mov_b32 v{s1}, 0\nv_mov_b32 v{q0}, 0\nv_mov_b32 v{q1}, 0\nv_mov_b32 v1, 0x3f803f80")
    for e in range(4):
        a(f"v_dot2c_f32_bf16 v{s0}, v{RSV+e}, v1\nv_dot2c_f32_bf16 v{q0}, v{RSV+e}, v{RSV+e}")
        a(f"v_dot2c_f32_bf16 v{s1}, v{RSV+4+e}, v1\nv_dot2c_f32_bf16 v{q1}, v{RSV+4+e}, v{RSV+4+e}")
    a(f"""s_nop 2
v_permlane32_swap_b32 v{s0}, v{s1}
v_permlane32_swap_b32 v{q0}, v{q1}
v_add_f32 v{s0}, v{s0}, v{s1}
v_add_f32 v{q0}, v{q0}, v{q1}
v_mov_b32 v{s1}, v{s0}
v_mov_b32 v{q1}, v{q0}
v_permlane16_swap_b32 v{s0}, v{s1}
v_permlane16_swap_b32 v{q0}, v{q1}
v_add_f32 v{s0}, v{s0}, v{s1}
v_add_f32 v{q0}, v{q0}, v{q1}""")
    for sh in (8, 4, 2, 1):
        a(f"v_add_f32_dpp v{s0}, v{s0}, v{s0} row_ror:{sh} row_mask:0xf bank_mask:0xf\nv_add_f32_dpp v{q0}, v{q0}, v{q0} row_ror:{sh} row_mask:0xf bank_mask:0xf")
    a(f"""v_mul_f32 v88, {f2u(-1/512)}, v{s0}
v_mul_f32 v{q0}, {f2u(1/512)}, v{q0}
v_fma_f32 v{q0}, -v88, v88, v{q0}
v_max_f32 v{q0}, 0, v{q0}
v_add_f32 v{q0}, {f2u(1e-5)}, v{q0}
v_rsq_f32 v89, v{q0}
v_lshrrev_b32 v1, 5, v0
v_lshlrev_b32 v1, 3, v1
s_lshl_b32 s{sT}, s{sKO}, 3
s_add_u32 s{sT}, s{sT}, {WS_RS}
buffer_store_dwordx2 v[88:89], v1, {srd(sWS)}, s{sT} offen sc1 ;tag=sst
v_mov_b32 v91, 0
buffer_store_dword v91, v{VONE}, {srd(sWS)}, s{sFLO} offen sc1 ;tag=sst
v_mov_b32 v90, 1""")
    for i in range(8): a(f"v_lshlrev_b32 v{B1F+2*i}, 16, v{B1R[i//2]+(i&1)}\nv_and_b32 v{B1F+2*i+1}, 0xffff0000, v{B1R[i//2]+(i&1)}")
    return [l.strip() for l in a.lines]

def dma_x(kb):
    A, B = sT + 2, sT + 3
    g = []
    for qt in range(4):
        for s in range(2):
            pre = []
            if qt == 0 and s == 0:
                pre += [f"s_xor_b32 s{A}, s{sROT}, {kb}", f"s_lshl_b32 s{A}, s{A}, 7", f"s_lshl_b32 s{B}, s{sPAR}, 15",
                        f"s_add_u32 s{A}, s{A}, s{B}", f"s_xor_b32 s{B}, s{A}, 0x8000"]
            pre.append(f"s_add_u32 m0, s{sXB if qt & 1 else sXA}, {(kb & 1) * XSLOT + (qt >> 1) * 4096 + s * 960}")
            g.append((pre, f"buffer_load_dwordx4 v{VX1 if qt & 1 else VX0}, {srd(sX)}, s{B if qt >= 2 else A} offen offset:{s*64} lds ;tag=x{kb}"))
    return g
def dma_w(kb):
    A, B, C = sT + 4, sT + 5, sT + 6
    base = (kb % 3) * WSLOT
    g = []
    for i in range(4):
        s, t = i >> 1, i & 1
        if i == 0:
            pre = [f"s_xor_b32 s{C}, s{sROT}, {kb}", f"s_lshl_b32 s{A}, s{C}, 19", f"s_mul_i32 s{C}, s{C}, {64*2752}", f"s_add_u32 m0, s{sWM}, {base}"]
            so = A
        else:
            pre = [f"s_add_u32 s{B}, s{A}, {(32*s+4*t)*8192 - i*1024}"]; so = B
        g.append((pre, f"buffer_load_dwordx4 v{VWQ}, {srd(sWQ)}, s{so} offen offset:{i*1024} lds ;tag=w{kb}"))
    g.append(([f"s_add_u32 m0, s{sWM}, {base+4096}"], f"buffer_load_dwordx4 v{VW1}, {srd(sF0)}, s{C} offen lds ;tag=w{kb}"))
    g.append(([f"s_add_u32 m0, s{sWM}, {base+5120}"], f"buffer_load_dwordx4 v{VW1}, {srd(sF1)}, s{C} offen lds ;tag=w{kb}"))
    return g
def dma_kv(kind, tile, A=sT + 7):
    g = []
    for i in range(4):
        pre = [f"s_mov_b32 s{A}, {tile*16384}", f"s_add_u32 m0, s{sKM if kind=='K' else sVM}, {(tile%NS)*(KSLOT if kind=='K' else VSLOT)}"] if i == 0 else []
        g.append((pre, f"buffer_load_dwordx4 v{VD}, {srd(sK if kind=='K' else sV)}, s{A} offen offset:{i*1024} lds ;tag={kind}{tile}"))
    return g
def flat(g):
    out = []
    for pre, l in g: out += pre + [l]
    return out
def place_group(sc, g, lo, hi, sp=4):
    cur = lo
    for n_, (pre, l) in enumerate(g):
        start = cur
        h_ = hi - (len(g) - 1 - n_)
        gp = sc.place_mem(l, min(cur + max(len(pre), sp if n_ else 1), h_), h_)
        assert gp > start
        free = [x for x in range(start, gp) if not sc.sal[x]]
        free = [x for x in free if x > start or not any(m.startswith(("buffer_", "global_")) for m in sc.mem[x])]
        if len(free) >= len(pre):
            for x, s_ in zip(free[-len(pre):] if pre else [], pre): sc.sal[x].append(s_)
        else:
            sc.post[gp - 1] += pre
        cur = gp
    return cur

def x_reads(kb):
    return [f"ds_read_b128 {ar(XF(kb,qt,s),4)}, v{VXR} offset:{(kb&1)*XSLOT+(qt*2+s)*1024}" for qt in range(4) for s in range(2)]
def w_off(kb, T, s, t):
    b = (kb % 3) * WSLOT
    return b + (2*s+t)*1024 + (T >> 1)*256 + (T & 1)*32 if T < 8 else b + 4096 + ((T-8) >> 1)*1024 + (2*s+t)*256 + (T & 1)*32
def w_reads(kb, T, n):
    return [f"ds_read_b64_tr_b16 {ar(WF(n,s)+2*t,2)}, v{VWR} offset:{w_off(kb,T,s,t)}" for s in range(2) for t in range(2)]
def c_reads(kb):
    out = []
    for j in range(3):
        for s in range(2):
            for t in range(2):
                if j < 2: out.append(f"ds_read_b64_tr_b16 {ar(CF(j,s)+2*t,2)}, v{VCQ} offset:{w_off(kb,j,s,t)}")
                else: out.append(f"ds_read_b64_tr_b16 {ar(CF(j,s)+2*t,2)}, v{VCF} offset:{w_off(kb,8,s,t)}")
    return out

CWR = [28, 88, 16, 20]
def gemm1(c):
    L = setup_A(c) + ["@stamp first"] + setup_A2(c) + ["@stamp setup"]
    if c.RSPOS == 0: L += flat(side_loads())
    L += flat(dma_x(0)[2:]) + flat(dma_w(1)) + flat(dma_x(1)[:2])
    L += ["@stamp issued", "@waitvm x0"] + x_reads(0) + ["@waitvm w0 lgkm0", "s_barrier", "@stamp b0 rt"]
    TORD = [0, 1, 2, 10, 3, 4, 5, 11, 6, 7, 8, 9]
    L += w_reads(0, TORD[0], 0) + w_reads(0, TORD[1], 1)
    sc = Sched()
    first = {}; last = {}; start = {}; cwg = {}
    for kb in range(8):
        start[kb] = sc.n()
        for n, T in enumerate(TORD if kb < 7 else [0, 1, 8, 10, 9, 2, 11, 3, 4, 5, 6, 7]):
            N = kb * 12 + n
            for qt in range(4 if T < 10 else 2):
                for s in range(2):
                    d = vr(ACC(T, qt), 4)
                    g = sc.add(f"{M16} {d}, {ar(WF(N,s),4)}, {ar(XF(kb,qt,s),4)}, {'0' if kb == 0 and s == 0 else d}")
                    first.setdefault(N, (g, T)); last[N] = g
            if n in (4, 5, 6): cwg[(kb, n - 4)] = sc.add(f"{SMF} {ar(CWA+4*(n-4),4)}, {vr(SMA,4)}, {ar(CF(n-4,0),8)}, v{VIDX}")
    start[8] = sc.n()
    bar = {kb: start[kb] - c.GBAR for kb in range(1, 9)}
    bar[0] = -1
    CNT2 = f"s_lshl_b32 s{sT+7}, s{sQB}, 5"
    for kb in range(8):
        lo, hi = bar[kb] + 1, bar[kb + 1]
        sc.sal[hi] += [f"@waitvm {'sst,w%d' % (kb+1) if kb < 7 else 'K0'} lgkm0", "s_barrier"] + ([f"@stamp b{kb+1}"] if kb < 7 else [])
        grp = []
        if kb == 1: grp += [([CNT2], f"buffer_atomic_add v90, v{VONE}, {srd(sDBG)}, s{sT+7} offen offset:4 sc1")]
        if kb == 0 and c.RSPOS == 1: place_group(sc, side_loads(), 0, hi - 1, sp=1)
        if kb + 1 < 8: grp += dma_x(kb + 1)[2:]
        if kb == 5: grp += [([CNT2], ST_LOAD)]
        if kb + 2 < 8: grp += dma_w(kb + 2) + dma_x(kb + 2)[:2]
        if kb == 6: grp += dma_kv("K", 0, sT + 6)
        if kb == 7: grp += dma_kv("V", 0) + dma_kv("K", 3) + touches(c)
        g0 = lo + c.GLO if kb else c.G0
        if kb == 0: sc.post[g0 - 1] += row_stats(c)
        cur = place_group(sc, grp, g0, hi - 1, sp=(c.GSP if kb else 2))
        xlast = next((g for g in range(hi, lo, -1) if any(f"tag=x{kb+1}" in m for m in sc.mem[g])), lo)
        if kb == 6:
            sc.post[cur + 2] += CNT_OK.split("\n") + ["s_cbranch_scc0 L_spin_st", "L_ok_st:"]
            A = sT + 6
            grp = [([f"s_lshl_b32 s{A}, s{sQB}, 2", f"s_add_u32 s{A}, s{A}, s{sW}", f"s_lshl_b32 s{A}, s{A}, 9", f"s_add_u32 s{A}, s{A}, {WS_RS}"] if qt == 0 else [],
                    f"buffer_load_dwordx2 {vr(SX+4*qt,2)}, v{92 + (qt >> 1)}, {srd(sWS)}, s{A} offen offset:{(qt&1)*128} sc1") for qt in range(4)]
            place_group(sc, grp + dma_kv("K", 1) + dma_kv("K", 2), cur + 3, hi - 1, sp=2)
        ops = []
        for n in range(12):
            N = kb * 12 + n
            if N >= 2: ops += [(l, max(lo, last[N - NWR] if N >= NWR else 0), min(first[N][0] - 5, hi - 4)) for l in w_reads(kb, first[N][1], N)]
        ops += [(l, max(lo, 0), cwg[(kb, n_ // 4)] - 5) for n_, l in enumerate(c_reads(kb))]
        if kb + 1 < 8:
            g = next(x for x in range(max(hi - 22, xlast + 1), sc.n()) if not sc.sal[x])
            sc.sal[g].append(f"@waitvm x{kb+1}")
            ops += [(l, g, hi - 3) for l in x_reads(kb + 1)]
        else:
            g = cwg[(7, 2)] + 6
            for j in range(3):
                sc.valu[g + 2 * j] += [f"v_accvgpr_read_b32 v{28+j}, a{CWA+4*j}"]
                sc.valu[g + 2 * j + 1] += [f"v_accvgpr_read_b32 v31, a{CWA+4*j+1}"]
                sc.valu[g + 2 * j + 2] += [f"v_add_f32 v{28+j}, v{28+j}, v31"]
            ops += [(f"ds_write_b32 v{VC0}, v28", g + 8, hi - 3), (f"ds_write_b32 v{VC0}, v29 offset:64", g + 8, hi - 3), (f"ds_write_b32 v{VC1}, v30", g + 8, hi - 3)]
            cs = math.log2(math.e) / math.sqrt(128.0)
            for qt in range(4): sc.valu[g + 9 + qt].append(f"v_mul_f32 v{SX+4*qt+2}, {f2u(cs)}, v{SX+4*qt+1}")
        sc.place_edf(ops)
    ops = [(f"ds_read_b128 {vr(CWR[j],4)}, v{VCR} offset:{(8+j)*64}", bar[8] + 1, start[8] - 1) for j in range(4)]
    ops += [(l, bar[8] + 1, start[8] - 1) for l in k_reads(0)]
    sc.place_edf(ops)
    print("gemm1 est cycles", sc.est(), file=sys.stderr)
    return L + sc.lines()

def touches(c):
    if not c.touch: return []
    A, B = sT + 4, sT + 5
    return [([f"s_lshl_b32 s{A}, s2, 2", f"s_add_u32 s{A}, s{A}, s{sW}", f"s_lshl_b32 s{B}, s{A}, 5", f"s_sub_u32 s{B}, s{B}, s{sQB}",
              "v_and_b32 v1, 31, v0", f"v_add_lshl_u32 v1, v1, s{B}, 7"], f"buffer_load_dword a254, v1, {srd(sWO)}, 0 offen"),
            ([f"s_mul_i32 s{B}, s{A}, 11", f"s_sub_u32 s{B}, s{B}, s{sQB}", "v_min_u32 v1, 10, v0", f"v_add_lshl_u32 v1, v1, s{B}, 7"],
             f"buffer_load_dword a255, v1, {srd(sW2)}, 0 offen")]

def sprinkle(lines, groups, every):
    out = []; groups = list(groups); k = 0
    for l in lines:
        out.append(l); k += 1
        if groups and k >= every and not l.strip().startswith(("s_cmp", "v_cmp", "s_add", "s_cselect")):
            pre, v = groups.pop(0); out += pre + [v]; k = 0
    return out + flat(groups)

def b2_init(a):
    a("v_lshrrev_b32 v1, 4, v0\nv_lshlrev_b32 v1, 3, v1")
    for ct in range(4): a(f"buffer_load_dwordx2 {vr(B2R+2*ct,2)}, v1, {srd(sB2)}, 0 offen offset:{ct*32}")
def attn_init():
    out = [f"v_accvgpr_write_b32 a{LA(0)+r}, 0" for r in range(16)] + [f"v_accvgpr_write_b32 a{FH(0,0)+r}, 0" for r in range(8)]
    for i in range(8): out += [f"v_lshlrev_b32 v{FA+2*i}, 16, v{B2R+i}", f"v_and_b32 v{FA+2*i+1}, 0xffff0000, v{B2R+i}"]
    return out
B2R = 16
def epi1(c):
    a = Asm()
    for l in k_reads(1): a(l)
    k1 = -2.0 * math.sqrt(2.0 / math.pi) * math.log2(math.e); k2 = k1 * 0.044715
    kk = f"s[{sT+2}:{sT+3}]"
    a(f"s_mov_b32 s{sT+2}, {f2u(k2)}\ns_mov_b32 s{sT+3}, {f2u(k1)}")
    items = [(T, qt, h, vr(ACC(T, qt) + 2 * h, 2)) for T in range(8, 12) for qt in range(4 if T < 10 else 2) for h in range(2)]
    for T, qt, h, r in items: a(f"v_pk_fma_f32 {r}, {vr(CWR[T-8]+2*h,2)}, {vr(SX+4*qt,2)}, {r} op_sel_hi:[1,0,1]")
    for T, qt, h, r in items: a(f"v_pk_fma_f32 {r}, {r}, {vr(SX+4*qt,2)}, {vr(B1F+(T-8)*4+2*h,2)} op_sel:[0,1,0] op_sel_hi:[1,1,1]")
    b2_init(a)
    for T0, q0 in ((8, 0), (8, 2), (10, 0)):
        regs_ = [ACC(T0 + t, q0 + q) + e for q in range(2) for t in range(2) for e in (0, 2)]
        prs = [(r, B1F + 2 * i) for i, r in enumerate(regs_)]
        for r, t in prs: a(f"v_pk_mul_f32 {vr(t,2)}, {vr(r,2)}, {vr(r,2)}")
        for r, t in prs: a(f"v_pk_fma_f32 {vr(t,2)}, {vr(t,2)}, {kk}, {kk} op_sel:[0,0,1] op_sel_hi:[1,0,1]")
        for r, t in prs: a(f"v_pk_mul_f32 {vr(t,2)}, {vr(t,2)}, {vr(r,2)}")
        for r, t in prs: a(f"v_exp_f32 v{t}, v{t}\nv_exp_f32 v{t+1}, v{t+1}")
        for r, t in prs: a(f"v_pk_add_f32 {vr(t,2)}, {vr(t,2)}, 1.0 op_sel_hi:[1,0]")
        for r, t in prs: a(f"v_rcp_f32 v{t}, v{t}\nv_rcp_f32 v{t+1}, v{t+1}")
        for r, t in prs: a(f"v_pk_mul_f32 {vr(t,2)}, {vr(t,2)}, {vr(r,2)}")
        for i, (r, t) in enumerate(prs): a(f"v_cvt_pk_bf16_f32 v{ACC(T0, q0 + i // 4) + i % 4}, v{t}, v{t+1}")
        for q in range(2):
            vo = VH1 if T0 == 10 else (VOA if q0 < 2 else VOB)
            a(f"buffer_store_dwordx4 {vr(ACC(T0,q0+q),4)}, v{vo}, {srd(sWS)}, s{sHS0 if T0 == 8 else sHS1} offen offset:{q*1024} {c.stflags} ;tag=hst")
        if (T0, q0) == (8, 0):
            for l in flat(dma_kv("V", 1)): a(l)
        if (T0, q0) == (8, 2):
            for T in (4, 5, 6, 7, 0, 1, 2, 3): a(f"ds_read_b128 {vr(96+4*T,4)}, v{VCR} offset:{T*64}")
    for l in flat(dma_kv("V", 2)): a(l)
    a("@stamp gelu")
    TQ = 64
    mq = qk_mfmas(0, czero=True)
    MXT = 88
    def maxchain(qt):
        b = S(0, qt); t = MXT + qt
        return [f"v_max3_f32 v{t}, v{b}, v{b+1}, v{b+2}", f"v_max3_f32 v{t}, v{t}, v{b+3}, v{b+4}", f"v_max3_f32 v{t}, v{t}, v{b+5}, v{b+6}", f"v_max_f32 v{t}, v{t}, v{b+7}"]
    def weave(va, mf):
        step = max(1, len(va) // (len(mf) + 1)) if mf else 1
        mf = list(mf)
        for n_, l in enumerate(va):
            if mf and n_ % step == 0: a(mf.pop(0))
            a(l)
        for l in mf: a(l)
    for qt in range(4):
        it = [(T, h, vr(ACC(T, qt) + 2 * h, 2)) for T in range(8) for h in range(2)]
        for T, h, r in it: a(f"v_pk_fma_f32 {r}, {vr(96+4*T+2*h,2)}, {vr(SX+4*qt,2)}, {r} op_sel_hi:[1,0,1]")
        for T, h, r in it: a(f"v_pk_mul_f32 {r}, {r}, {vr(SX+4*qt+2,2)} op_sel_hi:[1,0]")
        va = []
        for ks in range(4):
            t = TQ + 4 * ks; X, Y = ACC(2 * ks, qt), ACC(2 * ks + 1, qt)
            va += [f"v_cvt_pk_bf16_f32 v{t}, v{X}, v{X+1}", f"v_cvt_pk_bf16_f32 v{t+2}, v{Y}, v{Y+1}",
                   f"v_cvt_pk_bf16_f32 v{t+1}, v{X+2}, v{X+3}", f"v_cvt_pk_bf16_f32 v{t+3}, v{Y+2}, v{Y+3}"]
        for ks in range(4):
            t = TQ + 4 * ks
            va += [f"v_permlane16_swap_b32 v{t}, v{t+2}", f"v_permlane16_swap_b32 v{t+1}, v{t+3}"]
        weave(va, mq[8 * (qt - 1):8 * qt] if qt else [])
        for e in range(16): a(f"v_accvgpr_write_b32 a{Q(qt,0)+e}, v{TQ+e}")
    ini = attn_init()
    weave(ini[:16] + maxchain(0) + maxchain(1), mq[24:32])
    for l in ini[16:] + maxchain(2) + maxchain(3): a(l)
    T = MXT; U = P0
    for sw in ("v_permlane32_swap_b32", "v_permlane16_swap_b32"):
        for qt in range(4): a(f"v_mov_b32 v{U+qt}, v{T+qt}")
        for qt in range(4): a(f"{sw} v{T+qt}, v{U+qt}")
        for qt in range(4): a(f"v_max_f32 v{T+qt}, v{T+qt}, v{U+qt}")
    for qt in range(4): a(f"v_floor_f32 v{T+qt}, v{T+qt}")
    for qt in range(4): a(f"v_sub_f32 v{NEGM+4*qt}, -v{T+qt}, s{sSH}")
    for qt in range(4): a(f"v_mov_b32 v{NEGM+4*qt+1}, v{NEGM+4*qt}")
    for qt in range(4): a(f"v_pk_mov_b32 {vr(NEGM+4*qt+2,2)}, {vr(NEGM+4*qt,2)}, {vr(NEGM+4*qt,2)}")
    for qt in range(4):
        for k in range(0, 8, 2): a(f"v_pk_add_f32 {vr(S(0,qt)+k,2)}, {vr(S(0,qt)+k,2)}, {vr(NEGM+qt*4,2)}")
    return a.lines

SLOTS = {"X": ("V", XB)}
for _i in range(4): SLOTS[f"K{_i}"] = ("K", _i * KSLOT); SLOTS[f"V{_i}"] = ("V", VBASE + _i * VSLOT)
FAKE = [False]
def t_wload(n, slot):
    A = sT + 2
    kind, base = SLOTS[slot]
    pre = [f"s_xor_b32 s{A}, s{sRO}, {n & 7 if FAKE[0] else n}", f"s_add_u32 s{A}, s{A}, s{sKW}", f"s_lshl_b32 s{A}, s{A}, 15",
           f"s_add_u32 m0, s{sKM if kind == 'K' else sVM}, {base if kind == 'K' else base - VBASE}"]
    g = []
    for i in range(4):
        if i: pre = [f"s_add_u32 s{A}, s{A}, 7168"]
        g.append((pre, f"buffer_load_dwordx4 v{VDW}, {srd(sWO)}, s{A} offen offset:{i*1024} lds ;tag=t{n}"))
    return g
def t_bload(c, n, dst):
    B, D = sT + 3, sT + 5
    pre = [f"s_xor_b32 s{B}, s{sRO}, {n & 7 if c.fakeo else n}", f"s_add_u32 s{B}, s{B}, s{sKW}", f"s_lshl_b32 s{B}, s{B}, 12", f"s_add_u32 s{B}, s{B}, s{sOB}"]
    g = []
    for j in range(4):
        if j: pre = [f"s_xor_b32 s{D}, s{B}, {j*1024}"]
        g.append((pre, f"buffer_load_dwordx4 {dst(j)}, v{VL}, {srd(sWS)}, s{D if j else B} offen {c.ldflags} ;tag=b{n}"))
    return g
def t_reads(slot, dst):
    kind, base = SLOTS[slot]
    r = VRA + (4 if slot == "X" else 0 if kind == "K" else 2)
    off = 0 if slot == "X" else base if kind == "K" else base - VBASE
    return [f"ds_read_b64_tr_b16 {dst(ct, t)}, v{r + (ct & 1)} offset:{off + t*2048 + (ct>>1)*512}" for ct in range(4) for t in range(2)]
HOLD = [240, 64, 80, 208, 224, 96, 112, 128, 144, 160, 176, 192, 0, 16, 32, 48]
def hold(i): return lambda ct, t=None: ar(HOLD[i] + ct * 4, 4) if t is None else ar(HOLD[i] + ct * 4 + 2 * t, 2)
class WStream:
    def __init__(self): self.slot = {}; self.nxt = 0; self.held = 0
    def fill(self, sl):
        if self.nxt >= 32: return []
        n = self.nxt; self.nxt += 1; self.slot[n] = sl
        return t_wload(n, sl)
    def take(self):
        n = self.held; self.held += 1
        return f"@waitvm t{n}", t_reads(self.slot[n], hold(n)), f"@dep a{HOLD[n] + 15}", self.slot[n]
FAF = 208
def FH(buf, i): return 224 + buf * 8 + i * 4
def f_loads(c, gam, buf, nk):
    g = []
    for i in range(nk):
        g.append(([f"s_add_u32 s{sFW}, s{sFW}, 0x8000", f"s_add_u32 m0, s{sFM}, {buf*8192 + i*4096}"],
                  f"buffer_load_dwordx4 v{VDW}, {srd(sW2)}, s{sFW} offen {c.fwflags} lds ;tag=f{gam}"))
        g.append(([f"s_add_u32 s{sFH}, s{sFH}, 0x1000"],
                  f"buffer_load_dwordx4 {ar(FH(buf,i),4)}, v{VL}, {srd(sWS)}, s{sFH} offen {c.fhflags} ;tag=f{gam}"))
    return g
def f_reads(buf, i):
    return [f"ds_read_b64_tr_b16 {ar(FAF+ct*4+2*t,2)}, v{VFO if ct & 1 else VFE} offset:{buf*8192 + i*4096 + t*2048 + (ct>>1)*512}" for ct in range(4) for t in range(2)]
def f_mfma(buf, i, ct): return f"{M16} {vr(FA+4*ct,4)}, {ar(FAF+4*ct,4)}, {ar(FH(buf,i),4)}, {vr(FA+4*ct,4)}"
def f_group(k):
    if k == 0: return (-1, 0, 2)
    if k == 29: return (21, 1, 1)
    if 1 <= k <= 28 and (k - 1) % 4: return (3 * ((k - 1) // 4) + (k - 1) % 4 - 1, 1 if (k - 1) % 4 == 2 else 0, 2)
    return None

def spin(name, load, okcmp, back, slp=4):
    return f"""L_spin_{name}:
s_mov_b32 s{sT+6}, 0x40000
L_spin_{name}_l:
s_sleep {slp}
{load}
s_waitcnt vmcnt(0)
{okcmp}
s_cbranch_scc1 {back}
s_sub_u32 s{sT+6}, s{sT+6}, 1
s_cmp_lg_u32 s{sT+6}, 0
s_cbranch_scc1 L_spin_{name}_l
s_branch {back}""".split("\n")
CNT_LOAD = f"buffer_load_dword v{VPD}, off, {srd(sDBG)}, s{sT+7} sc1"
ST_LOAD = f"buffer_load_dword v{VPD}, off, {srd(sDBG)}, s{sT+7} offset:4 sc1"
CNT_OK = f"v_cmp_le_u32 vcc, 32, v{VPD}\ns_nop 0\ns_cmp_eq_u64 vcc, -1"
FL_LOAD = f"buffer_load_dword v{VPD}, v{VPA}, {srd(sWS)}, s{sT+7} offen sc1"
FL_OK = f"v_cmp_eq_u32 vcc, 1, v{VPD}\ns_nop 0\ns_cmp_eq_u64 vcc, -1"

def k_reads(u):
    slot = (u >> 1) % NS
    return [f"ds_read_b128 {ar(KF(u,t,ks),4)}, v{VK} offset:{slot*KSLOT + (2*(u&1)+t)*1024 + ks*256}" for t in range(2) for ks in range(4)]
def v_reads(u):
    slot = (u >> 1) % NS
    return [f"ds_read_b64_tr_b16 {ar(VF(u,dt)+2*t,2)}, v{VV} offset:{slot*VSLOT + (2*(u&1)+t)*1024 + (dt>>1)*256 + (dt&1)*32}" for dt in range(8) for t in range(2)]
def qk_mfmas(u, czero=False):
    par = u & 1
    return [f"{M16} {vr(S(par,qt,t),4)}, {ar(KF(u,t,ks),4)}, {ar(Q(qt,ks),4)}, " + (vr(S(par,qt,t),4) if ks else "0" if czero else vr(NEGM+qt*4,4))
            for qt in range(4) for t in range(2) for ks in range(4)]
def pv_mfmas(c, u):
    par = u & 1
    seq = [(dt, qt) for dt in range(8) for qt in range(4)] if c.pvorder == "ashare" else [(dt, qt) for qt in range(4) for dt in range(8)]
    return [f"{M16} {vr(O(dt,qt),4)}, {ar(VF(u,dt),4)}, {vr(P(par,qt),4)}, " + (vr(O(dt,qt),4) if u else "0") for dt, qt in seq]
def sm_ops(u, n):
    par = u & 1; e = n // 2
    if n < 0 or e >= 32: return []
    qt = e // 8; r = S(par, qt) + e % 8
    if n % 2 == 0: return [f"v_exp_f32 v{r}, v{r}"]
    return [f"v_cvt_pk_bf16_f32 v{P(par,qt)+(e%8)//2}, v{r-1}, v{r}"] if e % 2 else []

def attention(c, ws):
    a = Asm()
    a(f"""s_mov_b32 s{sVO}, {(NS-1)*16384}
s_lshl_b32 s{sFW}, s{sW}, 13
s_sub_u32 s{sFW}, s{sFW}, 0x8000
s_sub_u32 s{sFH}, s{sHB}, 0x1000
s_lshl_b32 s{sT}, s{sQB}, 5
s_xor_b32 s{sT+1}, s{sTRY}, 1
v_mov_b32 v89, s{sT+1}
v_mov_b32 v{VPD}, 0x10000000""")
    if c.recenter: a(f"s_cmp_eq_u32 s{sTRY}, 0\ns_cselect_b32 s{sRC}, {c.recenter[1]}, 0")
    if c.l2n:
        a(f"""s_lshr_b32 s{sT+2}, s2, 3
s_lshl_b32 s{sT+2}, s{sT+2}, 12
s_lshl_b32 s{sT+3}, s{sW}, 20
s_add_u32 s{sT+2}, s{sT+2}, s{sT+3}
s_lshl_b32 s{sT+3}, s{sQB}, 7
s_sub_u32 s{sT+2}, s{sT+2}, s{sT+3}
s_add_u32 s{sT+2}, s{sT+2}, {(8 - c.l2n) * 0x20000}
v_and_b32 v{VTO}, 31, v0
v_lshl_add_u32 v{VTO}, v{VTO}, 7, s{sT+2}
s_mov_b32 s{sTC}, {-(29 - c.l2n) * 0x20000}
s_mov_b64 s[{sX}:{sX+1}], s[{sWO}:{sWO+1}]""")
    head = a.lines
    G0 = c.BAR + 1 - 128
    pre = []
    for n in range(0, G0 + 64 - c.SM0): pre += sm_ops(0, n)
    head += pre
    sc = Sched(); idx = {}; fidx = {}
    for G in range(G0, 32 * 128):
        I, g = divmod(G, 128); ph, k = divmod(g, 32)
        u = 2 * I + (1, 0, 2, 1)[ph]
        m = None
        if ph in (0, 2):
            if 1 <= u <= 63: m = qk_mfmas(u)[k]
        elif u >= 0: m = pv_mfmas(c, u)[k]
        idx[G] = sc.add(m)
        for uu in (2 * I, 2 * I + 1, 2 * I + 2):
            if 0 <= uu <= 63: sc.valu[idx[G]] += sm_ops(uu, G - (64 * (uu - 1) + c.SM0))
        q = g - (c.SM0 + 20)
        if I >= 0 and q >= 0 and q % 16 == 0 and q // 16 < 4:
            qt = q // 16
            sc.add(f"{SMF} {ar(LA(qt),4)}, {vr(SMA,4)}, {vr(P(0,qt),8)}, v{VIDX}")
        fg = f_group(I - 1) if I >= 1 else None
        if fg:
            for i in range(fg[2]):
                q = g - c.FPOS[i]
                if q >= 0 and q % 4 == 0 and q // 4 < 4: fidx[(I, i, q // 4)] = sc.add(f_mfma(fg[1], i, q // 4))
    for k in range(32):
        b = 128 * (k - 1) + c.BAR
        nb = b + 128
        lo = idx[b + 1]
        hi = idx[nb] - 5 if k < 31 else sc.n() - 1
        B = 128 * k
        end = idx[nb] - 1 if k < 31 else sc.n() - 1
        cur = lo
        if c.recenter and 1 <= k <= 28:
            for nm, p_, g_ in (("a", c.recenter[0], 42), ("b", c.recenter[0] + 1, 6)):
                if (k - 1) % 4 == p_:
                    sc.sal[idx[B + g_]].append(f"s_cmp_eq_u32 s{sLOOP}, s{sRC}")
                    sc.sal[idx[B + g_] + 1] += [f"s_cbranch_scc1 L_rc_{nm}", f"L_rc_{nm}_back:"]
        fg = f_group(k)
        if fg and k == 0:
            cur = place_group(sc, [([f"s_add_u32 m0, s{sFM}, {i*4096}"], f"buffer_load_dwordx4 v{VPD}, {srd(sW2)}, 0 offen lds ;tag=fz") for i in range(2)], cur, end)
        elif fg: cur = place_group(sc, f_loads(c, *fg), cur, end)
        elif k <= 28:
            cur = place_group(sc, [([f"s_lshl_b32 s{sT+7}, s{sGX}, 5"], CNT_LOAD)], idx[B + 30], end)
            if c.codepf2: place_group(sc, [([], f"global_load_dword a255, v{VCP}, s[90:91]")], lo, end)
            sc.post[idx[B + 101]] += CNT_OK.split("\n") + ["s_cbranch_scc0 L_spin_cnt", "L_ok_cnt:"]
        if k + NS - 1 <= 31:
            dv = [([f"s_add_u32 m0, s{sVM}, {((k+NS-1)%NS)*VSLOT}"] if i == 0 else [], f"buffer_load_dwordx4 v{VD}, {srd(sV)}, s{sVO} offen offset:{i*1024} {c.kvflags} lds ;tag=V{k+NS-1}") for i in range(4)]
            dk = [([f"s_add_u32 s{sVO}, s{sVO}, 0x4000", f"s_min_u32 s{sKO}, s{sVO}, {31*16384}", f"s_add_u32 m0, s{sKM}, {(k%NS)*KSLOT}"] if i == 0 else [],
                   f"buffer_load_dwordx4 v{VD}, {srd(sK)}, s{sKO} offen offset:{i*1024} {c.kvflags} lds ;tag=K{k+NS}") for i in range(4)]
            cur = place_group(sc, dv, max(cur, idx[B + c.VPOS]), end)
            cur = place_group(sc, dk, max(cur, idx[B + c.KPOS]), end)
            if c.l2n and k >= 1:
                place_group(sc, [([f"s_add_u32 s{sTC}, s{sTC}, 0x20000", f"s_cmp_ge_i32 s{sTC}, 0", f"s_cselect_b32 s{sX+2}, s{sWO+2}, 0", f"s_cselect_b32 s{sTO}, s{sTC}, 0"],
                                  f"buffer_load_dword a{252 + (k & 3)}, v{VTO}, {srd(sX)}, s{sTO} offen")], cur + 1, end)
        ops = []
        def hold_in(g0, g1, vm):
            w, rd, dep, sl = ws.take()
            g0 = next(x for x in range(g0, g1) if not sc.sal[x]); sc.sal[g0].append(w)
            ops.extend((l, g0, g1) for l in rd)
            g2 = next(x for x in range(max(g1 + 3, vm), end) if not sc.sal[x]); sc.sal[g2].append(dep)
            return place_group(sc, ws.fill(sl), g2, end)
        if k == 29:
            cur = place_group(sc, ws.fill("K0") + ws.fill("V0") + ws.fill("K1"), cur, end, sp=6)
        if k == 30:
            cur = place_group(sc, ws.fill("V1") + ws.fill("K2"), cur, end, sp=6)
            cur = hold_in(idx[B + 30], idx[B + 70], cur)
        if k == 31:
            cur = place_group(sc, ws.fill("V2") + ws.fill("K3") + ws.fill("X"), cur, end)
            for g0, g1 in ((10, 36), (30, 54), (50, 96), (96, 106))[:c.H31]: cur = hold_in(idx[B + g0], idx[B + g1], cur)
        ops += [(l, lo, idx[B + 32] - 5 + n_ // 2) for n_, l in enumerate(v_reads(2 * k))]
        ops += [(l, idx[B], idx[B + 96] - 5 + n_ // 2) for n_, l in enumerate(v_reads(2 * k + 1))]
        if k < 31:
            ops += [(l, lo, idx[B + 64] - 5 + n_) for n_, l in enumerate(k_reads(2 * k + 2))]
            ops += [(l, idx[B + 32], hi) for l in k_reads(2 * k + 3)]
        fc = f_group(k - 1) if k >= 1 else None
        if fc:
            for i in range(fc[2]):
                ops += [(l, fidx[(k, 0, n_ // 2)] if i else lo, fidx[(k, i, n_ // 2)] - 5) for n_, l in enumerate(f_reads(fc[1], i))]
        sc.place_edf(ops)
        if k < 31:
            tags = f"V{k+1},K{k+2}" + (f",f{fg[0]}" if fg and k else ",fz" if fg else "")
            sc.sal[idx[nb]] += [f"@waitvm {tags} lgkm0", "s_barrier", f"@seg {k+1}"]
    print("attention est cycles", sc.est(), file=sys.stderr)
    a = Asm()
    a(f"""@waitvm K1,V0,hst lgkm0
s_barrier
buffer_atomic_add v89, v{VONE}, {srd(sDBG)}, s{sT} offen sc1""")
    return head + a.lines + ["@seg 0"] + sc.lines()

class Pump:
    def __init__(self, a, ws): self.a = a; self.ws = ws; self.pend = []; self.nxt = None
    def busy(self): return bool(self.pend or self.nxt)
    def __call__(self, nload, limit):
        a, ws = self.a, self.ws
        for _ in range(nload):
            if not self.pend:
                prev = self.nxt; self.nxt = None
                if ws.held < limit:
                    w, rd, dep, sl = ws.take(); a(w)
                    for l in rd: a(l)
                    self.nxt = (dep, sl)
                if prev:
                    g = ws.fill(prev[1])
                    if g: a(prev[0]); self.pend.extend(g)
            if self.pend:
                pre, l = self.pend.pop(0)
                for x in pre + [l]: a(x)

def tail1(c, ws, late):
    a = Asm()
    L0 = S0; MX = S0 + 4; T = S0 + 8; RC = NEGM; EX = P0
    pump = Pump(a, ws)
    a("s_setreg_imm32_b32 hwreg(HW_REG_MODE, 4, 2), 3")
    for qt in range(4):
        a(f"v_accvgpr_read_b32 v{L0+qt}, a{LA(qt)}\nv_accvgpr_read_b32 v{T+qt}, a{LA(qt)+1}")
    pump(1, c.NB1)
    for qt in range(4): a(f"v_add_f32 v{L0+qt}, v{L0+qt}, v{T+qt}")
    for qt in range(4): a(f"v_rcp_f32 v{RC+2*qt}, v{L0+qt}")
    so = [sT, sT + 1, sT + 3, sT + 4]
    a(f"""s_lshl_b32 s{sT}, s{sQB}, 2
s_add_u32 s{sT}, s{sT}, s{sW}
s_lshl_b32 s{sT}, s{sT}, 19
s_lshl_b32 s{sT+1}, s{sHEAD}, 14
s_add_u32 s{sT}, s{sT}, s{sT+1}
s_add_u32 s{so[1]}, s{sT}, 4096
s_add_u32 s{so[2]}, s{sT}, 8192
s_add_u32 s{so[3]}, s{sT}, 12288""")
    stores = []
    for m in range(4):
        for qt in range(4):
            mx = MX + qt
            src = [O(2*m, qt) + e for e in range(4)] + [O(2*m+1, qt) + e for e in range(4)]
            if late: pump(2, c.NLATE)
            for i in range(0, 8, 2):
                r = src[i]
                a(f"v_maximum3_f32 v{mx}, |v{r}|, |v{r+1}|, " + (f"v{mx}" if m or i else "0"))
                a(f"v_pk_mul_f32 {vr(r,2)}, {vr(r,2)}, {vr(RC+2*qt,2)} op_sel_hi:[1,0]")
            for e in range(4): a(f"v_cvt_pk_bf16_f32 v{src[e]}, v{src[2*e]}, v{src[2*e+1]}")
            st = f"buffer_store_dwordx4 {vr(src[0],4)}, v{VOA if qt < 2 else VOB}, {srd(sWS)}, s{so[m]} offen offset:{(qt&1)*1024} {c.stflags} ;tag=ost"
            if late: stores.append(st)
            else: a(st)
    if late:
        while pump.busy() or ws.held < c.NLATE: pump(1, c.NLATE)
        for st in stores: a(st)
    while pump.busy() or ws.held < c.NB1: pump(1, c.NB1)
    a(f"s_mov_b32 s{sT+4}, 0x100\ns_mov_b64 s[{sT+6}:{sT+7}], -1")
    for qt in range(4):
        for r in (L0 + qt, MX + qt, RC + 2 * qt):
            a(f"v_cmp_class_f32 vcc, v{r}, s{sT+4}\ns_and_b64 s[{sT+6}:{sT+7}], s[{sT+6}:{sT+7}], vcc")
    a(f"s_cmp_eq_u64 s[{sT+6}:{sT+7}], -1\ns_cselect_b32 s{sT+4}, 0, 1")
    if c.force_fallback: a(f"s_mov_b32 s{sT+4}, 1")
    if c.nofb: a(f"s_mov_b32 s{sT+4}, 0")
    a(f"""s_lshl_b32 s{sT+5}, s{sW}, 2
s_add_u32 s{sT+5}, s{sT+5}, {FLBASE}
v_mov_b32 v{T}, s{sT+5}
v_mov_b32 v{T+1}, s{sT+4}
ds_write_b32 v{T}, v{T+1}
s_setreg_imm32_b32 hwreg(HW_REG_MODE, 4, 2), 0
v_mov_b32 v{EX+8}, {FLBASE}
v_mov_b32 v{EX+9}, 1
s_lshl_b32 s{sT+7}, s{sGX}, 8
s_add_u32 s{sT+7}, s{sT+7}, s{sKW}
s_add_u32 s{sT+7}, s{sT+7}, {WS_FL}
@waitvm ost lgkm0""")
    return [l.strip() for l in a.lines]

def tail2(c, ws):
    a = Asm()
    SA = 128; AB = P0; XR = 16; G = FA; TT = 48; EX = AB
    def acc(ct, j): return SA + (j * 4 + ct) * 4
    def abuf(n): return lambda ct, t=None: vr(AB + (n & 1) * 16 + ct * 4, 4) if t is None else vr(AB + (n & 1) * 16 + ct * 4 + 2 * t, 2)
    def emit(ls):
        for l in ls: a(l)
    pump = Pump(a, ws)
    a(f"""L_bar1:
s_barrier
ds_read_b128 {vr(EX+12,4)}, v{EX+8}
v_or3_b32 v{EX+12}, v{EX+12}, v{EX+13}, v{EX+14}
v_or_b32 v{EX+12}, v{EX+12}, v{EX+15}
v_readfirstlane_b32 s{sT+4}, v{EX+12}
s_andn2_b32 s{sT+4}, s{sT+4}, s{sTRY}
s_cmp_lg_u32 s{sT+4}, 0
s_cbranch_scc1 L_fallback
""")
    a("@stamp bar1 rt")
    if c.flagmode == "store": a(f"buffer_store_dword v{EX+9}, v{VONE}, {srd(sWS)}, s{sFLO} offen sc1")
    elif c.flagmode == "vatomic": a(f"buffer_atomic_add v{EX+9}, v{VONE}, {srd(sWS)}, s{sFLO} offen sc1")
    elif c.flagmode == "satomic":
        a(f"""s_cmp_lg_u32 s{sW}, 0
s_cbranch_scc1 L_noflag
s_mov_b32 s{sT+4}, 1
s_atomic_add s{sT+4}, s[{sWS}:{sWS+1}], s{sFLO}
L_noflag:""")
    pump.pend.extend(ws.fill("V3"))
    b = Asm()
    b(f"""v_lshrrev_b32 v31, 4, v0
v_lshlrev_b32 v31, 3, v31
v_and_b32 v30, 15, v0
v_lshl_add_u32 v30, v30, 10, v31
s_lshl_b32 s{sT}, s{sW}, 14
v_add_u32 v30, s{sT}, v30""")
    for i in range(16): b(f"v_mul_f32 v{TT+i}, {f2u(-math.log2(math.e))}, v{G+i}")
    for i in range(16): b(f"v_exp_f32 v{TT+i}, v{TT+i}")
    for i in range(0, 16, 2): b(f"v_pk_add_f32 {vr(TT+i,2)}, {vr(TT+i,2)}, 1.0 op_sel_hi:[1,0]")
    for i in range(16): b(f"v_rcp_f32 v{TT+i}, v{TT+i}")
    for i in range(0, 16, 2): b(f"v_pk_mul_f32 {vr(G+i,2)}, {vr(G+i,2)}, {vr(TT+i,2)}")
    for n_, l in enumerate(b.lines):
        if n_ % 8 == 0: pump(1, c.NR)
        a(l)
    while ws.held < c.NR: pump(1, c.NR)
    a(FL_LOAD.replace("sc1", c.pollflags))
    while pump.busy(): pump(1, c.NR)
    for ct in range(4): a(f"buffer_load_dwordx2 {vr(XR+2*ct,2)}, v30, {srd(sXX)}, 0 offen offset:{ct*32}")
    a("@stamp held rt")
    a(FL_OK + ("\ns_cbranch_scc0 L_spin_fl" if c.flagmode != "none" else "") + "\nL_ok_fl:")
    a("@stamp flags rt")
    RING = [192, 208, 224, 240, 32, 48]
    assert c.DO < len(RING)
    lds_steps = list(range(c.NR, 32)); held_steps = list(range(c.NR))
    if c.mix:
        steps = []; li = hi_ = 0
        for i in range(32):
            if li < len(lds_steps) and (li * 29 <= i * len(lds_steps) or hi_ >= c.NR - 3): steps.append(lds_steps[li]); li += 1
            else: steps.append(held_steps[hi_]); hi_ += 1
    else: steps = lds_steps + held_steps
    lpos = {n: k_ for k_, n in enumerate(lds_steps)}
    assert steps[0] in lpos and all(n < c.NR for n in steps[29:])
    def ring(i): return lambda j: vr(RING[i % (c.DO + 1)] + 4 * j, 4)
    for i in range(c.DO0): emit(flat(t_bload(c, steps[i], ring(i))))
    nl = 32 - c.NR
    a(f"@waitvm t{steps[0]}")
    emit(t_reads(ws.slot[steps[0]], abuf(0)))
    L = a.lines
    sc = Sched()
    for i, n in enumerate(steps):
        A = abuf(lpos[n]) if n in lpos else hold(n)
        order = [(ct, j) for ct in range(4) for j in range(4)] if i < 31 else [(ct, j) for j in (1, 2, 3, 0) for ct in range(4)]
        for ct, j in order:
            d = vr(acc(ct, j), 4)
            sc.add(f"{M16} {d}, {A(ct)}, {ring(i)(j)}, {'0' if i == 0 else d}")
    nb = c.DO0
    wq = []
    nref = 32 - ws.nxt
    lastref = max(i for i, n in enumerate(steps) if n in lpos) - 4
    for i, n in enumerate(steps):
        st = 16 * i
        grp = []
        if nb < 32 and nb <= i + c.DO: grp += t_bload(c, steps[nb], ring(nb)); nb += 1
        if n in lpos and ws.nxt < 32:
            sc.sal[st].append(f"@dep v{AB + (lpos[n] & 1) * 16 + 15}")
            wq += ws.fill(ws.slot[n])
        k_ = min(len(wq), c.WPS)
        grp += wq[:k_]; wq = wq[k_:]
        if not k_ and nb < 32 and nb <= i + c.DO: grp += t_bload(c, steps[nb], ring(nb)); nb += 1
        if i in (1, 9, 18): sc.sal[st].append(f"@stamp o{i}")
        if grp: place_group(sc, grp, st, st + 15, sp=(1 if len(grp) > 6 else 2 if len(grp) > 4 else 3))
        if i + 1 < 32 and steps[i + 1] in lpos:
            assert not any(f"tag=t{steps[i+1]}" == l.split(";")[-1] for _, l in wq + grp), i
            sc.sal[st].append(f"@waitvm t{steps[i+1]}")
            cur = st
            for l in t_reads(ws.slot[steps[i + 1]], abuf(lpos[steps[i + 1]])): cur = sc.place_mem(l, cur, st + 14)
    assert not wq
    b = Asm()
    for j in range(1, 4):
        b(f"""s_add_u32 s{sT}, s{sVM}, {(j-1)*VSLOT}
v_add_u32 v{EX+j-1}, s{sT}, v{VL}
s_xor_b32 s{sT}, s{sW}, {j}
s_mul_i32 s{sT}, s{sT}, {VCH}
s_add_u32 s{sT}, s{sT}, {VBASE+(j-1)*VSLOT}
v_add_u32 v{EX+4+j-1}, s{sT}, v{VL}""")
    XU = EX + 16
    for i in range(8): b(f"v_lshlrev_b32 v{XU+2*i}, 16, v{XR+i}\nv_and_b32 v{XU+2*i+1}, 0xffff0000, v{XR+i}")
    for n_, l in enumerate(b.lines): sc.valu[16 * 29 + n_].append(l.strip())
    L += sc.lines()
    a = Asm()
    a("@stamp oproj rt")
    for j in range(1, 4):
        for ct in range(4): a(f"ds_write_b128 v{EX+j-1}, {vr(acc(ct,j),4)} offset:{ct*1024}")
    a("s_waitcnt lgkmcnt(0)\ns_barrier")
    for ct in range(4):
        for j in range(1, 4): a(f"ds_read_b128 {vr(acc(ct,j),4)}, v{EX+4+j-1} offset:{ct*1024}")
    for ct in range(4):
        r = SA + 4 * ct
        for j in range(1, 4):
            for h in (0, 2): a(f"v_pk_add_f32 {vr(r+h,2)}, {vr(r+h,2)}, {vr(acc(ct,j)+h,2)}")
        for h in (0, 2): a(f"v_pk_fma_f32 {vr(r+h,2)}, {vr(r+h,2)}, {vr(G+4*ct+h,2)}, {vr(XU+4*ct+h,2)}")
        a(f"v_cvt_pk_bf16_f32 v{r}, v{r}, v{r+1}\nv_cvt_pk_bf16_f32 v{r+1}, v{r+2}, v{r+3}")
        a(f"buffer_store_dwordx2 {vr(r,2)}, v30, {srd(sOUT)}, 0 offen offset:{ct*32} {c.outflags}")
    return L + a.lines

def fallback(c):
    a = Asm()
    T = P0
    a(f"L_fallback:\ns_mov_b32 s{sTRY}, 1\ns_mov_b32 s{sLOOP}, 0")
    for qt in range(4): a(f"v_mov_b32 v{T+qt}, 0xff800000")
    a(f"""L_fb_loop:
s_waitcnt vmcnt(0) lgkmcnt(0)
s_barrier
s_mov_b32 m0, s{sKM}
s_nop 0""")
    for i in range(4): a(f"buffer_load_dwordx4 v{VD}, {srd(sK)}, s{sLOOP} offen offset:{i*1024} lds")
    a("s_waitcnt vmcnt(0)\ns_barrier")
    for l in k_reads(0): a(l)
    a("s_waitcnt lgkmcnt(0)")
    for l in k_reads(1): a(l)
    a("s_waitcnt lgkmcnt(0)")
    for par in range(2):
        for l in qk_mfmas(par, True): a(l)
        a("s_nop 7")
        for qt in range(4):
            for k in range(0, 8, 2): a(f"v_max3_f32 v{T+qt}, v{T+qt}, v{S(par,qt)+k}, v{S(par,qt)+k+1}")
    a(f"s_add_u32 s{sLOOP}, s{sLOOP}, 0x4000\ns_cmp_lt_u32 s{sLOOP}, 0x80000\ns_cbranch_scc1 L_fb_loop")
    for sw in ("v_permlane32_swap_b32", "v_permlane16_swap_b32"):
        for qt in range(4): a(f"v_mov_b32 v{T+4+qt}, v{T+qt}")
        for qt in range(4): a(f"{sw} v{T+qt}, v{T+4+qt}")
        for qt in range(4): a(f"v_max_f32 v{T+qt}, v{T+qt}, v{T+4+qt}")
    a("s_barrier")
    for kind, t in (("K", 0), ("K", 1), ("V", 0), ("K", 2), ("K", 3), ("V", 1), ("V", 2)):
        for l in flat(dma_kv(kind, t)): a(l)
    b2_init(a)
    a("s_waitcnt vmcnt(0)\ns_barrier")
    for l in k_reads(0): a(l)
    a("s_waitcnt lgkmcnt(0)")
    for l in k_reads(1): a(l)
    for l in attn_init(): a(l)
    for qt in range(4):
        for k in range(4): a(f"v_sub_f32 v{NEGM+qt*4+k}, 0, v{T+qt}")
    a("s_waitcnt lgkmcnt(0)")
    for l in qk_mfmas(0): a(l)
    a("s_nop 7\ns_branch L_attn")
    return a.lines

def recenter(c):
    a = Asm()
    F = 88
    a(f"L_rc_a:\ns_mov_b32 s{sT+6}, -120")
    for qp in (0, 2):
        for op in ("v_accvgpr_read_b32 v{f}, a{l}", "v_accvgpr_read_b32 v{t}, a{l1}", "v_add_f32 v{f}, v{f}, v{t}", "v_frexp_exp_i32_f32 v{f}, v{f}",
                   "v_sub_u32 v{f}, %d, v{f}" % (1 - int(c.shift)), "v_med3_i32 v{f}, v{f}, 0, s%d" % (sT + 6), "v_cvt_f32_i32 v{t}, v{f}", "v_ldexp_f32 v{f}, 1.0, v{f}",
                   "v_add_f32 v{n}, v{n}, v{t}", "v_add_f32 v{n1}, v{n1}, v{t}", "v_add_f32 v{n2}, v{n2}, v{t}", "v_add_f32 v{n3}, v{n3}, v{t}"):
            for qt in (qp, qp + 1):
                n = NEGM + 4 * qt
                a(op.format(f=F + qt, t=92 + (qt & 1), l=LA(qt), l1=LA(qt) + 1, n=n, n1=n + 1, n2=n + 2, n3=n + 3))
    a("s_branch L_rc_a_back")
    a("L_rc_b:\ns_setreg_imm32_b32 hwreg(HW_REG_MODE, 4, 2), 3")
    for qt in range(4):
        sel = "op_sel:[0,1] op_sel_hi:[1,1]" if qt & 1 else "op_sel_hi:[1,0]"
        a(f"v_accvgpr_read_b32 v92, a{LA(qt)}\nv_accvgpr_read_b32 v93, a{LA(qt)+1}")
        for dt in range(8):
            for h in (0, 2): a(f"v_pk_mul_f32 {vr(O(dt,qt)+h,2)}, {vr(O(dt,qt)+h,2)}, {vr(F+(qt&2),2)} {sel}")
            if dt == 0: a(f"v_pk_mul_f32 v[92:93], v[92:93], {vr(F+(qt&2),2)} {sel}")
        a(f"v_accvgpr_write_b32 a{LA(qt)}, v92\nv_accvgpr_write_b32 a{LA(qt)+1}, v93")
    a("s_setreg_imm32_b32 hwreg(HW_REG_MODE, 4, 2), 0\ns_branch L_rc_b_back")
    return [l.strip() for l in a.lines]

def resolve_deps(lines):
    return [f"v_cmp_eq_u32 vcc, {l.split()[1]}, {l.split()[1]} ;dep" if l.startswith("@dep") else l for l in lines]

def kernel_A(c):
    ws = WStream(); FAKE[0] = c.fakew
    L = [l.strip() for l in gemm1(c)]
    L += ["@stamp gemm_end rt"] + [l.strip() for l in epi1(c)]
    L += ["@stamp epi1_end", "L_attn:"] + [l.strip() for l in attention(c, ws)]
    L += ["@stamp loop_end rt"]
    L, pl, pv = auto_wait(resolve_deps(L))
    LB = []
    if c.stagger:
        LB, _, _ = auto_wait(resolve_deps(tail1(c, copy.deepcopy(ws), True)), pl, pv)
        LB = fix_hazards(["L_late:", "s_nop 7"] + [l for l in LB if not l.endswith(";dep")] + ["s_branch L_bar1"])
        L += [f"s_bitcmp1_b32 s2, {c.stagger}", "s_cbranch_scc1 L_late"]
    L2, _, _ = auto_wait(resolve_deps(tail1(c, ws, False) + [l.strip() for l in tail2(c, ws)]), pl, pv)
    L = [l for l in L + L2 if not l.endswith(";dep")]
    L = fix_hazards(L)
    if c.trace:
        for t in salu_trace(L, {"s2": c.trace[0], "rfl": c.trace[1]}): print(t, file=sys.stderr)
    pos = {int(l.split()[1]): i for i, l in enumerate(L) if l.startswith("@seg")}
    strip = lambda ls: [l.split(";")[0].strip() for l in ls if not l.startswith("@")]
    seg = {k: strip(L[pos[k]:pos[k + 1]]) for k in range(31)}
    k0, k1 = 1, 29
    if seg[1] != seg[5]:
        for k in range(1, 5):
            assert len(seg[k]) == len(seg[k + 4])
            for x, y in zip(seg[k], seg[k + 4]):
                if x != y:
                    wx, wy = dict(_w.findall(x)), dict(_w.findall(y))
                    assert x.startswith("s_waitcnt") and all(int(wy.get(n, 99)) <= int(v) for n, v in wx.items()), (k, x, y)
    for k in range(5, k1 - 4): assert seg[k] == seg[k + 4], k
    body = sum((seg[k] for k in range(5, 9)), [])
    im = [i for i, l in enumerate(body) if l.startswith("v_mfma")]
    j = max(i for i, l in enumerate(body) if l.startswith(("s_add", "s_min", "s_mul", "s_xor", "s_lshl", "s_cmp", "s_csel")))
    cand = [i for i in im if i > j and not body[i + 1].startswith("s_")]
    body.insert(cand[1] + 1, f"s_cmp_lg_u32 s{sLOOP}, 0"); body.insert(cand[0] + 1, f"s_sub_u32 s{sLOOP}, s{sLOOP}, 1")
    head = L[:pos[k0]]
    jb = max(i for i, l in enumerate(head) if l.startswith("v_mfma") and not head[i + 1].startswith("s_"))
    head.insert(jb + 1, f"s_mov_b32 s{sLOOP}, {(k1-k0)//4}")
    out = head + ["@seg 1", "L_loop:"] + body + ["s_cbranch_scc1 L_loop"] + L[pos[k1]:]
    a = Asm()
    a("s_cmp_ge_u32 s2, 256\ns_cbranch_scc1 L_endA")
    stamp = Stamps()
    stamp(c, a, "start", True)
    for l in out:
        if l.startswith("@stamp"): stamp(c, a, l.split()[1], len(l.split()) > 2)
        elif l.startswith("@seg 0"): stamp(c, a, "loop_start", True)
        elif l.startswith("@seg"): stamp(c, a, "seg" + l.split()[1], l.split()[1] in ("1", "29"))
        elif l.startswith("@"): continue
        else: a(l.split(";tag")[0].rstrip())
    if c.diag:
        stamp(c, a, "final"); a("s_waitcnt vmcnt(0)"); stamp(c, a, "end", True); stamp.out(c, a, WS_ST, sWS, sW)
    a("L_endA:\ns_endpgm")
    if c.recenter: LB += fix_hazards(recenter(c))
    for n_, l in enumerate(body):
        if l.startswith("s_cmp"):
            for m_ in body[n_ + 1:] + ["s_cbranch"]:
                if m_.startswith(("s_cbranch", "s_cselect")): break
                assert not m_.startswith(("s_add", "s_sub", "s_min", "s_lshl", "s_xor", "s_and", "s_cmp")), (l, m_)
    for l in LB: a(l.split(";tag")[0].rstrip())
    for l in spin("st", ST_LOAD, CNT_OK, "L_ok_st") + spin("cnt", CNT_LOAD, CNT_OK, "L_ok_cnt") + spin("fl", FL_LOAD.replace("sc1", c.pollflags), FL_OK, "L_ok_fl", c.slp): a(l)
    for l in fix_hazards([l.strip() for l in fallback(c)]): a(l.split(";tag")[0].rstrip())
    a("L_last:\ns_endpgm")
    return a.lines
import re
_w = re.compile(r"(vmcnt|lgkmcnt)\((\d+)\)")

def gen(c):
    A = kernel_A(c)
    a = Asm()
    k = NAME + "_kernel"
    a(f"; @launch grid=(256,1,1) block=(256,1,1) lds={LDS_A}")
    a('.amdgcn_target "amdgcn-amd-amdhsa--gfx950"\n.text')
    a(f".globl {k}\n.p2align 8\n.type {k},@function\n{k}:")
    a.lines += A
    a('.section .rodata,"a"\n.p2align 6')
    a(kdesc(k, 512, 256))
    return a.text()

if __name__ == "__main__":
    kw = {}
    for s in sys.argv[2:]:
        k, v = s.split("=", 1); kw[k] = eval(v)
    open(sys.argv[1], "w").write(gen(Cfg(**kw)))
```

```python
import re

class Asm:
    def __init__(self):
        self.lines = []
    def __call__(self, s):
        for ln in s.split("\n"):
            ln = ln.strip()
            if ln:
                self.lines.append(ln if ln.endswith(":") or ln.startswith(".") or ln.startswith(";") else "    " + ln)
    def text(self):
        return "\n".join(self.lines) + "\n"

def vr(b, n=1, k="v"):
    return f"{k}{b}" if n == 1 else f"{k}[{b}:{b+n-1}]"
def ar(b, n=1):
    return vr(b, n, "a")

def kdesc(name, nvgpr, accum, nsgpr=102):
    return f""".amdhsa_kernel {name}
  .amdhsa_next_free_vgpr {nvgpr}
  .amdhsa_next_free_sgpr {nsgpr}
  .amdhsa_accum_offset {accum}
  .amdhsa_group_segment_fixed_size 0
  .amdhsa_kernarg_size 104
  .amdhsa_user_sgpr_count 2
  .amdhsa_user_sgpr_kernarg_segment_ptr 1
  .amdhsa_system_sgpr_workgroup_id_x 1
.end_amdhsa_kernel"""

_reg = re.compile(r"\b([va])(?:(\d+)|\[(\d+):(\d+)\])")
def regs(tok):
    out = []
    for m in _reg.finditer(tok):
        k = m.group(1)
        if m.group(2) is not None: out.append((k, int(m.group(2))))
        else: out += [(k, i) for i in range(int(m.group(3)), int(m.group(4)) + 1)]
    return out

_sreg = re.compile(r"\b(?:s(\d+)|s\[(\d+):(\d+)\]|(vcc))")
def sregs(tok):
    out = set()
    for m in _sreg.finditer(tok):
        if m.group(1): out.add(int(m.group(1)))
        elif m.group(2): out |= set(range(int(m.group(2)), int(m.group(3)) + 1))
        else: out.add("vcc")
    return out

TRANS = ("v_exp_f32", "v_log_f32", "v_rcp_f32", "v_rsq_f32", "v_sqrt_f32", "v_sin_f32", "v_cos_f32")
def parse(line):
    line = line.split(";")[0].strip()
    if not line or line.endswith(":") or line.startswith((".", "@")): return None
    parts = line.split(None, 1)
    op = parts[0]; ops = [o.strip() for o in parts[1].split(",")] if len(parts) > 1 else []
    d = dict(op=op, line=line, w=[], r=[], kind="other", states=1)
    if op == "s_nop": d["states"] = int(ops[0], 0) + 1
    if op.startswith("v_smfmac"):
        d["kind"] = "mfma"; d["w"] = regs(ops[0]); d["A"] = regs(ops[1]) + regs(ops[3]); d["B"] = regs(ops[2]); d["C"] = regs(ops[0])
        d["r"] = d["A"] + d["B"] + d["C"]; d["passes"] = 8
    elif op.startswith("v_mfma"):
        d["kind"] = "mfma"; d["w"] = regs(ops[0]); d["A"] = regs(ops[1]); d["B"] = regs(ops[2]); d["C"] = regs(ops[3])
        d["r"] = d["A"] + d["B"] + d["C"]
        d["passes"] = 8 if "32x32x16" in op else 4 if "16x16x32" in op else 16
    elif op.startswith("v_"):
        d["kind"] = "valu"
        if op.startswith("v_cmp") or op.startswith("v_readfirstlane") or op.startswith("v_readlane"):
            d["r"] = sum((regs(o) for o in ops[1:]), [])
        else:
            d["w"] = regs(ops[0]); d["r"] = sum((regs(o) for o in ops[1:]), [])
            if op.startswith(("v_fmac", "v_dot2c", "v_permlane", "v_writelane")): d["r"] += d["w"]
            if op.startswith("v_permlane"): d["w"] = d["w"] + regs(ops[1])
        d["trans"] = op.startswith(TRANS)
        d["dot"] = op.startswith("v_dot")
    elif op.startswith("ds_read"):
        d["kind"] = "mem"; d["w"] = regs(ops[0]); d["r"] = regs(ops[1])
    elif op.startswith("ds_"):
        d["kind"] = "mem"; d["r"] = sum((regs(o) for o in ops), [])
    elif op.startswith(("buffer_load", "global_load")):
        d["kind"] = "mem"
        if " lds" in line or "_lds_" in op: d["r"] = sum((regs(o) for o in ops), [])
        else: d["w"] = regs(ops[0]); d["r"] = sum((regs(o) for o in ops[1:]), [])
    elif op.startswith(("buffer_store", "global_store", "buffer_atomic", "global_atomic")):
        d["kind"] = "mem"; d["r"] = sum((regs(o) for o in ops), []); d["store"] = True
        d["wide"] = "x4" in op or "x3" in op
        d["data"] = regs(ops[0]) if op.startswith("buffer") else regs(ops[1])
    return d

def check_hazards(lines, window=24, only_last=False):
    ins = [p for p in map(parse, lines) if p]
    probs = []
    for i, c in enumerate(ins):
        if only_last and i != len(ins) - 1: continue
        dist = 0
        for j in range(i - 1, max(-1, i - window - 1), -1):
            p = ins[j]
            need = 0
            pw, cr, cw = set(p["w"]), set(c["r"]), set(c["w"])
            if p["kind"] == "mfma":
                n = {4: 8, 8: 12, 16: 20}[p["passes"]]
                if c["kind"] == "mfma":
                    if pw & (set(c["A"]) | set(c["B"])): need = n
                    elif pw & set(c["C"]):
                        need = 0 if (p["w"] == c["C"] and p["passes"] == c["passes"]) else n - 2
                    elif pw & cw and p["w"] != c["w"]: need = n - 2
                elif c["kind"] in ("valu", "mem"):
                    if pw & (cr | cw): need = n
                if c["kind"] == "valu" and set(p["C"]) & cw: need = max(need, {4: 3, 8: 7, 16: 15}[p["passes"]])
            elif p["kind"] == "valu":
                if c["kind"] == "mfma" and pw & cr: need = 3 if p.get("dot") else 2
                if c["kind"] == "valu":
                    if p.get("trans") and pw & cr: need = max(need, 1)
                    if c["op"].startswith("v_permlane") and pw & cr: need = max(need, 2)
                    if c["op"].startswith(("v_readfirstlane", "v_readlane")) and pw & cr: need = max(need, 1)
                    if "dpp" in c["line"] or "row_" in c["line"] or "quad_perm" in c["line"]:
                        if pw & cr: need = max(need, 2)
                    if "sdwa" in p["op"] and "dst_sel:DWORD" not in p["line"] and pw & (cr | cw): need = max(need, 1)
                    if p.get("dot") and pw & (cr | cw):
                        same = p["op"] == c["op"]
                        srcs = c["line"].split(",")
                        if not (same and c["op"].startswith("v_dot2c") and not (pw & set(sum((regs(o) for o in srcs[1:]), [])))) and \
                           not (same and len(srcs) == 4 and not (pw & set(regs(srcs[1]) + regs(srcs[2])))):
                            need = max(need, 3)
                if c["kind"] == "mem" and p.get("dot") and pw & cr: need = max(need, 3)
            elif p["kind"] == "mem" and p.get("store") and p.get("wide"):
                if set(p["data"]) & cw: need = 2 if c["kind"] == "valu" else 1
            if p["op"].startswith("v_add_co") and c["op"].startswith("v_addc_co"): need = max(need, 2)
            if p["kind"] == "valu" and p["op"].startswith(("v_cmp", "v_readfirstlane", "v_readlane")):
                dst = sregs(p["line"].split(None, 1)[1].split(",")[0])
                src = sregs(",".join(c["line"].split(None, 1)[1].split(",")[(0 if c["kind"] == "mem" else 1):])) if " " in c["line"] else set()
                if dst & src:
                    if c["kind"] == "valu": need = max(need, 2)
                    elif c["kind"] == "mem": need = max(need, 5)
                    else: need = max(need, 1)
            if p["op"].startswith("s_") and "m0" in p["line"].split(",")[0] and c["kind"] == "mem" and (" lds" in c["line"] or "_lds_" in c["op"]):
                need = max(need, 1)
            if need > dist:
                probs.append(f"need {need} have {dist}: [{p['line']}] -> [{c['line']}]")
            dist += p["states"]
            if dist > 20: break
    return probs

def icost(l):
    op = l.split()[0]
    if op.startswith(TRANS) or op.startswith(("buffer_", "global_", "v_permlane")): return 8
    if op.startswith("s_"): return 0
    return 4

class Sched:
    def __init__(self):
        self.mf = []; self.sal = []; self.mem = []; self.valu = []; self.post = []
    def add(self, mfma):
        self.mf.append(mfma); self.sal.append([]); self.mem.append([]); self.valu.append([]); self.post.append([])
        return len(self.mf) - 1
    def n(self): return len(self.mf)
    def budget(self, g):
        m = self.mf[g]
        return 4 if (m and m.startswith("v_smfmac")) else 8
    def cost(self, g):
        c = sum(icost(l) for l in self.mem[g] + self.valu[g])
        if len(self.mem[g]) >= 2 and not self.valu[g]: c += 4
        return c + 4 * max(0, len([x for x in self.sal[g] if not x.startswith(('@stamp', '@seg')) and not x.endswith(':')]) - 1) + 4 * len([x for x in self.post[g] if not x.startswith('@') and not x.endswith(':')])
    def place_mem(self, line, lo, hi=None):
        hi = self.n() - 1 if hi is None else min(hi, self.n() - 1)
        assert lo <= hi, (line, lo, hi)
        w = icost(line)
        for g in range(lo, hi + 1):
            if not self.mem[g] and self.cost(g) + w <= self.budget(g):
                self.mem[g].append(line); return g
        g = min(range(lo, hi + 1), key=lambda g: (len(self.mem[g]), self.cost(g) - self.budget(g), g))
        self.mem[g].append(line); return g
    def place_edf(self, ops):
        todo = {i: o for i, o in enumerate(ops)}
        for i, (l, lo, hi) in todo.items(): assert lo <= hi, (l, lo, hi)
        g0 = min(o[1] for o in ops); g1 = max(o[2] for o in ops)
        res = {}; used = {}
        passes = [lambda g: not self.mem[g] and not used.get(g) and self.cost(g) + 4 <= self.budget(g),
                  lambda g: not self.mem[g] and not used.get(g),
                  lambda g: len(self.mem[g]) + used.get(g, 0) < 2, lambda g: len(self.mem[g]) + used.get(g, 0) < 3, lambda g: True]
        for ok in passes:
            for g in range(g0, g1 + 1):
                if not ok(g): continue
                av = sorted((o[2], i) for i, o in todo.items() if o[1] <= g <= o[2])
                if av: i = av[0][1]; todo.pop(i); res[i] = g; used[g] = used.get(g, 0) + 1
        assert not todo
        same = {}
        for i, o in enumerate(ops): same.setdefault(o[1:], []).append(i)
        for ids in same.values():
            for i, g in zip(ids, sorted(res[i] for i in ids)): res[i] = g
        for i in sorted(res): self.mem[res[i]].append(ops[i][0])
        return res
    def est(self):
        return sum((max(16, 16 - self.budget(g) + self.cost(g)) if self.mf[g] else self.cost(g)) for g in range(self.n()))
    def lines(self):
        out = []
        for g in range(self.n()):
            if self.mf[g]: out.append(self.mf[g])
            out += self.sal[g] + self.mem[g] + self.valu[g] + self.post[g]
        return out

_wait = re.compile(r"(vmcnt|lgkmcnt)\((\d+)\)")
def auto_wait(lines, pend_lds=None, pend_vm=None, keep=False):
    lds = list(pend_lds or []); vm = list(pend_vm or [])
    out = []
    def hoist(kind, k):
        pos = len(out); kk = k
        j = len(out) - 1
        while j >= 0:
            if out[j].startswith("@"): j -= 1; continue
            p = parse(out[j])
            if p is None or out[j].split()[0] in ("s_barrier", "s_cbranch_scc1", "s_cbranch_scc0", "s_branch"): break
            if p["kind"] == "mfma":
                pos = j + 1; k = kk; break
            isl = p["op"].startswith("ds_"); isv = p["op"].startswith(("buffer_", "global_"))
            if (kind == "lgkmcnt" and isl) or (kind == "vmcnt" and isv):
                kk -= 1
                if kk < 0: break
            if len(out) - j > 6: break
            j -= 1
        if pos < len(out) and out[pos].startswith("s_waitcnt") and kind not in out[pos]:
            out[pos] = out[pos] + f" {kind}({k})"
        elif pos < len(out) and out[pos].startswith("s_waitcnt"):
            old = int(dict(_wait.findall(out[pos]))[kind])
            out[pos] = out[pos].replace(f"{kind}({old})", f"{kind}({min(old,k)})")
        else:
            out.insert(pos, f"s_waitcnt {kind}({k})")
    for l in lines:
        if l.startswith("@waitvm"):
            parts = l.split(); tags = set(parts[1].split(","))
            idx = [i for i, e in enumerate(vm) if e[1] in tags]
            w = []
            if idx:
                k = len(vm) - 1 - max(idx); k = min(k, 62); w.append(f"vmcnt({k})"); vm = vm[len(vm) - k:] if k else []
            if len(parts) > 2 and (lds or not keep): w.append("lgkmcnt(0)"); lds = []
            if w: out.append("s_waitcnt " + " ".join(w))
            out.append("@chk " + " ".join(parts[1:]))
            continue
        if l.startswith("@chk"):
            parts = l.split(); tags = set(parts[1].split(","))
            assert not any(e[1] in tags for e in vm), l
            assert len(parts) < 3 or not lds, l
            out.append(l); continue
        p = parse(l)
        if p is None: out.append(l); continue
        if p["op"] == "s_waitcnt":
            for kind, k in _wait.findall(l):
                k = int(k)
                if kind == "vmcnt": vm = vm[len(vm) - k:] if 0 < k < len(vm) else ([] if k == 0 else vm)
                else: lds = lds[len(lds) - k:] if 0 < k < len(lds) else ([] if k == 0 else lds)
            out.append(l); continue
        touched = set(p["r"]) | set(p["w"])
        idx = [i for i, e in enumerate(lds) if e & touched]
        if idx:
            nm = 0; young = 0
            for q in reversed(out):
                if q.startswith(("v_mfma", "v_smfmac")):
                    nm += 1
                    if nm >= 7: break
                elif q.startswith("ds_"): young += 1
            k = min(len(lds) - 1 - max(idx), 14, young if nm >= 7 else 99); k = k; hoist("lgkmcnt", k); lds = lds[len(lds) - k:] if k else []
        idx = [i for i, e in enumerate(vm) if e[0] & touched]
        if idx:
            k = min(len(vm) - 1 - max(idx), 62); hoist("vmcnt", k); vm = vm[len(vm) - k:] if k else []
        if p["op"].startswith("ds_"): lds.append(set(p["w"]))
        elif p["op"].startswith(("buffer_", "global_")):
            m = re.search(r";tag=(\w+)", l)
            vm.append((set(p["w"]), m.group(1) if m else None))
        out.append(l)
    return out, lds, vm

def fix_hazards(lines):
    lines = list(lines)
    i = 0
    while i < len(lines):
        p = parse(lines[i])
        if p is None: i += 1; continue
        lo = max(0, i - 40)
        seg = lines[lo:i + 1]
        need = 0
        for pr in check_hazards(seg, only_last=True):
            m = re.match(r"need (\d+) have (\d+)", pr); need = max(need, int(m.group(1)) - int(m.group(2)))
        if need:
            lines.insert(i, f"s_nop {need-1}"); i += 1
        i += 1
    return lines

def f2u(x):
    import struct
    return "%#x" % struct.unpack("<I", struct.pack("<f", float(x)))[0]

def salu_trace(lines, init):
    R = dict(init); scc = [0]; out = []
    def val(t):
        t = t.strip()
        if t == "m0" or re.fullmatch(r"s\d+", t): return R.get(t)
        try: return int(t, 0) & 0xffffffff
        except ValueError: return None
    for l in lines:
        body = l.split(";")[0].strip()
        if not body or body.startswith(("@", ".")) or body.endswith(":"): continue
        parts = body.split(None, 1); op = parts[0]
        ops = [o.strip() for o in parts[1].split(",")] if len(parts) > 1 else []
        if op.startswith("buffer_") and ";tag=" in l:
            so = ops[-1].split()[0]
            out.append((l.split(";tag=")[1].strip(), R.get("m0") if body.endswith("lds") else None, val(so), body)); continue
        f = {"s_add_u32": lambda a, b: a + b, "s_sub_u32": lambda a, b: a - b, "s_xor_b32": lambda a, b: a ^ b, "s_lshl_b32": lambda a, b: a << b,
             "s_lshr_b32": lambda a, b: a >> b, "s_mul_i32": lambda a, b: a * b, "s_min_u32": min, "s_and_b32": lambda a, b: a & b, "s_or_b32": lambda a, b: a | b}
        if op in f:
            a, b = val(ops[1]), val(ops[2])
            R[ops[0]] = None if a is None or b is None else f[op](a, b) & 0xffffffff
            scc[0] = None
        elif op == "s_mov_b32": R[ops[0]] = val(ops[1])
        elif op == "s_cmp_lt_u32":
            a, b = val(ops[0]), val(ops[1]); scc[0] = None if a is None or b is None else int(a < b)
        elif op == "s_cselect_b32": R[ops[0]] = None if scc[0] is None else val(ops[1] if scc[0] else ops[2])
        elif op.startswith("s_") and ops and re.fullmatch(r"s\d+|m0", ops[0]) and not op.startswith("s_cmp"): R[ops[0]] = None
        elif op.startswith("v_readfirstlane"): R[ops[0]] = R.get("rfl")
    return out

def align8(text, minrun=5):
    import subprocess, tempfile, os
    def sizes(text):
        d = tempfile.mkdtemp(); open(d + "/a.s", "w").write(text)
        subprocess.run(["clang", "-x", "assembler", "-target", "amdgcn-amd-amdhsa", "-mcpu=gfx950", "-c", d + "/a.s", "-o", d + "/a.o"], check=True)
        out = subprocess.run(["llvm-objdump", "-d", "--mcpu=gfx950", d + "/a.o"], capture_output=True, text=True).stdout
        return [4 * len(m.group(1).split()) for m in re.finditer(r"// [0-9A-F]{12}: ([0-9A-F ]+)", out)]
    lines = text.split("\n")
    end = next(i for i, l in enumerate(lines) if l.startswith(".section"))
    ins = [i for i, l in enumerate(lines[:end]) if parse(l.strip()) is not None]
    sz = sizes(text); assert len(sz) == len(ins), (len(sz), len(ins))
    W = ("v_exp_f32", "v_rcp_f32", "v_rsq_f32", "v_mov_b32", "v_add_f32", "v_mul_f32", "v_max_f32", "v_sub_f32", "v_lshlrev_b32", "v_lshrrev_b32",
         "v_and_b32", "v_or_b32", "v_xor_b32", "v_floor_f32", "v_add_u32", "v_permlane16_swap_b32", "v_permlane32_swap_b32", "v_cvt_f32_i32")
    phase = 0; k = 0; n = len(ins); lastrun = -1; nop = []; nw = 0
    while k < n:
        if sz[k] == 4: phase ^= 4; k += 1; continue
        e = k
        while e < n and sz[e] == 8: e += 1
        if e == k: phase = (phase + sz[k]) % 8; k += 1; continue
        if e - k >= minrun:
            if phase:
                c = [j for j in range(k - 1, lastrun, -1) if sz[j] == 4 and lines[ins[j]].split()[0] in W]
                if c:
                    t = lines[ins[c[0]]]; op = t.split()[0]; lines[ins[c[0]]] = t.replace(op, op + "_e64", 1); phase = 0; nw += 1
                else:
                    va = sum(1 for j in range(k, e) if parse(lines[ins[j]].strip())["kind"] == "valu")
                    if va >= 8 and 2 * va > e - k: nop.append(ins[k]); phase = 0
            lastrun = e - 1
        k = e
    for i in reversed(nop): lines.insert(i, "    s_nop 0")
    import sys; print("align8: widened", nw, "nops", len(nop), file=sys.stderr)
    return "\n".join(lines)

def check_dead_loads(lines):
    last = {}; bad = []
    for l in lines:
        p = parse(l)
        if p is None: continue
        for r in p["r"]: last.pop(r, None)
        for r in p["w"]:
            if r in last: bad.append((last[r], l))
            last.pop(r, None)
            if (p["kind"] == "mem" and not p["op"].endswith("load_dword")) or p["op"].startswith(("v_cvt_pk", "v_mfma", "v_exp")): last[r] = l
    return bad + [(l, "never read") for l in set(last.values())]
```

```python
import sys, math, copy
from asmlib import *
NAME = "recurrent_scan__gqa_block_cached__dense_activation_gelu__prompt"
M16 = "v_mfma_f32_16x16x32_bf16"
SMF = "v_smfmac_f32_16x16x64_bf16"

class Cfg:
    diag = False
    shift = 102.0
    SM0 = 8
    BAR = 29
    pvorder = "bshare"
    stflags = "sc1"
    ldflags = "sc1"
    NR = 16
    DO0 = 3
    ND = 6
    zig = 1
    gzig = 0
    WPS = 2
    DO = 3
    rot = 0
    rot2 = 7
    touch = True
    fakew = False
    fakeo = False
    kvflags = 'nt'
    fwflags = ''
    fhflags = 'sc1'
    FPOS = (47, 95)
    MG = 6
    align = 3
    HB = 2
    scr = 0
    tlb = 0
    rotw = 0
    PADR = 1024
    kvrot = 0
    PADW = 0
    rotx = 7
    probe = None
    last_h = None
    estonly = False
    DPOS = 56
    DSP = 4
    H30W = ((0, 30), (52, 66), (60, 76))
    H31W = ()
    HSP = 3
    NE = 3
    RS = 0
    H31 = 2
    NB1 = 9
    force_fallback = False
    trace = None
    nostamp = ('b3', 'b4', 'b5')
    codepf = True
    codepf2 = True
    GBAR = 14
    GBAR8 = 26
    STB = 6
    pg = 3
    XFULL = 9
    XFIRST = 1
    GSP0 = 4
    RSC = 16
    smtest = 0
    K2 = 1
    TP = 1
    RSPOS = 0
    GLO = 4
    G0 = 4
    nofb = False
    slp = 8
    recenter = 6
    l2n = 0
    stagger = 0
    NLATE = 10
    flagmode = 'store'
    pollflags = 'sc1'
    outflags = 'sc1'
    GSP = 4
    def __init__(self, **kw):
        for k, v in kw.items():
            assert hasattr(self, k), k
            setattr(self, k, v)

WS_O = 0x2000000
WS_H = 0x1000000
H_RT = 43 * 4096
WS_FL = 0x1800000
WS_RS = 0x1810000
WS_ST = 0x8000000
NS = 4
KSLOT = 16416; VCH = 4128; VSLOT = 4 * VCH
VBASE = NS * KSLOT
XBASE = KSLOT; XSLOT = 32832
WCH = 6176; WSLOT = 4 * WCH
WBASE = VBASE + VSLOT
CWBASE = WBASE + 3 * WSLOT
FLBASE = CWBASE + 768
LDS_A = FLBASE + 64
assert XBASE + XSLOT + 32768 <= WBASE and XBASE + XSLOT >= 3 * KSLOT and LDS_A <= 163840 and VBASE + NS * VSLOT <= LDS_A
VK, VV, VD, VIDX, VOA, VOB = 2, 3, 4, 5, 6, 7
SMA = 8
VDW, VL, VFE, VFO = 12, 13, 14, 15
NEGM = 16; S0 = 32; P0 = 48; O0 = 128; VXT = 96
FA = 64
VRA = 80
VPA, VONE, VPD, VDG = 86, 87, 1, 95
VX0, VX1, VXR, VWQ, VW1, VWR, VCQ, VCF, VC0, VC1, VCR, VH1 = range(16, 28)
B1F = 32; SX = 48
def S(n, i): return S0 + 4 * i if n >= 4 else O(i, n)
def P(n): return P0 + (n & 1) * 8
def O(dt, qt): return O0 + (dt * 4 + qt) * 4
def ACC(T, qt): return O0 + (T * 4 + qt) * 4 if T < 8 else 96 + ((T - 8) * 4 + qt) * 4 if T < 10 else 64 + ((T - 10) * 2 + qt) * 4
def Q(qt, ks): return (qt * 4 + ks) * 4
def KF(i, ks): return 64 + (i * 4 + ks) * 4
NVX = 2
def VF(T, u, dt): return ("v", VXT + (u * NVX + dt) * 4) if (T & 1 and dt < NVX) else ("a", 128 + u * 32 + dt * 4)
def rr(kb, n, o=0): return vr(kb[1] + o, n, kb[0])
def LA(qt): return 192 + qt * 4
def XF(kb, qt, s): return (kb & 1) * 32 + qt * 8 + s * 4
NWR = 6
def WF(n, s): return 128 + (n % NWR) * 8 + s * 4
def CF(j, s): return 64 + j * 8 + s * 4
CWA = 88
sK, sV, sWS, sX, sWQ, sF0, sF1, sDBG = 4, 8, 12, 16, 20, 24, 28, 32
sW, sHEAD, sQB, sPAR, sKM, sVM, sVO, sLOOP, sROT, sKO, sXM, sWM, sP0, sP1, sTRY, sSH = range(36, 52)
sT = 52
sWO, sXX, sW2, sOUT, sB2 = 60, 64, 68, 72, 76
sRO, sFM, sKW, sOB, sHB, sFW, sFH, sHS0, sHS1, sFLO = range(80, 90)
sGX = 3
sXA, sXB = 94, 95
sTO, sTC = 94, 95; VTO = 92
sRC = 93; VCP = 94; sOS = 100
sOL, sOT = sX, sWQ
XB = VBASE + 4 * VSLOT
XT = XB + VSLOT
assert XT + 8192 <= FLBASE
def srd(b): return f"s[{b}:{b+3}]"

class Stamps:
    def __init__(self): self.names = []; self.rt = []
    def __call__(self, c, a, name, rt=False):
        if c.probe and name in c.probe:
            a(f"s_memrealtime s[96:97]\ns_waitcnt lgkmcnt(0)\nv_writelane_b32 v{VDG}, s96, {c.probe.index(name)}")
        if not c.diag or name in c.nostamp: return
        i = len(self.names); self.names.append(name); assert i < 40
        a(f"s_memtime s[96:97]\ns_waitcnt lgkmcnt(0)\nv_writelane_b32 v{VDG}, s96, {i}")
        if rt:
            a(f"s_memrealtime s[96:97]\ns_waitcnt lgkmcnt(0)\nv_writelane_b32 v{VDG}, s96, {40+len(self.rt)}"); self.rt.append(name)
    def out(self, c, a, base, ws, wave):
        if not c.diag: return
        a(f"""s_lshl_b32 s{sT}, s2, 2
s_add_u32 s{sT}, s{sT}, s{wave}
s_lshl_b32 s{sT}, s{sT}, 8
s_add_u32 s{sT}, s{sT}, {base}
v_lshlrev_b32 v1, 2, v0
buffer_store_dword v{VDG}, v1, {srd(ws)}, s{sT} offen""")

def mk_srd(a, d, lo, hi, off, size):
    if off is None: a(f"s_mov_b32 s{d}, s{lo}\ns_mov_b32 s{d+1}, s{hi}")
    else: a(f"s_add_u32 s{d}, s{lo}, {off}\ns_addc_u32 s{d+1}, s{hi}, 0")
    a(f"s_mov_b32 s{d+2}, {size}\ns_mov_b32 s{d+3}, 0x20000")

L3, L23, L4 = 28, 29, 30
RSV = 48
def setup_A(c):
    a = Asm()
    a(f"""s_load_dwordx16 s[64:79], s[0:1], 0
s_load_dwordx8 s[80:87], s[0:1], 64
s_load_dwordx2 s[88:89], s[0:1], 96
v_lshrrev_b32 v1, 6, v0
v_and_b32 v0, 63, v0
s_and_b32 s{sGX}, s2, 7
v_readfirstlane_b32 s{sW}, v1
s_bfe_u32 s{sQB}, s2, 0x30003
s_lshr_b32 s{sT+1}, s2, 6
s_lshl_b32 s{sHEAD}, s{sGX}, 2
s_add_u32 s{sHEAD}, s{sHEAD}, s{sT+1}
s_and_b32 s{sPAR}, s{sHEAD}, 1
s_xor_b32 s{sROT}, s{sT+1}, s{sQB}
s_and_b32 s{sROT}, s{sROT}, {c.rot}
s_and_b32 s{sT}, s{sGX}, {c.rotx}
s_xor_b32 s{sROT}, s{sROT}, s{sT}
s_lshr_b32 s{sT}, s{sHEAD}, 1
s_mul_i32 s{sT}, s{sT}, 3
s_add_u32 s{sP1}, s{sT}, 1
s_lshl_b32 s{sT+1}, s{sPAR}, 1
s_add_u32 s{sP0}, s{sT}, s{sT+1}
s_add_u32 s{sT+1}, s{sHEAD}, 11
s_cmp_lt_u32 s{sHEAD}, 22
s_cselect_b32 s{sP0}, s{sP0}, s{sT+1}
s_cselect_b32 s{sP1}, s{sP1}, 0
s_lshl_b32 s{sXM}, s{sW}, 13
s_add_u32 s{sXM}, s{sXM}, {XBASE}
s_mul_i32 s{sWM}, s{sW}, {WCH}
s_add_u32 s{sWM}, s{sWM}, {WBASE}
v_and_b32 v{L3}, 3, v0
v_bfe_u32 v{L23}, v0, 2, 2
v_lshrrev_b32 v{L4}, 4, v0
v_lshlrev_b32 v{VL}, 4, v0
s_lshl_b32 s{sT+2}, s{sQB}, 8
s_lshl_b32 s{sT+3}, s{sHEAD}, 3
s_add_u32 s{sT+2}, s{sT+2}, s{sT+3}
s_lshl_b32 s{sT+3}, s{sW}, 1
s_add_u32 s{sKO}, s{sT+2}, s{sT+3}
s_lshl_b32 s{sT+2}, s{sKO}, 10
v_add_u32 v91, s{sT+2}, v{VL}
v_and_b32 v1, 1, v{L4}
v_lshlrev_b32 v1, 1, v1
v_xor_b32 v1, v1, v{L3}
v_lshlrev_b32 v{VDW}, 4, v1
v_lshrrev_b32 v31, 2, v0
v_lshl_add_u32 v{VX0}, v31, 10, v{VDW}
s_bfe_u32 s{sT}, s{sHEAD}, 0x10001
s_lshl_b32 s{sT+1}, s{sT}, 14
v_add_u32 v{VX0}, s{sT+1}, v{VX0}
v_xor_b32 v{VX1}, 0x4000, v{VX0}
s_lshl_b32 s{sT}, s{sT}, 11
s_add_u32 s{sXA}, s{sXM}, s{sT}
s_xor_b32 s{sT}, s{sT}, 0x800
s_add_u32 s{sXB}, s{sXM}, s{sT}
s_lshl_b32 s{sT}, s{sW}, 3
v_add_u32 v1, s{sT}, v{L23}
v_lshlrev_b32 v31, 4, v{L3}
v_lshl_add_u32 v{VD}, v{L4}, 6, v31
v_lshl_add_u32 v{VWQ}, v1, 13, v{VD}
v_lshrrev_b32 v{VW1}, 5, v0
v_lshl_add_u32 v1, v{VW1}, 5, v1
v_and_b32 v{VW1}, 1, v{L4}
v_lshl_add_u32 v1, v{VW1}, 2, v1
v_mul_u32_u24 v1, 2752, v1
v_add_u32 v{VW1}, v1, v31
s_lshl_b32 s{sT}, s{sQB}, 2
s_add_u32 s{sT+1}, s{sT}, s{sW}
s_lshl_b32 s{sT}, s{sT+1}, 16""")
    a("s_waitcnt lgkmcnt(0)")
    a("@stamp karg")
    if c.tlb:
        a(f"""s_load_dword s101, s[70:71], 0
s_load_dword s101, s[76:77], 0
s_mov_b32 s{sT+1}, {WS_RS + 0x8000}
s_load_dword s101, s[88:89], s{sT+1}
s_load_dword s101, s[78:79], 0
s_load_dword s101, s[86:87], 0
s_mov_b32 s{sT+1}, 0x200000
s_load_dword s101, s[70:71], s{sT+1}""")
    mk_srd(a, sX, 64, 65, f"s{sT}", 65536)
    L = a.lines + flat(dma_x(0)[:2])
    a = Asm()
    a(f"s_lshl_b32 s{sT}, s{sHEAD}, 8")
    mk_srd(a, sWQ, 70, 71, f"s{sT}", 512 * 8192 - 8192 + 256)
    a(f"s_lshl_b32 s{sT}, s{sP0}, 6")
    mk_srd(a, sF0, 76, 77, f"s{sT}", 512 * 2752 - 2752 + 64)
    a(f"s_lshl_b32 s{sT}, s{sP1}, 6")
    mk_srd(a, sF1, 76, 77, f"s{sT}", 512 * 2752 - 2752 + 64)
    a(f"s_cmp_lt_u32 s{sHEAD}, 22\ns_cselect_b32 s{sF1+2}, s{sF1+2}, 0\ns_mov_b64 s[98:99], s[64:65]")
    return L + a.lines + flat(dma_w(0))

B1R = [28, 30, 60, 62]
def side_loads():
    return [([], f"global_load_dwordx4 {vr(RSV+4*i,4)}, v91, s[98:99] offset:{i*1024}") for i in range(2)] + \
           [([], f"global_load_dwordx2 {vr(B1R[i],2)}, v{88 + i//2}, s[92:93] offset:{(i&1)*32}") for i in range(4)]

def setup_A2(c):
    a = Asm()
    if c.codepf:
        a(f"""s_getpc_b64 s[90:91]
L_pc:
s_lshr_b32 s{sT}, s2, 3
s_lshl_b32 s{sT}, s{sT}, 2
s_add_u32 s{sT}, s{sT}, s{sW}
s_lshl_b32 s{sT}, s{sT}, 9
v_lshl_add_u32 v{VCP}, v{L4}, 7, s{sT}
v_min_u32 v{VCP}, L_last-L_pc, v{VCP}
global_load_dword v255, v{VCP}, s[90:91]""")
    a(f"""; b1 (D layout): 4 bf16 at (pair*32 + 16a + 4g)
s_lshl_b32 s{sT}, s{sP0}, 6
s_lshl_b32 s{sT+1}, s{sP1}, 6
v_lshl_add_u32 v88, v{L4}, 3, s{sT}
v_lshl_add_u32 v89, v{L4}, 3, s{sT+1}
s_mov_b64 s[92:93], s[78:79]
s_lshl_b32 s{sT}, s{sHEAD}, 19""")
    mk_srd(a, sK, 66, 67, f"s{sT}", 0x80000)
    mk_srd(a, sV, 68, 69, f"s{sT}", 0x80000)
    mk_srd(a, sWS, 88, 89, None, 0x10000000)
    mk_srd(a, sDBG, 86, 87, None, 256)
    a(f"s_lshl_b32 s{sT}, s{sQB}, 7")
    mk_srd(a, sWO, 72, 73, f"s{sT}", 4096 * 1024 - 896)
    mk_srd(a, sW2, 80, 81, f"s{sT}", 1376 * 1024 - 896)
    mk_srd(a, sB2, 82, 83, f"s{sT}", 128)
    a(f"s_lshl_b32 s{sT+1}, s{sHEAD}, 16\ns_add_u32 s{sT+1}, s{sT+1}, s{sT}")
    mk_srd(a, sXX, 64, 65, f"s{sT+1}", 65536 - 896)
    mk_srd(a, sOUT, 84, 85, f"s{sT+1}", 65536 - 896)
    T = 31
    a(f"""s_lshr_b32 s{sRO}, s2, 6
s_lshl_b32 s{sRO}, s{sRO}, 1
s_xor_b32 s{sRO}, s{sRO}, s{sQB}
s_and_b32 s{sRO}, s{sRO}, {c.rot2}
s_and_b32 s{sT+4}, s{sW}, {c.rotw}
s_xor_b32 s{sRO}, s{sRO}, s{sT+4}
s_lshl_b32 s{sKW}, s{sW}, 5
s_lshl_b32 s{sT+4}, s{sW}, 10
s_add_u32 s{sFM}, s{sT+4}, {XB}
s_lshl_b32 s{sOB}, s{sW}, 12
s_add_u32 s{sRO}, s{sRO}, s{sKW}
s_lshr_b32 s{sT+5}, s{sRO}, 2
s_lshl_b32 s{sT+5}, s{sT+5}, 14
s_add_u32 s{sOB}, s{sOB}, s{sT+5}
s_and_b32 s{sT+5}, s{sRO}, 3
s_lshl_b32 s{sT+5}, s{sT+5}, 10
s_add_u32 s{sOB}, s{sOB}, s{sT+5}
s_lshl_b32 s{sRO}, s{sRO}, 15
s_lshl_b32 s{sOS}, s{sHEAD}, 1
s_add_u32 s{sOS}, s{sOS}, s{sPAR}
s_lshl_b32 s{sOS}, s{sOS}, 13
s_mul_i32 s{sHB}, s{sHEAD}, {H_RT}
s_add_u32 s{sHB}, s{sHB}, s{sT+4}
s_add_u32 s{sHB}, s{sHB}, {WS_H}
s_lshl_b32 s{sT+4}, s{sQB}, 2
s_add_u32 s{sT+4}, s{sT+4}, s{sW}
s_mul_i32 s{sT+4}, s{sT+4}, {H_RT}
s_add_u32 s{sT+4}, s{sT+4}, {WS_H}
s_lshl_b32 s{sHS0}, s{sP0}, 12
s_add_u32 s{sHS0}, s{sHS0}, s{sT+4}
s_lshl_b32 s{sHS1}, s{sP1}, 12
s_add_u32 s{sHS1}, s{sHS1}, s{sT+4}
s_lshl_b32 s{sFLO}, s{sQB}, 8
s_lshl_b32 s{sT+4}, s{sHEAD}, 2
s_add_u32 s{sFLO}, s{sFLO}, s{sT+4}
s_add_u32 s{sFLO}, s{sFLO}, {WS_FL}
s_lshr_b32 s{sT+4}, s{sW}, 1
s_lshl_b32 s{sT+4}, s{sT+4}, 4
s_lshl_b32 s{sKM}, s{sW}, 12
s_add_u32 s{sKM}, s{sKM}, s{sT+4}
s_mul_i32 s{sVM}, s{sW}, {VCH}
s_add_u32 s{sVM}, s{sVM}, {VBASE}
s_mov_b32 s{sTRY}, 0
s_mul_i32 s{sKV0}, s{sHEAD}, {c.kvrot * 16384}
s_mov_b32 s{sSH}, {f2u(c.shift)}
@pg1
v_lshl_add_u32 v{VD}, v{L23}, 8, v{VD}
s_lshl_b32 s{sT+4}, s{sW}, 12
v_add_u32 v{VD}, s{sT+4}, v{VD}
v_and_b32 v1, 1, v{L23}
v_lshlrev_b32 v1, 1, v1
v_xor_b32 v1, v1, v{L4}
v_lshlrev_b32 v1, 4, v1
v_and_b32 v{T}, 15, v0
v_lshl_add_u32 v1, v{T}, 6, v1
v_add_u32 v{VXR}, s{sXM}, v1
s_lshl_b32 s{sT+4}, s{sW}, 7
s_add_u32 s{sT+4}, s{sT+4}, {CWBASE}
s_lshl_b32 s{sT+5}, s{sW}, 6
s_add_u32 s{sT+5}, s{sT+5}, {CWBASE+512}
v_lshl_add_u32 v{VC0}, v{T}, 2, s{sT+4}
v_lshl_add_u32 v{VC1}, v{T}, 2, s{sT+5}
v_lshlrev_b32 v{VCR}, 4, v{L4}
v_add_u32 v{VCR}, {CWBASE}, v{VCR}
s_lshl_b32 s{sT+4}, s{sPAR}, 8
v_lshl_add_u32 v92, v{T}, 3, s{sT+4}
v_xor_b32 v93, 0x100, v92
v_lshlrev_b32 v1, 3, v{L3}
v_lshl_add_u32 v1, v{L23}, 6, v1
v_mul_u32_u24 v{VWR}, {WCH}, v{L4}
v_add_u32 v{VWR}, v{VWR}, v1
v_add_u32 v{VWR}, {WBASE}, v{VWR}
v_mul_u32_u24 v{VV}, {VCH}, v{L4}
v_add_u32 v{VV}, v{VV}, v1
v_add_u32 v{VV}, {VBASE}, v{VV}
s_lshl_b32 s{sT+4}, s{sW}, 8
v_add_u32 v{VCQ}, s{sT+4}, v{VWR}
s_lshr_b32 s{sT+4}, s{sW}, 1
s_lshl_b32 s{sT+4}, s{sT+4}, 10
s_and_b32 s{sT+5}, s{sW}, 1
s_lshl_b32 s{sT+5}, s{sT+5}, 5
s_add_u32 s{sT+4}, s{sT+4}, s{sT+5}
v_add_u32 v{VCF}, s{sT+4}, v{VWR}
v_lshrrev_b32 v{T}, 1, v{L4}
v_lshl_add_u32 v1, v{T}, 10, v1
v_lshl_add_u32 v{VDW}, v{T}, 6, v{VDW}
v_and_b32 v{T}, 1, v{L4}
v_lshl_add_u32 v1, v{T}, 8, v1
v_lshl_add_u32 v1, v{T}, 5, v1
v_xor_b32 v{T}, 32, v1
v_add_u32 v{VRA}, s{sKM}, v1
v_add_u32 v{VRA+1}, s{sKM}, v{T}
v_add_u32 v{VRA+2}, s{sVM}, v1
v_add_u32 v{VRA+3}, s{sVM}, v{T}
v_add_u32 v{VRA+4}, {4*VSLOT}, v{VRA+2}
v_add_u32 v{VRA+5}, {4*VSLOT}, v{VRA+3}
v_add_u32 v{VFE}, {XB}, v1
v_add_u32 v{VFO}, {XB}, v{T}
v_bfe_u32 v{T}, v0, 2, 3
v_lshl_add_u32 v{VDW}, v{T}, 10, v{VDW}
v_and_b32 v{VPA}, 7, v0
v_lshlrev_b32 v{VPA}, 2, v{VPA}
v_lshrrev_b32 v1, 1, v{L23}
v_lshlrev_b32 v1, 4, v1
v_lshl_add_u32 v1, v{L23}, 12, v1
v_lshl_add_u32 v1, v{L3}, 6, v1
v_and_b32 v{VK}, 1, v{L4}
v_lshl_add_u32 v1, v{VK}, 5, v1
v_lshrrev_b32 v{VK}, 1, v{L4}
v_lshl_add_u32 v{VK}, v{VK}, 4, v1
; store voffsets (workgroups without an extra FFN pair send those stores out of range)
s_lshl_b32 s{sT+4}, s{sPAR}, 11
v_add_u32 v{VOA}, s{sT+4}, v{VL}
v_xor_b32 v{VOB}, 0x800, v{VOA}
s_cmp_lt_u32 s{sHEAD}, 22
s_cselect_b32 s{sT+4}, 0, 0x10000000
v_add_u32 v{VH1}, s{sT+4}, v{VOA}
v_or_b32 v1, s{sW}, v0
v_cmp_eq_u32 vcc, 0, v1
v_mov_b32 v1, 0x10000000
v_cndmask_b32 v{VONE}, v1, 0, vcc
; row-sum operand: ones in rows 0,1 mod 4; index picks k%4 in (0,1) / (2,3)
v_cmp_gt_u32 vcc, 2, v{L3}
v_mov_b32 v1, 0x3f803f80
v_mov_b32 v{T}, 0x44444444
v_cndmask_b32 v{SMA}, 0, v1, vcc
v_cndmask_b32 v{SMA+1}, 0, v1, vcc
v_cndmask_b32 v{SMA+2}, 0, v1, vcc
v_cndmask_b32 v{SMA+3}, 0, v1, vcc
v_cmp_eq_u32 vcc, 1, v{L3}
v_mov_b32 v{VIDX}, 0xeeeeeeee
v_cndmask_b32 v{VIDX}, v{T}, v{VIDX}, vcc""")
    for r in range(12): a(f"v_accvgpr_write_b32 a{CWA+r}, 0")
    for l in attn_init()[:24]: a(l)
    pg = f"""s_xor_b32 s{sT+4}, s{sROT}, 4
s_lshl_b32 s{sT+4}, s{sT+4}, 19
s_cmp_lt_u32 s{sW}, 2
s_cselect_b64 s[96:97], s[{sWQ}:{sWQ+1}], s[{sWS}:{sWS+1}]
s_cselect_b32 s{sT+4}, s{sT+4}, s{sHS0}
v_mov_b32 v252, s{sT+4}
global_load_dword v253, v252, s[96:97] sc1
s_cselect_b64 s[96:97], s[{sK}:{sK+1}], s[{sV}:{sV+1}]
v_mov_b32 v252, 0
global_load_dword v254, v252, s[96:97]""".split("\n") if c.pg & 1 else []
    i_ = next(i for i, l in enumerate(a.lines) if l.strip() == "@pg1")
    a.lines[i_:i_ + 1] = pg
    if c.tlb > 1:
        for d, off in ((sK, 0), (sV, 0), (sWS, f"s{sHS0}"), (sB2, 0), (sW2, 0), (sWS, f"s{sHB}"), (sWO, f"s{sRO}"), (sWS, f"s{sOS}"), (sWS, f"s{sOB}"), (sOUT, 0), (sXX, 0)):
            a(f"s_load_dword s101, s[{d}:{d+1}], {off}")
    return a.lines

def stat_stores():
    return [([], f"buffer_store_dwordx2 v[88:89], v1, {srd(sWS)}, s{sKO} offen sc1 ;tag=sst"),
            ([], f"buffer_store_dword v91, v{VONE}, {srd(sWS)}, s{sFLO} offen sc1 ;tag=sst")]
def row_stats(c):
    a = Asm()
    s0, s1, q0, q1 = RSV + 8, RSV + 9, RSV + 10, RSV + 11
    a(f"v_mov_b32 v{s0}, 0\nv_mov_b32 v{s1}, 0\nv_mov_b32 v{q0}, 0\nv_mov_b32 v{q1}, 0\nv_mov_b32 v1, 0x3f803f80")
    for e in range(4):
        a(f"v_dot2c_f32_bf16 v{s0}, v{RSV+e}, v1\nv_dot2c_f32_bf16 v{q0}, v{RSV+e}, v{RSV+e}")
        a(f"v_dot2c_f32_bf16 v{s1}, v{RSV+4+e}, v1\nv_dot2c_f32_bf16 v{q1}, v{RSV+4+e}, v{RSV+4+e}")
    a(f"""s_nop 2
v_permlane32_swap_b32 v{s0}, v{s1}
v_permlane32_swap_b32 v{q0}, v{q1}
v_add_f32 v{s0}, v{s0}, v{s1}
v_add_f32 v{q0}, v{q0}, v{q1}
v_mov_b32 v{s1}, v{s0}
v_mov_b32 v{q1}, v{q0}
v_permlane16_swap_b32 v{s0}, v{s1}
v_permlane16_swap_b32 v{q0}, v{q1}
v_add_f32 v{s0}, v{s0}, v{s1}
v_add_f32 v{q0}, v{q0}, v{q1}""")
    for sh in (8, 4, 2, 1):
        a(f"v_add_f32_dpp v{s0}, v{s0}, v{s0} row_ror:{sh} row_mask:0xf bank_mask:0xf\nv_add_f32_dpp v{q0}, v{q0}, v{q0} row_ror:{sh} row_mask:0xf bank_mask:0xf")
    a(f"""v_mul_f32 v88, {f2u(-1/512)}, v{s0}
v_mul_f32 v{q0}, {f2u(1/512)}, v{q0}
v_fma_f32 v{q0}, -v88, v88, v{q0}
v_max_f32 v{q0}, 0, v{q0}
v_add_f32 v{q0}, {f2u(1e-5)}, v{q0}
v_rsq_f32 v89, v{q0}
v_lshrrev_b32 v1, 5, v0
v_lshlrev_b32 v1, 3, v1
s_lshl_b32 s{sKO}, s{sKO}, 3
s_add_u32 s{sKO}, s{sKO}, {WS_RS}
v_mov_b32 v91, 0
v_mov_b32 v90, 1""")
    for i in range(8): a(f"v_lshlrev_b32 v{B1F+2*i}, 16, v{B1R[i//2]+(i&1)}\nv_and_b32 v{B1F+2*i+1}, 0xffff0000, v{B1R[i//2]+(i&1)}")
    return [l.strip() for l in a.lines]

def dma_x(kb):
    A, B = sT + 2, sT + 3
    g = []
    for qt in range(4):
        for s in range(2):
            pre = []
            if qt == 0 and s == 0:
                pre += [f"s_xor_b32 s{A}, s{sROT}, {kb}", f"s_lshl_b32 s{A}, s{A}, 7", f"s_lshl_b32 s{B}, s{sPAR}, 15",
                        f"s_add_u32 s{A}, s{A}, s{B}", f"s_xor_b32 s{B}, s{A}, 0x8000"]
            pre.append(f"s_add_u32 m0, s{sXB if qt & 1 else sXA}, {(kb & 1) * XSLOT + (qt >> 1) * 4096 + s * 960}")
            g.append((pre, f"buffer_load_dwordx4 v{VX1 if qt & 1 else VX0}, {srd(sX)}, s{B if qt >= 2 else A} offen offset:{s*64} lds ;tag=x{kb}"))
    return g
def dma_w(kb):
    A, B, C = sT + 4, sT + 5, sT + 6
    base = (kb % 3) * WSLOT
    g = []
    for i in range(4):
        s, t = i >> 1, i & 1
        if i == 0:
            pre = [f"s_xor_b32 s{C}, s{sROT}, {kb}", f"s_lshl_b32 s{A}, s{C}, 19", f"s_mul_i32 s{C}, s{C}, {64*2752}", f"s_add_u32 m0, s{sWM}, {base}"]
            so = A
        else:
            pre = [f"s_add_u32 s{B}, s{A}, {(32*s+4*t)*8192 - i*1024}"]; so = B
        g.append((pre, f"buffer_load_dwordx4 v{VWQ}, {srd(sWQ)}, s{so} offen offset:{i*1024} lds ;tag=w{kb}"))
    g.append(([f"s_add_u32 m0, s{sWM}, {base+4096}"], f"buffer_load_dwordx4 v{VW1}, {srd(sF0)}, s{C} offen lds ;tag=w{kb}"))
    g.append(([f"s_add_u32 m0, s{sWM}, {base+5120}"], f"buffer_load_dwordx4 v{VW1}, {srd(sF1)}, s{C} offen lds ;tag=w{kb}"))
    return g
KVR = [0]; sKV0 = 101
def dma_kv(kind, tile, A=sT + 7):
    g = []
    for i in range(4):
        pre = ([f"s_add_u32 s{A}, s{sKV0}, {tile*16384}", f"s_and_b32 s{A}, s{A}, 0x7ffff"] if KVR[0] else [f"s_mov_b32 s{A}, {tile*16384}"]) + [f"s_add_u32 m0, s{sKM if kind=='K' else sVM}, {(tile%NS)*(KSLOT if kind=='K' else VSLOT)}"] if i == 0 else []
        g.append((pre, f"buffer_load_dwordx4 v{VD}, {srd(sK if kind=='K' else sV)}, s{A} offen offset:{i*1024} lds ;tag={kind}{tile}"))
    return g
def flat(g):
    out = []
    for pre, l in g: out += pre + [l]
    return out
def place_group(sc, g, lo, hi, sp=4, look=None):
    cur = lo
    for n_, (pre, l) in enumerate(g):
        start = cur
        h_ = hi - (len(g) - 1 - n_)
        l_ = min(cur + max(len(pre), sp if n_ else 1), h_)
        gp = sc.place_mem(l, l_, min(h_, l_ + look) if look is not None else h_)
        assert gp > start
        free = [x for x in range(start, gp) if not sc.sal[x]]
        free = [x for x in free if x > start or not any(m.startswith(("buffer_", "global_")) for m in sc.mem[x])]
        if len(free) < 1 and len(pre) == 1 and "m0" not in pre[0] and pre[0].startswith("s_") and not sc.sal[gp] and len(sc.mem[gp]) == 1:
            sc.sal[gp].append(pre[0])
        elif len(free) >= len(pre):
            for x, s_ in zip(free[-len(pre):] if pre else [], pre): sc.sal[x].append(s_)
        else:
            sc.post[gp - 1] += pre
        cur = gp
    return cur

def x_reads(kb):
    return [f"ds_read_b128 {ar(XF(kb,qt,s),4)}, v{VXR} offset:{(kb&1)*XSLOT+(qt*2+s)*1024}" for qt in range(4) for s in range(2)]
def w_off(kb, T, s, t):
    b = (kb % 3) * WSLOT
    return b + (2*s+t)*1024 + (T >> 1)*256 + (T & 1)*32 if T < 8 else b + 4096 + ((T-8) >> 1)*1024 + (2*s+t)*256 + (T & 1)*32
def w_reads(kb, T, n):
    return [f"ds_read_b64_tr_b16 {ar(WF(n,s)+2*t,2)}, v{VWR} offset:{w_off(kb,T,s,t)}" for s in range(2) for t in range(2)]
def c_reads(kb):
    out = []
    for j in range(3):
        for s in range(2):
            for t in range(2):
                if j < 2: out.append(f"ds_read_b64_tr_b16 {ar(CF(j,s)+2*t,2)}, v{VCQ} offset:{w_off(kb,j,s,t)}")
                else: out.append(f"ds_read_b64_tr_b16 {ar(CF(j,s)+2*t,2)}, v{VCF} offset:{w_off(kb,8,s,t)}")
    return out

CWR = [28, 88, 16, 20]
def gemm1(c):
    L = setup_A(c) + ["@stamp first"] + setup_A2(c) + ["@stamp setup"]
    g_ = side_loads() + dma_x(0)[2:] + dma_w(1) + dma_x(1)[:2]
    L += flat(g_[:c.RSC]) + row_stats(c) + flat(g_[c.RSC:]) if c.RSC else flat(g_)
    L += ["@stamp issued", "@waitvm x0"] + x_reads(0) + ["@waitvm w0 lgkm0", "s_barrier", "@stamp b0 rt"]
    TORD = [0, 1, 2, 10, 3, 4, 5, 11, 6, 7, 8, 9]
    L += w_reads(0, TORD[0], 0) + w_reads(0, TORD[1], 1)
    sc = Sched()
    first = {}; last = {}; start = {}; cwg = {}
    for kb in range(8):
        start[kb] = sc.n()
        for n, T in enumerate(TORD if kb < 7 else [0, 1, 8, 10, 9, 2, 11, 3, 4, 5, 6, 7]):
            N = kb * 12 + n
            for nq, qt in enumerate(range(4 if T < 10 else 2)):
                if c.gzig == 2 and T < 10 and (T & 1): qt = 3 - qt
                for i_ in range(2):
                    s = i_ ^ (nq & 1) if c.gzig else i_
                    d = vr(ACC(T, qt), 4)
                    g = sc.add(f"{M16} {d}, {ar(WF(N,s),4)}, {ar(XF(kb,qt,s),4)}, {'0' if kb == 0 and i_ == 0 else d}")
                    first.setdefault(N, (g, T)); last[N] = g
            j_ = n - (4 if kb < 7 else 3)
            if 0 <= j_ < 3: cwg[(kb, j_)] = sc.add(f"{SMF} {ar(CWA+4*j_,4)}, {vr(SMA,4)}, {ar(CF(j_,0),8)}, v{VIDX}")
    start[8] = sc.n()
    bar = {kb: start[kb] - c.GBAR for kb in range(1, 9)}
    bar[0] = -1; bar[8] = start[8] - c.GBAR8
    CNT2 = f"s_lshl_b32 s{sT+7}, s{sQB}, 5"
    for kb in range(8):
        lo, hi = bar[kb] + 1, bar[kb + 1]
        sc.sal[hi] += [f"@waitvm {('sst,' if kb else '') + 'w%d' % (kb+1) if kb < 7 else 'K0'} lgkm0", "s_barrier"] + ([f"@stamp b{kb+1}"] if kb < 7 else [])
        grp = []
        if kb + 1 < 8 and kb <= c.XFULL: grp += dma_x(kb + 1)[2:]
        if kb + 2 < 8 and kb > c.XFULL and c.XFIRST: grp += dma_x(kb + 2)
        if kb == 0: grp += stat_stores()
        if kb == 2: grp += [([CNT2], f"buffer_atomic_add v90, v{VONE}, {srd(sDBG)}, s{sT+7} offen offset:4 sc1")]
        if kb == c.STB: grp += [([CNT2], ST_LOAD)]
        if kb + 2 < 8: grp += dma_w(kb + 2) + (dma_x(kb + 2)[:2] if kb < c.XFULL else dma_x(kb + 2) if kb == c.XFULL or not c.XFIRST else [])
        if kb == 6: grp += dma_kv("K", 0, sT + 6) + dma_kv("K", 1, sT + 6)
        if kb == 7:
            sc.post[lo + 1] += CNT_OK.split("\n") + ["s_cbranch_scc0 L_spin_st", "L_ok_st:"]
            A = sT + 6
            grp += [([f"s_lshl_b32 s{A}, s{sQB}, 2", f"s_add_u32 s{A}, s{A}, s{sW}", f"s_lshl_b32 s{A}, s{A}, 9", f"s_add_u32 s{A}, s{A}, {WS_RS}"] if qt == 0 else [],
                     f"buffer_load_dwordx2 {vr(SX+4*qt,2)}, v{92 + (qt >> 1)}, {srd(sWS)}, s{A} offen offset:{(qt&1)*128} sc1") for qt in range(4)]
            grp += dma_kv("V", 0) + (dma_kv("K", 2) if c.K2 else []) + (touches(c) if c.TP == 0 else [])
        g0 = lo + c.GLO if kb else c.G0
        if kb == 0 and not c.RSC: sc.post[g0 - 1] += row_stats(c)
        cur = place_group(sc, grp, g0, hi - 1, sp=min(c.GSP if kb else c.GSP0, (hi - g0 - 8) // len(grp)))
        xlast = next((g for g in range(hi, lo, -1) if any(f"tag=x{kb+1}" in m for m in sc.mem[g])), lo)
        ops = []
        for n in range(12):
            N = kb * 12 + n
            if N >= 2: ops += [(l, max(lo, last[N - NWR] if N >= NWR else 0), min(first[N][0] - 5, hi - 4)) for l in w_reads(kb, first[N][1], N)]
        ops += [(l, max(lo, 0), cwg[(kb, n_ // 4)] - 5) for n_, l in enumerate(c_reads(kb))]
        if kb + 1 < 8:
            g = next(x for x in range(max(hi - 22, xlast + 1), sc.n()) if not sc.sal[x])
            sc.sal[g].append(f"@waitvm x{kb+1}")
            ops += [(l, g, hi - 3) for l in x_reads(kb + 1)]
        else:
            g = cwg[(7, 2)] + 6
            for j in range(3):
                sc.valu[g + 2 * j] += [f"v_accvgpr_read_b32 v{28+j}, a{CWA+4*j}"]
                sc.valu[g + 2 * j + 1] += [f"v_accvgpr_read_b32 v31, a{CWA+4*j+1}"]
                sc.valu[g + 2 * j + 2] += [f"v_add_f32 v{28+j}, v{28+j}, v31"]
            ops += [(f"ds_write_b32 v{VC0}, v28", g + 8, hi - 3), (f"ds_write_b32 v{VC0}, v29 offset:64", g + 8, hi - 3), (f"ds_write_b32 v{VC1}, v30", g + 8, hi - 3)]
            cs = math.log2(math.e) / math.sqrt(128.0)
            for qt in range(4): sc.valu[start[8] - 5 + qt].append(f"v_mul_f32 v{SX+4*qt+2}, {f2u(cs)}, v{SX+4*qt+1}")
        sc.place_edf(ops)
    place_group(sc, dma_kv("V", 1), bar[8] + 1, start[8] - 1, sp=5)
    ops = [(f"ds_read_b128 {vr(CWR[j],4)}, v{VCR} offset:{(8+j)*64}", bar[8] + 1, start[8] - 1) for j in range(4)]
    ops += [(l, bar[8] + 1, start[8] - 1) for l in k_reads(0)]
    sc.place_edf(ops)
    g = start[7]; ls = late_scalars(c)
    while ls:
        g = next(x for x in range(g + 1, start[8]) if not sc.sal[x])
        sc.sal[g].append(ls.pop(0))
        if ls and ls[0].startswith("s_addc"): sc.sal[g].append(ls.pop(0))
    print("gemm1 est cycles", sc.est(), file=sys.stderr)
    return L + sc.lines()

def touches(c, v=1, d0="a254", d1="a255"):
    if not c.touch: return []
    A, B = sT + 4, sT + 5
    return [([f"s_lshl_b32 s{A}, s2, 2", f"s_add_u32 s{A}, s{A}, s{sW}", f"s_lshl_b32 s{B}, s{A}, 5", f"s_sub_u32 s{B}, s{B}, s{sQB}",
              f"v_lshrrev_b32 v{v}, 1, v0", f"v_add_lshl_u32 v{v}, v{v}, s{B}, 7"], f"buffer_load_dword {d0}, v{v}, {srd(sWO)}, 0 offen"),
            ([f"s_mul_i32 s{B}, s{A}, 11", f"s_sub_u32 s{B}, s{B}, s{sQB}", f"v_min_u32 v{v}, 10, v0", f"v_add_lshl_u32 v{v}, v{v}, s{B}, 7"],
             f"buffer_load_dword {d1}, v{v}, {srd(sW2)}, 0 offen")]

def sprinkle(lines, groups, every):
    out = []; groups = list(groups); k = 0
    for l in lines:
        out.append(l); k += 1
        if groups and k >= every and not l.strip().startswith(("s_cmp", "v_cmp", "s_add", "s_cselect")):
            pre, v = groups.pop(0); out += pre + [v]; k = 0
    return out + flat(groups)

def b2_init(a, v=1):
    a(f"v_lshrrev_b32 v{v}, 4, v0\nv_lshlrev_b32 v{v}, 3, v{v}")
    for ct in range(4): a(f"buffer_load_dwordx2 {vr(B2R+2*ct,2)}, v{v}, {srd(sB2)}, 0 offen offset:{ct*32}")
def attn_init():
    out = [f"v_accvgpr_write_b32 a{LA(0)+r}, 0" for r in range(16)] + [f"v_accvgpr_write_b32 a{FH(0,0)+r}, 0" for r in range(8)]
    for i in range(8): out += [f"v_lshlrev_b32 v{FA+2*i}, 16, v{B2R+i}", f"v_and_b32 v{FA+2*i+1}, 0xffff0000, v{B2R+i}"]
    return out
B2R = FA + 8
def epi1(c):
    a = Asm()
    k1 = -2.0 * math.sqrt(2.0 / math.pi) * math.log2(math.e); k2 = k1 * 0.044715
    kk = f"s[{sT+2}:{sT+3}]"
    a(f"s_mov_b32 s{sT+2}, {f2u(k2)}\ns_mov_b32 s{sT+3}, {f2u(k1)}")
    items = [(T, qt, h, vr(ACC(T, qt) + 2 * h, 2)) for T in range(8, 12) for qt in range(4 if T < 10 else 2) for h in range(2)]
    for T, qt, h, r in items: a(f"v_pk_fma_f32 {r}, {vr(CWR[T-8]+2*h,2)}, {vr(SX+4*qt,2)}, {r} op_sel_hi:[1,0,1]")
    for T, qt, h, r in items: a(f"v_pk_fma_f32 {r}, {r}, {vr(SX+4*qt,2)}, {vr(B1F+(T-8)*4+2*h,2)} op_sel:[0,1,0] op_sel_hi:[1,1,1]")
    st = []
    for T0, q0 in ((8, 0), (8, 2), (10, 0)):
        regs_ = [ACC(T0 + t, q0 + q) + e for q in range(2) for t in range(2) for e in (0, 2)]
        prs = [(r, B1F + 2 * i) for i, r in enumerate(regs_)]
        for r, t in prs: a(f"v_pk_mul_f32 {vr(t,2)}, {vr(r,2)}, {vr(r,2)}")
        for r, t in prs: a(f"v_pk_fma_f32 {vr(t,2)}, {vr(t,2)}, {kk}, {kk} op_sel:[0,0,1] op_sel_hi:[1,0,1]")
        for r, t in prs: a(f"v_pk_mul_f32 {vr(t,2)}, {vr(t,2)}, {vr(r,2)}")
        for r, t in prs: a(f"v_exp_f32 v{t}, v{t}\nv_exp_f32 v{t+1}, v{t+1}")
        for r, t in prs: a(f"v_pk_add_f32 {vr(t,2)}, {vr(t,2)}, 1.0 op_sel_hi:[1,0]")
        for r, t in prs: a(f"v_rcp_f32 v{t}, v{t}\nv_rcp_f32 v{t+1}, v{t+1}")
        for r, t in prs: a(f"v_pk_mul_f32 {vr(t,2)}, {vr(t,2)}, {vr(r,2)}")
        for i, (r, t) in enumerate(prs): a(f"v_cvt_pk_bf16_f32 v{ACC(T0, q0 + i // 4) + i % 4}, v{t}, v{t+1}")
        vo = VH1 if T0 == 10 else (VOA if q0 < 2 else VOB)
        st = [([], f"buffer_store_dwordx4 {vr(ACC(T0,q0+q),4)}, v{vo}, {srd(sWS)}, s{sHS0 if T0 == 8 else sHS1} offen offset:{q*1024} {c.stflags} ;tag=hst") for q in range(2)]
        if (T0, q0) == (8, 0): a("@waitvm V0\ns_barrier")
        if T0 == 8:
            a(st[0][1])
            if q0:
                for T in (4, 5, 6, 7): a(f"ds_read_b128 {vr(96+4*T,4)}, v{VCR} offset:{T*64}")
            a(st[1][1])
            if q0:
                for T in (0, 1, 2, 3): a(f"ds_read_b128 {vr(96+4*T,4)}, v{VCR} offset:{T*64}")
    c.last_h = st
    a("@stamp gelu")
    return a.lines

def scalar_init(c):
    out = f"""s_add_u32 s{sVO}, s{sKV0}, {3*16384}
s_lshl_b32 s{sFW}, s{sW}, 13
s_sub_u32 s{sFW}, s{sFW}, 0x8000
s_sub_u32 s{sFH}, s{sHB}, 0x1000
s_mov_b32 s{sLOOP}, 7
v_mov_b32 v{VPD}, 0x10000000""".split("\n")
    return out
def late_scalars(c):
    a = Asm()
    for l in scalar_init(c)[:-1]: a(l)
    RS_ = 0x80000 + 4 * c.PADW + c.PADR
    a(f"""s_mul_i32 s{sT}, s{sHEAD}, {RS_}
s_mul_i32 s{sT+1}, s{sW}, {c.PADW}
s_add_u32 s{sT}, s{sT}, s{sT+1}
s_add_u32 s{sT}, s{sT}, {WS_O}""")
    mk_srd(a, sOL, sWS, sWS + 1, f"s{sT}", 0x80000)
    a(f"""s_lshl_b32 s{sT}, s{sQB}, 2
s_add_u32 s{sT}, s{sT}, s{sW}
s_mul_i32 s{sT}, s{sT}, {RS_}
s_lshr_b32 s{sT+1}, s{sHEAD}, 3
s_mul_i32 s{sT+1}, s{sT+1}, {c.PADW}
s_add_u32 s{sT}, s{sT}, s{sT+1}
s_add_u32 s{sT}, s{sT}, {WS_O}""")
    mk_srd(a, sOT, sWS, sWS + 1, f"s{sT}", 0x80000)
    if c.recenter: a(f"s_mov_b32 s{sRC}, {c.recenter}")
    return [l.strip() for l in a.lines]
def f_zero():
    return [([f"s_add_u32 m0, s{sFM}, {i*4096}"], f"buffer_load_dwordx4 v{VPD}, {srd(sW2)}, 0 offen lds ;tag=fz") for i in range(2)]

def head(c, early):
    a = Asm()
    TQ = S0
    def weave(va, mf, mem=()):
        va = list(va); mem = list(mem); tot = sum(icost(l) for l in va); done = 0
        for n_, m in enumerate(mf):
            a(m)
            for _ in range(-(-len(mem) // (len(mf) - n_))):
                x = mem.pop(0)
                for l in ([x] if isinstance(x, str) else x[0] + [x[1]]): a(l)
            while va and done < tot * (n_ + 1) / len(mf): done += icost(va[0]); a(va.pop(0))
        for l in va: a(l)
    def corr(qt):
        it = [(T, h, vr(ACC(T, qt) + 2 * h, 2)) for T in range(8) for h in range(2)]
        for T, h, r in it: a(f"v_pk_fma_f32 {r}, {vr(96+4*T+2*h,2)}, {vr(SX+4*qt,2)}, {r} op_sel_hi:[1,0,1]")
        for T, h, r in it: a(f"v_pk_mul_f32 {r}, {r}, {vr(SX+4*qt+2,2)} op_sel_hi:[1,0]")
    def frag(qt):
        va = []
        for ks in range(4):
            t = TQ + 4 * ks; X, Y = ACC(2 * ks, qt), ACC(2 * ks + 1, qt)
            va += [f"v_cvt_pk_bf16_f32 v{t}, v{X}, v{X+1}", f"v_cvt_pk_bf16_f32 v{t+2}, v{Y}, v{Y+1}",
                   f"v_cvt_pk_bf16_f32 v{t+1}, v{X+2}, v{X+3}", f"v_cvt_pk_bf16_f32 v{t+3}, v{Y+2}, v{Y+3}"]
        for ks in range(4):
            t = TQ + 4 * ks
            va += [f"v_permlane16_swap_b32 v{t}, v{t+2}", f"v_permlane16_swap_b32 v{t+1}, v{t+3}"]
        return va + [f"v_accvgpr_write_b32 a{Q(qt,0)+e}, v{TQ+e}" for e in range(16)]
    def rowmax(qt):
        r = [S(qt, e // 4) + e % 4 for e in range(16)]; n = NEGM + 4 * qt
        va = []
        for k in range(0, 8, 2):
            for h, t in ((0, 88), (8, 89)):
                va.append(f"v_max3_f32 v{t}, v{r[h+k]}, v{r[h+k+1]}, v{t}" if k else f"v_max_f32 v{t}, v{r[h]}, v{r[h+1]}")
        va += ["v_max_f32 v88, v88, v89", "v_mov_b32 v89, v88", "v_permlane32_swap_b32 v88, v89", "v_max_f32 v88, v88, v89",
               "v_mov_b32 v89, v88", "v_permlane16_swap_b32 v88, v89", "v_max_f32 v88, v88, v89", "v_floor_f32 v88, v88",
               f"v_sub_f32 v{n}, -v88, s{sSH}"]
        return va + [f"v_add_f32 v{x}, v{x}, v{n}" for x in r] + [f"v_mov_b32 v{n+k}, v{n}" for k in (1, 2, 3)]
    def mix(x, y):
        out = []; x = list(x); y = list(y); nx, ny = len(x), len(y)
        while x or y:
            if x and (not y or (nx - len(x)) * ny <= (ny - len(y)) * nx): out.append(x.pop(0))
            else: out.append(y.pop(0))
        return out
    vob = [f"v_lshrrev_b32 v{VOB}, 3, v0", f"v_lshl_add_u32 v{VOB}, s{sW}, 4, v{VOB}", f"v_and_b32 v{VOA}, 7, v0",
           f"v_lshlrev_b32 v{VOA}, 4, v{VOA}", f"v_lshl_add_u32 v{VOB}, v{VOB}, 10, v{VOA}"]
    sm = lambda n, upto=32: sum((sm_ops(n, p) for p in range(upto)), [])
    qk = lambda n: qk_mfmas(n, czero=True)
    pv = lambda n: [smf(n)] + pv_mfmas(n)
    vr0 = v_reads(0)
    ini = attn_init()
    a(scalar_init(c)[-1])
    if c.smtest:
        a(f"v_and_b32 v88, 15, v0\nv_cmp_gt_u32 vcc, {c.smtest}, v88")
        for r in range(4): a(f"v_cndmask_b32 v{SMA+r}, 0, v{SMA+r}, vcc")
    b = Asm(); b2_init(b, 90)
    for l in flat(c.last_h) + b.lines[:2]: a(l)
    corr(0)
    for l in frag(0): a(l)
    a("@stamp h0")
    corr(1); weave(frag(1), qk(0), mix(f_zero() + b.lines[2:], vr0[:14]))
    a("@stamp h1")
    kv3 = ([] if c.K2 else dma_kv("K", 2)) + dma_kv("V", 2) + dma_kv("K", 3) + dma_kv("V", 3)
    bar = f"""s_lshl_b32 s{sT}, s{sQB}, 5
v_mov_b32 v90, 1
@waitvm K1,V1,hst,fz lgkm0
s_barrier
buffer_atomic_add v90, v{VONE}, {srd(sDBG)}, s{sT} offen sc1
@stamp hb"""
    corr(2); weave(mix(rowmax(0), frag(2)), qk(1), vr0[14:] if c.HB == 2 else vr0[14:28])
    a("@stamp h2")
    corr(3)
    if c.HB == 2: a(bar)
    weave(mix(rowmax(1) + ini[24:], sm(0) + frag(3)), qk(2), ([] if c.HB == 2 else vr0[28:]) + sum(([x, "; "] for x in kv3[:len(kv3) // 2]), []))
    a("@stamp h3")
    if c.HB == 3: a(bar)
    weave(mix(["s_nop 0"] * 6 + rowmax(2), sm(1)), qk(3) + pv(0), sum(([x, "; ", "; ", "; "] for x in kv3[len(kv3) // 2:]), []))
    a("@stamp h4")
    h_ = len(early) // 2
    weave(mix(rowmax(3), sm(2)), pv(1), early[:h_] + (touches(c, 91, 'v92', 'v93') if c.TP else []))
    weave(vob + sm(3, 32 - c.SM0), pv(2), early[h_:])
    return a.lines

SLOTS = {"X": ("V", XB)}
for _i in range(4): SLOTS[f"K{_i}"] = ("K", _i * KSLOT); SLOTS[f"V{_i}"] = ("V", VBASE + _i * VSLOT)
FAKE = [False]
def t_wload(n, slot):
    A = sT + 2
    kind, base = SLOTS[slot]
    pre = [f"s_xor_b32 s{A}, s{sRO}, {(n & 7 if FAKE[0] else n) << 15}",
           f"s_add_u32 m0, s{sKM if kind == 'K' else sVM}, {base if kind == 'K' else base - VBASE}"]
    g = []
    for i in range(4):
        if i: pre = [f"s_add_u32 s{A}, s{A}, 7168"]
        g.append((pre, f"buffer_load_dwordx4 v{VDW}, {srd(sWO)}, s{A} offen offset:{i*1024} lds ;tag=t{n}"))
    return g
def t_bload(c, n, dst):
    B = sT + 3
    return [([f"s_xor_b32 s{B}, s{sOB}, {((n >> 2) << 14) + ((n & 3) << 10) + (j << 12)}"],
             f"buffer_load_dwordx4 {dst(j)}, v{VL}, {srd(sOL)}, s{B} offen {c.ldflags} ;tag=b{n}") for j in range(4)]
def t_reads(slot, dst):
    kind, base = SLOTS[slot]
    r = VRA + (4 if slot == "X" else 0 if kind == "K" else 2)
    off = 0 if slot == "X" else base if kind == "K" else base - VBASE
    return [f"ds_read_b64_tr_b16 {dst(ct, t)}, v{r + (ct & 1)} offset:{off + t*2048 + (ct>>1)*512}" for ct in range(4) for t in range(2)]
def quads(k, b): return [(k, b + 4 * i) for i in range(4)]
HOLD = [quads("v", 112), quads("a", 240), quads("a", 208), quads("a", 224), [("a", 128), ("a", 132), ("a", 160), ("a", 164)]] + \
       [quads("a", b) for b in (64, 80, 96, 112, 136)] + [[("a", 152), ("a", 156), ("a", 168), ("a", 172)]] + \
       [quads("a", 176), quads("v", 96), quads("a", 192)] + [quads("a", b) for b in (0, 16, 32, 48)]
def hold(i): return lambda ct, t=None: rr(HOLD[i][ct], 4) if t is None else rr(HOLD[i][ct], 2, 2 * t)
class WStream:
    def __init__(self): self.slot = {}; self.nxt = 0; self.held = 0
    def fill(self, sl):
        if self.nxt >= 32: return []
        n = self.nxt; self.nxt += 1; self.slot[n] = sl
        return t_wload(n, sl)
    def take(self):
        n = self.held; self.held += 1
        return f"@waitvm t{n}", t_reads(self.slot[n], hold(n)), f"@dep {HOLD[n][3][0]}{HOLD[n][3][1] + 3}", self.slot[n]
FAF = 208
def FH(buf, i): return 224 + buf * 8 + i * 4
def f_loads(c, gam, buf, nk):
    g = []
    for i in range(nk):
        g.append(([f"s_add_u32 s{sFW}, s{sFW}, 0x8000", f"s_add_u32 m0, s{sFM}, {buf*8192 + i*4096}"],
                  f"buffer_load_dwordx4 v{VDW}, {srd(sW2)}, s{sFW} offen {c.fwflags} lds ;tag=f{gam}"))
        g.append(([f"s_add_u32 s{sFH}, s{sFH}, 0x1000"],
                  f"buffer_load_dwordx4 {ar(FH(buf,i),4)}, v{VL}, {srd(sWS)}, s{sFH} offen {c.fhflags} ;tag=f{gam}"))
    return g
def f_part(buf, nk, g):
    it = [(2*g, 0), (2*g, 1), (2*g+1, 1), (2*g+1, 0)] if nk == 2 else [(ct, 0) for ct in range(4)]
    FB = 240 if g else FAF
    rd = [f"ds_read_b64_tr_b16 {ar(FB+4*n+2*t,2)}, v{VFO if ct & 1 else VFE} offset:{buf*8192 + i*4096 + t*2048 + (ct>>1)*512}" for n, (ct, i) in enumerate(it) for t in range(2)]
    return rd, [f"{M16} {vr(FA+4*ct,4)}, {ar(FB+4*n,4)}, {ar(FH(buf,i),4)}, {vr(FA+4*ct,4)}" for n, (ct, i) in enumerate(it)]
def f_group(k):
    if k == 0: return (-1, 0, 2)
    if k == 29: return (21, 1, 1)
    if 1 <= k <= 28 and (k - 1) % 4: return (3 * ((k - 1) // 4) + (k - 1) % 4 - 1, 1 if (k - 1) % 4 == 2 else 0, 2)
    return None

def spin(name, load, okcmp, back, slp=4):
    return f"""L_spin_{name}:
s_mov_b32 s{sT+6}, 0x40000
L_spin_{name}_l:
{load}
s_waitcnt vmcnt(0)
{okcmp}
s_cbranch_scc1 {back}
s_sub_u32 s{sT+6}, s{sT+6}, 1
s_cmp_lg_u32 s{sT+6}, 0
s_cbranch_scc1 L_spin_{name}_l
s_branch {back}""".split("\n")
CNT_LOAD = f"buffer_load_dword v{VPD}, off, {srd(sDBG)}, s{sT+7} sc1"
ST_LOAD = f"buffer_load_dword v{VPD}, off, {srd(sDBG)}, s{sT+7} offset:4 sc1"
CNT_OK = f"v_cmp_le_u32 vcc, 32, v{VPD}\ns_nop 0\ns_cmp_eq_u64 vcc, -1"
FL_LOAD = f"buffer_load_dword v{VPD}, v{VPA}, {srd(sWS)}, s{sT+7} offen sc1"
FL_OK = f"v_cmp_eq_u32 vcc, 1, v{VPD}\ns_nop 0\ns_cmp_eq_u64 vcc, -1"

QKO = [(i, 3 - k if i & 1 else k) for i in range(4) for k in range(4)]
PVO = [(dt, u ^ (dt & 1)) for dt in range(8) for u in range(2)]
def k_reads(T):
    return [f"ds_read_b128 {ar(KF(i,ks),4)}, v{VK} offset:{(T % NS)*KSLOT + i*1024 + ks*256}" for i, ks in QKO]
def v_reads(T):
    return [f"ds_read_b64_tr_b16 {rr(VF(T,u,dt),2,2*t)}, v{VV} offset:{(T % NS)*VSLOT + (2*u+t)*1024 + (dt>>1)*256 + (dt&1)*32}" for dt, u in PVO for t in range(2)]
def qk_mfmas(n, czero=False):
    qt = n & 3
    return [f"{M16} {vr(S(n,i),4)}, {ar(KF(i,ks),4)}, {ar(Q(qt,ks),4)}, " + (vr(S(n,i),4) if g & 3 else "0" if czero else vr(NEGM+qt*4,4)) for g, (i, ks) in enumerate(QKO)]
def pv_mfmas(n):
    qt = n & 3
    return [f"{M16} {vr(O(dt,qt),4)}, {rr(VF(n>>2,u,dt),4)}, {vr(P(n)+4*u,4)}, " + (vr(O(dt,qt),4) if n >= 4 or g & 1 else "0") for g, (dt, u) in enumerate(PVO)]
def smf(n): return f"{SMF} {ar(LA(n&3),4)}, {vr(SMA,4)}, {vr(P(n),8)}, v{VIDX}"
def sm_ops(n, p):
    e = p // 2
    if p < 0 or e >= 16: return []
    r = S(n, e // 4) + e % 4
    if p % 2 == 0: return [f"v_exp_f32 v{r}, v{r}"]
    return [f"v_cvt_pk_bf16_f32 v{P(n)+e//2}, v{r-1}, v{r}"] if e % 2 else []
def o_finish(c, qt, packed):
    L_, RC, MX = NEGM + 4 * qt, NEGM + 4 * qt + 2, NEGM + 4 * qt + 1
    va = [[f"v_accvgpr_read_b32 v{L_}, a{LA(qt)}", f"v_accvgpr_read_b32 v{RC}, a{LA(qt)+1}", f"v_add_f32 v{L_}, v{L_}, v{RC}", f"v_rcp_f32 v{RC}, v{L_}"], [], [], []]
    st = []
    for m in range(4):
        src = [O(2*m, qt) + e for e in range(4)] + [O(2*m+1, qt) + e for e in range(4)]
        for i in range(0, 8, 2):
            r = src[i]
            va[m].append(f"v_maximum3_f32 v{MX}, |v{r}|, |v{r+1}|, " + (f"v{MX}" if m or i else "0"))
            if packed: va[m].append(f"v_pk_mul_f32 {vr(r,2)}, {vr(r,2)}, {vr(RC,2)} op_sel_hi:[1,0]")
            else: va[m] += [f"v_mul_f32 v{r}, v{r}, v{RC}", f"v_mul_f32 v{r+1}, v{r+1}, v{RC}"]
        va[m] += [f"v_cvt_pk_bf16_f32 v{src[e]}, v{src[2*e]}, v{src[2*e+1]}" for e in range(4)]
        st.append(f"buffer_store_dwordx4 {vr(src[0],4)}, v{VL}, {srd(sOT)}, s{sT} offen offset:{m*1024} {c.stflags} ;tag=ost")
    va[0].insert(0, f"s_xor_b32 s{sT}, s{sOS}, {qt << 12}")
    return va, st

def attention(c, ws):
    sc = Sched(); idx = {}; fidx = {}
    for G in range(2 * 32 + c.BAR + 1, 129 * 32):
        n, g = divmod(G, 32)
        m = (qk_mfmas(n)[g] if n < 128 else None) if g < 16 else pv_mfmas(n - 1)[g - 16]
        idx[G] = sc.add(m)
        for nn in (n - 1, n):
            if nn < 128: sc.valu[idx[G]] += sm_ops(nn, G - 32 * nn - c.SM0)
        if g == 15: sc.add(smf(n - 1))
        k = G // 128
        fc = f_group(k - 1) if k >= 1 else (0, 0, 2)
        if fc:
            for h in range(fc[2]):
                if G - 128 * k == c.FPOS[h]:
                    for n_, m in enumerate(f_part(fc[1], fc[2], h)[1]): fidx[(k, h, n_)] = sc.add(m)
    def spread(lines, g0, g1):
        gaps = list(range(g0, g1 + 1)); lines = list(lines)
        tot = sum(icost(l) for l in lines) + sum(sc.cost(x) for x in gaps); acc_ = 0; last = g0
        for n_, x in enumerate(gaps):
            acc_ += sc.cost(x)
            while lines and (acc_ < tot * (n_ + 1) / len(gaps) - 2 or n_ == len(gaps) - 1):
                acc_ += icost(lines[0]); sc.valu[x].append(lines.pop(0)); last = x
        return last
    for k in range(1, 32):
        B = 128 * k
        lo = idx[B - 64 + c.BAR + 1]; nb = idx[B + 64 + c.BAR]; hi = nb - 4; end = nb - 1
        fg = f_group(k); p = (k - 1) % 4
        tags = f"V{k+1},K{k+1}" + (f",f{fg[0]}" if fg else "")
        if k < 31: sc.sal[nb] += [f"@waitvm {tags} lgkm0", "s_barrier"]
        if k <= 29: sc.post[idx[B + 32] - 1].append(f"@seg {k}")
        if k >= 30:
            for q_ in (-32, 32, 64, 96)[:2 if k == 30 else 4]: sc.post[idx[B + q_] - 1].append(f"@stamp p{(B + q_) // 32}")
        if c.recenter and k <= 29:
            for nm, p_, g_ in (("a", 0, 64), ("b", 1, 0)):
                if p == p_:
                    sc.sal[idx[B + g_] - 2].append(f"s_cmp_eq_u32 s{sLOOP}, s{sRC}")
                    sc.post[idx[B + g_] - 1] += [f"s_cbranch_scc1 L_rc_{nm}", f"L_rc_{nm}_back:"]
        if fg and k <= 28: place_group(sc, f_loads(c, *fg), idx[B], end)
        elif k <= 29 and c.codepf2: place_group(sc, [([], f"global_load_dword v{VOA}, v{VCP}, s[90:91]")], idx[B], end)
        if p == 1 and k <= 28: sc.post[idx[B - 3]] += CNT_OK.split("\n") + ["s_cbranch_scc0 L_spin_cnt", "L_ok_cnt:"]
        dm = []
        if k <= 29:
            for kind, sM, SL, d in (("K", sKM, KSLOT, sK), ("V", sVM, VSLOT, sV)):
                dm += [(([f"s_add_u32 s{sVO}, s{sVO}, 0x4000"] + ([f"s_and_b32 s{sVO}, s{sVO}, 0x7ffff"] if c.kvrot else []) if kind == "K" else []) + [f"s_add_u32 m0, s{sM}, {((k+3)%NS)*SL}"] if i == 0 else [],
                        f"buffer_load_dwordx4 v{VD}, {srd(d)}, s{sVO} offen offset:{i*1024} {c.kvflags} lds ;tag={kind}{k+3}") for i in range(4)]
            if p == 0: dm = [([f"s_lshl_b32 s{sT+7}, s{sGX}, 5"], CNT_LOAD)] + dm
            place_group(sc, dm, idx[B + c.DPOS], end, sp=c.DSP)
        ops = [(l, max(lo, idx[B - 32 + g]), idx[B + g] - c.MG) for g, l in enumerate(k_reads(k))]
        ops += [(l, lo if PVO[n_ // 2][0] < NVX else idx[B + 16 + n_ // 2], idx[B + 48 + n_ // 2] - c.MG) for n_, l in enumerate(v_reads(k))]
        fc = f_group(k - 1)
        if fc:
            for h in range(fc[2]):
                ops += [(l, idx[B], min(fidx[(k, h, n_ // 2)] - c.MG, hi)) for n_, l in enumerate(f_part(fc[1], fc[2], h)[0])]
        if k == 29:
            sc.place_edf(ops); ops = []
            for pre, l in dm + [([f"s_cmp_eq_u32 s{sLOOP}, s{sRC}", "s_cbranch_scc1 L_rc_a"], "L_rc_a_back:")]:
                for x in range(idx[B + 32], nb):
                    for lst in (sc.sal[x], sc.mem[x], sc.post[x]):
                        for y in pre + [l]:
                            if y in lst: lst.remove(y)
        def hold_in(g0, g1, vm, sp=4):
            w, rd, dep, sl = ws.take()
            g0 = next(x for x in range(g0, g1) if not sc.sal[x]); sc.sal[g0].append(w)
            ops.extend((l, g0, g1) for l in rd)
            g2 = next(x for x in range(max(g1 + 3, vm), end) if not sc.sal[x]); sc.sal[g2].append(dep)
            return place_group(sc, ws.fill(sl), g2, end, sp, 1 if sp == 2 else None)
        pg = [([], f"buffer_load_dword v{90+i}, off, {srd(d)}, {o} sc1") for i, (d, o) in enumerate(((sOT, f"s{sOS}"), (sOL, f"s{sOB}"), (sOUT, 0)))] if c.pg & 2 else []
        if k == 29: place_group(sc, pg + f_loads(c, *fg) + ws.fill("K0") + ws.fill("V0"), idx[B + (33 if pg else 40)], end, sp=3 if pg else 4)
        xt = [([f"s_lshl_b32 s{sT+4}, s{sW}, 11", f"s_add_u32 m0, s{sT+4}, {XT}"], f"buffer_load_dwordx4 v{VOB}, {srd(sXX)}, 0 offen lds ;tag=xt"),
              ([f"s_mov_b32 s{sT+4}, 7168"], f"buffer_load_dwordx4 v{VOB}, {srd(sXX)}, s{sT+4} offen offset:1024 lds ;tag=xt")]
        if k == 30:
            cur = place_group(sc, ws.fill("K1") + ws.fill("V1") + xt, lo, end)
            for g0, g1 in c.H30W: cur = hold_in(idx[B + g0], idx[B + g1], cur, c.HSP)
        if k == 31:
            cur = place_group(sc, ws.fill("K2") + ws.fill("V2") + ws.fill("X"), lo, end)
            g_ = next(x for x in range(idx[B + 13], end) if not sc.sal[x]); sc.sal[g_] += ["s_waitcnt lgkmcnt(0)", "s_barrier"]
            cur = place_group(sc, ws.fill("K3"), max(cur, g_), end)
            for g0, g1 in c.H31W: cur = hold_in(idx[B + g0], idx[B + g1], cur)
        if ops: sc.place_edf(ops)
    if c.NE: sc.sal[idx[(129 - c.NE) * 32] - 1].append("s_setreg_imm32_b32 hwreg(HW_REG_MODE, 4, 2), 3")
    for qt in range(c.NE):
        n = 129 - c.NE + qt
        va, st = o_finish(c, qt, False)
        g0, g1 = idx[32 * n + (3 if n < 128 else 12)], idx[32 * n + 31]
        for m in range(4):
            a0 = g0 + (g1 - g0) * m // 4; a1 = g0 + (g1 - g0) * (m + 1) // 4 - 1
            spread(va[m], a0, a1); sc.mem[a1 + 1].append(st[m])
    ge = lambda x: max(16, 16 - sc.budget(x) + sc.cost(x)) if sc.mf[x] else sc.cost(x)
    pe = [sum(ge(x) - (16 if sc.mf[x] else 0) for x in range(idx[32 * n], idx[32 * n + 31] + 1)) for n in list(range(37, 53)) + list(range(117, 129))]
    print("attention est cycles", sc.est(), "overflow per period", pe, file=sys.stderr)
    g4 = idx[128]
    if c.estonly: return pe
    early = sum((sc.mem[x] for x in range(g4)), [])
    assert all(l.startswith("ds_read") for l in early) and not any(sc.sal[x] or sc.post[x] for x in range(g4))
    for lst in (sc.mf, sc.sal, sc.mem, sc.valu, sc.post): del lst[:g4]
    return early, sc.lines()

class Pump:
    def __init__(self, a, ws): self.a = a; self.ws = ws; self.pend = []; self.nxt = None
    def busy(self): return bool(self.pend or self.nxt)
    def __call__(self, nload, limit):
        a, ws = self.a, self.ws
        for _ in range(nload):
            if not self.pend:
                prev = self.nxt; self.nxt = None
                if ws.held < limit:
                    w, rd, dep, sl = ws.take(); a(w)
                    for l in rd: a(l)
                    self.nxt = (dep, sl)
                if prev:
                    g = ws.fill(prev[1])
                    if g: a(prev[0]); self.pend.extend(g)
            if self.pend:
                pre, l = self.pend.pop(0)
                for x in pre + [l]: a(x)

def tail1(c, ws):
    a = Asm()
    T = 88; EX = S0
    pump = Pump(a, ws)
    if not c.NE: a("s_setreg_imm32_b32 hwreg(HW_REG_MODE, 4, 2), 3")
    pump(1, c.NB1)
    for qt in range(c.NE, 4):
        va, st = o_finish(c, qt, True)
        for m in range(4):
            for l in va[m] + [st[m]]: a(l)
    while pump.busy() or ws.held < c.NB1: pump(1, c.NB1)
    a(f"s_mov_b32 s{sT+4}, 0x100\ns_mov_b64 s[{sT+6}:{sT+7}], -1")
    for qt in range(4):
        for r in (NEGM + 4 * qt, NEGM + 4 * qt + 1, NEGM + 4 * qt + 2):
            a(f"v_cmp_class_f32 vcc, v{r}, s{sT+4}\ns_and_b64 s[{sT+6}:{sT+7}], s[{sT+6}:{sT+7}], vcc")
    a(f"s_cmp_eq_u64 s[{sT+6}:{sT+7}], -1\ns_cselect_b32 s{sT+4}, 0, 1")
    if c.force_fallback: a(f"s_mov_b32 s{sT+4}, 1")
    if c.nofb: a(f"s_mov_b32 s{sT+4}, 0")
    a(f"""s_lshl_b32 s{sT+5}, s{sW}, 2
s_add_u32 s{sT+5}, s{sT+5}, {FLBASE}
v_mov_b32 v{T}, s{sT+5}
v_mov_b32 v{T+1}, s{sT+4}
ds_write_b32 v{T}, v{T+1}
s_setreg_imm32_b32 hwreg(HW_REG_MODE, 4, 2), 0
v_mov_b32 v{EX+8}, {FLBASE}
v_mov_b32 v{EX+9}, 1
s_lshl_b32 s{sT+7}, s{sGX}, 8
s_add_u32 s{sT+7}, s{sT+7}, s{sKW}
s_add_u32 s{sT+7}, s{sT+7}, {WS_FL}
@waitvm ost lgkm0""")
    return [l.strip() for l in a.lines]

def tail2(c, ws):
    a = Asm()
    SA = 128; AB = S0; XR = 16; G = FA; TT = 48; EX = AB
    def acc(ct, j): return SA + (j * 4 + ct) * 4
    def abuf(n): return lambda ct, t=None: vr(AB + (n & 1) * 16 + ct * 4, 4) if t is None else vr(AB + (n & 1) * 16 + ct * 4 + 2 * t, 2)
    def emit(ls):
        for l in ls: a(l)
    pump = Pump(a, ws)
    a(f"""L_bar1:
s_barrier
ds_read_b128 {vr(EX+12,4)}, v{EX+8}
v_or3_b32 v{EX+12}, v{EX+12}, v{EX+13}, v{EX+14}
v_or_b32 v{EX+12}, v{EX+12}, v{EX+15}
v_readfirstlane_b32 s{sT+4}, v{EX+12}
s_andn2_b32 s{sT+4}, s{sT+4}, s{sTRY}
s_cmp_lg_u32 s{sT+4}, 0
s_cbranch_scc1 L_fallback
""")
    a("@stamp bar1 rt")
    if c.flagmode == "store": a(f"buffer_store_dword v{EX+9}, v{VONE}, {srd(sWS)}, s{sFLO} offen sc1")
    elif c.flagmode == "vatomic": a(f"buffer_atomic_add v{EX+9}, v{VONE}, {srd(sWS)}, s{sFLO} offen sc1")
    elif c.flagmode == "satomic":
        a(f"""s_cmp_lg_u32 s{sW}, 0
s_cbranch_scc1 L_noflag
s_mov_b32 s{sT+4}, 1
s_atomic_add s{sT+4}, s[{sWS}:{sWS+1}], s{sFLO}
L_noflag:""")
    pump.pend.extend(ws.fill("V3"))
    b = Asm()
    b(f"""v_lshrrev_b32 v31, 4, v0
v_lshlrev_b32 v31, 3, v31
v_and_b32 v30, 15, v0
s_lshl_b32 s{sT}, s{sW}, 11
s_add_u32 s{sT}, s{sT}, {XT}
v_lshl_add_u32 v29, v30, 7, v31
v_add_u32 v29, s{sT}, v29
v_mul_u32_u24 v30, 144, v30
v_add3_u32 v30, v30, v31, s{sKM}
v_lshrrev_b32 v31, 3, v0
v_mul_u32_u24 v31, 144, v31
v_and_b32 v28, 7, v0
v_lshl_add_u32 v31, v28, 4, v31
v_add_u32 v31, s{sKM}, v31""")
    for i in range(16): b(f"v_mul_f32 v{TT+i}, {f2u(-math.log2(math.e))}, v{G+i}")
    for i in range(16): b(f"v_exp_f32 v{TT+i}, v{TT+i}")
    for i in range(0, 16, 2): b(f"v_pk_add_f32 {vr(TT+i,2)}, {vr(TT+i,2)}, 1.0 op_sel_hi:[1,0]")
    for i in range(16): b(f"v_rcp_f32 v{TT+i}, v{TT+i}")
    for i in range(0, 16, 2): b(f"v_pk_mul_f32 {vr(G+i,2)}, {vr(G+i,2)}, {vr(TT+i,2)}")
    for n_, l in enumerate(b.lines):
        if n_ % 8 == 0: pump(1, c.NR)
        a(l)
    while ws.held < c.NR: pump(1, c.NR)
    a(FL_LOAD.replace("sc1", c.pollflags))
    while pump.busy(): pump(1, c.NR)
    a("@waitvm xt")
    for ct in range(4): a(f"ds_read_b64 {vr(XR+2*ct,2)}, v29 offset:{ct*32}")
    a("@stamp held rt")
    a(FL_OK + ("\ns_cbranch_scc0 L_spin_fl" if c.flagmode != "none" else "") + "\nL_ok_fl:")
    a("@stamp flags rt")
    RING = [192, 208, 224, 240]
    ND = c.ND; N1 = 32 - max(ND, 3)
    assert c.DO < len(RING) and ND <= 8
    lds_steps = list(range(c.NR, 32)); held_steps = list(range(c.NR))
    steps = []; li = hi_ = 0
    for i in range(32):
        if li < len(lds_steps) and (li * N1 <= i * len(lds_steps) or hi_ >= c.NR - (32 - N1)): steps.append(lds_steps[li]); li += 1
        else: steps.append(held_steps[hi_]); hi_ += 1
    lpos = {n: k_ for k_, n in enumerate(lds_steps)}
    assert steps[0] in lpos and all(n < c.NR for n in steps[N1:]) and 0 in steps[:24] and 1 in steps[:24]
    def ring(i): return lambda j: vr(RING[i % (c.DO + 1)] + 4 * j, 4) if j or i < 32 - ND else rr((HOLD[0] + HOLD[1])[i - 32 + ND], 4)
    def bload(i):
        g = t_bload(c, steps[i], ring(i))
        return g if i < 32 - ND else g[1:]
    for i in range(c.DO0): emit(flat(bload(i)))
    a(f"@waitvm t{steps[0]}")
    emit(t_reads(ws.slot[steps[0]], abuf(0)))
    L = a.lines
    sc = Sched(); st0 = []
    def mf(i, ct, j):
        n = steps[i]; A = abuf(lpos[n]) if n in lpos else hold(n); d = vr(acc(ct, j), 4)
        return sc.add(f"{M16} {d}, {A(ct)}, {ring(i)(j)}, {'0' if i == 0 else d}")
    for i in range(32):
        st0.append(sc.n())
        order = [(ct, j) for ct in range(4) for j in range(4)] if i < 31 else [(ct, j) for j in (1, 2, 3, 0) for ct in range(4)]
        for ct, j in order:
            if j or i < 32 - ND: mf(i, ct, j)
    st0.append(sc.n())
    for i in range(32 - ND, 32):
        for ct in range(4): mf(i, ct, 0)
    nb = c.DO0
    wq = []
    dq = [t_bload(c, steps[i], ring(i))[0] for i in range(32 - ND, 32)]
    for i, n in enumerate(steps):
        st, en = st0[i], st0[i + 1] - 1
        grp = []
        if nb < 32 and nb <= i + c.DO: grp += bload(nb); nb += 1
        elif nb == 32: k_ = -(-len(dq) // (32 - i)); grp += dq[:k_]; dq = dq[k_:]
        if n in lpos and ws.nxt < 32:
            sc.sal[st].append(f"@dep v{AB + (lpos[n] & 1) * 16 + 15}")
            wq += ws.fill(ws.slot[n])
        k_ = min(len(wq), c.WPS)
        grp += wq[:k_]; wq = wq[k_:]
        if not k_ and nb < 32 and nb <= i + c.DO: grp += bload(nb); nb += 1
        if i in (1, 9, 18): sc.sal[st].append(f"@stamp o{i}")
        if grp: place_group(sc, grp, st, en, sp=(1 if len(grp) > 6 else 2 if len(grp) > 4 else 3))
        if i + 1 < 32 and steps[i + 1] in lpos:
            assert not any(f"tag=t{steps[i+1]}" == l.split(";")[-1] for _, l in wq + grp), i
            sc.sal[st].append(f"@waitvm t{steps[i+1]}")
            cur = st
            for l in t_reads(ws.slot[steps[i + 1]], abuf(lpos[steps[i + 1]])): cur = sc.place_mem(l, cur, en - 1)
    assert not wq and not dq
    b = Asm()
    for j in range(1, 4):
        b(f"""s_add_u32 s{sT}, s{sVM}, {(j-1)*VSLOT}
v_add_u32 v{EX+j-1}, s{sT}, v{VL}
s_xor_b32 s{sT}, s{sW}, {j}
s_mul_i32 s{sT}, s{sT}, {VCH}
s_add_u32 s{sT}, s{sT}, {VBASE+(j-1)*VSLOT}
v_add_u32 v{EX+4+j-1}, s{sT}, v{VL}""")
    XU = EX + 16
    for i in range(8): b(f"v_lshlrev_b32 v{XU+2*i}, 16, v{XR+i}\nv_and_b32 v{XU+2*i+1}, 0xffff0000, v{XR+i}")
    for n_, l in enumerate(b.lines): sc.valu[st0[N1] + n_].append(l.strip())
    wr = [f"ds_write_b128 v{EX+j-1}, {vr(acc(ct,j),4)} offset:{ct*1024}" for j in range(1, 4) for ct in range(4)]
    rd = [f"ds_read_b128 {vr(acc(ct,j),4)}, v{EX+4+j-1} offset:{ct*1024}" for ct in range(4) for j in range(1, 4)]
    a = Asm()
    if ND >= 4:
        g = st0[32] - 4
        for l in wr: sc.mem[g].append(l); g += 1
        g = min(g + 3, sc.n() - 1)
        sc.sal[g] += ["@stamp oproj rt", "s_waitcnt lgkmcnt(0)", "s_barrier"]
        for l in rd: sc.mem[g].append(l); g = min(g + 1, sc.n() - 1)
    else:
        a("@stamp oproj rt")
        emit(wr + ["s_waitcnt lgkmcnt(0)", "s_barrier"] + rd)
    L += sc.lines()
    for j in (2, 3):
        for ct in range(4):
            for h in (0, 2): a(f"v_pk_add_f32 {vr(acc(ct,1)+h,2)}, {vr(acc(ct,1)+h,2)}, {vr(acc(ct,j)+h,2)}")
    for cp in (0, 2):
        it = [(acc(ct, 0) + h, acc(ct, 1) + h, 4 * ct + h) for ct in (cp, cp + 1) for h in (0, 2)]
        for r, p, o in it: a(f"v_pk_add_f32 {vr(r,2)}, {vr(r,2)}, {vr(p,2)}")
        for r, p, o in it: a(f"v_pk_fma_f32 {vr(r,2)}, {vr(r,2)}, {vr(G+o,2)}, {vr(XU+o,2)}")
        for r, p, o in it: a(f"v_cvt_pk_bf16_f32 v{XR+o//2}, v{r}, v{r+1}")
        for ct in (cp, cp + 1): a(f"ds_write_b64 v30, {vr(XR+2*ct,2)} offset:{ct*32}")
    a(f"s_mov_b32 s{sT}, 8192")
    for i in range(2): a(f"ds_read_b128 {vr(SA+4*i,4)}, v31 offset:{i*8*144}")
    for i in range(2): a(f"buffer_store_dwordx4 {vr(SA+4*i,4)}, v{VOB}, {srd(sOUT)}, {'s%d' % sT if i else 0} offen {c.outflags}")
    return L + a.lines

def fallback(c, early):
    a = Asm()
    T = 88; U = P0
    def emit(ls):
        for l in ls: a(l)
    def reads(ls):
        for i in range(0, len(ls), 8): emit(ls[i:i + 8] + ["s_waitcnt lgkmcnt(0)"])
    a(f"L_fallback:\ns_mov_b32 s{sTRY}, 1\ns_mov_b32 s{sRC}, 0\ns_mov_b32 s{sLOOP}, 0")
    for qt in range(4): a(f"v_mov_b32 v{T+qt}, 0xff800000")
    a(f"""L_fb_loop:
s_waitcnt vmcnt(0) lgkmcnt(0)
s_barrier
s_mov_b32 m0, s{sKM}
s_nop 0""")
    for i in range(4): a(f"buffer_load_dwordx4 v{VD}, {srd(sK)}, s{sLOOP} offen offset:{i*1024} lds")
    a("s_waitcnt vmcnt(0)\ns_barrier")
    reads(k_reads(0))
    for qt in range(4): emit(qk_mfmas(qt, True))
    a("s_nop 7")
    for qt in range(4):
        for e in range(0, 16, 2): a(f"v_max3_f32 v{T+qt}, v{T+qt}, v{S(qt,e//4)+e%4}, v{S(qt,e//4)+e%4+1}")
    a(f"s_add_u32 s{sLOOP}, s{sLOOP}, 0x4000\ns_cmp_lt_u32 s{sLOOP}, 0x80000\ns_cbranch_scc1 L_fb_loop")
    for sw in ("v_permlane32_swap_b32", "v_permlane16_swap_b32"):
        for qt in range(4): a(f"v_mov_b32 v{U+qt}, v{T+qt}")
        for qt in range(4): a(f"{sw} v{T+qt}, v{U+qt}")
        for qt in range(4): a(f"v_max_f32 v{T+qt}, v{T+qt}, v{U+qt}")
    a("s_barrier")
    for t in range(4): emit(flat(dma_kv("K", t) + dma_kv("V", t)))
    b2_init(a)
    emit(scalar_init(c) + flat(f_zero()))
    a("s_waitcnt vmcnt(0)\ns_barrier")
    reads(k_reads(0) + v_reads(0))
    emit(attn_init())
    for qt in range(4):
        for k in range(4): a(f"v_sub_f32 v{NEGM+qt*4+k}, 0, v{T+qt}")
    for qt in range(4): emit(qk_mfmas(qt))
    for qt in range(4):
        for p in range(32 if qt < 3 else 32 - c.SM0): emit(sm_ops(qt, p))
        if qt < 3: emit([smf(qt)] + pv_mfmas(qt))
    a("s_barrier")
    reads(early)
    a("s_nop 7\ns_branch L_attn")
    return a.lines

def recenter(c):
    a = Asm()
    for nm, qs in (("a", (2, 3)), ("b", (0, 1))):
        a(f"L_rc_{nm}:\ns_mov_b32 s{sT+6}, -120\ns_setreg_imm32_b32 hwreg(HW_REG_MODE, 4, 2), 3")
        for op in ("v_accvgpr_read_b32 v{x}, a{l}", "v_accvgpr_read_b32 v{y}, a{l1}", "v_add_f32 v{x}, v{x}, v{y}", "v_frexp_exp_i32_f32 v{f}, v{x}",
                   "v_sub_u32 v{f}, %d, v{f}" % (1 - int(c.shift)), "v_med3_i32 v{f}, v{f}, 0, s%d" % (sT + 6), "v_cvt_f32_i32 v{y}, v{f}",
                   "v_ldexp_f32 v{x}, v{x}, v{f}", "v_ldexp_f32 v{f}, 1.0, v{f}", "v_accvgpr_write_b32 a{l}, v{x}", "v_accvgpr_write_b32 a{l1}, 0",
                   "v_add_f32 v{n}, v{n}, v{y}", "v_add_f32 v{n1}, v{n1}, v{y}", "v_add_f32 v{n2}, v{n2}, v{y}", "v_add_f32 v{n3}, v{n3}, v{y}"):
            for qt in qs:
                n = NEGM + 4 * qt; h = qt & 1
                a(op.format(f=88 + h, x=90 + h, y=92 + h, l=LA(qt), l1=LA(qt) + 1, n=n, n1=n + 1, n2=n + 2, n3=n + 3))
        for qt in qs:
            sel = "op_sel:[0,1] op_sel_hi:[1,1]" if qt & 1 else "op_sel_hi:[1,0]"
            for dt in range(8):
                for h in (0, 2): a(f"v_pk_mul_f32 {vr(O(dt,qt)+h,2)}, {vr(O(dt,qt)+h,2)}, v[88:89] {sel}")
        a(f"s_setreg_imm32_b32 hwreg(HW_REG_MODE, 4, 2), 0\ns_branch L_rc_{nm}_back")
    return [l.strip() for l in a.lines]

def resolve_deps(lines):
    return [f"v_cmp_eq_u32 vcc, {l.split()[1]}, {l.split()[1]} ;dep" if l.startswith("@dep") else l for l in lines]

def kernel_A(c):
    ws = WStream(); FAKE[0] = c.fakew; KVR[0] = c.kvrot
    early, att = attention(c, ws)
    L = gemm1(c) + ["@stamp gemm_end rt"] + epi1(c) + head(c, early) + ["@stamp loop_start rt", "L_attn:"] + att
    L += ["@stamp loop_end rt"] + tail1(c, ws) + tail2(c, ws)
    L, _, _ = auto_wait(resolve_deps([l.strip() for l in L]))
    L = fix_hazards(L)
    LB = []
    if c.trace:
        for t in salu_trace(L, {"s2": c.trace[0], "rfl": c.trace[1]}): print(t, file=sys.stderr)
    pos = {int(l.split()[1]): i for i, l in enumerate(L) if l.startswith("@seg")}
    k0, k1 = 1, 29
    core = lambda l: l.split()[0] if l.startswith("@") else l.split(";")[0].strip()
    def split(ls):
        out = []; w = {}
        for l in ls:
            if l.startswith("s_waitcnt"):
                for n_, v in _w.findall(l): w[n_] = min(int(v), w.get(n_, 99))
            else: out.append((l, w)); w = {}
        assert not w
        return out
    V = L; first = True
    while True:
        pos = {int(l.split()[1]): i for i, l in enumerate(V) if l.startswith("@seg")}
        trips = [split(V[pos[k]:pos[k + 4]]) for k in range(k0, k1, 4)]
        for t in trips: assert [core(x[0]) for x in t] == [core(x[0]) for x in trips[2]]
        W = []
        for col in zip(*(trips[2:3] if first else trips)):
            w = {}
            for _, x in col:
                for n_, v in x.items(): w[n_] = min(v, w.get(n_, 99))
            W.append(w)
        first = False
        U = V[:pos[k0]]
        for t in trips:
            for (l, _), w in zip(t, W):
                if w: U.append("s_waitcnt " + " ".join(f"{n_}({v})" for n_, v in sorted(w.items(), reverse=True)))
                U.append(l.replace("@chk", "@waitvm"))
        U += [l.replace("@chk", "@waitvm") for l in V[pos[k1]:]]
        V = auto_wait(U, keep=True)[0]
        if [l for l in V if not l.startswith("@")] == [l for l in U if not l.startswith("@")]: break
    L = V
    V = [l for l in V if not l.endswith(";dep")]
    assert not check_hazards(V), check_hazards(V)[:5]
    assert not check_dead_loads(V), check_dead_loads(V)[:5]
    L = [l for l in L if not l.endswith(";dep")]
    pos = {int(l.split()[1]): i for i, l in enumerate(L) if l.startswith("@seg")}
    body = [core(l) for l in L[pos[9]:pos[13]] if not l.startswith("@")]
    im = [i for i, l in enumerate(body) if l.startswith("v_mfma")]
    j = max(i for i, l in enumerate(body) if l.startswith(("s_add", "s_min", "s_mul", "s_xor", "s_lshl", "s_cmp", "s_csel", "s_and")))
    cand = [i for i in im if i > j and not body[i + 1].startswith("s_")]
    body.insert(cand[1] + 1, f"s_cmp_lg_u32 s{sLOOP}, 0"); body.insert(cand[0] + 1, f"s_sub_u32 s{sLOOP}, s{sLOOP}, 1")
    out = L[:pos[k0]] + ["@seg 1", "L_loop:"] + body + ["s_cbranch_scc1 L_loop"] + L[pos[k1]:]
    a = Asm()
    a("s_cmp_ge_u32 s2, 256\ns_cbranch_scc1 L_endA")
    if c.scr == 1: a("s_lshr_b32 s3, s2, 3\ns_and_b32 s3, s3, 7\ns_xor_b32 s2, s2, s3\ns_lshr_b32 s3, s2, 6\ns_xor_b32 s2, s2, s3")
    if c.scr == 2: a("s_and_b32 s3, s2, 7\ns_lshl_b32 s3, s3, 3\ns_bfe_u32 s4, s2, 0x30003\ns_and_b32 s2, s2, 0xc0\ns_or_b32 s2, s2, s3\ns_or_b32 s2, s2, s4")
    stamp = Stamps()
    stamp(c, a, "start", True)
    for l in out:
        if l.startswith("@stamp"): stamp(c, a, l.split()[1], len(l.split()) > 2)
        elif l.startswith("@seg"): stamp(c, a, "seg" + l.split()[1], l.split()[1] in ("1", "29"))
        elif l.startswith("@"): continue
        else: a(l.split(";tag")[0].rstrip())
    if c.diag:
        stamp(c, a, "final"); a("s_waitcnt vmcnt(0)"); stamp(c, a, "end", True); stamp.out(c, a, WS_ST, sWS, sW)
    if c.probe:
        stamp(c, a, "end")
        a(f"""s_nop 1
v_readlane_b32 s52, v{VDG}, 0
v_readlane_b32 s53, v{VDG}, 1
s_memrealtime s[96:97]
s_waitcnt lgkmcnt(0)
s_sub_u32 s52, s53, s52
s_mul_i32 s52, s52, 4
s_min_u32 s52, s52, 100000
s_mov_b32 s53, s96
L_probe:
s_memrealtime s[96:97]
s_waitcnt lgkmcnt(0)
s_sub_u32 s54, s96, s53
s_cmp_lt_u32 s54, s52
s_cbranch_scc1 L_probe""")
    a("L_endA:\ns_endpgm")
    if c.recenter: LB += fix_hazards(recenter(c))
    for n_, l in enumerate(body):
        if l.startswith("s_cmp"):
            for m_ in body[n_ + 1:] + ["s_cbranch"]:
                if m_.startswith(("s_cbranch", "s_cselect")): break
                assert not m_.startswith(("s_add", "s_sub", "s_min", "s_lshl", "s_xor", "s_and", "s_cmp")), (l, m_)
    for l in LB: a(l.split(";tag")[0].rstrip())
    for l in spin("st", ST_LOAD, CNT_OK, "L_ok_st") + spin("cnt", CNT_LOAD, CNT_OK, "L_ok_cnt") + spin("fl", FL_LOAD.replace("sc1", c.pollflags), FL_OK, "L_ok_fl", c.slp): a(l)
    for l in fix_hazards([l.strip() for l in fallback(c, early)]): a(l.split(";tag")[0].rstrip())
    a("L_last:\ns_endpgm")
    return a.lines
import re
_w = re.compile(r"(vmcnt|lgkmcnt)\((\d+)\)")

def gen(c):
    A = kernel_A(c)
    a = Asm()
    k = NAME + "_kernel"
    a(f"; @launch grid=(256,1,1) block=(256,1,1) lds={LDS_A}")
    a('.amdgcn_target "amdgcn-amd-amdhsa--gfx950"\n.text')
    a(f".globl {k}\n.p2align 8\n.type {k},@function\n{k}:")
    a.lines += A
    a('.section .rodata,"a"\n.p2align 6')
    a(kdesc(k, 512, 256))
    return align8(a.text(), c.align) if c.align else a.text()

if __name__ == "__main__":
    kw = {}
    for s in sys.argv[2:]:
        k, v = s.split("=", 1); kw[k] = eval(v)
    open(sys.argv[1], "w").write(gen(Cfg(**kw)))
```

```python
import re

class Asm:
    def __init__(self):
        self.lines = []
    def __call__(self, s):
        for ln in s.split("\n"):
            ln = ln.strip()
            if ln:
                self.lines.append(ln if ln.endswith(":") or ln.startswith(".") or ln.startswith(";") else "    " + ln)
    def text(self):
        return "\n".join(self.lines) + "\n"

def vr(b, n=1, k="v"):
    return f"{k}{b}" if n == 1 else f"{k}[{b}:{b+n-1}]"
def ar(b, n=1):
    return vr(b, n, "a")

def kdesc(name, nvgpr, accum, nsgpr=102):
    return f""".amdhsa_kernel {name}
  .amdhsa_next_free_vgpr {nvgpr}
  .amdhsa_next_free_sgpr {nsgpr}
  .amdhsa_accum_offset {accum}
  .amdhsa_group_segment_fixed_size 0
  .amdhsa_kernarg_size 104
  .amdhsa_user_sgpr_count 2
  .amdhsa_user_sgpr_kernarg_segment_ptr 1
  .amdhsa_system_sgpr_workgroup_id_x 1
.end_amdhsa_kernel"""

_reg = re.compile(r"\b([va])(?:(\d+)|\[(\d+):(\d+)\])")
def regs(tok):
    out = []
    for m in _reg.finditer(tok):
        k = m.group(1)
        if m.group(2) is not None: out.append((k, int(m.group(2))))
        else: out += [(k, i) for i in range(int(m.group(3)), int(m.group(4)) + 1)]
    return out

_sreg = re.compile(r"\b(?:s(\d+)|s\[(\d+):(\d+)\]|(vcc))")
def sregs(tok):
    out = set()
    for m in _sreg.finditer(tok):
        if m.group(1): out.add(int(m.group(1)))
        elif m.group(2): out |= set(range(int(m.group(2)), int(m.group(3)) + 1))
        else: out.add("vcc")
    return out

TRANS = ("v_exp_f32", "v_log_f32", "v_rcp_f32", "v_rsq_f32", "v_sqrt_f32", "v_sin_f32", "v_cos_f32")
def parse(line):
    line = line.split(";")[0].strip()
    if not line or line.endswith(":") or line.startswith((".", "@")): return None
    parts = line.split(None, 1)
    op = parts[0]; ops = [o.strip() for o in parts[1].split(",")] if len(parts) > 1 else []
    d = dict(op=op, line=line, w=[], r=[], kind="other", states=1)
    if op == "s_nop": d["states"] = int(ops[0], 0) + 1
    if op.startswith("v_smfmac"):
        d["kind"] = "mfma"; d["w"] = regs(ops[0]); d["A"] = regs(ops[1]) + regs(ops[3]); d["B"] = regs(ops[2]); d["C"] = regs(ops[0])
        d["r"] = d["A"] + d["B"] + d["C"]; d["passes"] = 8
    elif op.startswith("v_mfma"):
        d["kind"] = "mfma"; d["w"] = regs(ops[0]); d["A"] = regs(ops[1]); d["B"] = regs(ops[2]); d["C"] = regs(ops[3])
        d["r"] = d["A"] + d["B"] + d["C"]
        d["passes"] = 8 if "32x32x16" in op else 4 if "16x16x32" in op else 16
    elif op.startswith("v_"):
        d["kind"] = "valu"
        if op.startswith("v_cmp") or op.startswith("v_readfirstlane") or op.startswith("v_readlane"):
            d["r"] = sum((regs(o) for o in ops[1:]), [])
        else:
            d["w"] = regs(ops[0]); d["r"] = sum((regs(o) for o in ops[1:]), [])
            if op.startswith(("v_fmac", "v_dot2c", "v_permlane", "v_writelane")): d["r"] += d["w"]
            if op.startswith("v_permlane"): d["w"] = d["w"] + regs(ops[1])
        d["trans"] = op.startswith(TRANS)
        d["dot"] = op.startswith("v_dot")
    elif op.startswith("ds_read"):
        d["kind"] = "mem"; d["w"] = regs(ops[0]); d["r"] = regs(ops[1])
    elif op.startswith("ds_"):
        d["kind"] = "mem"; d["r"] = sum((regs(o) for o in ops), [])
    elif op.startswith(("buffer_load", "global_load")):
        d["kind"] = "mem"
        if " lds" in line or "_lds_" in op: d["r"] = sum((regs(o) for o in ops), [])
        else: d["w"] = regs(ops[0]); d["r"] = sum((regs(o) for o in ops[1:]), [])
    elif op.startswith(("buffer_store", "global_store", "buffer_atomic", "global_atomic")):
        d["kind"] = "mem"; d["r"] = sum((regs(o) for o in ops), []); d["store"] = True
        d["wide"] = "x4" in op or "x3" in op
        d["data"] = regs(ops[0]) if op.startswith("buffer") else regs(ops[1])
    return d

def check_hazards(lines, window=24, only_last=False):
    ins = [p for p in map(parse, lines) if p]
    probs = []
    for i, c in enumerate(ins):
        if only_last and i != len(ins) - 1: continue
        dist = 0
        for j in range(i - 1, max(-1, i - window - 1), -1):
            p = ins[j]
            need = 0
            pw, cr, cw = set(p["w"]), set(c["r"]), set(c["w"])
            if p["kind"] == "mfma":
                n = {4: 8, 8: 12, 16: 20}[p["passes"]]
                if c["kind"] == "mfma":
                    if pw & (set(c["A"]) | set(c["B"])): need = n
                    elif pw & set(c["C"]):
                        need = 0 if (p["w"] == c["C"] and p["passes"] == c["passes"]) else n - 2
                    elif pw & cw and p["w"] != c["w"]: need = n - 2
                elif c["kind"] in ("valu", "mem"):
                    if pw & (cr | cw): need = n
                if c["kind"] == "valu" and set(p["C"]) & cw: need = max(need, {4: 3, 8: 7, 16: 15}[p["passes"]])
            elif p["kind"] == "valu":
                if c["kind"] == "mfma" and pw & cr: need = 3 if p.get("dot") else 2
                if c["kind"] == "valu":
                    if p.get("trans") and pw & cr: need = max(need, 1)
                    if c["op"].startswith("v_permlane") and pw & cr: need = max(need, 2)
                    if c["op"].startswith(("v_readfirstlane", "v_readlane")) and pw & cr: need = max(need, 1)
                    if "dpp" in c["line"] or "row_" in c["line"] or "quad_perm" in c["line"]:
                        if pw & cr: need = max(need, 2)
                    if "sdwa" in p["op"] and "dst_sel:DWORD" not in p["line"] and pw & (cr | cw): need = max(need, 1)
                    if p.get("dot") and pw & (cr | cw):
                        same = p["op"] == c["op"]
                        srcs = c["line"].split(",")
                        if not (same and c["op"].startswith("v_dot2c") and not (pw & set(sum((regs(o) for o in srcs[1:]), [])))) and \
                           not (same and len(srcs) == 4 and not (pw & set(regs(srcs[1]) + regs(srcs[2])))):
                            need = max(need, 3)
                if c["kind"] == "mem" and p.get("dot") and pw & cr: need = max(need, 3)
            elif p["kind"] == "mem" and p.get("store") and p.get("wide"):
                if set(p["data"]) & cw: need = 2 if c["kind"] == "valu" else 1
            if p["op"].startswith("v_add_co") and c["op"].startswith("v_addc_co"): need = max(need, 2)
            if p["kind"] == "valu" and p["op"].startswith(("v_cmp", "v_readfirstlane", "v_readlane")):
                dst = sregs(p["line"].split(None, 1)[1].split(",")[0])
                src = sregs(",".join(c["line"].split(None, 1)[1].split(",")[(0 if c["kind"] == "mem" else 1):])) if " " in c["line"] else set()
                if dst & src:
                    if c["kind"] == "valu": need = max(need, 2)
                    elif c["kind"] == "mem": need = max(need, 5)
                    else: need = max(need, 1)
            if p["op"].startswith("s_") and "m0" in p["line"].split(",")[0] and c["kind"] == "mem" and (" lds" in c["line"] or "_lds_" in c["op"]):
                need = max(need, 1)
            if need > dist:
                probs.append(f"need {need} have {dist}: [{p['line']}] -> [{c['line']}]")
            dist += p["states"]
            if dist > 20: break
    return probs

def icost(l):
    op = l.split()[0]
    if op.startswith(TRANS) or op.startswith(("buffer_", "global_", "v_permlane")): return 8
    if op.startswith("s_"): return 0
    return 4

class Sched:
    def __init__(self):
        self.mf = []; self.sal = []; self.mem = []; self.valu = []; self.post = []
    def add(self, mfma):
        self.mf.append(mfma); self.sal.append([]); self.mem.append([]); self.valu.append([]); self.post.append([])
        return len(self.mf) - 1
    def n(self): return len(self.mf)
    def budget(self, g):
        m = self.mf[g]
        return 4 if (m and m.startswith("v_smfmac")) else 8
    def cost(self, g):
        c = sum(icost(l) for l in self.mem[g] + self.valu[g])
        if len(self.mem[g]) >= 2 and not self.valu[g]: c += 4
        return c + 4 * max(0, len([x for x in self.sal[g] if not x.startswith(('@stamp', '@seg')) and not x.endswith(':')]) - 1) + 4 * len([x for x in self.post[g] if not x.startswith('@') and not x.endswith(':')])
    def place_mem(self, line, lo, hi=None):
        hi = self.n() - 1 if hi is None else min(hi, self.n() - 1)
        assert lo <= hi, (line, lo, hi)
        w = icost(line)
        for g in range(lo, hi + 1):
            if not self.mem[g] and self.cost(g) + w <= self.budget(g):
                self.mem[g].append(line); return g
        g = min(range(lo, hi + 1), key=lambda g: (len(self.mem[g]), self.cost(g) - self.budget(g), g))
        self.mem[g].append(line); return g
    def place_edf(self, ops):
        todo = {i: o for i, o in enumerate(ops)}
        for i, (l, lo, hi) in todo.items(): assert lo <= hi, (l, lo, hi)
        g0 = min(o[1] for o in ops); g1 = max(o[2] for o in ops)
        res = {}; used = {}
        passes = [lambda g: not self.mem[g] and not used.get(g) and self.cost(g) + 4 <= self.budget(g),
                  lambda g: not self.mem[g] and not used.get(g),
                  lambda g: len(self.mem[g]) + used.get(g, 0) < 2, lambda g: len(self.mem[g]) + used.get(g, 0) < 3, lambda g: True]
        for ok in passes:
            for g in range(g0, g1 + 1):
                if not ok(g): continue
                av = sorted((o[2], i) for i, o in todo.items() if o[1] <= g <= o[2])
                if av: i = av[0][1]; todo.pop(i); res[i] = g; used[g] = used.get(g, 0) + 1
        assert not todo
        same = {}
        for i, o in enumerate(ops): same.setdefault(o[1:], []).append(i)
        for ids in same.values():
            for i, g in zip(ids, sorted(res[i] for i in ids)): res[i] = g
        for i in sorted(res): self.mem[res[i]].append(ops[i][0])
        return res
    def est(self):
        return sum((max(16, 16 - self.budget(g) + self.cost(g)) if self.mf[g] else self.cost(g)) for g in range(self.n()))
    def lines(self):
        out = []
        for g in range(self.n()):
            if self.mf[g]: out.append(self.mf[g])
            out += self.sal[g] + self.mem[g] + self.valu[g] + self.post[g]
        return out

_wait = re.compile(r"(vmcnt|lgkmcnt)\((\d+)\)")
def auto_wait(lines, pend_lds=None, pend_vm=None, keep=False):
    lds = list(pend_lds or []); vm = list(pend_vm or [])
    out = []
    def hoist(kind, k):
        pos = len(out); kk = k
        j = len(out) - 1
        while j >= 0:
            if out[j].startswith("@"): j -= 1; continue
            p = parse(out[j])
            if p is None or out[j].split()[0] in ("s_barrier", "s_cbranch_scc1", "s_cbranch_scc0", "s_branch"): break
            if p["kind"] == "mfma":
                pos = j + 1; k = kk; break
            isl = p["op"].startswith("ds_"); isv = p["op"].startswith(("buffer_", "global_"))
            if (kind == "lgkmcnt" and isl) or (kind == "vmcnt" and isv):
                kk -= 1
                if kk < 0: break
            if len(out) - j > 6: break
            j -= 1
        if pos < len(out) and out[pos].startswith("s_waitcnt") and kind not in out[pos]:
            out[pos] = out[pos] + f" {kind}({k})"
        elif pos < len(out) and out[pos].startswith("s_waitcnt"):
            old = int(dict(_wait.findall(out[pos]))[kind])
            out[pos] = out[pos].replace(f"{kind}({old})", f"{kind}({min(old,k)})")
        else:
            out.insert(pos, f"s_waitcnt {kind}({k})")
    for l in lines:
        if l.startswith("@waitvm"):
            parts = l.split(); tags = set(parts[1].split(","))
            idx = [i for i, e in enumerate(vm) if e[1] in tags]
            w = []
            if idx:
                k = len(vm) - 1 - max(idx); k = min(k, 62); w.append(f"vmcnt({k})"); vm = vm[len(vm) - k:] if k else []
            if len(parts) > 2 and (lds or not keep): w.append("lgkmcnt(0)"); lds = []
            if w: out.append("s_waitcnt " + " ".join(w))
            out.append("@chk " + " ".join(parts[1:]))
            continue
        if l.startswith("@chk"):
            parts = l.split(); tags = set(parts[1].split(","))
            assert not any(e[1] in tags for e in vm), l
            assert len(parts) < 3 or not lds, l
            out.append(l); continue
        p = parse(l)
        if p is None: out.append(l); continue
        if p["op"] == "s_waitcnt":
            for kind, k in _wait.findall(l):
                k = int(k)
                if kind == "vmcnt": vm = vm[len(vm) - k:] if 0 < k < len(vm) else ([] if k == 0 else vm)
                else: lds = lds[len(lds) - k:] if 0 < k < len(lds) else ([] if k == 0 else lds)
            out.append(l); continue
        touched = set(p["r"]) | set(p["w"])
        idx = [i for i, e in enumerate(lds) if e & touched]
        if idx:
            nm = 0; young = 0
            for q in reversed(out):
                if q.startswith(("v_mfma", "v_smfmac")):
                    nm += 1
                    if nm >= 7: break
                elif q.startswith("ds_"): young += 1
            k = min(len(lds) - 1 - max(idx), 14, young if nm >= 7 else 99); k = k; hoist("lgkmcnt", k); lds = lds[len(lds) - k:] if k else []
        idx = [i for i, e in enumerate(vm) if e[0] & touched]
        if idx:
            k = min(len(vm) - 1 - max(idx), 62); hoist("vmcnt", k); vm = vm[len(vm) - k:] if k else []
        if p["op"].startswith("ds_"): lds.append(set(p["w"]))
        elif p["op"].startswith(("buffer_", "global_")):
            m = re.search(r";tag=(\w+)", l)
            vm.append((set(p["w"]), m.group(1) if m else None))
        out.append(l)
    return out, lds, vm

def fix_hazards(lines):
    lines = list(lines)
    i = 0
    while i < len(lines):
        p = parse(lines[i])
        if p is None: i += 1; continue
        lo = max(0, i - 40)
        seg = lines[lo:i + 1]
        need = 0
        for pr in check_hazards(seg, only_last=True):
            m = re.match(r"need (\d+) have (\d+)", pr); need = max(need, int(m.group(1)) - int(m.group(2)))
        if need:
            lines.insert(i, f"s_nop {need-1}"); i += 1
        i += 1
    return lines

def f2u(x):
    import struct
    return "%#x" % struct.unpack("<I", struct.pack("<f", float(x)))[0]

def salu_trace(lines, init):
    R = dict(init); scc = [0]; out = []
    def val(t):
        t = t.strip()
        if t == "m0" or re.fullmatch(r"s\d+", t): return R.get(t)
        try: return int(t, 0) & 0xffffffff
        except ValueError: return None
    for l in lines:
        body = l.split(";")[0].strip()
        if not body or body.startswith(("@", ".")) or body.endswith(":"): continue
        parts = body.split(None, 1); op = parts[0]
        ops = [o.strip() for o in parts[1].split(",")] if len(parts) > 1 else []
        if op.startswith("buffer_") and ";tag=" in l:
            so = ops[-1].split()[0]
            out.append((l.split(";tag=")[1].strip(), R.get("m0") if body.endswith("lds") else None, val(so), body)); continue
        f = {"s_add_u32": lambda a, b: a + b, "s_sub_u32": lambda a, b: a - b, "s_xor_b32": lambda a, b: a ^ b, "s_lshl_b32": lambda a, b: a << b,
             "s_lshr_b32": lambda a, b: a >> b, "s_mul_i32": lambda a, b: a * b, "s_min_u32": min, "s_and_b32": lambda a, b: a & b, "s_or_b32": lambda a, b: a | b}
        if op in f:
            a, b = val(ops[1]), val(ops[2])
            R[ops[0]] = None if a is None or b is None else f[op](a, b) & 0xffffffff
            scc[0] = None
        elif op == "s_mov_b32": R[ops[0]] = val(ops[1])
        elif op == "s_cmp_lt_u32":
            a, b = val(ops[0]), val(ops[1]); scc[0] = None if a is None or b is None else int(a < b)
        elif op == "s_cselect_b32": R[ops[0]] = None if scc[0] is None else val(ops[1] if scc[0] else ops[2])
        elif op.startswith("s_") and ops and re.fullmatch(r"s\d+|m0", ops[0]) and not op.startswith("s_cmp"): R[ops[0]] = None
        elif op.startswith("v_readfirstlane"): R[ops[0]] = R.get("rfl")
    return out

def layout(text):
    import subprocess, tempfile, shutil
    lines = text.split("\n")
    end = next(i for i, l in enumerate(lines) if l.startswith(".section"))
    ins = [i for i, l in enumerate(lines[:end]) if parse(l.strip()) is not None]
    d = tempfile.mkdtemp()
    open(d + "/a.s", "w").write("\n".join(l for l in lines if not l.startswith(".p2align 12")))
    subprocess.run(["clang", "-x", "assembler", "-target", "amdgcn-amd-amdhsa", "-mcpu=gfx950", "-c", d + "/a.s", "-o", d + "/a.o"], check=True)
    out = subprocess.run(["llvm-objdump", "-d", "--mcpu=gfx950", d + "/a.o"], capture_output=True, text=True).stdout
    shutil.rmtree(d)
    sz = [4 * len(m.group(1).split()) for m in re.finditer(r"// [0-9A-F]{12}: ([0-9A-F ]+)", out)]
    assert len(sz) == len(ins), (len(sz), len(ins))
    ad = []; a = 0; k = 0
    for i, l in enumerate(lines[:end]):
        if l.startswith(".p2align 12"): a = (a + 4095) // 4096 * 4096
        if k < len(ins) and ins[k] == i: ad.append(a); a += sz[k]; k += 1
    return ins, ad, sz

def page_hooks(text, minrun, sessions, nchain=4):
    base = text.split("\n")
    at = lambda name: next(i for i, l in enumerate(base) if l.strip() == name + ":")
    rng = [(at(first), at(last)) for p, first, last, _ in sessions]
    def build(pos):
        ins_at = {}
        for (p, first, last, extra), (lo, hi) in zip(sessions, rng):
            order = sorted(i for i in pos if lo < i < hi) + [at(e) + 1 for e in extra]
            for n, i in enumerate(order):
                nxt = f"{p}{n + nchain}" if n + nchain < len(order) else p + "_back"
                ins_at[i] = [f"{p}{n}:", f"    s_cbranch_execz {nxt}"]
            ins_at[at(p + "_back")] = [f"{p}{n}:" for n in range(len(order), nchain)]
        out = []; back = []
        for i, l in enumerate(base):
            for x in ins_at.get(i, []): out.append(x); back.append(None)
            out.append(l); back.append(i)
        return out, back
    pos = []
    while True:
        out, back = build(pos)
        marked = [l + f" ;@{b}" if b is not None and parse(l.strip()) is not None else l for l, b in zip(out, back)]
        t = align8("\n".join(marked), minrun, quiet=True) if minrun else "\n".join(marked)
        L = t.split("\n"); ins, ad, sz = layout(t)
        orig = lambda k: int(L[ins[k]].rsplit(";@", 1)[1]) if ";@" in L[ins[k]] else None
        for k in range(len(ins)):
            if orig(k) in pos: assert ad[k] % 4096 < 72, hex(ad[k])
        done = {ad[k] // 4096 for k in range(len(ins)) if orig(k) in pos or any(orig(k) == lo + 1 and ad[k] % 4096 == 0 for lo, hi in rng)}
        cand = [k for k in range(1, len(ins)) if orig(k) is not None and any(lo + 1 < orig(k) < hi - (12 if base[hi].strip().endswith('_back:') else 0) for lo, hi in rng) and 8 <= ad[k] % 4096 < 52 and ad[k] // 4096 not in done]
        if not cand: return "\n".join(l.split(" ;@")[0] for l in L), len(pos)
        pg = ad[cand[0]] // 4096; cand = [k for k in cand if ad[k] // 4096 == pg]
        good = [k for k in cand if L[ins[k - 1]].strip().startswith("v_mfma") and not L[ins[k]].strip().startswith("s_")]
        pos.append(orig((good or cand)[0]))

def align8(text, minrun=5, quiet=False):
    lines = text.split("\n")
    end = next(i for i, l in enumerate(lines) if l.startswith(".section"))
    ins, ad, sz = layout(text)
    W = ("v_exp_f32", "v_rcp_f32", "v_rsq_f32", "v_mov_b32", "v_add_f32", "v_mul_f32", "v_max_f32", "v_sub_f32", "v_lshlrev_b32", "v_lshrrev_b32",
         "v_and_b32", "v_or_b32", "v_xor_b32", "v_floor_f32", "v_add_u32", "v_permlane16_swap_b32", "v_permlane32_swap_b32", "v_cvt_f32_i32")
    phase = 0; k = 0; n = len(ins); lastrun = -1; nop = []; nw = 0
    while k < n:
        if k and ad[k] != ad[k - 1] + sz[k - 1]: phase = 0; lastrun = k - 1
        if sz[k] == 4: phase ^= 4; k += 1; continue
        e = k
        while e < n and sz[e] == 8: e += 1
        if e == k: phase = (phase + sz[k]) % 8; k += 1; continue
        if e - k >= minrun:
            if phase:
                c = [j for j in range(k - 1, lastrun, -1) if sz[j] == 4 and lines[ins[j]].split()[0] in W]
                if c:
                    t = lines[ins[c[0]]]; op = t.split()[0]; lines[ins[c[0]]] = t.replace(op, op + "_e64", 1); phase = 0; nw += 1
                else:
                    va = sum(1 for j in range(k, e) if parse(lines[ins[j]].strip())["kind"] == "valu")
                    if va >= 8 and 2 * va > e - k: nop.append(ins[k]); phase = 0
            lastrun = e - 1
        k = e
    for i in reversed(nop): lines.insert(i, "    s_nop 0")
    import sys
    if not quiet: print("align8: widened", nw, "nops", len(nop), file=sys.stderr)
    return "\n".join(lines)

def check_dead_loads(lines):
    last = {}; bad = []
    for l in lines:
        p = parse(l)
        if p is None: continue
        for r in p["r"]: last.pop(r, None)
        for r in p["w"]:
            if r in last: bad.append((last[r], l))
            last.pop(r, None)
            if (p["kind"] == "mem" and not p["op"].endswith("load_dword")) or p["op"].startswith(("v_cvt_pk", "v_mfma", "v_exp")): last[r] = l
    return bad + [(l, "never read") for l in set(last.values())]
```

```python
import sys, math, copy
from asmlib import *
NAME = "recurrent_scan__gqa_block_cached__dense_activation_gelu__prompt"
M16 = "v_mfma_f32_16x16x32_bf16"
SMF = "v_smfmac_f32_16x16x64_bf16"

class Cfg:
    diag = False
    shift = 102.0
    SM0 = 8
    BAR = 29
    pvorder = "bshare"
    stflags = "sc1"
    ldflags = "sc1"
    NR = 16
    DO0 = 3
    ND = 8
    chain2 = True
    DU = 6
    DU0 = 6
    LL0 = 2
    LLS = 3
    adj = 1
    zig = 1
    gzig = 0
    WPS = 2
    DO = 3
    rot = 0
    rot2 = 5
    touch = True
    fakew = False
    fakeo = False
    kvflags = 'nt'
    fwflags = ''
    fhflags = 'sc1'
    FPOS = (47, 95)
    MG = 6
    align = 3
    HB = 2
    scr = 0
    tlb = 0
    rotw = 0
    PADR = 1024
    early_gate = True
    NP0 = 0
    WSK = 99
    tmap = 1
    PADW = 0
    rotx = 7
    probe = None
    last_h = None
    estonly = False
    DPOS = 56
    DSP = 4
    H30W = ((0, 30), (52, 66), (60, 76))
    H31W = ()
    HSP = 3
    NE = 3
    RS = 0
    H31 = 2
    NB1 = 9
    force_fallback = False
    trace = None
    nostamp = ('b3', 'b4', 'b5')
    codepf = True
    codepf2 = True
    GBAR = 14
    GBAR8 = 26
    STB = 6
    sat = 0
    woflags = ''
    wqflags = ''
    pg = 0
    ipg = 0
    hop = 20
    hop0 = 'L_loop_end'
    hop0rc = 1
    hopend = 'L_endA'
    palign = False
    XFULL = 9
    XFIRST = 1
    GSP0 = 4
    RSC = 16
    smtest = 0
    K2 = 1
    TP = 1
    RSPOS = 0
    GLO = 4
    G0 = 4
    nofb = False
    slp = 8
    recenter = 1 << 6
    l2n = 0
    stagger = 0
    NLATE = 10
    flagmode = 'store'
    pollflags = 'sc1'
    outflags = 'sc1'
    GSP = 4
    def __init__(self, **kw):
        for k, v in kw.items():
            assert hasattr(self, k), k
            setattr(self, k, v)

WS_O = 0x2000000
WS_H = 0x1000000
H_RT = 43 * 4096
WS_FL = 0x1800000
WS_RS = 0x1810000
WS_ST = 0x8000000
NS = 4
KSLOT = 16416; VCH = 4128; VSLOT = 4 * VCH
VBASE = NS * KSLOT
XBASE = KSLOT; XSLOT = 32832
WCH = 6176; WSLOT = 4 * WCH
WBASE = VBASE + VSLOT
CWBASE = WBASE + 3 * WSLOT
FLBASE = CWBASE + 768
LDS_A = FLBASE + 64
assert XBASE + XSLOT + 32768 <= WBASE and XBASE + XSLOT >= 3 * KSLOT and LDS_A <= 163840 and VBASE + NS * VSLOT <= LDS_A
VK, VV, VD, VIDX, VOA, VOB = 2, 3, 4, 5, 6, 7
SMA = 8
VDW, VL, VFE, VFO = 12, 13, 14, 15
NEGM = 16; S0 = 32; P0 = 48; O0 = 128; VXT = 96
FA = 64
VRA = 80
VPA, VONE, VPD, VDG = 86, 87, 1, 95
VX0, VX1, VXR, VWQ, VW1, VWR, VCQ, VCF, VC0, VC1, VCR, VH1 = range(16, 28)
B1F = 32; SX = 48
def S(n, i): return S0 + 4 * i if n >= 4 else O(i, n)
def P(n): return P0 + (n & 1) * 8
def O(dt, qt): return O0 + (dt * 4 + qt) * 4
def ACC(T, qt): return O0 + (T * 4 + qt) * 4 if T < 8 else 96 + ((T - 8) * 4 + qt) * 4 if T < 10 else 64 + ((T - 10) * 2 + qt) * 4
def Q(qt, ks): return (qt * 4 + ks) * 4
def KF(i, ks): return 64 + (i * 4 + ks) * 4
NVX = 2
def VF(T, u, dt): return ("v", VXT + (u * NVX + dt) * 4) if (T & 1 and dt < NVX) else ("a", 128 + u * 32 + dt * 4)
def rr(kb, n, o=0): return vr(kb[1] + o, n, kb[0])
def LA(qt): return 192 + qt * 4
def XF(kb, qt, s): return (kb & 1) * 32 + qt * 8 + s * 4
NWR = 6
def WF(n, s): return 128 + (n % NWR) * 8 + s * 4
def CF(j, s): return 64 + j * 8 + s * 4
CWA = 88
sK, sV, sWS, sX, sWQ, sF0, sF1, sDBG = 4, 8, 12, 16, 20, 24, 28, 32
sW, sHEAD, sQB, sPAR, sKM, sVM, sVO, sLOOP, sROT, sKO, sXM, sWM, sP0, sP1, sTRY, sSH = range(36, 52)
sT = 52
sWO, sXX, sW2, sOUT, sB2 = 60, 64, 68, 72, 76
sRO, sFM, sKW, sOB, sHB, sFW, sFH, sHS0, sHS1, sFLO = range(80, 90)
sGX = 3
sRT = 101; sCT = sP1
sXA, sXB = 94, 95
sTO, sTC = 94, 95; VTO = 92
sRC = 93; VCP = 94; sOS = 100
sOL, sOT = sX, sWQ
XB = VBASE + 4 * VSLOT
XT = XB + VSLOT
assert XT + 8192 <= FLBASE
def srd(b): return f"s[{b}:{b+3}]"

class Stamps:
    def __init__(self): self.names = []; self.rt = []
    def __call__(self, c, a, name, rt=False):
        if c.probe and name in c.probe:
            a(f"s_memrealtime s[96:97]\ns_waitcnt lgkmcnt(0)\nv_writelane_b32 v{VDG}, s96, {c.probe.index(name)}")
        if not c.diag or name in c.nostamp: return
        i = len(self.names); self.names.append(name); assert i < 40
        a(f"s_memtime s[96:97]\ns_waitcnt lgkmcnt(0)\nv_writelane_b32 v{VDG}, s96, {i}")
        if rt:
            a(f"s_memrealtime s[96:97]\ns_waitcnt lgkmcnt(0)\nv_writelane_b32 v{VDG}, s96, {40+len(self.rt)}"); self.rt.append(name)
    def out(self, c, a, base, ws, wave):
        if not c.diag: return
        a(f"""s_lshl_b32 s{sT}, s2, 2
s_add_u32 s{sT}, s{sT}, s{wave}
s_lshl_b32 s{sT}, s{sT}, 8
s_add_u32 s{sT}, s{sT}, {base}
v_lshlrev_b32 v1, 2, v0
buffer_store_dword v{VDG}, v1, {srd(ws)}, s{sT} offen""")

def mk_srd(a, d, lo, hi, off, size):
    if off is None: a(f"s_mov_b32 s{d}, s{lo}\ns_mov_b32 s{d+1}, s{hi}")
    else: a(f"s_add_u32 s{d}, s{lo}, {off}\ns_addc_u32 s{d+1}, s{hi}, 0")
    a(f"s_mov_b32 s{d+2}, {size}\ns_mov_b32 s{d+3}, 0x20000")

L3, L23, L4 = 28, 29, 30
RSV = 48
def setup_A(c):
    a = Asm()
    a(f"""s_load_dwordx16 s[64:79], s[0:1], 0
s_load_dwordx8 s[80:87], s[0:1], 64
s_load_dwordx2 s[88:89], s[0:1], 96
s_getpc_b64 s[90:91]
L_pc:
s_lshr_b32 s{sT}, s2, 3
s_lshl_b32 s{sT}, s{sT}, 11
v_lshrrev_b32 v{VCP}, 4, v0
v_lshl_add_u32 v{VCP}, v{VCP}, 7, s{sT}
v_min_u32 v{VCP}, L_last-L_pc, v{VCP}
global_load_dword v255, v{VCP}, s[90:91]
v_lshrrev_b32 v1, 6, v0
v_and_b32 v0, 63, v0
s_and_b32 s{sGX}, s2, 7
v_readfirstlane_b32 s{sW}, v1
s_bfe_u32 s{sQB}, s2, 0x30003
s_lshr_b32 s{sT+1}, s2, 6
s_lshl_b32 s{sHEAD}, s{sGX}, 2
s_add_u32 s{sHEAD}, s{sHEAD}, s{sT+1}
s_and_b32 s{sPAR}, s{sHEAD}, 1
s_xor_b32 s{sROT}, s{sT+1}, s{sQB}
s_and_b32 s{sROT}, s{sROT}, {c.rot}
s_and_b32 s{sT}, s{sGX}, {c.rotx}
s_xor_b32 s{sROT}, s{sROT}, s{sT}
s_lshr_b32 s{sT}, s{sHEAD}, 1
s_mul_i32 s{sT}, s{sT}, 3
s_add_u32 s{sP1}, s{sT}, 1
s_lshl_b32 s{sT+1}, s{sPAR}, 1
s_add_u32 s{sP0}, s{sT}, s{sT+1}
s_add_u32 s{sT+1}, s{sHEAD}, 11
s_cmp_lt_u32 s{sHEAD}, 22
s_cselect_b32 s{sP0}, s{sP0}, s{sT+1}
s_cselect_b32 s{sP1}, s{sP1}, 0
s_lshl_b32 s{sXM}, s{sW}, 13
s_add_u32 s{sXM}, s{sXM}, {XBASE}
s_mul_i32 s{sWM}, s{sW}, {WCH}
s_add_u32 s{sWM}, s{sWM}, {WBASE}
v_and_b32 v{L3}, 3, v0
v_bfe_u32 v{L23}, v0, 2, 2
v_lshrrev_b32 v{L4}, 4, v0
v_lshlrev_b32 v{VL}, 4, v0
s_lshl_b32 s{sT+2}, s{sQB}, 8
s_lshl_b32 s{sT+3}, s{sHEAD}, 3
s_add_u32 s{sT+2}, s{sT+2}, s{sT+3}
s_lshl_b32 s{sT+3}, s{sW}, 1
s_add_u32 s{sKO}, s{sT+2}, s{sT+3}
s_lshl_b32 s{sT+2}, s{sKO}, 10
v_add_u32 v91, s{sT+2}, v{VL}
v_and_b32 v1, 1, v{L4}
v_lshlrev_b32 v1, 1, v1
v_xor_b32 v1, v1, v{L3}
v_lshlrev_b32 v{VDW}, 4, v1
v_lshrrev_b32 v31, 2, v0
v_lshl_add_u32 v{VX0}, v31, 10, v{VDW}
s_bfe_u32 s{sT}, s{sHEAD}, 0x10001
s_lshl_b32 s{sT+1}, s{sT}, 14
v_add_u32 v{VX0}, s{sT+1}, v{VX0}
v_xor_b32 v{VX1}, 0x4000, v{VX0}
s_lshl_b32 s{sT}, s{sT}, 11
s_add_u32 s{sXA}, s{sXM}, s{sT}
s_xor_b32 s{sT}, s{sT}, 0x800
s_add_u32 s{sXB}, s{sXM}, s{sT}
s_lshl_b32 s{sT}, s{sW}, 3
v_add_u32 v1, s{sT}, v{L23}
v_lshlrev_b32 v31, 4, v{L3}
v_lshl_add_u32 v{VD}, v{L4}, 6, v31
v_lshl_add_u32 v{VWQ}, v1, 13, v{VD}
v_lshrrev_b32 v{VW1}, 5, v0
v_lshl_add_u32 v1, v{VW1}, 5, v1
v_and_b32 v{VW1}, 1, v{L4}
v_lshl_add_u32 v1, v{VW1}, 2, v1
v_mul_u32_u24 v1, 2752, v1
v_add_u32 v{VW1}, v1, v31
s_lshl_b32 s{sT}, s{sQB}, 2
s_add_u32 s{sT+1}, s{sT}, s{sW}
s_lshl_b32 s{sT}, s{sT+1}, 16""")
    a("s_waitcnt lgkmcnt(0)")
    a("@stamp karg")
    if c.tlb:
        a(f"""s_load_dword s101, s[70:71], 0
s_load_dword s101, s[76:77], 0
s_mov_b32 s{sT+1}, {WS_RS + 0x8000}
s_load_dword s101, s[88:89], s{sT+1}
s_load_dword s101, s[78:79], 0
s_load_dword s101, s[86:87], 0
s_mov_b32 s{sT+1}, 0x200000
s_load_dword s101, s[70:71], s{sT+1}""")
    mk_srd(a, sX, 64, 65, f"s{sT}", 65536)
    L = a.lines + flat(dma_x(0)[:2])
    a = Asm()
    a(f"s_lshl_b32 s{sT}, s{sHEAD}, 8")
    mk_srd(a, sWQ, 70, 71, f"s{sT}", 512 * 8192 - 8192 + 256)
    a(f"s_lshl_b32 s{sT}, s{sP0}, 6")
    mk_srd(a, sF0, 76, 77, f"s{sT}", 512 * 2752 - 2752 + 64)
    a(f"s_lshl_b32 s{sT}, s{sP1}, 6")
    mk_srd(a, sF1, 76, 77, f"s{sT}", 512 * 2752 - 2752 + 64)
    a(f"s_cmp_lt_u32 s{sHEAD}, 22\ns_cselect_b32 s{sF1+2}, s{sF1+2}, 0\ns_mov_b64 s[98:99], s[64:65]")
    return L + a.lines + flat(dma_w(0))

B1R = [28, 30, 60, 62]
def side_loads():
    return [([], f"global_load_dwordx4 {vr(RSV+4*i,4)}, v91, s[98:99] offset:{i*1024}") for i in range(2)] + \
           [([], f"global_load_dwordx2 {vr(B1R[i],2)}, v{88 + i//2}, s[92:93] offset:{(i&1)*32}") for i in range(4)]

def setup_A2(c):
    a = Asm()
    a(f"""; b1 (D layout): 4 bf16 at (pair*32 + 16a + 4g)
s_lshl_b32 s{sT}, s{sP0}, 6
s_lshl_b32 s{sT+1}, s{sP1}, 6
v_lshl_add_u32 v88, v{L4}, 3, s{sT}
v_lshl_add_u32 v89, v{L4}, 3, s{sT+1}
s_mov_b64 s[92:93], s[78:79]
s_lshl_b32 s{sT}, s{sHEAD}, 19""")
    mk_srd(a, sK, 66, 67, f"s{sT}", 0x80000)
    mk_srd(a, sV, 68, 69, f"s{sT}", 0x80000)
    mk_srd(a, sWS, 88, 89, None, 0x10000000)
    mk_srd(a, sDBG, 86, 87, None, 256)
    if c.tmap == 0: a(f"s_mov_b32 s{sRT}, s{sHEAD}\ns_mov_b32 s{sT+7}, s{sQB}")
    else: a(f"""s_and_b32 s{sRT}, s{sHEAD}, 24
s_add_u32 s{sRT}, s{sRT}, s{sQB}
s_and_b32 s{sT+7}, s{sHEAD}, 7
s_lshr_b32 s{sGX}, s{sRT}, 2""")
    a(f"s_lshl_b32 s{sT}, s{sT+7}, 7")
    mk_srd(a, sWO, 72, 73, f"s{sT}", 4096 * 1024 - 896)
    mk_srd(a, sW2, 80, 81, f"s{sT}", 1376 * 1024 - 896)
    mk_srd(a, sB2, 82, 83, f"s{sT}", 128)
    a(f"s_lshl_b32 s{sT+1}, s{sRT}, 16\ns_add_u32 s{sT+1}, s{sT+1}, s{sT}")
    mk_srd(a, sXX, 64, 65, f"s{sT+1}", 65536 - 896)
    mk_srd(a, sOUT, 84, 85, f"s{sT+1}", 65536 - 896)
    T = 31
    a(f"""s_lshr_b32 s{sRO}, s2, 6
s_lshl_b32 s{sRO}, s{sRO}, 1
s_xor_b32 s{sRO}, s{sRO}, s{sQB}
s_and_b32 s{sRO}, s{sRO}, {c.rot2}
s_and_b32 s{sT+4}, s{sW}, {c.rotw}
s_xor_b32 s{sRO}, s{sRO}, s{sT+4}
s_lshl_b32 s{sKW}, s{sW}, 5
s_lshl_b32 s{sT+4}, s{sW}, 10
s_add_u32 s{sFM}, s{sT+4}, {XB}
s_lshl_b32 s{sOB}, s{sW}, 12
s_add_u32 s{sRO}, s{sRO}, s{sKW}
s_lshr_b32 s{sT+5}, s{sRO}, 2
s_lshl_b32 s{sT+5}, s{sT+5}, 14
s_add_u32 s{sOB}, s{sOB}, s{sT+5}
s_and_b32 s{sT+5}, s{sRO}, 3
s_lshl_b32 s{sT+5}, s{sT+5}, 10
s_add_u32 s{sOB}, s{sOB}, s{sT+5}
s_lshl_b32 s{sRO}, s{sRO}, 15
s_lshl_b32 s{sOS}, s{sHEAD}, 1
s_add_u32 s{sOS}, s{sOS}, s{sPAR}
s_lshl_b32 s{sOS}, s{sOS}, 13
s_mul_i32 s{sHB}, s{sRT}, {H_RT}
s_add_u32 s{sHB}, s{sHB}, s{sT+4}
s_add_u32 s{sHB}, s{sHB}, {WS_H}
s_lshl_b32 s{sT+4}, s{sQB}, 2
s_add_u32 s{sT+4}, s{sT+4}, s{sW}
s_mul_i32 s{sT+4}, s{sT+4}, {H_RT}
s_add_u32 s{sT+4}, s{sT+4}, {WS_H}
s_lshl_b32 s{sHS0}, s{sP0}, 12
s_add_u32 s{sHS0}, s{sHS0}, s{sT+4}
s_lshl_b32 s{sHS1}, s{sP1}, 12
s_add_u32 s{sHS1}, s{sHS1}, s{sT+4}
s_lshl_b32 s{sFLO}, s{sQB}, 8
s_lshl_b32 s{sT+4}, s{sHEAD}, 2
s_add_u32 s{sFLO}, s{sFLO}, s{sT+4}
s_add_u32 s{sFLO}, s{sFLO}, {WS_FL}
s_lshr_b32 s{sT+4}, s{sW}, 1
s_lshl_b32 s{sT+4}, s{sT+4}, 4
s_lshl_b32 s{sKM}, s{sW}, 12
s_add_u32 s{sKM}, s{sKM}, s{sT+4}
s_mul_i32 s{sVM}, s{sW}, {VCH}
s_add_u32 s{sVM}, s{sVM}, {VBASE}
s_mov_b32 s{sTRY}, 0
s_mov_b32 s{sCT}, s{sT+7}
s_mov_b32 s{sSH}, {f2u(c.shift)}
@pg1
v_lshl_add_u32 v{VD}, v{L23}, 8, v{VD}
s_lshl_b32 s{sT+4}, s{sW}, 12
v_add_u32 v{VD}, s{sT+4}, v{VD}
v_and_b32 v1, 1, v{L23}
v_lshlrev_b32 v1, 1, v1
v_xor_b32 v1, v1, v{L4}
v_lshlrev_b32 v1, 4, v1
v_and_b32 v{T}, 15, v0
v_lshl_add_u32 v1, v{T}, 6, v1
v_add_u32 v{VXR}, s{sXM}, v1
s_lshl_b32 s{sT+4}, s{sW}, 7
s_add_u32 s{sT+4}, s{sT+4}, {CWBASE}
s_lshl_b32 s{sT+5}, s{sW}, 6
s_add_u32 s{sT+5}, s{sT+5}, {CWBASE+512}
v_lshl_add_u32 v{VC0}, v{T}, 2, s{sT+4}
v_lshl_add_u32 v{VC1}, v{T}, 2, s{sT+5}
v_lshlrev_b32 v{VCR}, 4, v{L4}
v_add_u32 v{VCR}, {CWBASE}, v{VCR}
s_lshl_b32 s{sT+4}, s{sPAR}, 8
v_lshl_add_u32 v92, v{T}, 3, s{sT+4}
v_xor_b32 v93, 0x100, v92
v_lshlrev_b32 v1, 3, v{L3}
v_lshl_add_u32 v1, v{L23}, 6, v1
v_mul_u32_u24 v{VWR}, {WCH}, v{L4}
v_add_u32 v{VWR}, v{VWR}, v1
v_add_u32 v{VWR}, {WBASE}, v{VWR}
v_mul_u32_u24 v{VV}, {VCH}, v{L4}
v_add_u32 v{VV}, v{VV}, v1
v_add_u32 v{VV}, {VBASE}, v{VV}
s_lshl_b32 s{sT+4}, s{sW}, 8
v_add_u32 v{VCQ}, s{sT+4}, v{VWR}
s_lshr_b32 s{sT+4}, s{sW}, 1
s_lshl_b32 s{sT+4}, s{sT+4}, 10
s_and_b32 s{sT+5}, s{sW}, 1
s_lshl_b32 s{sT+5}, s{sT+5}, 5
s_add_u32 s{sT+4}, s{sT+4}, s{sT+5}
v_add_u32 v{VCF}, s{sT+4}, v{VWR}
v_lshrrev_b32 v{T}, 1, v{L4}
v_lshl_add_u32 v1, v{T}, 10, v1
v_lshl_add_u32 v{VDW}, v{T}, 6, v{VDW}
v_and_b32 v{T}, 1, v{L4}
v_lshl_add_u32 v1, v{T}, 8, v1
v_lshl_add_u32 v1, v{T}, 5, v1
v_xor_b32 v{T}, 32, v1
v_add_u32 v{VRA}, s{sKM}, v1
v_add_u32 v{VRA+1}, s{sKM}, v{T}
v_add_u32 v{VRA+2}, s{sVM}, v1
v_add_u32 v{VRA+3}, s{sVM}, v{T}
v_add_u32 v{VRA+4}, {4*VSLOT}, v{VRA+2}
v_add_u32 v{VRA+5}, {4*VSLOT}, v{VRA+3}
v_add_u32 v{VFE}, {XB}, v1
v_add_u32 v{VFO}, {XB}, v{T}
v_bfe_u32 v{T}, v0, 2, 3
v_lshl_add_u32 v{VDW}, v{T}, 10, v{VDW}
v_and_b32 v{VPA}, 7, v0
v_lshlrev_b32 v{VPA}, 2, v{VPA}
v_lshrrev_b32 v1, 1, v{L23}
v_lshlrev_b32 v1, 4, v1
v_lshl_add_u32 v1, v{L23}, 12, v1
v_lshl_add_u32 v1, v{L3}, 6, v1
v_and_b32 v{VK}, 1, v{L4}
v_lshl_add_u32 v1, v{VK}, 5, v1
v_lshrrev_b32 v{VK}, 1, v{L4}
v_lshl_add_u32 v{VK}, v{VK}, 4, v1
; store voffsets (workgroups without an extra FFN pair send those stores out of range)
s_lshl_b32 s{sT+4}, s{sPAR}, 11
v_add_u32 v{VOA}, s{sT+4}, v{VL}
v_xor_b32 v{VOB}, 0x800, v{VOA}
s_cmp_lt_u32 s{sHEAD}, 22
s_cselect_b32 s{sT+4}, 0, 0x10000000
v_add_u32 v{VH1}, s{sT+4}, v{VOA}
v_or_b32 v1, s{sW}, v0
v_cmp_eq_u32 vcc, 0, v1
v_mov_b32 v1, 0x10000000
v_cndmask_b32 v{VONE}, v1, 0, vcc
; row-sum operand: ones in rows 0,1 mod 4; index picks k%4 in (0,1) / (2,3)
v_cmp_gt_u32 vcc, 2, v{L3}
v_mov_b32 v1, 0x3f803f80
v_mov_b32 v{T}, 0x44444444
v_cndmask_b32 v{SMA}, 0, v1, vcc
v_cndmask_b32 v{SMA+1}, 0, v1, vcc
v_cndmask_b32 v{SMA+2}, 0, v1, vcc
v_cndmask_b32 v{SMA+3}, 0, v1, vcc
v_cmp_eq_u32 vcc, 1, v{L3}
v_mov_b32 v{VIDX}, 0xeeeeeeee
v_cndmask_b32 v{VIDX}, v{T}, v{VIDX}, vcc""")
    for r in range(12): a(f"v_accvgpr_write_b32 a{CWA+r}, 0")
    for l in attn_init()[:24]: a(l)
    pg = f"""s_xor_b32 s{sT+4}, s{sROT}, 4
s_lshl_b32 s{sT+4}, s{sT+4}, 19
s_cmp_lt_u32 s{sW}, 2
s_cselect_b64 s[96:97], s[{sWQ}:{sWQ+1}], s[{sWS}:{sWS+1}]
s_cselect_b32 s{sT+4}, s{sT+4}, s{sHS0}
v_mov_b32 v252, s{sT+4}
global_load_dword v253, v252, s[96:97] sc1
s_cselect_b64 s[96:97], s[{sK}:{sK+1}], s[{sV}:{sV+1}]
v_mov_b32 v252, 0
global_load_dword v254, v252, s[96:97]""".split("\n") if c.pg & 1 else []
    i_ = next(i for i, l in enumerate(a.lines) if l.strip() == "@pg1")
    a.lines[i_:i_ + 1] = pg
    if c.tlb > 1:
        for d, off in ((sK, 0), (sV, 0), (sWS, f"s{sHS0}"), (sB2, 0), (sW2, 0), (sWS, f"s{sHB}"), (sWO, f"s{sRO}"), (sWS, f"s{sOS}"), (sWS, f"s{sOB}"), (sOUT, 0), (sXX, 0)):
            a(f"s_load_dword s101, s[{d}:{d+1}], {off}")
    return a.lines

def stat_stores():
    return [([], f"buffer_store_dwordx2 v[88:89], v1, {srd(sWS)}, s{sKO} offen sc1 ;tag=sst"),
            ([], f"buffer_store_dword v91, v{VONE}, {srd(sWS)}, s{sFLO} offen sc1 ;tag=sst")]
def row_stats(c):
    a = Asm()
    s0, s1, q0, q1 = RSV + 8, RSV + 9, RSV + 10, RSV + 11
    a(f"v_mov_b32 v{s0}, 0\nv_mov_b32 v{s1}, 0\nv_mov_b32 v{q0}, 0\nv_mov_b32 v{q1}, 0\nv_mov_b32 v1, 0x3f803f80")
    for e in range(4):
        a(f"v_dot2c_f32_bf16 v{s0}, v{RSV+e}, v1\nv_dot2c_f32_bf16 v{q0}, v{RSV+e}, v{RSV+e}")
        a(f"v_dot2c_f32_bf16 v{s1}, v{RSV+4+e}, v1\nv_dot2c_f32_bf16 v{q1}, v{RSV+4+e}, v{RSV+4+e}")
    a(f"""s_nop 2
v_permlane32_swap_b32 v{s0}, v{s1}
v_permlane32_swap_b32 v{q0}, v{q1}
v_add_f32 v{s0}, v{s0}, v{s1}
v_add_f32 v{q0}, v{q0}, v{q1}
v_mov_b32 v{s1}, v{s0}
v_mov_b32 v{q1}, v{q0}
v_permlane16_swap_b32 v{s0}, v{s1}
v_permlane16_swap_b32 v{q0}, v{q1}
v_add_f32 v{s0}, v{s0}, v{s1}
v_add_f32 v{q0}, v{q0}, v{q1}""")
    for sh in (8, 4, 2, 1):
        a(f"v_add_f32_dpp v{s0}, v{s0}, v{s0} row_ror:{sh} row_mask:0xf bank_mask:0xf\nv_add_f32_dpp v{q0}, v{q0}, v{q0} row_ror:{sh} row_mask:0xf bank_mask:0xf")
    a(f"""v_mul_f32 v88, {f2u(-1/512)}, v{s0}
v_mul_f32 v{q0}, {f2u(1/512)}, v{q0}
v_fma_f32 v{q0}, -v88, v88, v{q0}
v_max_f32 v{q0}, 0, v{q0}
v_add_f32 v{q0}, {f2u(1e-5)}, v{q0}
v_rsq_f32 v89, v{q0}
v_lshrrev_b32 v1, 5, v0
v_lshlrev_b32 v1, 3, v1
s_lshl_b32 s{sKO}, s{sKO}, 3
s_add_u32 s{sKO}, s{sKO}, {WS_RS}
v_mov_b32 v91, 0
v_mov_b32 v90, 1""")
    for i in range(8): a(f"v_lshlrev_b32 v{B1F+2*i}, 16, v{B1R[i//2]+(i&1)}\nv_and_b32 v{B1F+2*i+1}, 0xffff0000, v{B1R[i//2]+(i&1)}")
    return [l.strip() for l in a.lines]

def dma_x(kb):
    A, B = sT + 2, sT + 3
    g = []
    for qt in range(4):
        for s in range(2):
            pre = []
            if qt == 0 and s == 0:
                pre += [f"s_xor_b32 s{A}, s{sROT}, {kb}", f"s_lshl_b32 s{A}, s{A}, 7", f"s_lshl_b32 s{B}, s{sPAR}, 15",
                        f"s_add_u32 s{A}, s{A}, s{B}", f"s_xor_b32 s{B}, s{A}, 0x8000"]
            pre.append(f"s_add_u32 m0, s{sXB if qt & 1 else sXA}, {(kb & 1) * XSLOT + (qt >> 1) * 4096 + s * 960}")
            g.append((pre, f"buffer_load_dwordx4 v{VX1 if qt & 1 else VX0}, {srd(sX)}, s{B if qt >= 2 else A} offen offset:{s*64} lds ;tag=x{kb}"))
    return g
def dma_w(kb):
    A, B, C = sT + 4, sT + 5, sT + 6
    base = (kb % 3) * WSLOT
    g = []
    for i in range(4):
        s, t = i >> 1, i & 1
        if i == 0:
            pre = [f"s_xor_b32 s{C}, s{sROT}, {kb}", f"s_lshl_b32 s{A}, s{C}, 19", f"s_mul_i32 s{C}, s{C}, {64*2752}", f"s_add_u32 m0, s{sWM}, {base}"]
            so = A
        else:
            pre = [f"s_add_u32 s{B}, s{A}, {(32*s+4*t)*8192 - i*1024}"]; so = B
        g.append((pre, f"buffer_load_dwordx4 v{VWQ}, {srd(sWQ)}, s{so} offen offset:{i*1024} {WFL[1]} lds ;tag=w{kb}"))
    g.append(([f"s_add_u32 m0, s{sWM}, {base+4096}"], f"buffer_load_dwordx4 v{VW1}, {srd(sF0)}, s{C} offen lds ;tag=w{kb}"))
    g.append(([f"s_add_u32 m0, s{sWM}, {base+5120}"], f"buffer_load_dwordx4 v{VW1}, {srd(sF1)}, s{C} offen lds ;tag=w{kb}"))
    return g
WFL = ['', '']
def dma_kv(kind, tile, A=sT + 7):
    g = []
    for i in range(4):
        pre = [f"s_mov_b32 s{A}, {tile*16384}", f"s_add_u32 m0, s{sKM if kind=='K' else sVM}, {(tile%NS)*(KSLOT if kind=='K' else VSLOT)}"] if i == 0 else []
        g.append((pre, f"buffer_load_dwordx4 v{VD}, {srd(sK if kind=='K' else sV)}, s{A} offen offset:{i*1024} lds ;tag={kind}{tile}"))
    return g
def flat(g):
    out = []
    for pre, l in g: out += pre + [l]
    return out
def place_group(sc, g, lo, hi, sp=4, look=None):
    cur = lo
    for n_, (pre, l) in enumerate(g):
        start = cur
        h_ = hi - (len(g) - 1 - n_)
        l_ = min(cur + max(len(pre), sp if n_ else 1), h_)
        gp = sc.place_mem(l, l_, min(h_, l_ + look) if look is not None else h_)
        assert gp > start
        free = [x for x in range(start, gp) if not sc.sal[x]]
        free = [x for x in free if x > start or not any(m.startswith(("buffer_", "global_")) for m in sc.mem[x])]
        if len(free) < 1 and len(pre) == 1 and "m0" not in pre[0] and pre[0].startswith("s_") and not sc.sal[gp] and len(sc.mem[gp]) == 1:
            sc.sal[gp].append(pre[0])
        elif len(free) >= len(pre):
            for x, s_ in zip(free[-len(pre):] if pre else [], pre): sc.sal[x].append(s_)
        else:
            sc.post[gp - 1] += pre
        cur = gp
    return cur

def x_reads(kb):
    return [f"ds_read_b128 {ar(XF(kb,qt,s),4)}, v{VXR} offset:{(kb&1)*XSLOT+(qt*2+s)*1024}" for qt in range(4) for s in range(2)]
def w_off(kb, T, s, t):
    b = (kb % 3) * WSLOT
    return b + (2*s+t)*1024 + (T >> 1)*256 + (T & 1)*32 if T < 8 else b + 4096 + ((T-8) >> 1)*1024 + (2*s+t)*256 + (T & 1)*32
def w_reads(kb, T, n):
    return [f"ds_read_b64_tr_b16 {ar(WF(n,s)+2*t,2)}, v{VWR} offset:{w_off(kb,T,s,t)}" for s in range(2) for t in range(2)]
def c_reads(kb):
    out = []
    for j in range(3):
        for s in range(2):
            for t in range(2):
                if j < 2: out.append(f"ds_read_b64_tr_b16 {ar(CF(j,s)+2*t,2)}, v{VCQ} offset:{w_off(kb,j,s,t)}")
                else: out.append(f"ds_read_b64_tr_b16 {ar(CF(j,s)+2*t,2)}, v{VCF} offset:{w_off(kb,8,s,t)}")
    return out

CWR = [28, 88, 16, 20]
def s_count(name, off):
    return [f"s_lshl_b32 s{sT}, s{sQB}, 5", f"s_add_u32 s{sT}, s{sT}, {off}", f"s_mov_b32 s{sT+1}, 1", f"s_cmp_lg_u32 s{sW}, 0",
            f"s_cbranch_scc1 L_sc_{name}", f"s_atomic_add s{sT+1}, s[{sDBG}:{sDBG+1}], s{sT}", f"L_sc_{name}:"]
def hop(c, p="L_hop"):
    return ["s_mov_b64 exec, 0"] + sum(([f"s_cmp_eq_u32 s{sW}, {w}", f"s_cbranch_scc1 {p}{w}"] for w in range(3)), []) + [f"s_branch {p}3"] + ([".p2align 12"] if p == "L_hop" else []) + [f"{p}_back:", "s_mov_b64 exec, -1"]
def gemm1(c):
    L = setup_A(c) + ["@stamp first"] + setup_A2(c) + ["@stamp setup"] + (hop(c, "L_hoo") if c.hop and c.hop0 else [])
    g_ = side_loads() + dma_x(0)[2:] + dma_w(1) + dma_x(1)[:2]
    for n_ in range(len(g_) + 1):
        if n_ == c.RSC: L += row_stats(c)
        if n_ == c.hop: L += hop(c)
        L += flat(g_[n_:n_ + 1])
    L += ["@stamp issued", "@waitvm x0"] + x_reads(0) + ["@waitvm w0 lgkm0", "s_barrier", "@stamp b0 rt"]
    TORD = [0, 1, 2, 10, 3, 4, 5, 11, 6, 7, 8, 9]
    L += w_reads(0, TORD[0], 0) + w_reads(0, TORD[1], 1)
    sc = Sched()
    first = {}; last = {}; start = {}; cwg = {}
    for kb in range(8):
        start[kb] = sc.n()
        for n, T in enumerate(TORD if kb < 7 else [0, 1, 8, 10, 9, 2, 11, 3, 4, 5, 6, 7]):
            N = kb * 12 + n
            for nq, qt in enumerate(range(4 if T < 10 else 2)):
                if c.gzig == 2 and T < 10 and (T & 1): qt = 3 - qt
                for i_ in range(2):
                    s = i_ ^ (nq & 1) if c.gzig else i_
                    d = vr(ACC(T, qt), 4)
                    g = sc.add(f"{M16} {d}, {ar(WF(N,s),4)}, {ar(XF(kb,qt,s),4)}, {'0' if kb == 0 and i_ == 0 else d}")
                    first.setdefault(N, (g, T)); last[N] = g
            j_ = n - (4 if kb < 7 else 3)
            if 0 <= j_ < 3: cwg[(kb, j_)] = sc.add(f"{SMF} {ar(CWA+4*j_,4)}, {vr(SMA,4)}, {ar(CF(j_,0),8)}, v{VIDX}")
    start[8] = sc.n()
    bar = {kb: start[kb] - c.GBAR for kb in range(1, 9)}
    bar[0] = -1; bar[8] = start[8] - c.GBAR8
    CNT2 = f"s_lshl_b32 s{sT+7}, s{sQB}, 5"
    for kb in range(8):
        lo, hi = bar[kb] + 1, bar[kb + 1]
        sc.sal[hi] += [f"@waitvm {('sst,' if kb else '') + 'w%d' % (kb+1) if kb < 7 else 'K0'} lgkm0", "s_barrier"] + ([f"@stamp b{kb+1}"] if kb < 7 else [])
        grp = []
        if kb + 1 < 8 and kb <= c.XFULL: grp += dma_x(kb + 1)[2:]
        if kb + 2 < 8 and kb > c.XFULL and c.XFIRST: grp += dma_x(kb + 2)
        if kb == 0: grp += stat_stores()
        if kb == 2 and not c.sat & 1: grp += [([CNT2], f"buffer_atomic_add v90, v{VONE}, {srd(sDBG)}, s{sT+7} offen offset:4 sc1")]
        if kb == 2 and c.sat & 1:
            for n_, l in enumerate(s_count("a", 4)): sc.sal[lo + min(n_, 4)].append(l)
        if kb == c.STB: grp += [([CNT2], ST_LOAD)]
        if kb + 2 < 8: grp += dma_w(kb + 2) + (dma_x(kb + 2)[:2] if kb < c.XFULL else dma_x(kb + 2) if kb == c.XFULL or not c.XFIRST else [])
        if kb == 6: grp += dma_kv("K", 0, sT + 6) + dma_kv("K", 1, sT + 6)
        if kb == 7:
            sc.post[lo + 1] += CNT_OK.split("\n") + ["s_cbranch_scc0 L_spin_st", "L_ok_st:"]
            A = sT + 6
            grp += [([f"s_lshl_b32 s{A}, s{sQB}, 2", f"s_add_u32 s{A}, s{A}, s{sW}", f"s_lshl_b32 s{A}, s{A}, 9", f"s_add_u32 s{A}, s{A}, {WS_RS}"] if qt == 0 else [],
                     f"buffer_load_dwordx2 {vr(SX+4*qt,2)}, v{92 + (qt >> 1)}, {srd(sWS)}, s{A} offen offset:{(qt&1)*128} sc1") for qt in range(4)]
            grp += dma_kv("V", 0) + (dma_kv("K", 2) if c.K2 else []) + (touches(c) if c.TP == 0 else [])
        g0 = lo + max(c.GLO, 5 if kb == 2 and c.sat & 1 else 0) if kb else c.G0
        if kb == 0 and not c.RSC: sc.post[g0 - 1] += row_stats(c)
        cur = place_group(sc, grp, g0, hi - 1, sp=min(c.GSP if kb else c.GSP0, (hi - g0 - 8) // len(grp)))
        xlast = next((g for g in range(hi, lo, -1) if any(f"tag=x{kb+1}" in m for m in sc.mem[g])), lo)
        ops = []
        for n in range(12):
            N = kb * 12 + n
            if N >= 2: ops += [(l, max(lo, last[N - NWR] if N >= NWR else 0), min(first[N][0] - 5, hi - 4)) for l in w_reads(kb, first[N][1], N)]
        ops += [(l, max(lo, 0), cwg[(kb, n_ // 4)] - 5) for n_, l in enumerate(c_reads(kb))]
        if kb + 1 < 8:
            g = next(x for x in range(max(hi - 22, xlast + 1), sc.n()) if not sc.sal[x])
            sc.sal[g].append(f"@waitvm x{kb+1}")
            if c.hop == f"x{kb+1}": sc.post[g - 1] += hop(c)
            ops += [(l, g, hi - 3) for l in x_reads(kb + 1)]
        else:
            g = cwg[(7, 2)] + 6
            for j in range(3):
                sc.valu[g + 2 * j] += [f"v_accvgpr_read_b32 v{28+j}, a{CWA+4*j}"]
                sc.valu[g + 2 * j + 1] += [f"v_accvgpr_read_b32 v31, a{CWA+4*j+1}"]
                sc.valu[g + 2 * j + 2] += [f"v_add_f32 v{28+j}, v{28+j}, v31"]
            ops += [(f"ds_write_b32 v{VC0}, v28", g + 8, hi - 3), (f"ds_write_b32 v{VC0}, v29 offset:64", g + 8, hi - 3), (f"ds_write_b32 v{VC1}, v30", g + 8, hi - 3)]
            cs = math.log2(math.e) / math.sqrt(128.0)
            for qt in range(4): sc.valu[start[8] - 5 + qt].append(f"v_mul_f32 v{SX+4*qt+2}, {f2u(cs)}, v{SX+4*qt+1}")
        sc.place_edf(ops)
    place_group(sc, dma_kv("V", 1), bar[8] + 1, start[8] - 1, sp=5)
    ops = [(f"ds_read_b128 {vr(CWR[j],4)}, v{VCR} offset:{(8+j)*64}", bar[8] + 1, start[8] - 1) for j in range(4)]
    ops += [(l, bar[8] + 1, start[8] - 1) for l in k_reads(0)]
    sc.place_edf(ops)
    g = start[7]; ls = late_scalars(c)
    while ls:
        g = next(x for x in range(g + 1, start[8]) if not sc.sal[x])
        sc.sal[g].append(ls.pop(0))
        if ls and ls[0].startswith("s_addc"): sc.sal[g].append(ls.pop(0))
    print("gemm1 est cycles", sc.est(), file=sys.stderr)
    return L + sc.lines()

def touches(c, v=1, d0="a254", d1="a255"):
    if not c.touch: return []
    A, B = sT + 4, sT + 5
    return [([f"s_lshl_b32 s{A}, s2, 2", f"s_add_u32 s{A}, s{A}, s{sW}", f"s_lshl_b32 s{B}, s{A}, 5", f"s_sub_u32 s{B}, s{B}, s{sCT}",
              f"v_lshrrev_b32 v{v}, 1, v0", f"v_add_lshl_u32 v{v}, v{v}, s{B}, 7"], f"buffer_load_dword {d0}, v{v}, {srd(sWO)}, 0 offen"),
            ([f"s_mul_i32 s{B}, s{A}, 11", f"s_sub_u32 s{B}, s{B}, s{sCT}", f"v_min_u32 v{v}, 10, v0", f"v_add_lshl_u32 v{v}, v{v}, s{B}, 7"],
             f"buffer_load_dword {d1}, v{v}, {srd(sW2)}, 0 offen")]

def sprinkle(lines, groups, every):
    out = []; groups = list(groups); k = 0
    for l in lines:
        out.append(l); k += 1
        if groups and k >= every and not l.strip().startswith(("s_cmp", "v_cmp", "s_add", "s_cselect")):
            pre, v = groups.pop(0); out += pre + [v]; k = 0
    return out + flat(groups)

def b2_init(a, v=1):
    a(f"v_lshrrev_b32 v{v}, 4, v0\nv_lshlrev_b32 v{v}, 3, v{v}")
    for ct in range(4): a(f"buffer_load_dwordx2 {vr(B2R+2*ct,2)}, v{v}, {srd(sB2)}, 0 offen offset:{ct*32}")
def attn_init():
    out = [f"v_accvgpr_write_b32 a{LA(0)+r}, 0" for r in range(16)] + [f"v_accvgpr_write_b32 a{FH(0,0)+r}, 0" for r in range(8)]
    for i in range(8): out += [f"v_lshlrev_b32 v{FA+2*i}, 16, v{B2R+i}", f"v_and_b32 v{FA+2*i+1}, 0xffff0000, v{B2R+i}"]
    return out
B2R = FA + 8
def epi1(c):
    a = Asm()
    k1 = -2.0 * math.sqrt(2.0 / math.pi) * math.log2(math.e); k2 = k1 * 0.044715
    kk = f"s[{sT+2}:{sT+3}]"
    a(f"s_mov_b32 s{sT+2}, {f2u(k2)}\ns_mov_b32 s{sT+3}, {f2u(k1)}")
    items = [(T, qt, h, vr(ACC(T, qt) + 2 * h, 2)) for T in range(8, 12) for qt in range(4 if T < 10 else 2) for h in range(2)]
    for T, qt, h, r in items: a(f"v_pk_fma_f32 {r}, {vr(CWR[T-8]+2*h,2)}, {vr(SX+4*qt,2)}, {r} op_sel_hi:[1,0,1]")
    for T, qt, h, r in items: a(f"v_pk_fma_f32 {r}, {r}, {vr(SX+4*qt,2)}, {vr(B1F+(T-8)*4+2*h,2)} op_sel:[0,1,0] op_sel_hi:[1,1,1]")
    st = []
    for T0, q0 in ((8, 0), (8, 2), (10, 0)):
        regs_ = [ACC(T0 + t, q0 + q) + e for q in range(2) for t in range(2) for e in (0, 2)]
        prs = [(r, B1F + 2 * i) for i, r in enumerate(regs_)]
        for r, t in prs: a(f"v_pk_mul_f32 {vr(t,2)}, {vr(r,2)}, {vr(r,2)}")
        for r, t in prs: a(f"v_pk_fma_f32 {vr(t,2)}, {vr(t,2)}, {kk}, {kk} op_sel:[0,0,1] op_sel_hi:[1,0,1]")
        for r, t in prs: a(f"v_pk_mul_f32 {vr(t,2)}, {vr(t,2)}, {vr(r,2)}")
        for r, t in prs: a(f"v_exp_f32 v{t}, v{t}\nv_exp_f32 v{t+1}, v{t+1}")
        for r, t in prs: a(f"v_pk_add_f32 {vr(t,2)}, {vr(t,2)}, 1.0 op_sel_hi:[1,0]")
        for r, t in prs: a(f"v_rcp_f32 v{t}, v{t}\nv_rcp_f32 v{t+1}, v{t+1}")
        for r, t in prs: a(f"v_pk_mul_f32 {vr(t,2)}, {vr(t,2)}, {vr(r,2)}")
        for i, (r, t) in enumerate(prs): a(f"v_cvt_pk_bf16_f32 v{ACC(T0, q0 + i // 4) + i % 4}, v{t}, v{t+1}")
        vo = VH1 if T0 == 10 else (VOA if q0 < 2 else VOB)
        st = [([], f"buffer_store_dwordx4 {vr(ACC(T0,q0+q),4)}, v{vo}, {srd(sWS)}, s{sHS0 if T0 == 8 else sHS1} offen offset:{q*1024} {c.stflags} ;tag=hst") for q in range(2)]
        if (T0, q0) == (8, 0): a("@waitvm V0\ns_barrier")
        if T0 == 8:
            a(st[0][1])
            if q0:
                for T in (4, 5, 6, 7): a(f"ds_read_b128 {vr(96+4*T,4)}, v{VCR} offset:{T*64}")
            a(st[1][1])
            if q0:
                for T in (0, 1, 2, 3): a(f"ds_read_b128 {vr(96+4*T,4)}, v{VCR} offset:{T*64}")
    c.last_h = st
    a("@stamp gelu")
    return a.lines

def scalar_init(c):
    out = f"""s_mov_b32 s{sVO}, {3*16384}
s_lshl_b32 s{sFW}, s{sW}, 13
s_sub_u32 s{sFW}, s{sFW}, 0x8000
s_sub_u32 s{sFH}, s{sHB}, 0x1000
s_mov_b32 s{sLOOP}, 7
v_mov_b32 v{VPD}, 0x10000000""".split("\n")
    return out
def late_scalars(c):
    a = Asm()
    for l in scalar_init(c)[:-1]: a(l)
    RS_ = 0x80000 + 4 * c.PADW + c.PADR
    a(f"""s_mul_i32 s{sT}, s{sRT}, {RS_}
s_mul_i32 s{sT+1}, s{sW}, {c.PADW}
s_add_u32 s{sT}, s{sT}, s{sT+1}
s_add_u32 s{sT}, s{sT}, {WS_O}""")
    mk_srd(a, sOL, sWS, sWS + 1, f"s{sT}", 0x80000)
    a(f"""s_lshl_b32 s{sT}, s{sQB}, 2
s_add_u32 s{sT}, s{sT}, s{sW}
s_mul_i32 s{sT}, s{sT}, {RS_}
s_lshr_b32 s{sT+1}, s{sHEAD}, 3
s_mul_i32 s{sT+1}, s{sT+1}, {c.PADW}
s_add_u32 s{sT}, s{sT}, s{sT+1}
s_add_u32 s{sT}, s{sT}, {WS_O}""")
    mk_srd(a, sOT, sWS, sWS + 1, f"s{sT}", 0x80000)
    if c.recenter: a(f"s_mov_b32 s{sRC}, {c.recenter}")
    return [l.strip() for l in a.lines]
def f_zero():
    return [([f"s_add_u32 m0, s{sFM}, {i*4096}"], f"buffer_load_dwordx4 v{VPD}, {srd(sW2)}, 0 offen lds ;tag=fz") for i in range(2)]

def head(c, early):
    a = Asm()
    TQ = S0
    def weave(va, mf, mem=()):
        va = list(va); mem = list(mem); tot = sum(icost(l) for l in va); done = 0
        for n_, m in enumerate(mf):
            a(m)
            for _ in range(-(-len(mem) // (len(mf) - n_))):
                x = mem.pop(0)
                for l in ([x] if isinstance(x, str) else x[0] + [x[1]]): a(l)
            while va and done < tot * (n_ + 1) / len(mf): done += icost(va[0]); a(va.pop(0))
        for l in va: a(l)
    def corr(qt):
        it = [(T, h, vr(ACC(T, qt) + 2 * h, 2)) for T in range(8) for h in range(2)]
        for T, h, r in it: a(f"v_pk_fma_f32 {r}, {vr(96+4*T+2*h,2)}, {vr(SX+4*qt,2)}, {r} op_sel_hi:[1,0,1]")
        for T, h, r in it: a(f"v_pk_mul_f32 {r}, {r}, {vr(SX+4*qt+2,2)} op_sel_hi:[1,0]")
    def frag(qt):
        va = []
        for ks in range(4):
            t = TQ + 4 * ks; X, Y = ACC(2 * ks, qt), ACC(2 * ks + 1, qt)
            va += [f"v_cvt_pk_bf16_f32 v{t}, v{X}, v{X+1}", f"v_cvt_pk_bf16_f32 v{t+2}, v{Y}, v{Y+1}",
                   f"v_cvt_pk_bf16_f32 v{t+1}, v{X+2}, v{X+3}", f"v_cvt_pk_bf16_f32 v{t+3}, v{Y+2}, v{Y+3}"]
        for ks in range(4):
            t = TQ + 4 * ks
            va += [f"v_permlane16_swap_b32 v{t}, v{t+2}", f"v_permlane16_swap_b32 v{t+1}, v{t+3}"]
        return va + [f"v_accvgpr_write_b32 a{Q(qt,0)+e}, v{TQ+e}" for e in range(16)]
    def rowmax(qt):
        r = [S(qt, e // 4) + e % 4 for e in range(16)]; n = NEGM + 4 * qt
        va = []
        for k in range(0, 8, 2):
            for h, t in ((0, 88), (8, 89)):
                va.append(f"v_max3_f32 v{t}, v{r[h+k]}, v{r[h+k+1]}, v{t}" if k else f"v_max_f32 v{t}, v{r[h]}, v{r[h+1]}")
        va += ["v_max_f32 v88, v88, v89", "v_mov_b32 v89, v88", "v_permlane32_swap_b32 v88, v89", "v_max_f32 v88, v88, v89",
               "v_mov_b32 v89, v88", "v_permlane16_swap_b32 v88, v89", "v_max_f32 v88, v88, v89", "v_floor_f32 v88, v88",
               f"v_sub_f32 v{n}, -v88, s{sSH}"]
        return va + [f"v_add_f32 v{x}, v{x}, v{n}" for x in r] + [f"v_mov_b32 v{n+k}, v{n}" for k in (1, 2, 3)]
    def mix(x, y):
        out = []; x = list(x); y = list(y); nx, ny = len(x), len(y)
        while x or y:
            if x and (not y or (nx - len(x)) * ny <= (ny - len(y)) * nx): out.append(x.pop(0))
            else: out.append(y.pop(0))
        return out
    vob = [f"v_lshrrev_b32 v{VOB}, 3, v0", f"v_lshl_add_u32 v{VOB}, s{sW}, 4, v{VOB}", f"v_and_b32 v{VOA}, 7, v0",
           f"v_lshlrev_b32 v{VOA}, 4, v{VOA}", f"v_lshl_add_u32 v{VOB}, v{VOB}, 10, v{VOA}"]
    sm = lambda n, upto=32: sum((sm_ops(n, p) for p in range(upto)), [])
    qk = lambda n: qk_mfmas(n, czero=True)
    pv = lambda n: [smf(n)] + pv_mfmas(n)
    vr0 = v_reads(0)
    ini = attn_init()
    a(scalar_init(c)[-1])
    if c.smtest:
        a(f"v_and_b32 v88, 15, v0\nv_cmp_gt_u32 vcc, {c.smtest}, v88")
        for r in range(4): a(f"v_cndmask_b32 v{SMA+r}, 0, v{SMA+r}, vcc")
    b = Asm(); b2_init(b, 90)
    for l in flat(c.last_h) + b.lines[:2]: a(l)
    corr(0)
    for l in frag(0): a(l)
    a("@stamp h0")
    corr(1); weave(frag(1), qk(0), mix(f_zero() + b.lines[2:], vr0[:14]))
    a("@stamp h1")
    kv3 = ([] if c.K2 else dma_kv("K", 2)) + dma_kv("V", 2) + dma_kv("K", 3) + dma_kv("V", 3)
    bar = f"""s_lshl_b32 s{sT}, s{sQB}, 5
v_mov_b32 v90, 1
@waitvm K1,V1,hst,fz lgkm0
s_barrier
buffer_atomic_add v90, v{VONE}, {srd(sDBG)}, s{sT} offen sc1
@stamp hb"""
    if c.sat & 2: bar = "\n".join(s_count("b", 0)[:4] + ["@waitvm K1,V1,hst,fz lgkm0", "s_barrier"] + s_count("b", 0)[4:])
    corr(2); weave(mix(rowmax(0), frag(2)), qk(1), vr0[14:] if c.HB == 2 else vr0[14:28])
    a("@stamp h2")
    corr(3)
    if c.HB == 2: a(bar)
    weave(mix(rowmax(1) + ini[24:], sm(0) + frag(3)), qk(2), ([] if c.HB == 2 else vr0[28:]) + sum(([x, "; "] for x in kv3[:len(kv3) // 2]), []))
    a("@stamp h3")
    if c.HB == 3: a(bar)
    weave(mix(["s_nop 0"] * 6 + rowmax(2), sm(1)), qk(3) + pv(0), sum(([x, "; ", "; ", "; "] for x in kv3[len(kv3) // 2:]), []))
    a("@stamp h4")
    h_ = len(early) // 2
    weave(mix(rowmax(3), sm(2)), pv(1), early[:h_] + (touches(c, 91, 'v92', 'v93') if c.TP else []))
    weave(vob + sm(3, 32 - c.SM0), pv(2), early[h_:])
    return a.lines

SLOTS = {"X": ("V", XB)}
for _i in range(4): SLOTS[f"K{_i}"] = ("K", _i * KSLOT); SLOTS[f"V{_i}"] = ("V", VBASE + _i * VSLOT)
FAKE = [False]
SIG = {n: n for n in range(32)}
def make_pairs(c):
    Ls = list(range(c.NR, 32)); Hs = list(range(c.NR)); NP = 16 - c.ND // 2
    nll = len(Ls) - NP; assert nll >= 0
    llpos = {c.LL0 + c.LLS * k_ for k_ in range(nll)}; assert all(p < NP for p in llpos)
    return [(Hs.pop(0), Hs.pop(0)) if p >= NP else (Ls.pop(0), Ls.pop(0)) if p in llpos else (Ls.pop(0), Hs.pop(0)) for p in range(16)]
def t_wload(n, slot):
    A = sT + 2
    kind, base = SLOTS[slot]
    pre = [f"s_xor_b32 s{A}, s{sRO}, {SIG[n] << 15}",
           f"s_add_u32 m0, s{sKM if kind == 'K' else sVM}, {base if kind == 'K' else base - VBASE}"]
    g = []
    for i in range(4):
        if i: pre = [f"s_add_u32 s{A}, s{A}, 7168"]
        g.append((pre, f"buffer_load_dwordx4 v{VDW}, {srd(sWO)}, s{A} offen offset:{i*1024} {WFL[0]} lds ;tag=t{n}"))
    return g
def t_bload(c, n, dst):
    B = sT + 3
    return [([f"s_xor_b32 s{B}, s{sOB}, {((SIG[n] >> 2) << 14) + ((SIG[n] & 3) << 10) + (j << 12)}"],
             f"buffer_load_dwordx4 {dst(j)}, v{VL}, {srd(sOL)}, s{B} offen {c.ldflags} ;tag=b{n}") for j in range(4)]
def t_reads(slot, dst):
    kind, base = SLOTS[slot]
    r = VRA + (4 if slot == "X" else 0 if kind == "K" else 2)
    off = 0 if slot == "X" else base if kind == "K" else base - VBASE
    return [f"ds_read_b64_tr_b16 {dst(ct, t)}, v{r + (ct & 1)} offset:{off + t*2048 + (ct>>1)*512}" for ct in range(4) for t in range(2)]
def quads(k, b): return [(k, b + 4 * i) for i in range(4)]
HOLD = [quads("v", 112), quads("a", 240), quads("a", 208), quads("a", 224), [("a", 128), ("a", 132), ("a", 160), ("a", 164)]] + \
       [quads("a", b) for b in (64, 80, 96, 112, 136)] + [[("a", 152), ("a", 156), ("a", 168), ("a", 172)]] + \
       [quads("a", 176), quads("v", 96), quads("a", 192)] + [quads("a", b) for b in (0, 16, 32, 48)]
def hold(i): return lambda ct, t=None: rr(HOLD[i][ct], 4) if t is None else rr(HOLD[i][ct], 2, 2 * t)
class WStream:
    def __init__(self): self.slot = {}; self.nxt = 0; self.held = 0
    def fill(self, sl):
        if self.nxt >= 32: return []
        n = self.nxt; self.nxt += 1; self.slot[n] = sl
        return t_wload(n, sl)
    def take(self):
        n = self.held; self.held += 1
        return f"@waitvm t{n}", t_reads(self.slot[n], hold(n)), f"@dep {HOLD[n][3][0]}{HOLD[n][3][1] + 3}", self.slot[n]
FAF = 208
def FH(buf, i): return 224 + buf * 8 + i * 4
def f_loads(c, gam, buf, nk):
    g = []
    for i in range(nk):
        g.append(([f"s_add_u32 s{sFW}, s{sFW}, 0x8000", f"s_add_u32 m0, s{sFM}, {buf*8192 + i*4096}"],
                  f"buffer_load_dwordx4 v{VDW}, {srd(sW2)}, s{sFW} offen {c.fwflags} lds ;tag=f{gam}"))
        g.append(([f"s_add_u32 s{sFH}, s{sFH}, 0x1000"],
                  f"buffer_load_dwordx4 {ar(FH(buf,i),4)}, v{VL}, {srd(sWS)}, s{sFH} offen {c.fhflags} ;tag=f{gam}"))
    return g
def f_part(buf, nk, g):
    it = [(2*g, 0), (2*g, 1), (2*g+1, 1), (2*g+1, 0)] if nk == 2 else [(ct, 0) for ct in range(4)]
    FB = 240 if g else FAF
    rd = [f"ds_read_b64_tr_b16 {ar(FB+4*n+2*t,2)}, v{VFO if ct & 1 else VFE} offset:{buf*8192 + i*4096 + t*2048 + (ct>>1)*512}" for n, (ct, i) in enumerate(it) for t in range(2)]
    return rd, [f"{M16} {vr(FA+4*ct,4)}, {ar(FB+4*n,4)}, {ar(FH(buf,i),4)}, {vr(FA+4*ct,4)}" for n, (ct, i) in enumerate(it)]
def f_group(k):
    if k == 0: return (-1, 0, 2)
    if k == 29: return (21, 1, 1)
    if 1 <= k <= 28 and (k - 1) % 4: return (3 * ((k - 1) // 4) + (k - 1) % 4 - 1, 1 if (k - 1) % 4 == 2 else 0, 2)
    return None

def spin(name, load, okcmp, back, slp=4):
    return f"""L_spin_{name}:
s_mov_b32 s{sT+6}, 0x40000
L_spin_{name}_l:
{load}
s_waitcnt vmcnt(0)
{okcmp}
s_cbranch_scc1 {back}
s_sub_u32 s{sT+6}, s{sT+6}, 1
s_cmp_lg_u32 s{sT+6}, 0
s_cbranch_scc1 L_spin_{name}_l
s_branch {back}""".split("\n")
CNT_LOAD = f"buffer_load_dword v{VPD}, off, {srd(sDBG)}, s{sT+7} sc1"
ST_LOAD = f"buffer_load_dword v{VPD}, off, {srd(sDBG)}, s{sT+7} offset:4 sc1"
CNT_OK = f"v_cmp_le_u32 vcc, 32, v{VPD}\ns_nop 0\ns_cmp_eq_u64 vcc, -1"
FL_LOAD = f"buffer_load_dword v{VPD}, v{VPA}, {srd(sWS)}, s{sT+7} offen sc1"
FL_OK = f"v_cmp_eq_u32 vcc, 1, v{VPD}\ns_nop 0\ns_cmp_eq_u64 vcc, -1"

QKO = [(i, 3 - k if i & 1 else k) for i in range(4) for k in range(4)]
PVO = [(dt, u ^ (dt & 1)) for dt in range(8) for u in range(2)]
def k_reads(T):
    return [f"ds_read_b128 {ar(KF(i,ks),4)}, v{VK} offset:{(T % NS)*KSLOT + i*1024 + ks*256}" for i, ks in QKO]
def v_reads(T):
    return [f"ds_read_b64_tr_b16 {rr(VF(T,u,dt),2,2*t)}, v{VV} offset:{(T % NS)*VSLOT + (2*u+t)*1024 + (dt>>1)*256 + (dt&1)*32}" for dt, u in PVO for t in range(2)]
def qk_mfmas(n, czero=False):
    qt = n & 3
    return [f"{M16} {vr(S(n,i),4)}, {ar(KF(i,ks),4)}, {ar(Q(qt,ks),4)}, " + (vr(S(n,i),4) if g & 3 else "0" if czero else vr(NEGM+qt*4,4)) for g, (i, ks) in enumerate(QKO)]
def pv_mfmas(n):
    qt = n & 3
    return [f"{M16} {vr(O(dt,qt),4)}, {rr(VF(n>>2,u,dt),4)}, {vr(P(n)+4*u,4)}, " + (vr(O(dt,qt),4) if n >= 4 or g & 1 else "0") for g, (dt, u) in enumerate(PVO)]
def smf(n): return f"{SMF} {ar(LA(n&3),4)}, {vr(SMA,4)}, {vr(P(n),8)}, v{VIDX}"
def sm_ops(n, p):
    e = p // 2
    if p < 0 or e >= 16: return []
    r = S(n, e // 4) + e % 4
    if p % 2 == 0: return [f"v_exp_f32 v{r}, v{r}"]
    return [f"v_cvt_pk_bf16_f32 v{P(n)+e//2}, v{r-1}, v{r}"] if e % 2 else []
def o_finish(c, qt, packed):
    L_, RC, MX = NEGM + 4 * qt, NEGM + 4 * qt + 2, NEGM + 4 * qt + 1
    va = [[f"v_accvgpr_read_b32 v{L_}, a{LA(qt)}", f"v_accvgpr_read_b32 v{RC}, a{LA(qt)+1}", f"v_add_f32 v{L_}, v{L_}, v{RC}", f"v_rcp_f32 v{RC}, v{L_}"], [], [], []]
    st = []
    for m in range(4):
        src = [O(2*m, qt) + e for e in range(4)] + [O(2*m+1, qt) + e for e in range(4)]
        for i in range(0, 8, 2):
            r = src[i]
            va[m].append(f"v_maximum3_f32 v{MX}, |v{r}|, |v{r+1}|, " + (f"v{MX}" if m or i else "0"))
            if packed: va[m].append(f"v_pk_mul_f32 {vr(r,2)}, {vr(r,2)}, {vr(RC,2)} op_sel_hi:[1,0]")
            else: va[m] += [f"v_mul_f32 v{r}, v{r}, v{RC}", f"v_mul_f32 v{r+1}, v{r+1}, v{RC}"]
        va[m] += [f"v_cvt_pk_bf16_f32 v{src[e]}, v{src[2*e]}, v{src[2*e+1]}" for e in range(4)]
        st.append(f"buffer_store_dwordx4 {vr(src[0],4)}, v{VL}, {srd(sOT)}, s{sT} offen offset:{m*1024} {c.stflags} ;tag=ost")
    va[0].insert(0, f"s_xor_b32 s{sT}, s{sOS}, {qt << 12}")
    return va, st

def attention(c, ws):
    sc = Sched(); idx = {}; fidx = {}
    for G in range(2 * 32 + c.BAR + 1, 129 * 32):
        n, g = divmod(G, 32)
        m = (qk_mfmas(n)[g] if n < 128 else None) if g < 16 else pv_mfmas(n - 1)[g - 16]
        idx[G] = sc.add(m)
        for nn in (n - 1, n):
            if nn < 128: sc.valu[idx[G]] += sm_ops(nn, G - 32 * nn - c.SM0)
        if g == 15: sc.add(smf(n - 1))
        k = G // 128
        fc = f_group(k - 1) if k >= 1 else (0, 0, 2)
        if fc:
            for h in range(fc[2]):
                if G - 128 * k == c.FPOS[h]:
                    for n_, m in enumerate(f_part(fc[1], fc[2], h)[1]): fidx[(k, h, n_)] = sc.add(m)
    def spread(lines, g0, g1):
        gaps = list(range(g0, g1 + 1)); lines = list(lines)
        tot = sum(icost(l) for l in lines) + sum(sc.cost(x) for x in gaps); acc_ = 0; last = g0
        for n_, x in enumerate(gaps):
            acc_ += sc.cost(x)
            while lines and (acc_ < tot * (n_ + 1) / len(gaps) - 2 or n_ == len(gaps) - 1):
                acc_ += icost(lines[0]); sc.valu[x].append(lines.pop(0)); last = x
        return last
    for k in range(1, 32):
        B = 128 * k
        lo = idx[B - 64 + c.BAR + 1]; nb = idx[B + 64 + c.BAR]; hi = nb - 4; end = nb - 1
        fg = f_group(k); p = (k - 1) % 4
        tags = f"V{k+1},K{k+1}" + (f",f{fg[0]}" if fg else "")
        if k < 31: sc.sal[nb] += [f"@waitvm {tags} lgkm0", "s_barrier"]
        if k <= 29: sc.post[idx[B + 32] - 1].append(f"@seg {k}")
        if k >= 30:
            for q_ in (-32, 32, 64, 96)[:2 if k == 30 else 4]: sc.post[idx[B + q_] - 1].append(f"@stamp p{(B + q_) // 32}")
        if c.recenter and k <= 29:
            for nm, p_, g_ in (("a", 0, 64), ("b", 1, 0)):
                if p == p_:
                    sc.sal[idx[B + g_] - 2].append(f"s_bitcmp1_b32 s{sRC}, s{sLOOP}")
                    sc.post[idx[B + g_] - 1] += [f"s_cbranch_scc1 L_rc_{nm}", f"L_rc_{nm}_back:"]
        if fg and k <= 28: place_group(sc, f_loads(c, *fg), idx[B], end)
        elif k <= 29 and c.codepf2: place_group(sc, [([], f"global_load_dword v{VOA}, v{VCP}, s[90:91]")], idx[B], end)
        if p == 1 and k <= 28: sc.post[idx[B - 3]] += CNT_OK.split("\n") + ["s_cbranch_scc0 L_spin_cnt", "L_ok_cnt:"]
        dm = []
        if k <= 29:
            for kind, sM, SL, d in (("K", sKM, KSLOT, sK), ("V", sVM, VSLOT, sV)):
                dm += [(([f"s_add_u32 s{sVO}, s{sVO}, 0x4000"] if kind == "K" else []) + [f"s_add_u32 m0, s{sM}, {((k+3)%NS)*SL}"] if i == 0 else [],
                        f"buffer_load_dwordx4 v{VD}, {srd(d)}, s{sVO} offen offset:{i*1024} {c.kvflags} lds ;tag={kind}{k+3}") for i in range(4)]
            if p == 0: dm = [([f"s_lshl_b32 s{sT+7}, s{sGX}, 5"], CNT_LOAD)] + dm
            place_group(sc, dm, idx[B + c.DPOS], end, sp=c.DSP)
        ops = [(l, max(lo, idx[B - 32 + g]), idx[B + g] - c.MG) for g, l in enumerate(k_reads(k))]
        ops += [(l, lo if PVO[n_ // 2][0] < NVX else idx[B + 16 + n_ // 2], idx[B + 48 + n_ // 2] - c.MG) for n_, l in enumerate(v_reads(k))]
        fc = f_group(k - 1)
        if fc:
            for h in range(fc[2]):
                ops += [(l, idx[B], min(fidx[(k, h, n_ // 2)] - c.MG, hi)) for n_, l in enumerate(f_part(fc[1], fc[2], h)[0])]
        if k == 29:
            sc.place_edf(ops); ops = []
            for pre, l in dm + [([f"s_bitcmp1_b32 s{sRC}, s{sLOOP}", "s_cbranch_scc1 L_rc_a"], "L_rc_a_back:")]:
                for x in range(idx[B + 32], nb):
                    for lst in (sc.sal[x], sc.mem[x], sc.post[x]):
                        for y in pre + [l]:
                            if y in lst: lst.remove(y)
        def hold_in(g0, g1, vm, sp=4):
            w, rd, dep, sl = ws.take()
            g0 = next(x for x in range(g0, g1) if not sc.sal[x]); sc.sal[g0].append(w)
            ops.extend((l, g0, g1) for l in rd)
            g2 = next(x for x in range(max(g1 + 3, vm), end) if not sc.sal[x]); sc.sal[g2].append(dep)
            return place_group(sc, ws.fill(sl), g2, end, sp, 1 if sp == 2 else None)
        pg = [([], f"buffer_load_dword v{90+i}, off, {srd(d)}, {o} sc1") for i, (d, o) in enumerate(((sOT, f"s{sOS}"), (sOL, f"s{sOB}"), (sOUT, 0)))] if c.pg & 2 else []
        if k == 29: place_group(sc, pg + f_loads(c, *fg) + ws.fill("K0") + ws.fill("V0"), idx[B + (33 if pg else 40)], end, sp=3 if pg else 4)
        xt = [([f"s_lshl_b32 s{sT+4}, s{sW}, 11", f"s_add_u32 m0, s{sT+4}, {XT}"], f"buffer_load_dwordx4 v{VOB}, {srd(sXX)}, 0 offen lds ;tag=xt"),
              ([f"s_mov_b32 s{sT+4}, 7168"], f"buffer_load_dwordx4 v{VOB}, {srd(sXX)}, s{sT+4} offen offset:1024 lds ;tag=xt")]
        if k == 30:
            cur = place_group(sc, ws.fill("K1") + ws.fill("V1") + xt, lo, end)
            for g0, g1 in c.H30W: cur = hold_in(idx[B + g0], idx[B + g1], cur, c.HSP)
        if k == 31:
            cur = place_group(sc, ws.fill("K2") + ws.fill("V2") + ws.fill("X"), lo, end)
            g_ = next(x for x in range(idx[B + 13], end) if not sc.sal[x]); sc.sal[g_] += ["s_waitcnt lgkmcnt(0)", "s_barrier"]
            cur = place_group(sc, ws.fill("K3"), max(cur, g_), end)
            for g0, g1 in c.H31W: cur = hold_in(idx[B + g0], idx[B + g1], cur)
        if ops: sc.place_edf(ops)
    if c.NE: sc.sal[idx[(129 - c.NE) * 32] - 1].append("s_setreg_imm32_b32 hwreg(HW_REG_MODE, 4, 2), 3")
    for qt in range(c.NE):
        n = 129 - c.NE + qt
        va, st = o_finish(c, qt, False)
        g0, g1 = idx[32 * n + (3 if n < 128 else 12)], idx[32 * n + 31]
        for m in range(4):
            a0 = g0 + (g1 - g0) * m // 4; a1 = g0 + (g1 - g0) * (m + 1) // 4 - 1
            spread(va[m], a0, a1); sc.mem[a1 + 1].append(st[m])
    ge = lambda x: max(16, 16 - sc.budget(x) + sc.cost(x)) if sc.mf[x] else sc.cost(x)
    pe = [sum(ge(x) - (16 if sc.mf[x] else 0) for x in range(idx[32 * n], idx[32 * n + 31] + 1)) for n in list(range(37, 53)) + list(range(117, 129))]
    print("attention est cycles", sc.est(), "overflow per period", pe, file=sys.stderr)
    g4 = idx[128]
    if c.estonly: return pe
    early = sum((sc.mem[x] for x in range(g4)), [])
    assert all(l.startswith("ds_read") for l in early) and not any(sc.sal[x] or sc.post[x] for x in range(g4))
    for lst in (sc.mf, sc.sal, sc.mem, sc.valu, sc.post): del lst[:g4]
    return early, sc.lines()

class Pump:
    def __init__(self, a, ws): self.a = a; self.ws = ws; self.pend = []; self.nxt = None
    def busy(self): return bool(self.pend or self.nxt)
    def __call__(self, nload, limit):
        a, ws = self.a, self.ws
        for _ in range(nload):
            if not self.pend:
                prev = self.nxt; self.nxt = None
                if ws.held < limit:
                    w, rd, dep, sl = ws.take(); a(w)
                    for l in rd: a(l)
                    self.nxt = (dep, sl)
                if prev:
                    g = ws.fill(prev[1])
                    if g: a(prev[0]); self.pend.extend(g)
            if self.pend:
                pre, l = self.pend.pop(0)
                for x in pre + [l]: a(x)

def gate(c):
    G = FA; TT = 48
    b = Asm()
    b(f"""v_lshrrev_b32 v31, 4, v0
v_lshlrev_b32 v31, 3, v31
v_and_b32 v30, 15, v0
s_lshl_b32 s{sT}, s{sW}, 11
s_add_u32 s{sT}, s{sT}, {XT}
v_lshl_add_u32 v29, v30, 7, v31
v_add_u32 v29, s{sT}, v29
v_mul_u32_u24 v30, 144, v30
v_add3_u32 v30, v30, v31, s{sKM}
v_lshrrev_b32 v31, 3, v0
v_mul_u32_u24 v31, 144, v31
v_and_b32 v28, 7, v0
v_lshl_add_u32 v31, v28, 4, v31
v_add_u32 v31, s{sKM}, v31""")
    for i in range(16): b(f"v_mul_f32 v{TT+i}, {f2u(-math.log2(math.e))}, v{G+i}")
    for i in range(16): b(f"v_exp_f32 v{TT+i}, v{TT+i}")
    for i in range(0, 16, 2): b(f"v_pk_add_f32 {vr(TT+i,2)}, {vr(TT+i,2)}, 1.0 op_sel_hi:[1,0]")
    for i in range(16): b(f"v_rcp_f32 v{TT+i}, v{TT+i}")
    for i in range(0, 16, 2): b(f"v_pk_mul_f32 {vr(G+i,2)}, {vr(G+i,2)}, {vr(TT+i,2)}")
    return b.lines

def tail1(c, ws):
    a = Asm()
    T = 88; EX = S0
    pump = Pump(a, ws)
    if not c.NE: a("s_setreg_imm32_b32 hwreg(HW_REG_MODE, 4, 2), 3")
    pump(1, c.NB1)
    for qt in range(c.NE, 4):
        va, st = o_finish(c, qt, True)
        for m in range(4):
            for l in va[m] + [st[m]]: a(l)
    pump(c.NP0, c.NB1)
    if not c.early_gate:
        while pump.busy() or ws.held < c.NB1: pump(1, c.NB1)
    a(f"s_mov_b32 s{sT+4}, 0x100\ns_mov_b64 s[{sT+6}:{sT+7}], -1")
    for qt in range(4):
        for r in (NEGM + 4 * qt, NEGM + 4 * qt + 1, NEGM + 4 * qt + 2):
            a(f"v_cmp_class_f32 vcc, v{r}, s{sT+4}\ns_and_b64 s[{sT+6}:{sT+7}], s[{sT+6}:{sT+7}], vcc")
    a(f"s_cmp_eq_u64 s[{sT+6}:{sT+7}], -1\ns_cselect_b32 s{sT+4}, 0, 1")
    if c.force_fallback: a(f"s_mov_b32 s{sT+4}, 1")
    if c.nofb: a(f"s_mov_b32 s{sT+4}, 0")
    a(f"""s_lshl_b32 s{sT+5}, s{sW}, 2
s_add_u32 s{sT+5}, s{sT+5}, {FLBASE}
v_mov_b32 v{T}, s{sT+5}
v_mov_b32 v{T+1}, s{sT+4}
ds_write_b32 v{T}, v{T+1}
s_setreg_imm32_b32 hwreg(HW_REG_MODE, 4, 2), 0
v_mov_b32 v{EX+8}, {FLBASE}
v_mov_b32 v{EX+9}, 1
s_lshl_b32 s{sT+7}, s{sGX}, 8
s_add_u32 s{sT+7}, s{sT+7}, s{sKW}
s_add_u32 s{sT+7}, s{sT+7}, {WS_FL}""")
    if c.early_gate:
        for l in gate(c): a(l)
    if c.hop:
        for l in hop(c, "L_hoq"): a(l)
    while pump.busy() or ws.held < c.NB1: pump(1, c.NB1)
    a("@waitvm ost lgkm0")
    return [l.strip() for l in a.lines]

def tail2(c, ws):
    a = Asm()
    SA = 128; AB = S0; XR = 16; G = FA; TT = 48; EX = AB
    def acc(ct, j): return SA + (j * 4 + ct) * 4
    def abuf(n): return lambda ct, t=None: vr(AB + (n & 1) * 16 + ct * 4, 4) if t is None else vr(AB + (n & 1) * 16 + ct * 4 + 2 * t, 2)
    def emit(ls):
        for l in ls: a(l)
    pump = Pump(a, ws)
    a(f"""L_bar1:
s_barrier
ds_read_b128 {vr(EX+12,4)}, v{EX+8}
v_or3_b32 v{EX+12}, v{EX+12}, v{EX+13}, v{EX+14}
v_or_b32 v{EX+12}, v{EX+12}, v{EX+15}
v_readfirstlane_b32 s{sT+4}, v{EX+12}
s_andn2_b32 s{sT+4}, s{sT+4}, s{sTRY}
s_cmp_lg_u32 s{sT+4}, 0
s_cbranch_scc1 L_fallback
""")
    a("@stamp bar1 rt")
    if c.flagmode == "store": a(f"buffer_store_dword v{EX+9}, v{VONE}, {srd(sWS)}, s{sFLO} offen sc1")
    elif c.flagmode == "vatomic": a(f"buffer_atomic_add v{EX+9}, v{VONE}, {srd(sWS)}, s{sFLO} offen sc1")
    elif c.flagmode == "satomic":
        a(f"""s_cmp_lg_u32 s{sW}, 0
s_cbranch_scc1 L_noflag
s_mov_b32 s{sT+4}, 1
s_atomic_add s{sT+4}, s[{sWS}:{sWS+1}], s{sFLO}
L_noflag:""")
    pump.pend.extend(ws.fill("V3"))
    if not c.early_gate:
        for n_, l in enumerate(gate(c)):
            if n_ % 8 == 0: pump(1, c.NR)
            a(l)
    while ws.held < c.NR: pump(1, c.NR)
    a(FL_LOAD.replace("sc1", c.pollflags))
    while pump.busy(): pump(1, c.NR)
    a("@waitvm xt")
    for ct in range(4): a(f"ds_read_b64 {vr(XR+2*ct,2)}, v29 offset:{ct*32}")
    a("@stamp held rt")
    a(FL_OK + ("\ns_cbranch_scc0 L_spin_fl" if c.flagmode != "none" else "") + "\nL_ok_fl:")
    a("@stamp flags rt")
    if c.chain2:
        ND = c.ND; assert ND % 2 == 0 and 4 <= ND <= 8
        NP = 16 - ND // 2; pairs = make_pairs(c)
        units = [(p, j) for p in range(16) for j in range(4) if j or p < NP] + [(p, 0) for p in range(NP, 16)]
        NU = len(units); NM = NU - ND // 2
        frag = lambda u, h: vr(192 + ((2 * u + h) % 16) * 4, 4)
        def uload(u):
            p, j = units[u]
            return [t_bload(c, pairs[p][h], lambda jj: frag(u, h))[j] for h in range(2)]
        free = [quads("v", AB), quads("v", AB + 16)]; home = {n: HOLD[n] for n in range(c.NR)}
        def areads(n):
            home[n] = free.pop(0)
            return t_reads(ws.slot[n], lambda ct, t: rr(home[n][ct], 2, 2 * t))
        for u in range(c.DU0): emit(flat(uload(u)))
        a(f"@waitvm t{pairs[0][0]}")
        emit(areads(pairs[0][0]))
        L = a.lines
        sc = Sched(); nu = c.DU0; wq = []; pstart = {}; rds = []
        for u, (p, j) in enumerate(units):
            st = sc.n()
            for ct in range(4):
                for k_ in range(2):
                    h = k_ ^ (ct & 1); d = vr(acc(ct, j), 4)
                    sc.add(f"{M16} {d}, {rr(home[pairs[p][h]][ct], 4)}, {frag(u, h)}, {'0' if p == 0 and k_ == 0 else d}")
            if p not in pstart:
                pstart[p] = st
                if p: free.extend(home[n] for n in pairs[p - 1] if p - 1 < NP)
                for n in pairs[p]:
                    if n >= c.NR and ws.nxt < 32:
                        sc.sal[st].append(f"@dep {home[n][3][0]}{home[n][3][1] + 3}"); wq += ws.fill(ws.slot[n])
                nl_ = [n for n in pairs[p + 1] if n >= c.NR] if p < 15 else []
                if nl_:
                    assert not any(f"tag=t{n}" == l.split(";")[-1] for _, l in wq for n in nl_), p
                    sc.sal[st].append("@waitvm " + ",".join(f"t{n}" for n in nl_))
                    rds.append((st, sum((areads(n) for n in nl_), [])))
                if p in (1, 5, 9): sc.sal[st].append(f"@stamp o{2*p if p > 5 else 2*p-1}")
            grp = []
            if nu < NU and nu <= u + c.DU: grp += uload(nu); nu += 1
            if wq and u % c.WSK != c.WSK - 1: grp.append(wq.pop(0))
            elif wq: pass
            elif nu < NU and nu <= u + c.DU: grp += uload(nu); nu += 1
            if grp: place_group(sc, grp, st, st + 7, sp=(1 if len(grp) > 3 else 2))
        assert not wq
        for st, rd in rds: sc.place_edf([(l, st, st + 27) for l in rd])
        st0 = {32: 8 * NM}; N1 = "x"; st0["x"] = pstart[NP]
    else:
        RING = [192, 208, 224, 240]
        ND = c.ND; N1 = 32 - max(ND, 3)
        assert c.DO < len(RING) and ND <= 8
        lds_steps = list(range(c.NR, 32)); held_steps = list(range(c.NR))
        steps = []; li = hi_ = 0
        for i in range(32):
            if li < len(lds_steps) and (li * N1 <= i * len(lds_steps) or hi_ >= c.NR - (32 - N1)): steps.append(lds_steps[li]); li += 1
            else: steps.append(held_steps[hi_]); hi_ += 1
        lpos = {n: k_ for k_, n in enumerate(lds_steps)}
        assert steps[0] in lpos and all(n < c.NR for n in steps[N1:]) and 0 in steps[:24] and 1 in steps[:24]
        def ring(i): return lambda j: vr(RING[i % (c.DO + 1)] + 4 * j, 4) if j or i < 32 - ND else rr((HOLD[0] + HOLD[1])[i - 32 + ND], 4)
        def bload(i):
            g = t_bload(c, steps[i], ring(i))
            return g if i < 32 - ND else g[1:]
        for i in range(c.DO0): emit(flat(bload(i)))
        a(f"@waitvm t{steps[0]}")
        emit(t_reads(ws.slot[steps[0]], abuf(0)))
        L = a.lines
        sc = Sched(); st0 = []
        def mf(i, ct, j):
            n = steps[i]; A = abuf(lpos[n]) if n in lpos else hold(n); d = vr(acc(ct, j), 4)
            return sc.add(f"{M16} {d}, {A(ct)}, {ring(i)(j)}, {'0' if i == 0 else d}")
        for i in range(32):
            st0.append(sc.n())
            order = [(ct, j) for ct in range(4) for j in range(4)] if i < 31 else [(ct, j) for j in (1, 2, 3, 0) for ct in range(4)]
            for ct, j in order:
                if j or i < 32 - ND: mf(i, ct, j)
        st0.append(sc.n())
        for i in range(32 - ND, 32):
            for ct in range(4): mf(i, ct, 0)
        nb = c.DO0
        wq = []
        dq = [t_bload(c, steps[i], ring(i))[0] for i in range(32 - ND, 32)]
        for i, n in enumerate(steps):
            st, en = st0[i], st0[i + 1] - 1
            grp = []
            if nb < 32 and nb <= i + c.DO: grp += bload(nb); nb += 1
            elif nb == 32: k_ = -(-len(dq) // (32 - i)); grp += dq[:k_]; dq = dq[k_:]
            if n in lpos and ws.nxt < 32:
                sc.sal[st].append(f"@dep v{AB + (lpos[n] & 1) * 16 + 15}")
                wq += ws.fill(ws.slot[n])
            k_ = min(len(wq), c.WPS)
            grp += wq[:k_]; wq = wq[k_:]
            if not k_ and nb < 32 and nb <= i + c.DO: grp += bload(nb); nb += 1
            if i in (1, 9, 18): sc.sal[st].append(f"@stamp o{i}")
            if grp: place_group(sc, grp, st, en, sp=(1 if len(grp) > 6 else 2 if len(grp) > 4 else 3))
            if i + 1 < 32 and steps[i + 1] in lpos:
                assert not any(f"tag=t{steps[i+1]}" == l.split(";")[-1] for _, l in wq + grp), i
                sc.sal[st].append(f"@waitvm t{steps[i+1]}")
                cur = st
                for l in t_reads(ws.slot[steps[i + 1]], abuf(lpos[steps[i + 1]])): cur = sc.place_mem(l, cur, en - 1)
        assert not wq and not dq
    b = Asm()
    for j in range(1, 4):
        b(f"""s_add_u32 s{sT}, s{sVM}, {(j-1)*VSLOT}
v_add_u32 v{EX+j-1}, s{sT}, v{VL}
s_xor_b32 s{sT}, s{sW}, {j}
s_mul_i32 s{sT}, s{sT}, {VCH}
s_add_u32 s{sT}, s{sT}, {VBASE+(j-1)*VSLOT}
v_add_u32 v{EX+4+j-1}, s{sT}, v{VL}""")
    XU = EX + 16
    for i in range(8): b(f"v_lshlrev_b32 v{XU+2*i}, 16, v{XR+i}\nv_and_b32 v{XU+2*i+1}, 0xffff0000, v{XR+i}")
    for n_, l in enumerate(b.lines): sc.valu[st0[N1] + n_].append(l.strip())
    wr = [f"ds_write_b128 v{EX+j-1}, {vr(acc(ct,j),4)} offset:{ct*1024}" for j in range(1, 4) for ct in range(4)]
    rd = [f"ds_read_b128 {vr(acc(ct,j),4)}, v{EX+4+j-1} offset:{ct*1024}" for ct in range(4) for j in range(1, 4)]
    a = Asm()
    if ND >= 4:
        g = st0[32] - (10 if c.chain2 else 4)
        for n_, l in enumerate(wr):
            if c.chain2 and n_ in (4, 8): g = max(g, st0[32] - (4 if n_ == 4 else -2))
            sc.mem[g].append(l); g += 1
        g = min(g + 3, sc.n() - 1)
        sc.sal[g] += ["@stamp oproj rt", "s_waitcnt lgkmcnt(0)", "s_barrier"]
        for l in rd: sc.mem[g].append(l); g = min(g + 1, sc.n() - 1)
    else:
        a("@stamp oproj rt")
        emit(wr + ["s_waitcnt lgkmcnt(0)", "s_barrier"] + rd)
    L += sc.lines()
    for j in (2, 3):
        for ct in range(4):
            for h in (0, 2): a(f"v_pk_add_f32 {vr(acc(ct,1)+h,2)}, {vr(acc(ct,1)+h,2)}, {vr(acc(ct,j)+h,2)}")
    for cp in (0, 2):
        it = [(acc(ct, 0) + h, acc(ct, 1) + h, 4 * ct + h) for ct in (cp, cp + 1) for h in (0, 2)]
        for r, p, o in it: a(f"v_pk_add_f32 {vr(r,2)}, {vr(r,2)}, {vr(p,2)}")
        for r, p, o in it: a(f"v_pk_fma_f32 {vr(r,2)}, {vr(r,2)}, {vr(G+o,2)}, {vr(XU+o,2)}")
        for r, p, o in it: a(f"v_cvt_pk_bf16_f32 v{XR+o//2}, v{r}, v{r+1}")
        for ct in (cp, cp + 1): a(f"ds_write_b64 v30, {vr(XR+2*ct,2)} offset:{ct*32}")
    a(f"s_mov_b32 s{sT}, 8192")
    for i in range(2): a(f"ds_read_b128 {vr(SA+4*i,4)}, v31 offset:{i*8*144}")
    for i in range(2): a(f"buffer_store_dwordx4 {vr(SA+4*i,4)}, v{VOB}, {srd(sOUT)}, {'s%d' % sT if i else 0} offen {c.outflags}")
    return L + a.lines

def fallback(c, early):
    a = Asm()
    T = 88; U = P0
    def emit(ls):
        for l in ls: a(l)
    def reads(ls):
        for i in range(0, len(ls), 8): emit(ls[i:i + 8] + ["s_waitcnt lgkmcnt(0)"])
    a(f"L_fallback:\ns_mov_b32 s{sTRY}, 1\ns_mov_b32 s{sRC}, 0\ns_mov_b32 s{sLOOP}, 0")
    for qt in range(4): a(f"v_mov_b32 v{T+qt}, 0xff800000")
    a(f"""L_fb_loop:
s_waitcnt vmcnt(0) lgkmcnt(0)
s_barrier
s_mov_b32 m0, s{sKM}
s_nop 0""")
    for i in range(4): a(f"buffer_load_dwordx4 v{VD}, {srd(sK)}, s{sLOOP} offen offset:{i*1024} lds")
    a("s_waitcnt vmcnt(0)\ns_barrier")
    reads(k_reads(0))
    for qt in range(4): emit(qk_mfmas(qt, True))
    a("s_nop 7")
    for qt in range(4):
        for e in range(0, 16, 2): a(f"v_max3_f32 v{T+qt}, v{T+qt}, v{S(qt,e//4)+e%4}, v{S(qt,e//4)+e%4+1}")
    a(f"s_add_u32 s{sLOOP}, s{sLOOP}, 0x4000\ns_cmp_lt_u32 s{sLOOP}, 0x80000\ns_cbranch_scc1 L_fb_loop")
    for sw in ("v_permlane32_swap_b32", "v_permlane16_swap_b32"):
        for qt in range(4): a(f"v_mov_b32 v{U+qt}, v{T+qt}")
        for qt in range(4): a(f"{sw} v{T+qt}, v{U+qt}")
        for qt in range(4): a(f"v_max_f32 v{T+qt}, v{T+qt}, v{U+qt}")
    a("s_barrier")
    for t in range(4): emit(flat(dma_kv("K", t) + dma_kv("V", t)))
    b2_init(a)
    emit(scalar_init(c) + flat(f_zero()))
    a("s_waitcnt vmcnt(0)\ns_barrier")
    reads(k_reads(0) + v_reads(0))
    emit(attn_init())
    for qt in range(4):
        for k in range(4): a(f"v_sub_f32 v{NEGM+qt*4+k}, 0, v{T+qt}")
    for qt in range(4): emit(qk_mfmas(qt))
    for qt in range(4):
        for p in range(32 if qt < 3 else 32 - c.SM0): emit(sm_ops(qt, p))
        if qt < 3: emit([smf(qt)] + pv_mfmas(qt))
    a("s_barrier")
    reads(early)
    a("s_nop 7\ns_branch L_attn")
    return a.lines

def recenter(c):
    a = Asm()
    for nm, qs in (("a", (2, 3)), ("b", (0, 1))):
        a(f"L_rc_{nm}:\ns_mov_b32 s{sT+6}, -120\ns_setreg_imm32_b32 hwreg(HW_REG_MODE, 4, 2), 3")
        for op in ("v_accvgpr_read_b32 v{x}, a{l}", "v_accvgpr_read_b32 v{y}, a{l1}", "v_add_f32 v{x}, v{x}, v{y}", "v_frexp_exp_i32_f32 v{f}, v{x}",
                   "v_sub_u32 v{f}, %d, v{f}" % (1 - int(c.shift)), "v_med3_i32 v{f}, v{f}, 0, s%d" % (sT + 6), "v_cvt_f32_i32 v{y}, v{f}",
                   "v_ldexp_f32 v{x}, v{x}, v{f}", "v_ldexp_f32 v{f}, 1.0, v{f}", "v_accvgpr_write_b32 a{l}, v{x}", "v_accvgpr_write_b32 a{l1}, 0",
                   "v_add_f32 v{n}, v{n}, v{y}", "v_add_f32 v{n1}, v{n1}, v{y}", "v_add_f32 v{n2}, v{n2}, v{y}", "v_add_f32 v{n3}, v{n3}, v{y}"):
            for qt in qs:
                n = NEGM + 4 * qt; h = qt & 1
                a(op.format(f=88 + h, x=90 + h, y=92 + h, l=LA(qt), l1=LA(qt) + 1, n=n, n1=n + 1, n2=n + 2, n3=n + 3))
        for qt in qs:
            sel = "op_sel:[0,1] op_sel_hi:[1,1]" if qt & 1 else "op_sel_hi:[1,0]"
            for dt in range(8):
                for h in (0, 2): a(f"v_pk_mul_f32 {vr(O(dt,qt)+h,2)}, {vr(O(dt,qt)+h,2)}, v[88:89] {sel}")
        a(f"s_setreg_imm32_b32 hwreg(HW_REG_MODE, 4, 2), 0\ns_branch L_rc_{nm}_back")
    return [l.strip() for l in a.lines]

def resolve_deps(lines):
    return [f"v_cmp_eq_u32 vcc, {l.split()[1]}, {l.split()[1]} ;dep" if l.startswith("@dep") else l for l in lines]

def kernel_A(c):
    ws = WStream(); FAKE[0] = c.fakew; WFL[:] = [c.woflags, c.wqflags]
    if c.chain2 and c.adj:
        for p, pr in enumerate(make_pairs(c)):
            for h, n in enumerate(pr): SIG[n] = 2 * p + h if c.adj == 1 else (p & 3) + 4 * h + 8 * (p >> 2)
    early, att = attention(c, ws)
    L = gemm1(c) + ["@stamp gemm_end rt"] + epi1(c) + head(c, early) + ["@stamp loop_start rt", "L_attn:"] + att
    L += ["@stamp loop_end rt"] + tail1(c, ws) + tail2(c, ws)
    L, _, _ = auto_wait(resolve_deps([l.strip() for l in L]))
    L = fix_hazards(L)
    LB = []
    if c.trace:
        for t in salu_trace(L, {"s2": c.trace[0], "rfl": c.trace[1]}): print(t, file=sys.stderr)
    pos = {int(l.split()[1]): i for i, l in enumerate(L) if l.startswith("@seg")}
    k0, k1 = 1, 29
    core = lambda l: l.split()[0] if l.startswith("@") else l.split(";")[0].strip()
    def split(ls):
        out = []; w = {}
        for l in ls:
            if l.startswith("s_waitcnt"):
                for n_, v in _w.findall(l): w[n_] = min(int(v), w.get(n_, 99))
            else: out.append((l, w)); w = {}
        assert not w
        return out
    V = L; first = True
    while True:
        pos = {int(l.split()[1]): i for i, l in enumerate(V) if l.startswith("@seg")}
        trips = [split(V[pos[k]:pos[k + 4]]) for k in range(k0, k1, 4)]
        for t in trips: assert [core(x[0]) for x in t] == [core(x[0]) for x in trips[2]]
        W = []
        for col in zip(*(trips[2:3] if first else trips)):
            w = {}
            for _, x in col:
                for n_, v in x.items(): w[n_] = min(v, w.get(n_, 99))
            W.append(w)
        first = False
        U = V[:pos[k0]]
        for t in trips:
            for (l, _), w in zip(t, W):
                if w: U.append("s_waitcnt " + " ".join(f"{n_}({v})" for n_, v in sorted(w.items(), reverse=True)))
                U.append(l.replace("@chk", "@waitvm"))
        U += [l.replace("@chk", "@waitvm") for l in V[pos[k1]:]]
        V = auto_wait(U, keep=True)[0]
        if [l for l in V if not l.startswith("@")] == [l for l in U if not l.startswith("@")]: break
    L = V
    V = [l for l in V if not l.endswith(";dep")]
    assert not check_hazards(V), check_hazards(V)[:5]
    assert not check_dead_loads(V), check_dead_loads(V)[:5]
    L = [l for l in L if not l.endswith(";dep")]
    pos = {int(l.split()[1]): i for i, l in enumerate(L) if l.startswith("@seg")}
    body = [core(l) for l in L[pos[9]:pos[13]] if not l.startswith("@")]
    im = [i for i, l in enumerate(body) if l.startswith("v_mfma")]
    j = max(i for i, l in enumerate(body) if l.startswith(("s_add", "s_min", "s_mul", "s_xor", "s_lshl", "s_cmp", "s_csel", "s_and", "s_bitcmp")))
    cand = [i for i in im if i > j and not body[i + 1].startswith("s_")]
    body.insert(cand[1] + 1, f"s_cmp_lg_u32 s{sLOOP}, 0"); body.insert(cand[0] + 1, f"s_sub_u32 s{sLOOP}, s{sLOOP}, 1")
    out = L[:pos[k0]] + ["@seg 1", "L_loop:"] + body + ["s_cbranch_scc1 L_loop", "L_loop_end:"] + L[pos[k1]:]
    a = Asm()
    a("s_cmp_ge_u32 s2, 256\ns_cbranch_scc1 L_endA")
    if c.scr == 1: a("s_lshr_b32 s3, s2, 3\ns_and_b32 s3, s3, 7\ns_xor_b32 s2, s2, s3\ns_lshr_b32 s3, s2, 6\ns_xor_b32 s2, s2, s3")
    if c.scr == 2: a("s_and_b32 s3, s2, 7\ns_lshl_b32 s3, s3, 3\ns_bfe_u32 s4, s2, 0x30003\ns_and_b32 s2, s2, 0xc0\ns_or_b32 s2, s2, s3\ns_or_b32 s2, s2, s4")
    stamp = Stamps()
    stamp(c, a, "start", True)
    for l in out:
        if l.startswith("@stamp"): stamp(c, a, l.split()[1], len(l.split()) > 2)
        elif l.startswith("@seg"): stamp(c, a, "seg" + l.split()[1], l.split()[1] in ("1", "29"))
        elif l.startswith("@"): continue
        else: a(l.split(";tag")[0].rstrip())
    if c.diag:
        stamp(c, a, "final"); a("s_waitcnt vmcnt(0)"); stamp(c, a, "end", True); stamp.out(c, a, WS_ST, sWS, sW)
    if c.probe:
        stamp(c, a, "end")
        a(f"""s_nop 1
v_readlane_b32 s52, v{VDG}, 0
v_readlane_b32 s53, v{VDG}, 1
s_memrealtime s[96:97]
s_waitcnt lgkmcnt(0)
s_sub_u32 s52, s53, s52
s_mul_i32 s52, s52, 4
s_min_u32 s52, s52, 100000
s_mov_b32 s53, s96
L_probe:
s_memrealtime s[96:97]
s_waitcnt lgkmcnt(0)
s_sub_u32 s54, s96, s53
s_cmp_lt_u32 s54, s52
s_cbranch_scc1 L_probe""")
    a("L_endA:\ns_endpgm")
    if c.recenter: LB += fix_hazards(recenter(c))
    for n_, l in enumerate(body):
        if l.startswith(("s_cmp", "s_bitcmp")):
            for m_ in body[n_ + 1:] + ["s_cbranch"]:
                if m_.startswith(("s_cbranch", "s_cselect")): break
                assert not m_.startswith(("s_add", "s_sub", "s_min", "s_lshl", "s_xor", "s_and", "s_cmp", "s_bitcmp")), (l, m_)
    for l in LB: a(l.split(";tag")[0].rstrip())
    for l in spin("st", ST_LOAD, CNT_OK, "L_ok_st") + spin("cnt", CNT_LOAD, CNT_OK, "L_ok_cnt") + spin("fl", FL_LOAD.replace("sc1", c.pollflags), FL_OK, "L_ok_fl", c.slp): a(l)
    for l in fix_hazards([l.strip() for l in fallback(c, early)]): a(l.split(";tag")[0].rstrip())
    a("L_last:\ns_endpgm")
    return a.lines
import re
_w = re.compile(r"(vmcnt|lgkmcnt)\((\d+)\)")

def gen(c):
    A = kernel_A(c)
    a = Asm()
    k = NAME + "_kernel"
    a(f"; @launch grid=(256,1,1) block=(256,1,1) lds={LDS_A}")
    a('.amdgcn_target "amdgcn-amd-amdhsa--gfx950"\n.text')
    if c.hop: a(".p2align 12")
    a(f".globl {k}\n.p2align 8\n.type {k},@function\n{k}:")
    a.lines += A
    a('.section .rodata,"a"\n.p2align 6')
    a(kdesc(k, 512, 256))
    if c.hop:
        rc = ["L_rc_a", "L_rc_b"] if c.recenter else []
        ses = [("L_hoq", "L_hoq_back", "L_endA", [])]
        if c.hop0: ses += [("L_hop", "L_hop_back", c.hop0, rc[c.hop0rc:]), ("L_hoo", c.hop0, "L_hoq_back", rc[:c.hop0rc])]
        else: ses += [("L_hop", "L_hop_back", "L_hoq_back", rc)]
        t, n = page_hooks(a.text(), c.align, ses)
        print("page hooks", n, file=sys.stderr)
        return t
    return align8(a.text(), c.align) if c.align else a.text()

if __name__ == "__main__":
    kw = {}
    for s in sys.argv[2:]:
        k, v = s.split("=", 1); kw[k] = eval(v)
    open(sys.argv[1], "w").write(gen(Cfg(**kw)))
```

```python
import re

class Asm:
    def __init__(self):
        self.lines = []
    def __call__(self, s):
        for ln in s.split("\n"):
            ln = ln.strip()
            if ln:
                self.lines.append(ln if ln.endswith(":") or ln.startswith(".") or ln.startswith(";") else "    " + ln)
    def text(self):
        return "\n".join(self.lines) + "\n"

def vr(b, n=1, k="v"):
    return f"{k}{b}" if n == 1 else f"{k}[{b}:{b+n-1}]"
def ar(b, n=1):
    return vr(b, n, "a")

def kdesc(name, nvgpr, accum, nsgpr=102):
    return f""".amdhsa_kernel {name}
  .amdhsa_next_free_vgpr {nvgpr}
  .amdhsa_next_free_sgpr {nsgpr}
  .amdhsa_accum_offset {accum}
  .amdhsa_group_segment_fixed_size 0
  .amdhsa_kernarg_size 104
  .amdhsa_user_sgpr_count 2
  .amdhsa_user_sgpr_kernarg_segment_ptr 1
  .amdhsa_system_sgpr_workgroup_id_x 1
.end_amdhsa_kernel"""

_reg = re.compile(r"\b([va])(?:(\d+)|\[(\d+):(\d+)\])")
def regs(tok):
    out = []
    for m in _reg.finditer(tok):
        k = m.group(1)
        if m.group(2) is not None: out.append((k, int(m.group(2))))
        else: out += [(k, i) for i in range(int(m.group(3)), int(m.group(4)) + 1)]
    return out

_sreg = re.compile(r"\b(?:s(\d+)|s\[(\d+):(\d+)\]|(vcc))")
def sregs(tok):
    out = set()
    for m in _sreg.finditer(tok):
        if m.group(1): out.add(int(m.group(1)))
        elif m.group(2): out |= set(range(int(m.group(2)), int(m.group(3)) + 1))
        else: out.add("vcc")
    return out

TRANS = ("v_exp_f32", "v_log_f32", "v_rcp_f32", "v_rsq_f32", "v_sqrt_f32", "v_sin_f32", "v_cos_f32")
def parse(line):
    line = line.split(";")[0].strip()
    if not line or line.endswith(":") or line.startswith((".", "@")): return None
    parts = line.split(None, 1)
    op = parts[0]; ops = [o.strip() for o in parts[1].split(",")] if len(parts) > 1 else []
    d = dict(op=op, line=line, w=[], r=[], kind="other", states=1)
    if op == "s_nop": d["states"] = int(ops[0], 0) + 1
    if op.startswith("v_smfmac"):
        d["kind"] = "mfma"; d["w"] = regs(ops[0]); d["A"] = regs(ops[1]) + regs(ops[3]); d["B"] = regs(ops[2]); d["C"] = regs(ops[0])
        d["r"] = d["A"] + d["B"] + d["C"]; d["passes"] = 8
    elif op.startswith("v_mfma"):
        d["kind"] = "mfma"; d["w"] = regs(ops[0]); d["A"] = regs(ops[1]); d["B"] = regs(ops[2]); d["C"] = regs(ops[3])
        d["r"] = d["A"] + d["B"] + d["C"]
        d["passes"] = 8 if "32x32x16" in op else 4 if "16x16x32" in op else 16
    elif op.startswith("v_"):
        d["kind"] = "valu"
        if op.startswith("v_cmp") or op.startswith("v_readfirstlane") or op.startswith("v_readlane"):
            d["r"] = sum((regs(o) for o in ops[1:]), [])
        else:
            d["w"] = regs(ops[0]); d["r"] = sum((regs(o) for o in ops[1:]), [])
            if op.startswith(("v_fmac", "v_dot2c", "v_permlane", "v_writelane")): d["r"] += d["w"]
            if op.startswith("v_permlane"): d["w"] = d["w"] + regs(ops[1])
        d["trans"] = op.startswith(TRANS)
        d["dot"] = op.startswith("v_dot")
    elif op.startswith("ds_read"):
        d["kind"] = "mem"; d["w"] = regs(ops[0]); d["r"] = regs(ops[1])
    elif op.startswith("ds_"):
        d["kind"] = "mem"; d["r"] = sum((regs(o) for o in ops), [])
    elif op.startswith(("buffer_load", "global_load")):
        d["kind"] = "mem"
        if " lds" in line or "_lds_" in op: d["r"] = sum((regs(o) for o in ops), [])
        else: d["w"] = regs(ops[0]); d["r"] = sum((regs(o) for o in ops[1:]), [])
    elif op.startswith(("buffer_store", "global_store", "buffer_atomic", "global_atomic")):
        d["kind"] = "mem"; d["r"] = sum((regs(o) for o in ops), []); d["store"] = True
        d["wide"] = "x4" in op or "x3" in op
        d["data"] = regs(ops[0]) if op.startswith("buffer") else regs(ops[1])
    return d

def check_hazards(lines, window=24, only_last=False):
    ins = [p for p in map(parse, lines) if p]
    probs = []
    for i, c in enumerate(ins):
        if only_last and i != len(ins) - 1: continue
        dist = 0
        for j in range(i - 1, max(-1, i - window - 1), -1):
            p = ins[j]
            need = 0
            pw, cr, cw = set(p["w"]), set(c["r"]), set(c["w"])
            if p["kind"] == "mfma":
                n = {4: 8, 8: 12, 16: 20}[p["passes"]]
                if c["kind"] == "mfma":
                    if pw & (set(c["A"]) | set(c["B"])): need = n
                    elif pw & set(c["C"]):
                        need = 0 if (p["w"] == c["C"] and p["passes"] == c["passes"]) else n - 2
                    elif pw & cw and p["w"] != c["w"]: need = n - 2
                elif c["kind"] in ("valu", "mem"):
                    if pw & (cr | cw): need = n
                if c["kind"] == "valu" and set(p["C"]) & cw: need = max(need, {4: 3, 8: 7, 16: 15}[p["passes"]])
            elif p["kind"] == "valu":
                if c["kind"] == "mfma" and pw & cr: need = 3 if p.get("dot") else 2
                if c["kind"] == "valu":
                    if p.get("trans") and pw & cr: need = max(need, 1)
                    if c["op"].startswith("v_permlane") and pw & cr: need = max(need, 2)
                    if c["op"].startswith(("v_readfirstlane", "v_readlane")) and pw & cr: need = max(need, 1)
                    if "dpp" in c["line"] or "row_" in c["line"] or "quad_perm" in c["line"]:
                        if pw & cr: need = max(need, 2)
                    if "sdwa" in p["op"] and "dst_sel:DWORD" not in p["line"] and pw & (cr | cw): need = max(need, 1)
                    if p.get("dot") and pw & (cr | cw):
                        same = p["op"] == c["op"]
                        srcs = c["line"].split(",")
                        if not (same and c["op"].startswith("v_dot2c") and not (pw & set(sum((regs(o) for o in srcs[1:]), [])))) and \
                           not (same and len(srcs) == 4 and not (pw & set(regs(srcs[1]) + regs(srcs[2])))):
                            need = max(need, 3)
                if c["kind"] == "mem" and p.get("dot") and pw & cr: need = max(need, 3)
            elif p["kind"] == "mem" and p.get("store") and p.get("wide"):
                if set(p["data"]) & cw: need = 2 if c["kind"] == "valu" else 1
            if p["op"].startswith("v_add_co") and c["op"].startswith("v_addc_co"): need = max(need, 2)
            if p["kind"] == "valu" and p["op"].startswith(("v_cmp", "v_readfirstlane", "v_readlane")):
                dst = sregs(p["line"].split(None, 1)[1].split(",")[0])
                src = sregs(",".join(c["line"].split(None, 1)[1].split(",")[(0 if c["kind"] == "mem" else 1):])) if " " in c["line"] else set()
                if dst & src:
                    if c["kind"] == "valu": need = max(need, 2)
                    elif c["kind"] == "mem": need = max(need, 5)
                    else: need = max(need, 1)
            if p["op"].startswith("s_") and "m0" in p["line"].split(",")[0] and c["kind"] == "mem" and (" lds" in c["line"] or "_lds_" in c["op"]):
                need = max(need, 1)
            if need > dist:
                probs.append(f"need {need} have {dist}: [{p['line']}] -> [{c['line']}]")
            dist += p["states"]
            if dist > 20: break
    return probs

def icost(l):
    op = l.split()[0]
    if op.startswith(TRANS) or op.startswith(("buffer_", "global_", "v_permlane")): return 8
    if op.startswith("s_"): return 0
    return 4

class Sched:
    def __init__(self):
        self.mf = []; self.sal = []; self.mem = []; self.valu = []; self.post = []
    def add(self, mfma):
        self.mf.append(mfma); self.sal.append([]); self.mem.append([]); self.valu.append([]); self.post.append([])
        return len(self.mf) - 1
    def n(self): return len(self.mf)
    def budget(self, g):
        m = self.mf[g]
        return 4 if (m and m.startswith("v_smfmac")) else 8
    def cost(self, g):
        c = sum(icost(l) for l in self.mem[g] + self.valu[g])
        if len(self.mem[g]) >= 2 and not self.valu[g]: c += 4
        return c + 4 * max(0, len([x for x in self.sal[g] if not x.startswith(('@stamp', '@seg')) and not x.endswith(':')]) - 1) + 4 * len([x for x in self.post[g] if not x.startswith('@') and not x.endswith(':')])
    def place_mem(self, line, lo, hi=None):
        hi = self.n() - 1 if hi is None else min(hi, self.n() - 1)
        assert lo <= hi, (line, lo, hi)
        w = icost(line)
        for g in range(lo, hi + 1):
            if not self.mem[g] and self.cost(g) + w <= self.budget(g):
                self.mem[g].append(line); return g
        g = min(range(lo, hi + 1), key=lambda g: (len(self.mem[g]), self.cost(g) - self.budget(g), g))
        self.mem[g].append(line); return g
    def place_edf(self, ops):
        todo = {i: o for i, o in enumerate(ops)}
        for i, (l, lo, hi) in todo.items(): assert lo <= hi, (l, lo, hi)
        g0 = min(o[1] for o in ops); g1 = max(o[2] for o in ops)
        res = {}; used = {}
        passes = [lambda g: not self.mem[g] and not used.get(g) and self.cost(g) + 4 <= self.budget(g),
                  lambda g: not self.mem[g] and not used.get(g),
                  lambda g: len(self.mem[g]) + used.get(g, 0) < 2, lambda g: len(self.mem[g]) + used.get(g, 0) < 3, lambda g: True]
        for ok in passes:
            for g in range(g0, g1 + 1):
                if not ok(g): continue
                av = sorted((o[2], i) for i, o in todo.items() if o[1] <= g <= o[2])
                if av: i = av[0][1]; todo.pop(i); res[i] = g; used[g] = used.get(g, 0) + 1
        assert not todo
        same = {}
        for i, o in enumerate(ops): same.setdefault(o[1:], []).append(i)
        for ids in same.values():
            for i, g in zip(ids, sorted(res[i] for i in ids)): res[i] = g
        for i in sorted(res): self.mem[res[i]].append(ops[i][0])
        return res
    def est(self):
        return sum((max(16, 16 - self.budget(g) + self.cost(g)) if self.mf[g] else self.cost(g)) for g in range(self.n()))
    def lines(self):
        out = []
        for g in range(self.n()):
            if self.mf[g]: out.append(self.mf[g])
            out += self.sal[g] + self.mem[g] + self.valu[g] + self.post[g]
        return out

_wait = re.compile(r"(vmcnt|lgkmcnt)\((\d+)\)")
def auto_wait(lines, pend_lds=None, pend_vm=None, keep=False):
    lds = list(pend_lds or []); vm = list(pend_vm or [])
    out = []
    def hoist(kind, k):
        pos = len(out); kk = k
        j = len(out) - 1
        while j >= 0:
            if out[j].startswith("@"): j -= 1; continue
            p = parse(out[j])
            if p is None or out[j].split()[0] in ("s_barrier", "s_cbranch_scc1", "s_cbranch_scc0", "s_branch"): break
            if p["kind"] == "mfma":
                pos = j + 1; k = kk; break
            isl = p["op"].startswith("ds_"); isv = p["op"].startswith(("buffer_", "global_"))
            if (kind == "lgkmcnt" and isl) or (kind == "vmcnt" and isv):
                kk -= 1
                if kk < 0: break
            if len(out) - j > 6: break
            j -= 1
        if pos < len(out) and out[pos].startswith("s_waitcnt") and kind not in out[pos]:
            out[pos] = out[pos] + f" {kind}({k})"
        elif pos < len(out) and out[pos].startswith("s_waitcnt"):
            old = int(dict(_wait.findall(out[pos]))[kind])
            out[pos] = out[pos].replace(f"{kind}({old})", f"{kind}({min(old,k)})")
        else:
            out.insert(pos, f"s_waitcnt {kind}({k})")
    for l in lines:
        if l.startswith("@waitvm"):
            parts = l.split(); tags = set(parts[1].split(","))
            idx = [i for i, e in enumerate(vm) if e[1] in tags]
            w = []
            if idx:
                k = len(vm) - 1 - max(idx); k = min(k, 62); w.append(f"vmcnt({k})"); vm = vm[len(vm) - k:] if k else []
            if len(parts) > 2 and (lds or not keep): w.append("lgkmcnt(0)"); lds = []
            if w: out.append("s_waitcnt " + " ".join(w))
            out.append("@chk " + " ".join(parts[1:]))
            continue
        if l.startswith("@chk"):
            parts = l.split(); tags = set(parts[1].split(","))
            assert not any(e[1] in tags for e in vm), l
            assert len(parts) < 3 or not lds, l
            out.append(l); continue
        p = parse(l)
        if p is None: out.append(l); continue
        if p["op"] == "s_waitcnt":
            for kind, k in _wait.findall(l):
                k = int(k)
                if kind == "vmcnt": vm = vm[len(vm) - k:] if 0 < k < len(vm) else ([] if k == 0 else vm)
                else: lds = lds[len(lds) - k:] if 0 < k < len(lds) else ([] if k == 0 else lds)
            out.append(l); continue
        touched = set(p["r"]) | set(p["w"])
        idx = [i for i, e in enumerate(lds) if e & touched]
        if idx:
            nm = 0; young = 0
            for q in reversed(out):
                if q.startswith(("v_mfma", "v_smfmac")):
                    nm += 1
                    if nm >= 7: break
                elif q.startswith("ds_"): young += 1
            k = min(len(lds) - 1 - max(idx), 14, young if nm >= 7 else 99); k = k; hoist("lgkmcnt", k); lds = lds[len(lds) - k:] if k else []
        idx = [i for i, e in enumerate(vm) if e[0] & touched]
        if idx:
            k = min(len(vm) - 1 - max(idx), 62); hoist("vmcnt", k); vm = vm[len(vm) - k:] if k else []
        if p["op"].startswith("ds_"): lds.append(set(p["w"]))
        elif p["op"].startswith(("buffer_", "global_")):
            m = re.search(r";tag=(\w+)", l)
            vm.append((set(p["w"]), m.group(1) if m else None))
        out.append(l)
    return out, lds, vm

def fix_hazards(lines):
    lines = list(lines)
    i = 0
    while i < len(lines):
        p = parse(lines[i])
        if p is None: i += 1; continue
        lo = max(0, i - 40)
        seg = lines[lo:i + 1]
        need = 0
        for pr in check_hazards(seg, only_last=True):
            m = re.match(r"need (\d+) have (\d+)", pr); need = max(need, int(m.group(1)) - int(m.group(2)))
        if need:
            lines.insert(i, f"s_nop {need-1}"); i += 1
        i += 1
    return lines

def f2u(x):
    import struct
    return "%#x" % struct.unpack("<I", struct.pack("<f", float(x)))[0]

def salu_trace(lines, init):
    R = dict(init); scc = [0]; out = []
    def val(t):
        t = t.strip()
        if t == "m0" or re.fullmatch(r"s\d+", t): return R.get(t)
        try: return int(t, 0) & 0xffffffff
        except ValueError: return None
    for l in lines:
        body = l.split(";")[0].strip()
        if not body or body.startswith(("@", ".")) or body.endswith(":"): continue
        parts = body.split(None, 1); op = parts[0]
        ops = [o.strip() for o in parts[1].split(",")] if len(parts) > 1 else []
        if op.startswith("buffer_") and ";tag=" in l:
            so = ops[-1].split()[0]
            out.append((l.split(";tag=")[1].strip(), R.get("m0") if body.endswith("lds") else None, val(so), body)); continue
        f = {"s_add_u32": lambda a, b: a + b, "s_sub_u32": lambda a, b: a - b, "s_xor_b32": lambda a, b: a ^ b, "s_lshl_b32": lambda a, b: a << b,
             "s_lshr_b32": lambda a, b: a >> b, "s_mul_i32": lambda a, b: a * b, "s_min_u32": min, "s_and_b32": lambda a, b: a & b, "s_or_b32": lambda a, b: a | b}
        if op in f:
            a, b = val(ops[1]), val(ops[2])
            R[ops[0]] = None if a is None or b is None else f[op](a, b) & 0xffffffff
            scc[0] = None
        elif op == "s_mov_b32": R[ops[0]] = val(ops[1])
        elif op == "s_cmp_lt_u32":
            a, b = val(ops[0]), val(ops[1]); scc[0] = None if a is None or b is None else int(a < b)
        elif op == "s_cselect_b32": R[ops[0]] = None if scc[0] is None else val(ops[1] if scc[0] else ops[2])
        elif op.startswith("s_") and ops and re.fullmatch(r"s\d+|m0", ops[0]) and not op.startswith("s_cmp"): R[ops[0]] = None
        elif op.startswith("v_readfirstlane"): R[ops[0]] = R.get("rfl")
    return out

def layout(text):
    import subprocess, tempfile, shutil
    lines = text.split("\n")
    end = next(i for i, l in enumerate(lines) if l.startswith(".section"))
    ins = [i for i, l in enumerate(lines[:end]) if parse(l.strip()) is not None]
    d = tempfile.mkdtemp()
    open(d + "/a.s", "w").write("\n".join(l for l in lines if not l.startswith(".p2align 12")))
    subprocess.run(["clang", "-x", "assembler", "-target", "amdgcn-amd-amdhsa", "-mcpu=gfx950", "-c", d + "/a.s", "-o", d + "/a.o"], check=True)
    out = subprocess.run(["llvm-objdump", "-d", "--mcpu=gfx950", d + "/a.o"], capture_output=True, text=True).stdout
    shutil.rmtree(d)
    sz = [4 * len(m.group(1).split()) for m in re.finditer(r"// [0-9A-F]{12}: ([0-9A-F ]+)", out)]
    assert len(sz) == len(ins), (len(sz), len(ins))
    ad = []; a = 0; k = 0
    for i, l in enumerate(lines[:end]):
        if l.startswith(".p2align 12"): a = (a + 4095) // 4096 * 4096
        if k < len(ins) and ins[k] == i: ad.append(a); a += sz[k]; k += 1
    return ins, ad, sz

def page_hooks(text, minrun, sessions, nchain=4):
    base = text.split("\n")
    at = lambda name: next(i for i, l in enumerate(base) if l.strip() == name + ":")
    rngs = [[(at(first), at(last))] + [(at(e[0]), at(e[1])) for e in extra if not isinstance(e, str)] for p, first, last, extra in sessions]
    rng = sum(rngs, [])
    def build(pos):
        ins_at = {}
        for (p, first, last, extra), rs in zip(sessions, rngs):
            order = sorted(i for i in pos if any(lo < i < hi for lo, hi in rs)) + [at(e) + 1 for e in extra if isinstance(e, str)]
            for n, i in enumerate(order):
                nxt = f"{p}{n + nchain}" if n + nchain < len(order) else p + "_back"
                ins_at[i] = [f"{p}{n}:", f"    s_cbranch_execz {nxt}"]
            ins_at[at(p + "_back")] = [f"{p}{n}:" for n in range(len(order), nchain)]
        out = []; back = []
        for i, l in enumerate(base):
            for x in ins_at.get(i, []): out.append(x); back.append(None)
            out.append(l); back.append(i)
        return out, back
    forb = set(); z = False
    for i, l in enumerate(base):
        t_ = l.strip()
        if z or t_ == "s_mov_b64 exec, -1": forb.add(i)
        if t_ == "s_mov_b64 exec, 0": z = True
        elif t_.startswith("s_branch"): z = False
    pos = []
    while True:
        out, back = build(pos)
        marked = [l + f" ;@{b}" if b is not None and parse(l.strip()) is not None else l for l, b in zip(out, back)]
        t = align8("\n".join(marked), minrun, quiet=True) if minrun else "\n".join(marked)
        L = t.split("\n"); ins, ad, sz = layout(t)
        orig = lambda k: int(L[ins[k]].rsplit(";@", 1)[1]) if ";@" in L[ins[k]] else None
        for k in range(len(ins)):
            if orig(k) in pos: assert ad[k] % 4096 < 72, hex(ad[k])
        done = {ad[k] // 4096 for k in range(len(ins)) if orig(k) in pos or any(orig(k) == lo + 1 and ad[k] % 4096 == 0 for lo, hi in rng)}
        cand = [k for k in range(1, len(ins)) if orig(k) is not None and orig(k) not in forb and any(lo + 1 < orig(k) < hi for lo, hi in rng) and 8 <= ad[k] % 4096 < 52 and ad[k] // 4096 not in done]
        if not cand: return "\n".join(l.split(" ;@")[0] for l in L), len(pos)
        pg = ad[cand[0]] // 4096; cand = [k for k in cand if ad[k] // 4096 == pg]
        good = [k for k in cand if L[ins[k - 1]].strip().startswith("v_mfma") and not L[ins[k]].strip().startswith("s_")]
        pos.append(orig((good or cand)[0]))

def align8(text, minrun=5, quiet=False):
    lines = text.split("\n")
    end = next(i for i, l in enumerate(lines) if l.startswith(".section"))
    ins, ad, sz = layout(text)
    W = ("v_exp_f32", "v_rcp_f32", "v_rsq_f32", "v_mov_b32", "v_add_f32", "v_mul_f32", "v_max_f32", "v_sub_f32", "v_lshlrev_b32", "v_lshrrev_b32",
         "v_and_b32", "v_or_b32", "v_xor_b32", "v_floor_f32", "v_add_u32", "v_permlane16_swap_b32", "v_permlane32_swap_b32", "v_cvt_f32_i32")
    phase = 0; k = 0; n = len(ins); lastrun = -1; nop = []; nw = 0
    while k < n:
        if k and ad[k] != ad[k - 1] + sz[k - 1]: phase = 0; lastrun = k - 1
        if sz[k] == 4: phase ^= 4; k += 1; continue
        e = k
        while e < n and sz[e] == 8: e += 1
        if e == k: phase = (phase + sz[k]) % 8; k += 1; continue
        if e - k >= minrun:
            if phase:
                c = [j for j in range(k - 1, lastrun, -1) if sz[j] == 4 and lines[ins[j]].split()[0] in W]
                if c:
                    t = lines[ins[c[0]]]; op = t.split()[0]; lines[ins[c[0]]] = t.replace(op, op + "_e64", 1); phase = 0; nw += 1
                else:
                    va = sum(1 for j in range(k, e) if parse(lines[ins[j]].strip())["kind"] == "valu")
                    if va >= 8 and 2 * va > e - k: nop.append(ins[k]); phase = 0
            lastrun = e - 1
        k = e
    for i in reversed(nop): lines.insert(i, "    s_nop 0")
    import sys
    if not quiet: print("align8: widened", nw, "nops", len(nop), file=sys.stderr)
    return "\n".join(lines)

def check_dead_loads(lines):
    last = {}; bad = []
    for l in lines:
        p = parse(l)
        if p is None: continue
        for r in p["r"]: last.pop(r, None)
        for r in p["w"]:
            if r in last: bad.append((last[r], l))
            last.pop(r, None)
            if (p["kind"] == "mem" and not p["op"].endswith("load_dword")) or p["op"].startswith(("v_cvt_pk", "v_mfma", "v_exp")): last[r] = l
    return bad + [(l, "never read") for l in set(last.values())]
```

```python
import sys, math, copy
from asmlib import *
NAME = "recurrent_scan__gqa_block_cached__dense_activation_gelu__prompt"
M16 = "v_mfma_f32_16x16x32_bf16"
SMF = "v_smfmac_f32_16x16x64_bf16"

class Cfg:
    diag = False
    shift = 102.0
    SM0 = 8
    BAR = 29
    pvorder = "bshare"
    stflags = "sc1"
    ldflags = "sc1"
    NR = 16
    DO0 = 3
    ND = 8
    chain2 = True
    DU = 6
    DU0 = 6
    LL0 = 2
    LLS = 3
    adj = 1
    zig = 1
    gzig = 0
    WPS = 2
    DO = 3
    rot = 0
    rot2 = 5
    touch = 'wo'
    fakew = False
    fakeo = False
    kvflags = 'nt'
    fwflags = ''
    fhflags = 'sc1'
    FPOS = (47, 95)
    MG = 6
    align = 3
    HB = 2
    scr = 0
    tlb = 0
    rotw = 0
    PADR = 1024
    early_gate = True
    NP0 = 0
    l2end = 28
    pollall = False
    rcw = False
    tripstamp = False
    SORD = 0
    HLW = ((0, 10), (8, 24), (37, 46), (44, 56))
    fold = False
    WSK = 99
    tmap = 1
    PADW = 0
    rotx = 7
    probe = None
    last_h = None
    estonly = False
    DPOS = 56
    DSP = 4
    H30W = ((0, 30), (52, 66), (60, 76))
    H31W = ()
    HSP = 3
    NE = 3
    RS = 0
    H31 = 2
    NB1 = 9
    force_fallback = False
    trace = None
    nostamp = ('b3', 'b4', 'b5')
    codepf = True
    codepf2 = True
    GBAR = 14
    GBAR8 = 26
    STB = 6
    sat = 0
    woflags = ''
    wqflags = ''
    pg = 0
    ipg = 0
    hop = 20
    hop0 = 'L_loop_end'
    hop0rc = 1
    hopend = 'L_endA'
    palign = False
    XFULL = 9
    XFIRST = 1
    GSP0 = 4
    RSC = 16
    smtest = 0
    K2 = 1
    TP = 1
    RSPOS = 0
    GLO = 4
    G0 = 4
    nofb = False
    slp = 0
    recenter = 1 << 6
    l2n = 0
    stagger = 0
    NLATE = 10
    flagmode = 'store'
    pollflags = 'sc1'
    outflags = 'sc1'
    GSP = 4
    def __init__(self, **kw):
        for k, v in kw.items():
            assert hasattr(self, k), k
            setattr(self, k, v)

WS_O = 0x2000000
WS_H = 0x1000000
H_RT = 43 * 4096
WS_FL = 0x1800000
WS_RS = 0x1810000
WS_ST = 0x8000000
NS = 4
KSLOT = 16416; VCH = 4128; VSLOT = 4 * VCH
VBASE = NS * KSLOT
XBASE = KSLOT; XSLOT = 32832
WCH = 6176; WSLOT = 4 * WCH
WBASE = VBASE + VSLOT
CWBASE = WBASE + 3 * WSLOT
FLBASE = CWBASE + 768
LDS_A = FLBASE + 64
assert XBASE + XSLOT + 32768 <= WBASE and XBASE + XSLOT >= 3 * KSLOT and LDS_A <= 163840 and VBASE + NS * VSLOT <= LDS_A
VK, VV, VD, VIDX, VOA, VOB = 2, 3, 4, 5, 6, 7
SMA = 8
VDW, VL, VFE, VFO = 12, 13, 14, 15
NEGM = 16; S0 = 32; P0 = 48; O0 = 128; VXT = 96
FA = 64
VRA = 80
VPA, VONE, VPD, VDG = 86, 87, 1, 95
VX0, VX1, VXR, VWQ, VW1, VWR, VCQ, VCF, VC0, VC1, VCR, VH1 = range(16, 28)
B1F = 32; SX = 48
def S(n, i): return S0 + 4 * i if n >= 4 else O(i, n)
def P(n): return P0 + (n & 1) * 8
def O(dt, qt): return O0 + (dt * 4 + qt) * 4
def ACC(T, qt): return O0 + (T * 4 + qt) * 4 if T < 8 else 96 + ((T - 8) * 4 + qt) * 4 if T < 10 else 64 + ((T - 10) * 2 + qt) * 4
def Q(qt, ks): return (qt * 4 + ks) * 4
def KF(i, ks): return 64 + (i * 4 + ks) * 4
NVX = 2
def VF(T, u, dt): return ("v", VXT + (u * NVX + dt) * 4) if (T & 1 and dt < NVX) else ("a", 128 + u * 32 + dt * 4)
def rr(kb, n, o=0): return vr(kb[1] + o, n, kb[0])
def LA(qt): return 192 + qt * 4
def XF(kb, qt, s): return (kb & 1) * 32 + qt * 8 + s * 4
NWR = 6
def WF(n, s): return 128 + (n % NWR) * 8 + s * 4
def CF(j, s): return 64 + j * 8 + s * 4
CWA = 88
sK, sV, sWS, sX, sWQ, sF0, sF1, sDBG = 4, 8, 12, 16, 20, 24, 28, 32
sW, sHEAD, sQB, sPAR, sKM, sVM, sVO, sLOOP, sROT, sKO, sXM, sWM, sP0, sP1, sTRY, sSH = range(36, 52)
sT = 52
sWO, sXX, sW2, sOUT, sB2 = 60, 64, 68, 72, 76
sRO, sFM, sKW, sOB, sHB, sFW, sFH, sHS0, sHS1, sFLO = range(80, 90)
sGX = 3
sRT = 101; sCT = sP1
sXA, sXB = 94, 95
sTO, sTC = 94, 95; VTO = 112; sPF = sF0
sRC = 93; VCP = 94; sOS = 100
sOL, sOT = sX, sWQ
XB = VBASE + 4 * VSLOT
XT = XB + VSLOT
assert XT + 8192 <= FLBASE
def srd(b): return f"s[{b}:{b+3}]"

class Stamps:
    def __init__(self): self.names = []; self.rt = []
    def __call__(self, c, a, name, rt=False):
        if c.probe and name in c.probe:
            a(f"s_memrealtime s[96:97]\ns_waitcnt lgkmcnt(0)\nv_writelane_b32 v{VDG}, s96, {c.probe.index(name)}")
        if not c.diag or name in c.nostamp: return
        i = len(self.names); self.names.append(name); assert i < 40
        a(f"s_memtime s[96:97]\ns_waitcnt lgkmcnt(0)\nv_writelane_b32 v{VDG}, s96, {i}")
        if rt:
            a(f"s_memrealtime s[96:97]\ns_waitcnt lgkmcnt(0)\nv_writelane_b32 v{VDG}, s96, {40+len(self.rt)}"); self.rt.append(name)
    def out(self, c, a, base, ws, wave):
        if not c.diag: return
        a(f"""s_lshl_b32 s{sT}, s2, 2
s_add_u32 s{sT}, s{sT}, s{wave}
s_lshl_b32 s{sT}, s{sT}, 8
s_add_u32 s{sT}, s{sT}, {base}
v_lshlrev_b32 v1, 2, v0
buffer_store_dword v{VDG}, v1, {srd(ws)}, s{sT} offen""")

def mk_srd(a, d, lo, hi, off, size):
    if off is None: a(f"s_mov_b32 s{d}, s{lo}\ns_mov_b32 s{d+1}, s{hi}")
    else: a(f"s_add_u32 s{d}, s{lo}, {off}\ns_addc_u32 s{d+1}, s{hi}, 0")
    a(f"s_mov_b32 s{d+2}, {size}\ns_mov_b32 s{d+3}, 0x20000")

L3, L23, L4 = 28, 29, 30
RSV = 48
def setup_A(c):
    a = Asm()
    a(f"""s_load_dwordx16 s[64:79], s[0:1], 0
s_load_dwordx8 s[80:87], s[0:1], 64
s_load_dwordx2 s[88:89], s[0:1], 96
s_getpc_b64 s[90:91]
L_pc:
s_lshr_b32 s{sT}, s2, 3
s_lshl_b32 s{sT}, s{sT}, 11
v_lshrrev_b32 v{VCP}, 4, v0
v_lshl_add_u32 v{VCP}, v{VCP}, 7, s{sT}
v_min_u32 v{VCP}, L_last-L_pc, v{VCP}
global_load_dword v255, v{VCP}, s[90:91]
v_lshrrev_b32 v1, 6, v0
v_and_b32 v0, 63, v0
s_and_b32 s{sGX}, s2, 7
v_readfirstlane_b32 s{sW}, v1
s_bfe_u32 s{sQB}, s2, 0x30003
s_lshr_b32 s{sT+1}, s2, 6
s_lshl_b32 s{sHEAD}, s{sGX}, 2
s_add_u32 s{sHEAD}, s{sHEAD}, s{sT+1}
s_and_b32 s{sPAR}, s{sHEAD}, 1
s_xor_b32 s{sROT}, s{sT+1}, s{sQB}
s_and_b32 s{sROT}, s{sROT}, {c.rot}
s_and_b32 s{sT}, s{sGX}, {c.rotx}
s_xor_b32 s{sROT}, s{sROT}, s{sT}
s_lshr_b32 s{sT}, s{sHEAD}, 1
s_mul_i32 s{sT}, s{sT}, 3
s_add_u32 s{sP1}, s{sT}, 1
s_lshl_b32 s{sT+1}, s{sPAR}, 1
s_add_u32 s{sP0}, s{sT}, s{sT+1}
s_add_u32 s{sT+1}, s{sHEAD}, 11
s_cmp_lt_u32 s{sHEAD}, 22
s_cselect_b32 s{sP0}, s{sP0}, s{sT+1}
s_cselect_b32 s{sP1}, s{sP1}, 0
s_lshl_b32 s{sXM}, s{sW}, 13
s_add_u32 s{sXM}, s{sXM}, {XBASE}
s_mul_i32 s{sWM}, s{sW}, {WCH}
s_add_u32 s{sWM}, s{sWM}, {WBASE}
v_and_b32 v{L3}, 3, v0
v_bfe_u32 v{L23}, v0, 2, 2
v_lshrrev_b32 v{L4}, 4, v0
v_lshlrev_b32 v{VL}, 4, v0
s_lshl_b32 s{sT+2}, s{sQB}, 8
s_lshl_b32 s{sT+3}, s{sHEAD}, 3
s_add_u32 s{sT+2}, s{sT+2}, s{sT+3}
s_lshl_b32 s{sT+3}, s{sW}, 1
s_add_u32 s{sKO}, s{sT+2}, s{sT+3}
s_lshl_b32 s{sT+2}, s{sKO}, 10
v_add_u32 v91, s{sT+2}, v{VL}
v_and_b32 v1, 1, v{L4}
v_lshlrev_b32 v1, 1, v1
v_xor_b32 v1, v1, v{L3}
v_lshlrev_b32 v{VDW}, 4, v1
v_lshrrev_b32 v31, 2, v0
v_lshl_add_u32 v{VX0}, v31, 10, v{VDW}
s_bfe_u32 s{sT}, s{sHEAD}, 0x10001
s_lshl_b32 s{sT+1}, s{sT}, 14
v_add_u32 v{VX0}, s{sT+1}, v{VX0}
v_xor_b32 v{VX1}, 0x4000, v{VX0}
s_lshl_b32 s{sT}, s{sT}, 11
s_add_u32 s{sXA}, s{sXM}, s{sT}
s_xor_b32 s{sT}, s{sT}, 0x800
s_add_u32 s{sXB}, s{sXM}, s{sT}
s_lshl_b32 s{sT}, s{sW}, 3
v_add_u32 v1, s{sT}, v{L23}
v_lshlrev_b32 v31, 4, v{L3}
v_lshl_add_u32 v{VD}, v{L4}, 6, v31
v_lshl_add_u32 v{VWQ}, v1, 13, v{VD}
v_lshrrev_b32 v{VW1}, 5, v0
v_lshl_add_u32 v1, v{VW1}, 5, v1
v_and_b32 v{VW1}, 1, v{L4}
v_lshl_add_u32 v1, v{VW1}, 2, v1
v_mul_u32_u24 v1, 2752, v1
v_add_u32 v{VW1}, v1, v31
s_lshl_b32 s{sT}, s{sQB}, 2
s_add_u32 s{sT+1}, s{sT}, s{sW}
s_lshl_b32 s{sT}, s{sT+1}, 16""")
    a("s_waitcnt lgkmcnt(0)")
    a("@stamp karg")
    if c.tlb:
        a(f"""s_load_dword s101, s[70:71], 0
s_load_dword s101, s[76:77], 0
s_mov_b32 s{sT+1}, {WS_RS + 0x8000}
s_load_dword s101, s[88:89], s{sT+1}
s_load_dword s101, s[78:79], 0
s_load_dword s101, s[86:87], 0
s_mov_b32 s{sT+1}, 0x200000
s_load_dword s101, s[70:71], s{sT+1}""")
    mk_srd(a, sX, 64, 65, f"s{sT}", 65536)
    L = a.lines + flat(dma_x(0)[:2])
    a = Asm()
    a(f"s_lshl_b32 s{sT}, s{sHEAD}, 8")
    mk_srd(a, sWQ, 70, 71, f"s{sT}", 512 * 8192 - 8192 + 256)
    a(f"s_lshl_b32 s{sT}, s{sP0}, 6")
    mk_srd(a, sF0, 76, 77, f"s{sT}", 512 * 2752 - 2752 + 64)
    a(f"s_lshl_b32 s{sT}, s{sP1}, 6")
    mk_srd(a, sF1, 76, 77, f"s{sT}", 512 * 2752 - 2752 + 64)
    a(f"s_cmp_lt_u32 s{sHEAD}, 22\ns_cselect_b32 s{sF1+2}, s{sF1+2}, 0\ns_mov_b64 s[98:99], s[64:65]")
    return L + a.lines + flat(dma_w(0))

B1R = [96, 98, 60, 62]
def side_loads():
    return [([], f"global_load_dwordx4 {vr(RSV+4*i,4)}, v91, s[98:99] offset:{i*1024}") for i in range(2)] + \
           [([], f"global_load_dwordx2 {vr(B1R[i],2)}, v{88 + i//2}, s[92:93] offset:{(i&1)*32}") for i in range(4)]

def setup_A2(c):
    a = Asm()
    a(f"""; b1 (D layout): 4 bf16 at (pair*32 + 16a + 4g)
s_lshl_b32 s{sT}, s{sP0}, 6
s_lshl_b32 s{sT+1}, s{sP1}, 6
v_lshl_add_u32 v88, v{L4}, 3, s{sT}
v_lshl_add_u32 v89, v{L4}, 3, s{sT+1}
s_mov_b64 s[92:93], s[78:79]
s_lshl_b32 s{sT}, s{sHEAD}, 19""")
    if c.SORD >= 1:
        for l in flat(side_loads()[2:]): a(l)
    if c.SORD == 2:
        for l in flat(side_loads()[:2]): a(l)
    mk_srd(a, sK, 66, 67, f"s{sT}", 0x80000)
    mk_srd(a, sV, 68, 69, f"s{sT}", 0x80000)
    mk_srd(a, sWS, 88, 89, None, 0x10000000)
    mk_srd(a, sDBG, 86, 87, None, 256)
    if c.tmap == 0: a(f"s_mov_b32 s{sRT}, s{sHEAD}\ns_mov_b32 s{sT+7}, s{sQB}")
    else: a(f"""s_and_b32 s{sRT}, s{sHEAD}, 24
s_add_u32 s{sRT}, s{sRT}, s{sQB}
s_and_b32 s{sT+7}, s{sHEAD}, 7
s_lshr_b32 s{sGX}, s{sRT}, 2""")
    a(f"s_lshl_b32 s{sT}, s{sT+7}, 7")
    mk_srd(a, sWO, 72, 73, f"s{sT}", 4096 * 1024 - 896)
    mk_srd(a, sW2, 80, 81, f"s{sT}", 1376 * 1024 - 896)
    mk_srd(a, sB2, 82, 83, f"s{sT}", 128)
    a(f"s_lshl_b32 s{sT+1}, s{sRT}, 16\ns_add_u32 s{sT+1}, s{sT+1}, s{sT}")
    mk_srd(a, sXX, 64, 65, f"s{sT+1}", 65536 - 896)
    mk_srd(a, sOUT, 84, 85, f"s{sT+1}", 65536 - 896)
    T = 31
    a(f"""s_lshr_b32 s{sRO}, s2, 6
s_lshl_b32 s{sRO}, s{sRO}, 1
s_xor_b32 s{sRO}, s{sRO}, s{sQB}
s_and_b32 s{sRO}, s{sRO}, {c.rot2}
s_and_b32 s{sT+4}, s{sW}, {c.rotw}
s_xor_b32 s{sRO}, s{sRO}, s{sT+4}
s_lshl_b32 s{sKW}, s{sW}, 5
s_lshl_b32 s{sT+4}, s{sW}, 10
s_add_u32 s{sFM}, s{sT+4}, {XB}
s_lshl_b32 s{sOB}, s{sW}, 12
s_add_u32 s{sRO}, s{sRO}, s{sKW}
s_lshr_b32 s{sT+5}, s{sRO}, 2
s_lshl_b32 s{sT+5}, s{sT+5}, 14
s_add_u32 s{sOB}, s{sOB}, s{sT+5}
s_and_b32 s{sT+5}, s{sRO}, 3
s_lshl_b32 s{sT+5}, s{sT+5}, 10
s_add_u32 s{sOB}, s{sOB}, s{sT+5}
s_lshl_b32 s{sRO}, s{sRO}, 15
s_lshl_b32 s{sOS}, s{sHEAD}, 1
s_add_u32 s{sOS}, s{sOS}, s{sPAR}
s_lshl_b32 s{sOS}, s{sOS}, 13
s_mul_i32 s{sHB}, s{sRT}, {H_RT}
s_add_u32 s{sHB}, s{sHB}, s{sT+4}
s_add_u32 s{sHB}, s{sHB}, {WS_H}
s_lshl_b32 s{sT+4}, s{sQB}, 2
s_add_u32 s{sT+4}, s{sT+4}, s{sW}
s_mul_i32 s{sT+4}, s{sT+4}, {H_RT}
s_add_u32 s{sT+4}, s{sT+4}, {WS_H}
s_lshl_b32 s{sHS0}, s{sP0}, 12
s_add_u32 s{sHS0}, s{sHS0}, s{sT+4}
s_lshl_b32 s{sHS1}, s{sP1}, 12
s_add_u32 s{sHS1}, s{sHS1}, s{sT+4}
s_lshl_b32 s{sFLO}, s{sQB}, 8
s_lshl_b32 s{sT+4}, s{sHEAD}, 2
s_add_u32 s{sFLO}, s{sFLO}, s{sT+4}
s_add_u32 s{sFLO}, s{sFLO}, {WS_FL}
s_lshr_b32 s{sT+4}, s{sW}, 1
s_lshl_b32 s{sT+4}, s{sT+4}, 4
s_lshl_b32 s{sKM}, s{sW}, 12
s_add_u32 s{sKM}, s{sKM}, s{sT+4}
s_mul_i32 s{sVM}, s{sW}, {VCH}
s_add_u32 s{sVM}, s{sVM}, {VBASE}
s_mov_b32 s{sTRY}, 0
s_mov_b32 s{sCT}, s{sT+7}
s_mov_b32 s{sSH}, {f2u(c.shift)}
@pg1
v_lshl_add_u32 v{VD}, v{L23}, 8, v{VD}
s_lshl_b32 s{sT+4}, s{sW}, 12
v_add_u32 v{VD}, s{sT+4}, v{VD}
v_and_b32 v1, 1, v{L23}
v_lshlrev_b32 v1, 1, v1
v_xor_b32 v1, v1, v{L4}
v_lshlrev_b32 v1, 4, v1
v_and_b32 v{T}, 15, v0
v_lshl_add_u32 v1, v{T}, 6, v1
v_add_u32 v{VXR}, s{sXM}, v1
s_lshl_b32 s{sT+4}, s{sW}, 7
s_add_u32 s{sT+4}, s{sT+4}, {CWBASE}
s_lshl_b32 s{sT+5}, s{sW}, 6
s_add_u32 s{sT+5}, s{sT+5}, {CWBASE+512}
v_lshl_add_u32 v{VC0}, v{T}, 2, s{sT+4}
v_lshl_add_u32 v{VC1}, v{T}, 2, s{sT+5}
v_lshlrev_b32 v{VCR}, 4, v{L4}
v_add_u32 v{VCR}, {CWBASE}, v{VCR}
s_lshl_b32 s{sT+4}, s{sPAR}, 8
v_lshl_add_u32 v92, v{T}, 3, s{sT+4}
v_xor_b32 v93, 0x100, v92
v_lshlrev_b32 v1, 3, v{L3}
v_lshl_add_u32 v1, v{L23}, 6, v1
v_mul_u32_u24 v{VWR}, {WCH}, v{L4}
v_add_u32 v{VWR}, v{VWR}, v1
v_add_u32 v{VWR}, {WBASE}, v{VWR}
v_mul_u32_u24 v{VV}, {VCH}, v{L4}
v_add_u32 v{VV}, v{VV}, v1
v_add_u32 v{VV}, {VBASE}, v{VV}
s_lshl_b32 s{sT+4}, s{sW}, 8
v_add_u32 v{VCQ}, s{sT+4}, v{VWR}
s_lshr_b32 s{sT+4}, s{sW}, 1
s_lshl_b32 s{sT+4}, s{sT+4}, 10
s_and_b32 s{sT+5}, s{sW}, 1
s_lshl_b32 s{sT+5}, s{sT+5}, 5
s_add_u32 s{sT+4}, s{sT+4}, s{sT+5}
v_add_u32 v{VCF}, s{sT+4}, v{VWR}
; wo / w2 transposed read: (g>>1)*1024 + (g&1)*256 + rk*64 + c*8 + ((ct&1)^(g&1))*32
v_lshrrev_b32 v{T}, 1, v{L4}
v_lshl_add_u32 v1, v{T}, 10, v1
v_lshl_add_u32 v{VDW}, v{T}, 6, v{VDW}
v_and_b32 v{T}, 1, v{L4}
v_lshl_add_u32 v1, v{T}, 8, v1
v_lshl_add_u32 v1, v{T}, 5, v1
v_xor_b32 v{T}, 32, v1
v_add_u32 v{VRA}, s{sKM}, v1
v_add_u32 v{VRA+1}, s{sKM}, v{T}
v_add_u32 v{VRA+2}, s{sVM}, v1
v_add_u32 v{VRA+3}, s{sVM}, v{T}
v_add_u32 v{VRA+4}, {4*VSLOT}, v{VRA+2}
v_add_u32 v{VRA+5}, {4*VSLOT}, v{VRA+3}
v_add_u32 v{VFE}, {XB}, v1
v_add_u32 v{VFO}, {XB}, v{T}
; wo / w2 DMA voffset: row r8=(l>>2)&7 (stride 1024), half = l>>5 (64B), chunk (l&3)^(2*(r8>>2))
v_bfe_u32 v{T}, v0, 2, 3
v_lshl_add_u32 v{VDW}, v{T}, 10, v{VDW}
v_and_b32 v{VPA}, {31 if c.pollall else 7}, v0
v_lshlrev_b32 v{VPA}, 2, v{VPA}
v_lshrrev_b32 v1, 1, v{L23}
v_lshlrev_b32 v1, 4, v1
v_lshl_add_u32 v1, v{L23}, 12, v1
v_lshl_add_u32 v1, v{L3}, 6, v1
v_and_b32 v{VK}, 1, v{L4}
v_lshl_add_u32 v1, v{VK}, 5, v1
v_lshrrev_b32 v{VK}, 1, v{L4}
v_lshl_add_u32 v{VK}, v{VK}, 4, v1
; store voffsets (workgroups without an extra FFN pair send those stores out of range)
s_lshl_b32 s{sT+4}, s{sPAR}, 11
v_add_u32 v{VOA}, s{sT+4}, v{VL}
v_xor_b32 v{VOB}, 0x800, v{VOA}
s_cmp_lt_u32 s{sHEAD}, 22
s_cselect_b32 s{sT+4}, 0, 0x10000000
v_add_u32 v{VH1}, s{sT+4}, v{VOA}
v_or_b32 v1, s{sW}, v0
v_cmp_eq_u32 vcc, 0, v1
v_mov_b32 v1, 0x10000000
v_cndmask_b32 v{VONE}, v1, 0, vcc
; row-sum operand: ones in rows 0,1 mod 4; index picks k%4 in (0,1) / (2,3)
v_cmp_gt_u32 vcc, 2, v{L3}
v_mov_b32 v1, 0x3f803f80
v_mov_b32 v{T}, 0x44444444
v_cndmask_b32 v{SMA}, 0, v1, vcc
v_cndmask_b32 v{SMA+1}, 0, v1, vcc
v_cndmask_b32 v{SMA+2}, 0, v1, vcc
v_cndmask_b32 v{SMA+3}, 0, v1, vcc
v_cmp_eq_u32 vcc, 1, v{L3}
v_mov_b32 v{VIDX}, 0xeeeeeeee
v_cndmask_b32 v{VIDX}, v{T}, v{VIDX}, vcc""")
    for r in range(12): a(f"v_accvgpr_write_b32 a{CWA+r}, 0")
    for l in attn_init()[:24]: a(l)
    pg = f"""s_xor_b32 s{sT+4}, s{sROT}, 4
s_lshl_b32 s{sT+4}, s{sT+4}, 19
s_cmp_lt_u32 s{sW}, 2
s_cselect_b64 s[96:97], s[{sWQ}:{sWQ+1}], s[{sWS}:{sWS+1}]
s_cselect_b32 s{sT+4}, s{sT+4}, s{sHS0}
v_mov_b32 v252, s{sT+4}
global_load_dword v253, v252, s[96:97] sc1
s_cselect_b64 s[96:97], s[{sK}:{sK+1}], s[{sV}:{sV+1}]
v_mov_b32 v252, 0
global_load_dword v254, v252, s[96:97]""".split("\n") if c.pg & 1 else []
    i_ = next(i for i, l in enumerate(a.lines) if l.strip() == "@pg1")
    a.lines[i_:i_ + 1] = pg
    if c.tlb > 1:
        for d, off in ((sK, 0), (sV, 0), (sWS, f"s{sHS0}"), (sB2, 0), (sW2, 0), (sWS, f"s{sHB}"), (sWO, f"s{sRO}"), (sWS, f"s{sOS}"), (sWS, f"s{sOB}"), (sOUT, 0), (sXX, 0)):
            a(f"s_load_dword s101, s[{d}:{d+1}], {off}")
    return a.lines

def stat_stores():
    return [([], f"buffer_store_dwordx2 v[88:89], v1, {srd(sWS)}, s{sKO} offen sc1 ;tag=sst"),
            ([], f"buffer_store_dword v91, v{VONE}, {srd(sWS)}, s{sFLO} offen sc1 ;tag=sst")]
def row_stats(c):
    a = Asm()
    s0, s1, q0, q1 = RSV + 8, RSV + 9, RSV + 10, RSV + 11
    a(f"v_mov_b32 v{s0}, 0\nv_mov_b32 v{s1}, 0\nv_mov_b32 v{q0}, 0\nv_mov_b32 v{q1}, 0\nv_mov_b32 v1, 0x3f803f80")
    for e in range(4):
        a(f"v_dot2c_f32_bf16 v{s0}, v{RSV+e}, v1\nv_dot2c_f32_bf16 v{q0}, v{RSV+e}, v{RSV+e}")
        a(f"v_dot2c_f32_bf16 v{s1}, v{RSV+4+e}, v1\nv_dot2c_f32_bf16 v{q1}, v{RSV+4+e}, v{RSV+4+e}")
    a(f"""s_nop 2
v_permlane32_swap_b32 v{s0}, v{s1}
v_permlane32_swap_b32 v{q0}, v{q1}
v_add_f32 v{s0}, v{s0}, v{s1}
v_add_f32 v{q0}, v{q0}, v{q1}
v_mov_b32 v{s1}, v{s0}
v_mov_b32 v{q1}, v{q0}
v_permlane16_swap_b32 v{s0}, v{s1}
v_permlane16_swap_b32 v{q0}, v{q1}
v_add_f32 v{s0}, v{s0}, v{s1}
v_add_f32 v{q0}, v{q0}, v{q1}""")
    for sh in (8, 4, 2, 1):
        a(f"v_add_f32_dpp v{s0}, v{s0}, v{s0} row_ror:{sh} row_mask:0xf bank_mask:0xf\nv_add_f32_dpp v{q0}, v{q0}, v{q0} row_ror:{sh} row_mask:0xf bank_mask:0xf")
    a(f"""v_mul_f32 v88, {f2u(-1/512)}, v{s0}
v_mul_f32 v{q0}, {f2u(1/512)}, v{q0}
v_fma_f32 v{q0}, -v88, v88, v{q0}
v_max_f32 v{q0}, 0, v{q0}
v_add_f32 v{q0}, {f2u(1e-5)}, v{q0}
v_rsq_f32 v89, v{q0}
v_lshrrev_b32 v1, 5, v0
v_lshlrev_b32 v1, 3, v1
s_lshl_b32 s{sKO}, s{sKO}, 3
s_add_u32 s{sKO}, s{sKO}, {WS_RS}
v_mov_b32 v91, 0
v_mov_b32 v90, 1""")
    for i in range(8): a(f"v_lshlrev_b32 v{B1F+2*i}, 16, v{B1R[i//2]+(i&1)}\nv_and_b32 v{B1F+2*i+1}, 0xffff0000, v{B1R[i//2]+(i&1)}")
    return [l.strip() for l in a.lines]

def dma_x(kb):
    A, B = sT + 2, sT + 3
    g = []
    for qt in range(4):
        for s in range(2):
            pre = []
            if qt == 0 and s == 0:
                pre += [f"s_xor_b32 s{A}, s{sROT}, {kb}", f"s_lshl_b32 s{A}, s{A}, 7", f"s_lshl_b32 s{B}, s{sPAR}, 15",
                        f"s_add_u32 s{A}, s{A}, s{B}", f"s_xor_b32 s{B}, s{A}, 0x8000"]
            pre.append(f"s_add_u32 m0, s{sXB if qt & 1 else sXA}, {(kb & 1) * XSLOT + (qt >> 1) * 4096 + s * 960}")
            g.append((pre, f"buffer_load_dwordx4 v{VX1 if qt & 1 else VX0}, {srd(sX)}, s{B if qt >= 2 else A} offen offset:{s*64} lds ;tag=x{kb}"))
    return g
def dma_w(kb):
    A, B, C = sT + 4, sT + 5, sT + 6
    base = (kb % 3) * WSLOT
    g = []
    for i in range(4):
        s, t = i >> 1, i & 1
        if i == 0:
            pre = [f"s_xor_b32 s{C}, s{sROT}, {kb}", f"s_lshl_b32 s{A}, s{C}, 19", f"s_mul_i32 s{C}, s{C}, {64*2752}", f"s_add_u32 m0, s{sWM}, {base}"]
            so = A
        else:
            pre = [f"s_add_u32 s{B}, s{A}, {(32*s+4*t)*8192 - i*1024}"]; so = B
        g.append((pre, f"buffer_load_dwordx4 v{VWQ}, {srd(sWQ)}, s{so} offen offset:{i*1024} {WFL[1]} lds ;tag=w{kb}"))
    g.append(([f"s_add_u32 m0, s{sWM}, {base+4096}"], f"buffer_load_dwordx4 v{VW1}, {srd(sF0)}, s{C} offen lds ;tag=w{kb}"))
    g.append(([f"s_add_u32 m0, s{sWM}, {base+5120}"], f"buffer_load_dwordx4 v{VW1}, {srd(sF1)}, s{C} offen lds ;tag=w{kb}"))
    return g
WFL = ['', '']
def dma_kv(kind, tile, A=sT + 7):
    g = []
    for i in range(4):
        pre = [f"s_mov_b32 s{A}, {tile*16384}", f"s_add_u32 m0, s{sKM if kind=='K' else sVM}, {(tile%NS)*(KSLOT if kind=='K' else VSLOT)}"] if i == 0 else []
        g.append((pre, f"buffer_load_dwordx4 v{VD}, {srd(sK if kind=='K' else sV)}, s{A} offen offset:{i*1024} lds ;tag={kind}{tile}"))
    return g
def flat(g):
    out = []
    for pre, l in g: out += pre + [l]
    return out
def place_group(sc, g, lo, hi, sp=4, look=None):
    cur = lo
    for n_, (pre, l) in enumerate(g):
        start = cur
        h_ = hi - (len(g) - 1 - n_)
        l_ = min(cur + max(len(pre), sp if n_ else 1), h_)
        gp = sc.place_mem(l, l_, min(h_, l_ + look) if look is not None else h_)
        assert gp > start
        free = [x for x in range(start, gp) if not sc.sal[x]]
        free = [x for x in free if x > start or not any(m.startswith(("buffer_", "global_")) for m in sc.mem[x])]
        if len(free) < 1 and len(pre) == 1 and "m0" not in pre[0] and pre[0].startswith("s_") and not sc.sal[gp] and len(sc.mem[gp]) == 1:
            sc.sal[gp].append(pre[0])
        elif len(free) >= len(pre):
            for x, s_ in zip(free[-len(pre):] if pre else [], pre): sc.sal[x].append(s_)
        else:
            sc.post[gp - 1] += pre
        cur = gp
    return cur

def x_reads(kb):
    return [f"ds_read_b128 {ar(XF(kb,qt,s),4)}, v{VXR} offset:{(kb&1)*XSLOT+(qt*2+s)*1024}" for qt in range(4) for s in range(2)]
def w_off(kb, T, s, t):
    b = (kb % 3) * WSLOT
    return b + (2*s+t)*1024 + (T >> 1)*256 + (T & 1)*32 if T < 8 else b + 4096 + ((T-8) >> 1)*1024 + (2*s+t)*256 + (T & 1)*32
def w_reads(kb, T, n):
    return [f"ds_read_b64_tr_b16 {ar(WF(n,s)+2*t,2)}, v{VWR} offset:{w_off(kb,T,s,t)}" for s in range(2) for t in range(2)]
def c_reads(kb):
    out = []
    for j in range(3):
        for s in range(2):
            for t in range(2):
                if j < 2: out.append(f"ds_read_b64_tr_b16 {ar(CF(j,s)+2*t,2)}, v{VCQ} offset:{w_off(kb,j,s,t)}")
                else: out.append(f"ds_read_b64_tr_b16 {ar(CF(j,s)+2*t,2)}, v{VCF} offset:{w_off(kb,8,s,t)}")
    return out

CWR = [28, 88, 16, 20]
def s_count(name, off):
    return [f"s_lshl_b32 s{sT}, s{sQB}, 5", f"s_add_u32 s{sT}, s{sT}, {off}", f"s_mov_b32 s{sT+1}, 1", f"s_cmp_lg_u32 s{sW}, 0",
            f"s_cbranch_scc1 L_sc_{name}", f"s_atomic_add s{sT+1}, s[{sDBG}:{sDBG+1}], s{sT}", f"L_sc_{name}:"]
def hop(c, p="L_hop"):
    return ["s_mov_b64 exec, 0"] + sum(([f"s_cmp_eq_u32 s{sW}, {w}", f"s_cbranch_scc1 {p}{w}"] for w in range(3)), []) + [f"s_branch {p}3"] + ([".p2align 12"] if p == "L_hop" else []) + [f"{p}_back:", "s_mov_b64 exec, -1"]
def gemm1(c):
    L = setup_A(c) + ["@stamp first"] + setup_A2(c) + ["@stamp setup"] + (hop(c, "L_hoo") if c.hop and c.hop0 else [])
    no = [([], "; ")]
    g_ = [side_loads() + dma_x(0)[2:], no * 4 + dma_x(0)[2:] + side_loads()[:2], no * 6 + dma_x(0)[2:], no * 4 + side_loads()[:2] + dma_x(0)[2:]][c.SORD] + dma_w(1) + dma_x(1)[:2]
    for n_ in range(len(g_) + 2):
        if n_ == c.RSC: L += row_stats(c)
        if n_ == c.hop: L += hop(c)
        L += flat(g_[n_:n_ + 1])
    L += ["@stamp issued", "@waitvm x0"] + x_reads(0) + ["@waitvm w0 lgkm0", "s_barrier", "@stamp b0 rt"]
    TORD = [0, 1, 2, 10, 3, 4, 5, 11, 6, 7, 8, 9]
    L += w_reads(0, TORD[0], 0) + w_reads(0, TORD[1], 1)
    sc = Sched()
    first = {}; last = {}; start = {}; cwg = {}
    for kb in range(8):
        start[kb] = sc.n()
        for n, T in enumerate(TORD if kb < 7 else [0, 1, 8, 10, 9, 2, 11, 3, 4, 5, 6, 7]):
            N = kb * 12 + n
            for nq, qt in enumerate(range(4 if T < 10 else 2)):
                if c.gzig == 2 and T < 10 and (T & 1): qt = 3 - qt
                for i_ in range(2):
                    s = i_ ^ (nq & 1) if c.gzig else i_
                    d = vr(ACC(T, qt), 4)
                    g = sc.add(f"{M16} {d}, {ar(WF(N,s),4)}, {ar(XF(kb,qt,s),4)}, {'0' if kb == 0 and i_ == 0 else d}")
                    first.setdefault(N, (g, T)); last[N] = g
            j_ = n - (4 if kb < 7 else 3)
            if 0 <= j_ < 3: cwg[(kb, j_)] = sc.add(f"{SMF} {ar(CWA+4*j_,4)}, {vr(SMA,4)}, {ar(CF(j_,0),8)}, v{VIDX}")
    start[8] = sc.n()
    bar = {kb: start[kb] - c.GBAR for kb in range(1, 9)}
    bar[0] = -1; bar[8] = start[8] - c.GBAR8
    CNT2 = f"s_lshl_b32 s{sT+7}, s{sQB}, 5"
    for kb in range(8):
        lo, hi = bar[kb] + 1, bar[kb + 1]
        sc.sal[hi] += [f"@waitvm {('sst,' if kb else '') + 'w%d' % (kb+1) if kb < 7 else 'K0'} lgkm0", "s_barrier"] + ([f"@stamp b{kb+1}"] if kb < 7 else [])
        grp = []
        if kb + 1 < 8 and kb <= c.XFULL: grp += dma_x(kb + 1)[2:]
        if kb + 2 < 8 and kb > c.XFULL and c.XFIRST: grp += dma_x(kb + 2)
        if kb == 0: grp += stat_stores()
        if kb == 2 and not c.sat & 1: grp += [([CNT2], f"buffer_atomic_add v90, v{VONE}, {srd(sDBG)}, s{sT+7} offen offset:4 sc1")]
        if kb == 2 and c.sat & 1:
            for n_, l in enumerate(s_count("a", 4)): sc.sal[lo + min(n_, 4)].append(l)
        if kb == c.STB: grp += [([CNT2], ST_LOAD)]
        if kb + 2 < 8: grp += dma_w(kb + 2) + (dma_x(kb + 2)[:2] if kb < c.XFULL else dma_x(kb + 2) if kb == c.XFULL or not c.XFIRST else [])
        if kb == 6: grp += dma_kv("K", 0, sT + 6) + dma_kv("K", 1, sT + 6)
        if kb == 7:
            sc.post[lo + 1] += CNT_OK.split("\n") + ["s_cbranch_scc0 L_spin_st", "L_ok_st:"]
            A = sT + 6
            grp += [([f"s_lshl_b32 s{A}, s{sQB}, 2", f"s_add_u32 s{A}, s{A}, s{sW}", f"s_lshl_b32 s{A}, s{A}, 9", f"s_add_u32 s{A}, s{A}, {WS_RS}"] if qt == 0 else [],
                     f"buffer_load_dwordx2 {vr(SX+4*qt,2)}, v{92 + (qt >> 1)}, {srd(sWS)}, s{A} offen offset:{(qt&1)*128} sc1") for qt in range(4)]
            grp += dma_kv("V", 0) + (dma_kv("K", 2) if c.K2 else []) + (touches(c) if c.TP == 0 else [])
        g0 = lo + max(c.GLO, 5 if kb == 2 and c.sat & 1 else 0) if kb else c.G0
        if kb == 0 and not c.RSC: sc.post[g0 - 1] += row_stats(c)
        cur = place_group(sc, grp, g0, hi - 1, sp=min(c.GSP if kb else c.GSP0, (hi - g0 - 8) // len(grp)))
        xlast = next((g for g in range(hi, lo, -1) if any(f"tag=x{kb+1}" in m for m in sc.mem[g])), lo)
        ops = []
        for n in range(12):
            N = kb * 12 + n
            if N >= 2: ops += [(l, max(lo, last[N - NWR] if N >= NWR else 0), min(first[N][0] - 5, hi - 4)) for l in w_reads(kb, first[N][1], N)]
        ops += [(l, max(lo, 0), cwg[(kb, n_ // 4)] - 5) for n_, l in enumerate(c_reads(kb))]
        if kb + 1 < 8:
            g = next(x for x in range(max(hi - 22, xlast + 1), sc.n()) if not sc.sal[x])
            sc.sal[g].append(f"@waitvm x{kb+1}")
            if c.hop == f"x{kb+1}": sc.post[g - 1] += hop(c)
            ops += [(l, g, hi - 3) for l in x_reads(kb + 1)]
        else:
            g = cwg[(7, 2)] + 6
            for j in range(3):
                sc.valu[g + 2 * j] += [f"v_accvgpr_read_b32 v{28+j}, a{CWA+4*j}"]
                sc.valu[g + 2 * j + 1] += [f"v_accvgpr_read_b32 v31, a{CWA+4*j+1}"]
                sc.valu[g + 2 * j + 2] += [f"v_add_f32 v{28+j}, v{28+j}, v31"]
            ops += [(f"ds_write_b32 v{VC0}, v28", g + 8, hi - 3), (f"ds_write_b32 v{VC0}, v29 offset:64", g + 8, hi - 3), (f"ds_write_b32 v{VC1}, v30", g + 8, hi - 3)]
            cs = math.log2(math.e) / math.sqrt(128.0)
            for qt in range(4): sc.valu[start[8] - 5 + qt].append(f"v_mul_f32 v{SX+4*qt+2}, {f2u(cs)}, v{SX+4*qt+1}")
        sc.place_edf(ops)
    place_group(sc, dma_kv("V", 1), bar[8] + 1, start[8] - 1, sp=5)
    ops = [(f"ds_read_b128 {vr(CWR[j],4)}, v{VCR} offset:{(8+j)*64}", bar[8] + 1, start[8] - 1) for j in range(4)]
    ops += [(l, bar[8] + 1, start[8] - 1) for l in k_reads(0)]
    sc.place_edf(ops)
    g = start[7]; ls = late_scalars(c)
    while ls:
        g = next(x for x in range(g + 1, start[8]) if not sc.sal[x])
        sc.sal[g].append(ls.pop(0))
        if ls and ls[0].startswith(("s_addc", "s_subb")): sc.sal[g].append(ls.pop(0))
    print("gemm1 est cycles", sc.est(), file=sys.stderr)
    return L + sc.lines()

def touches(c, v=1, d0="a254", d1="a255"):
    if not c.touch: return []
    A, B = sT + 4, sT + 5
    return [([f"s_lshl_b32 s{A}, s2, 2", f"s_add_u32 s{A}, s{A}, s{sW}", f"s_lshl_b32 s{B}, s{A}, 5", f"s_sub_u32 s{B}, s{B}, s{sCT}",
              f"v_lshrrev_b32 v{v}, 1, v0", f"v_add_lshl_u32 v{v}, v{v}, s{B}, 7"], f"buffer_load_dword {d0}, v{v}, {srd(sWO)}, 0 offen"),
            ([f"s_mul_i32 s{B}, s{A}, 11", f"s_sub_u32 s{B}, s{B}, s{sCT}", f"v_min_u32 v{v}, 10, v0", f"v_add_lshl_u32 v{v}, v{v}, s{B}, 7"],
             f"buffer_load_dword {d1}, v{v}, {srd(sW2)}, 0 offen")][:1 if c.touch == "wo" else 2]

def sprinkle(lines, groups, every):
    out = []; groups = list(groups); k = 0
    for l in lines:
        out.append(l); k += 1
        if groups and k >= every and not l.strip().startswith(("s_cmp", "v_cmp", "s_add", "s_cselect")):
            pre, v = groups.pop(0); out += pre + [v]; k = 0
    return out + flat(groups)

def b2_init(a, v=1):
    a(f"v_lshrrev_b32 v{v}, 4, v0\nv_lshlrev_b32 v{v}, 3, v{v}")
    for ct in range(4): a(f"buffer_load_dwordx2 {vr(B2R+2*ct,2)}, v{v}, {srd(sB2)}, 0 offen offset:{ct*32}")
def attn_init():
    out = [f"v_accvgpr_write_b32 a{LA(0)+r}, 0" for r in range(16)] + [f"v_accvgpr_write_b32 a{FH(0,0)+r}, 0" for r in range(8)]
    for i in range(8): out += [f"v_lshlrev_b32 v{FA+2*i}, 16, v{B2R+i}", f"v_and_b32 v{FA+2*i+1}, 0xffff0000, v{B2R+i}"]
    return out
B2R = FA + 8
def epi1(c):
    a = Asm()
    k1 = -2.0 * math.sqrt(2.0 / math.pi) * math.log2(math.e); k2 = k1 * 0.044715
    kk = f"s[{sT+2}:{sT+3}]"
    a(f"s_mov_b32 s{sT+2}, {f2u(k2)}\ns_mov_b32 s{sT+3}, {f2u(k1)}")
    items = [(T, qt, h, vr(ACC(T, qt) + 2 * h, 2)) for T in range(8, 12) for qt in range(4 if T < 10 else 2) for h in range(2)]
    for T, qt, h, r in items: a(f"v_pk_fma_f32 {r}, {vr(CWR[T-8]+2*h,2)}, {vr(SX+4*qt,2)}, {r} op_sel_hi:[1,0,1]")
    for T, qt, h, r in items: a(f"v_pk_fma_f32 {r}, {r}, {vr(SX+4*qt,2)}, {vr(B1F+(T-8)*4+2*h,2)} op_sel:[0,1,0] op_sel_hi:[1,1,1]")
    st = []
    for T0, q0 in ((8, 0), (8, 2), (10, 0)):
        regs_ = [ACC(T0 + t, q0 + q) + e for q in range(2) for t in range(2) for e in (0, 2)]
        prs = [(r, B1F + 2 * i) for i, r in enumerate(regs_)]
        for r, t in prs: a(f"v_pk_mul_f32 {vr(t,2)}, {vr(r,2)}, {vr(r,2)}")
        for r, t in prs: a(f"v_pk_fma_f32 {vr(t,2)}, {vr(t,2)}, {kk}, {kk} op_sel:[0,0,1] op_sel_hi:[1,0,1]")
        for r, t in prs: a(f"v_pk_mul_f32 {vr(t,2)}, {vr(t,2)}, {vr(r,2)}")
        for r, t in prs: a(f"v_exp_f32 v{t}, v{t}\nv_exp_f32 v{t+1}, v{t+1}")
        for r, t in prs: a(f"v_pk_add_f32 {vr(t,2)}, {vr(t,2)}, 1.0 op_sel_hi:[1,0]")
        for r, t in prs: a(f"v_rcp_f32 v{t}, v{t}\nv_rcp_f32 v{t+1}, v{t+1}")
        for r, t in prs: a(f"v_pk_mul_f32 {vr(t,2)}, {vr(t,2)}, {vr(r,2)}")
        for i, (r, t) in enumerate(prs): a(f"v_cvt_pk_bf16_f32 v{ACC(T0, q0 + i // 4) + i % 4}, v{t}, v{t+1}")
        vo = VH1 if T0 == 10 else (VOA if q0 < 2 else VOB)
        st = [([], f"buffer_store_dwordx4 {vr(ACC(T0,q0+q),4)}, v{vo}, {srd(sWS)}, s{sHS0 if T0 == 8 else sHS1} offen offset:{q*1024} {c.stflags} ;tag=hst") for q in range(2)]
        if (T0, q0) == (8, 0): a("@waitvm V0\ns_barrier")
        if T0 == 8:
            a(st[0][1])
            if q0:
                for T in (4, 5, 6, 7): a(f"ds_read_b128 {vr(96+4*T,4)}, v{VCR} offset:{T*64}")
            a(st[1][1])
            if q0:
                for T in (0, 1, 2, 3): a(f"ds_read_b128 {vr(96+4*T,4)}, v{VCR} offset:{T*64}")
    c.last_h = st
    a("@stamp gelu")
    return a.lines

def scalar_init(c):
    out = f"""s_mov_b32 s{sVO}, {3*16384}
s_lshl_b32 s{sFW}, s{sW}, 13
s_sub_u32 s{sFW}, s{sFW}, 0x8000
s_sub_u32 s{sFH}, s{sHB}, 0x1000
s_mov_b32 s{sLOOP}, 7
s_mov_b32 s{sTC}, {-(c.l2end + 1 - c.l2n) * (0x100000 // max(c.l2n, 1))}
v_mov_b32 v{VPD}, 0x10000000""".split("\n")
    return [l for l in out if c.l2n or f"s{sTC}," not in l]
def late_scalars(c):
    a = Asm()
    for l in scalar_init(c)[:-1]: a(l)
    RS_ = 0x80000 + 4 * c.PADW + c.PADR
    a(f"""s_mul_i32 s{sT}, s{sRT}, {RS_}
s_mul_i32 s{sT+1}, s{sW}, {c.PADW}
s_add_u32 s{sT}, s{sT}, s{sT+1}
s_add_u32 s{sT}, s{sT}, {WS_O}""")
    mk_srd(a, sOL, sWS, sWS + 1, f"s{sT}", 0x80000)
    a(f"""s_lshl_b32 s{sT}, s{sQB}, 2
s_add_u32 s{sT}, s{sT}, s{sW}
s_mul_i32 s{sT}, s{sT}, {RS_}
s_lshr_b32 s{sT+1}, s{sHEAD}, 3
s_mul_i32 s{sT+1}, s{sT+1}, {c.PADW}
s_add_u32 s{sT}, s{sT}, s{sT+1}
s_add_u32 s{sT}, s{sT}, {WS_O}""")
    mk_srd(a, sOT, sWS, sWS + 1, f"s{sT}", 0x80000)
    if c.recenter: a(f"s_mov_b32 s{sRC}, {c.recenter}")
    if c.l2n:
        a(f"s_and_b32 s{sT}, s{sHEAD}, 3\ns_lshl_b32 s{sT}, s{sT}, 7\ns_sub_u32 s{sPF}, s{sWO}, s{sT}\ns_subb_u32 s{sPF+1}, s{sWO+1}, 0")
    return [l.strip() for l in a.lines]
def l2_addr(c):
    R = 32 // c.l2n; sh = (64 // R).bit_length() - 1
    return [f"s_lshr_b32 s{sT}, s2, 3", f"s_mul_i32 s{sT}, s{sT}, {R * 1024}", f"s_lshl_b32 s{sT+1}, s{sW}, 20", f"s_add_u32 s{sT}, s{sT}, s{sT+1}",
            f"v_lshrrev_b32 v{VTO}, {sh}, v0", f"v_lshl_add_u32 v{VTO}, v{VTO}, 10, s{sT}", f"v_bfe_u32 v{VTO+1}, v0, {sh-2}, 2", f"v_lshl_add_u32 v{VTO}, v{VTO+1}, 7, v{VTO}"]
def f_zero():
    return [([f"s_add_u32 m0, s{sFM}, {i*4096}"], f"buffer_load_dwordx4 v{VPD}, {srd(sW2)}, 0 offen lds ;tag=fz") for i in range(2)]

def head(c, early):
    a = Asm()
    TQ = S0
    def weave(va, mf, mem=()):
        va = list(va); mem = list(mem); tot = sum(icost(l) for l in va); done = 0
        for n_, m in enumerate(mf):
            a(m)
            for _ in range(-(-len(mem) // (len(mf) - n_))):
                x = mem.pop(0)
                for l in ([x] if isinstance(x, str) else x[0] + [x[1]]): a(l)
            while va and done < tot * (n_ + 1) / len(mf): done += icost(va[0]); a(va.pop(0))
        for l in va: a(l)
    def corr(qt):
        it = [(T, h, vr(ACC(T, qt) + 2 * h, 2)) for T in range(8) for h in range(2)]
        for T, h, r in it: a(f"v_pk_fma_f32 {r}, {vr(96+4*T+2*h,2)}, {vr(SX+4*qt,2)}, {r} op_sel_hi:[1,0,1]")
        for T, h, r in it: a(f"v_pk_mul_f32 {r}, {r}, {vr(SX+4*qt+2,2)} op_sel_hi:[1,0]")
    def frag(qt):
        va = []
        for ks in range(4):
            t = TQ + 4 * ks; X, Y = ACC(2 * ks, qt), ACC(2 * ks + 1, qt)
            va += [f"v_cvt_pk_bf16_f32 v{t}, v{X}, v{X+1}", f"v_cvt_pk_bf16_f32 v{t+2}, v{Y}, v{Y+1}",
                   f"v_cvt_pk_bf16_f32 v{t+1}, v{X+2}, v{X+3}", f"v_cvt_pk_bf16_f32 v{t+3}, v{Y+2}, v{Y+3}"]
        for ks in range(4):
            t = TQ + 4 * ks
            va += [f"v_permlane16_swap_b32 v{t}, v{t+2}", f"v_permlane16_swap_b32 v{t+1}, v{t+3}"]
        return va + [f"v_accvgpr_write_b32 a{Q(qt,0)+e}, v{TQ+e}" for e in range(16)]
    def rowmax(qt):
        r = [S(qt, e // 4) + e % 4 for e in range(16)]; n = NEGM + 4 * qt
        va = []
        for k in range(0, 8, 2):
            for h, t in ((0, 88), (8, 89)):
                va.append(f"v_max3_f32 v{t}, v{r[h+k]}, v{r[h+k+1]}, v{t}" if k else f"v_max_f32 v{t}, v{r[h]}, v{r[h+1]}")
        va += ["v_max_f32 v88, v88, v89", "v_mov_b32 v89, v88", "v_permlane32_swap_b32 v88, v89", "v_max_f32 v88, v88, v89",
               "v_mov_b32 v89, v88", "v_permlane16_swap_b32 v88, v89", "v_max_f32 v88, v88, v89", "v_floor_f32 v88, v88",
               f"v_sub_f32 v{n}, -v88, s{sSH}"]
        return va + [f"v_add_f32 v{x}, v{x}, v{n}" for x in r] + [f"v_mov_b32 v{n+k}, v{n}" for k in (1, 2, 3)]
    def mix(x, y):
        out = []; x = list(x); y = list(y); nx, ny = len(x), len(y)
        while x or y:
            if x and (not y or (nx - len(x)) * ny <= (ny - len(y)) * nx): out.append(x.pop(0))
            else: out.append(y.pop(0))
        return out
    vob = [f"v_lshrrev_b32 v{VOB}, 3, v0", f"v_lshl_add_u32 v{VOB}, s{sW}, 4, v{VOB}", f"v_and_b32 v{VOA}, 7, v0",
           f"v_lshlrev_b32 v{VOA}, 4, v{VOA}", f"v_lshl_add_u32 v{VOB}, v{VOB}, 10, v{VOA}"]
    sm = lambda n, upto=32: sum((sm_ops(n, p) for p in range(upto)), [])
    qk = lambda n: qk_mfmas(n, czero=True)
    pv = lambda n: [smf(n)] + pv_mfmas(n)
    vr0 = v_reads(0)
    ini = attn_init()
    a(scalar_init(c)[-1])
    if c.smtest:
        a(f"v_and_b32 v88, 15, v0\nv_cmp_gt_u32 vcc, {c.smtest}, v88")
        for r in range(4): a(f"v_cndmask_b32 v{SMA+r}, 0, v{SMA+r}, vcc")
    b = Asm(); b2_init(b, 90)
    for l in flat(c.last_h) + b.lines[:2]: a(l)
    corr(0)
    for l in frag(0): a(l)
    a("@stamp h0")
    corr(1); weave(frag(1), qk(0), mix(f_zero() + b.lines[2:], vr0[:14]))
    a("@stamp h1")
    kv3 = ([] if c.K2 else dma_kv("K", 2)) + dma_kv("V", 2) + dma_kv("K", 3) + dma_kv("V", 3)
    bar = f"""s_lshl_b32 s{sT}, s{sQB}, 5
v_mov_b32 v90, 1
@waitvm K1,V1,hst,fz lgkm0
s_barrier
buffer_atomic_add v90, v{VONE}, {srd(sDBG)}, s{sT} offen sc1
@stamp hb"""
    if c.sat & 2: bar = "\n".join(s_count("b", 0)[:4] + ["@waitvm K1,V1,hst,fz lgkm0", "s_barrier"] + s_count("b", 0)[4:])
    corr(2); weave(mix(rowmax(0), frag(2)), qk(1), vr0[14:] if c.HB == 2 else vr0[14:28])
    a("@stamp h2")
    corr(3)
    if c.HB == 2: a(bar)
    weave(mix(rowmax(1) + ini[24:], sm(0) + frag(3)), qk(2), ([] if c.HB == 2 else vr0[28:]) + sum(([x, "; "] for x in kv3[:len(kv3) // 2]), []))
    a("@stamp h3")
    if c.HB == 3: a(bar)
    weave(mix(["s_nop 0"] * 6 + rowmax(2), sm(1)), qk(3) + pv(0), sum(([x, "; ", "; ", "; "] for x in kv3[len(kv3) // 2:]), []))
    a("@stamp h4")
    h_ = len(early) // 2
    weave(mix(rowmax(3), sm(2)), pv(1), early[:h_] + (touches(c, 91, 'v92', 'v93') if c.TP else []))
    weave(vob + (l2_addr(c) if c.l2n else []) + sm(3, 32 - c.SM0), pv(2), early[h_:])
    return a.lines

SLOTS = {"X": ("V", XB)}
for _i in range(4): SLOTS[f"K{_i}"] = ("K", _i * KSLOT); SLOTS[f"V{_i}"] = ("V", VBASE + _i * VSLOT)
FAKE = [False]
SIG = {n: n for n in range(32)}
def make_pairs(c):
    Ls = list(range(c.NR, 32)); Hs = list(range(c.NR)); NP = 16 - c.ND // 2
    nll = len(Ls) - NP; assert nll >= 0
    llpos = {c.LL0 + c.LLS * k_ for k_ in range(nll)}; assert all(p < NP for p in llpos)
    return [(Hs.pop(0), Hs.pop(0)) if p >= NP else (Ls.pop(0), Ls.pop(0)) if p in llpos else (Ls.pop(0), Hs.pop(0)) for p in range(16)]
def t_wload(n, slot):
    A = sT + 2
    kind, base = SLOTS[slot]
    pre = [f"s_xor_b32 s{A}, s{sRO}, {SIG[n] << 15}",
           f"s_add_u32 m0, s{sKM if kind == 'K' else sVM}, {base if kind == 'K' else base - VBASE}"]
    g = []
    for i in range(4):
        if i: pre = [f"s_add_u32 s{A}, s{A}, 7168"]
        g.append((pre, f"buffer_load_dwordx4 v{VDW}, {srd(sWO)}, s{A} offen offset:{i*1024} {WFL[0]} lds ;tag=t{n}"))
    return g
def t_bload(c, n, dst):
    B = sT + 3
    return [([f"s_xor_b32 s{B}, s{sOB}, {((SIG[n] >> 2) << 14) + ((SIG[n] & 3) << 10) + (j << 12)}"],
             f"buffer_load_dwordx4 {dst(j)}, v{VL}, {srd(sOL)}, s{B} offen {c.ldflags} ;tag=b{n}") for j in range(4)]
def t_reads(slot, dst):
    kind, base = SLOTS[slot]
    r = VRA + (4 if slot == "X" else 0 if kind == "K" else 2)
    off = 0 if slot == "X" else base if kind == "K" else base - VBASE
    return [f"ds_read_b64_tr_b16 {dst(ct, t)}, v{r + (ct & 1)} offset:{off + t*2048 + (ct>>1)*512}" for ct in range(4) for t in range(2)]
def quads(k, b): return [(k, b + 4 * i) for i in range(4)]
HOLD = [quads("v", 112), quads("a", 240), quads("a", 208), quads("a", 224), [("a", 128), ("a", 132), ("a", 160), ("a", 164)]] + \
       [quads("a", b) for b in (64, 80, 96, 112, 136)] + [[("a", 152), ("a", 156), ("a", 168), ("a", 172)]] + \
       [quads("a", 176), quads("v", 96), quads("a", 192)] + [quads("a", b) for b in (0, 16, 32, 48)]
def hold(i): return lambda ct, t=None: rr(HOLD[i][ct], 4) if t is None else rr(HOLD[i][ct], 2, 2 * t)
class WStream:
    def __init__(self): self.slot = {}; self.nxt = 0; self.held = 0
    def fill(self, sl):
        if self.nxt >= 32: return []
        n = self.nxt; self.nxt += 1; self.slot[n] = sl
        return t_wload(n, sl)
    def take(self):
        n = self.held; self.held += 1
        return f"@waitvm t{n}", t_reads(self.slot[n], hold(n)), f"@dep {HOLD[n][3][0]}{HOLD[n][3][1] + 3}", self.slot[n]
FAF = 208
def FH(buf, i): return 224 + buf * 8 + i * 4
def f_loads(c, gam, buf, nk):
    g = []
    for i in range(nk):
        g.append(([f"s_add_u32 s{sFW}, s{sFW}, 0x8000", f"s_add_u32 m0, s{sFM}, {buf*8192 + i*4096}"],
                  f"buffer_load_dwordx4 v{VDW}, {srd(sW2)}, s{sFW} offen {c.fwflags} lds ;tag=f{gam}"))
        g.append(([f"s_add_u32 s{sFH}, s{sFH}, 0x1000"],
                  f"buffer_load_dwordx4 {ar(FH(buf,i),4)}, v{VL}, {srd(sWS)}, s{sFH} offen {c.fhflags} ;tag=f{gam}"))
    return g
def f_part(buf, nk, g):
    it = [(2*g, 0), (2*g, 1), (2*g+1, 1), (2*g+1, 0)] if nk == 2 else [(ct, 0) for ct in range(4)]
    FB = 240 if g else FAF
    rd = [f"ds_read_b64_tr_b16 {ar(FB+4*n+2*t,2)}, v{VFO if ct & 1 else VFE} offset:{buf*8192 + i*4096 + t*2048 + (ct>>1)*512}" for n, (ct, i) in enumerate(it) for t in range(2)]
    return rd, [f"{M16} {vr(FA+4*ct,4)}, {ar(FB+4*n,4)}, {ar(FH(buf,i),4)}, {vr(FA+4*ct,4)}" for n, (ct, i) in enumerate(it)]
def f_group(k):
    if k == 0: return (-1, 0, 2)
    if k == 29: return (21, 1, 1)
    if 1 <= k <= 28 and (k - 1) % 4: return (3 * ((k - 1) // 4) + (k - 1) % 4 - 1, 1 if (k - 1) % 4 == 2 else 0, 2)
    return None

def spin(name, load, okcmp, back, slp=0):
    return f"""L_spin_{name}:
s_mov_b32 s{sT+6}, 0x40000
L_spin_{name}_l:{chr(10) + 's_sleep %d' % slp if slp else ''}
{load}
s_waitcnt vmcnt(0)
{okcmp}
s_cbranch_scc1 {back}
s_sub_u32 s{sT+6}, s{sT+6}, 1
s_cmp_lg_u32 s{sT+6}, 0
s_cbranch_scc1 L_spin_{name}_l
s_branch {back}""".split("\n")
CNT_LOAD = f"buffer_load_dword v{VPD}, off, {srd(sDBG)}, s{sT+7} sc1"
ST_LOAD = f"buffer_load_dword v{VPD}, off, {srd(sDBG)}, s{sT+7} offset:4 sc1"
CNT_OK = f"v_cmp_le_u32 vcc, 32, v{VPD}\ns_nop 0\ns_cmp_eq_u64 vcc, -1"
FL_LOAD = f"buffer_load_dword v{VPD}, v{VPA}, {srd(sWS)}, s{sT+7} offen sc1"
FL_OK = f"v_cmp_eq_u32 vcc, 1, v{VPD}\ns_nop 0\ns_cmp_eq_u64 vcc, -1"

QKO = [(i, 3 - k if i & 1 else k) for i in range(4) for k in range(4)]
PVO = [(dt, u ^ (dt & 1)) for dt in range(8) for u in range(2)]
def k_reads(T):
    return [f"ds_read_b128 {ar(KF(i,ks),4)}, v{VK} offset:{(T % NS)*KSLOT + i*1024 + ks*256}" for i, ks in QKO]
def v_reads(T):
    return [f"ds_read_b64_tr_b16 {rr(VF(T,u,dt),2,2*t)}, v{VV} offset:{(T % NS)*VSLOT + (2*u+t)*1024 + (dt>>1)*256 + (dt&1)*32}" for dt, u in PVO for t in range(2)]
def qk_mfmas(n, czero=False):
    qt = n & 3
    return [f"{M16} {vr(S(n,i),4)}, {ar(KF(i,ks),4)}, {ar(Q(qt,ks),4)}, " + (vr(S(n,i),4) if g & 3 else "0" if czero else vr(NEGM+qt*4,4)) for g, (i, ks) in enumerate(QKO)]
def pv_mfmas(n):
    qt = n & 3
    return [f"{M16} {vr(O(dt,qt),4)}, {rr(VF(n>>2,u,dt),4)}, {vr(P(n)+4*u,4)}, " + (vr(O(dt,qt),4) if n >= 4 or g & 1 else "0") for g, (dt, u) in enumerate(PVO)]
def smf(n): return f"{SMF} {ar(LA(n&3),4)}, {vr(SMA,4)}, {vr(P(n),8)}, v{VIDX}"
def sm_ops(n, p):
    e = p // 2
    if p < 0 or e >= 16: return []
    r = S(n, e // 4) + e % 4
    if p % 2 == 0: return [f"v_exp_f32 v{r}, v{r}"]
    return [f"v_cvt_pk_bf16_f32 v{P(n)+e//2}, v{r-1}, v{r}"] if e % 2 else []
def o_finish(c, qt, packed):
    L_, RC, MX = NEGM + 4 * qt, NEGM + 4 * qt + 2, NEGM + 4 * qt + 1
    va = [[f"v_accvgpr_read_b32 v{L_}, a{LA(qt)}", f"v_accvgpr_read_b32 v{RC}, a{LA(qt)+1}", f"v_add_f32 v{L_}, v{L_}, v{RC}", f"v_rcp_f32 v{RC}, v{L_}"], [], [], []]
    st = []
    for m in range(4):
        src = [O(2*m, qt) + e for e in range(4)] + [O(2*m+1, qt) + e for e in range(4)]
        for i in range(0, 8, 2):
            r = src[i]
            va[m].append(f"v_maximum3_f32 v{MX}, |v{r}|, |v{r+1}|, " + (f"v{MX}" if m or i else "0"))
            if packed: va[m].append(f"v_pk_mul_f32 {vr(r,2)}, {vr(r,2)}, {vr(RC,2)} op_sel_hi:[1,0]")
            else: va[m] += [f"v_mul_f32 v{r}, v{r}, v{RC}", f"v_mul_f32 v{r+1}, v{r+1}, v{RC}"]
        va[m] += [f"v_cvt_pk_bf16_f32 v{src[e]}, v{src[2*e]}, v{src[2*e+1]}" for e in range(4)]
        st.append(f"buffer_store_dwordx4 {vr(src[0],4)}, v{VL}, {srd(sOT)}, s{sT} offen offset:{m*1024} {c.stflags} ;tag=ost")
    va[0].insert(0, f"s_xor_b32 s{sT}, s{sOS}, {qt << 12}")
    return va, st

def attention(c, ws):
    sc = Sched(); idx = {}; fidx = {}
    for G in range(2 * 32 + c.BAR + 1, 129 * 32):
        n, g = divmod(G, 32)
        m = (qk_mfmas(n)[g] if n < 128 else None) if g < 16 else pv_mfmas(n - 1)[g - 16]
        idx[G] = sc.add(m)
        for nn in (n - 1, n):
            if nn < 128: sc.valu[idx[G]] += sm_ops(nn, G - 32 * nn - c.SM0)
        if g == 15: sc.add(smf(n - 1))
        k = G // 128
        fc = f_group(k - 1) if k >= 1 else (0, 0, 2)
        if fc:
            for h in range(fc[2]):
                if G - 128 * k == c.FPOS[h]:
                    for n_, m in enumerate(f_part(fc[1], fc[2], h)[1]): fidx[(k, h, n_)] = sc.add(m)
    def spread(lines, g0, g1):
        gaps = list(range(g0, g1 + 1)); lines = list(lines)
        tot = sum(icost(l) for l in lines) + sum(sc.cost(x) for x in gaps); acc_ = 0; last = g0
        for n_, x in enumerate(gaps):
            acc_ += sc.cost(x)
            while lines and (acc_ < tot * (n_ + 1) / len(gaps) - 2 or n_ == len(gaps) - 1):
                acc_ += icost(lines[0]); sc.valu[x].append(lines.pop(0)); last = x
        return last
    for k in range(1, 32):
        B = 128 * k
        lo = idx[B - 64 + c.BAR + 1]; nb = idx[B + 64 + c.BAR]; hi = nb - 4; end = nb - 1
        fg = f_group(k); p = (k - 1) % 4
        tags = f"V{k+1},K{k+1}" + (f",f{fg[0]}" if fg else "")
        if k < 31: sc.sal[nb] += [f"@waitvm {tags} lgkm0", "s_barrier"]
        if k <= 29: sc.post[idx[B + 32] - 1].append(f"@seg {k}")
        if k >= 30:
            for q_ in (-32, 32, 64, 96)[:2 if k == 30 else 4]: sc.post[idx[B + q_] - 1].append(f"@stamp p{(B + q_) // 32}")
        if c.recenter and c.rcw and k <= 28 and p == 1:
            sc.sal[idx[B] - 2].append(f"s_bitcmp1_b32 s{sRC}, s{sLOOP}")
            sc.post[idx[B] - 1] += ["s_cbranch_scc1 L_rc_a", "@rc 0"]
            for q_ in (1, 2, 3): sc.post[idx[B + 32 * q_] - 1].append(f"@rc {q_}")
            sc.post[idx[B + 128] - 1].append("L_rc_back:")
        if c.recenter and not c.rcw and k <= 29:
            for nm, p_, g_ in (("a", 0, 64), ("b", 1, 0)):
                if p == p_:
                    sc.sal[idx[B + g_] - 2].append(f"s_bitcmp1_b32 s{sRC}, s{sLOOP}")
                    sc.post[idx[B + g_] - 1] += [f"s_cbranch_scc1 L_rc_{nm}", f"L_rc_{nm}_back:"]
        if fg and k <= 28: place_group(sc, f_loads(c, *fg), idx[B], end)
        elif k <= 29 and c.codepf2: place_group(sc, [([], f"global_load_dword v{VOA}, v{VCP}, s[90:91]")], idx[B], end)
        if p == 1 and k <= 28: sc.post[idx[B - 3]] += CNT_OK.split("\n") + ["s_cbranch_scc0 L_spin_cnt", "L_ok_cnt:"]
        dm = []
        if k <= 29:
            for kind, sM, SL, d in (("K", sKM, KSLOT, sK), ("V", sVM, VSLOT, sV)):
                dm += [(([f"s_add_u32 s{sVO}, s{sVO}, 0x4000"] if kind == "K" else []) + [f"s_add_u32 m0, s{sM}, {((k+3)%NS)*SL}"] if i == 0 else [],
                        f"buffer_load_dwordx4 v{VD}, {srd(d)}, s{sVO} offen offset:{i*1024} {c.kvflags} lds ;tag={kind}{k+3}") for i in range(4)]
            if p == 0: dm = [([f"s_lshl_b32 s{sT+7}, s{sGX}, 5"], CNT_LOAD)] + dm
            if c.l2n:
                dm.append(([f"s_add_u32 s{sTC}, s{sTC}, {0x100000 // c.l2n}", f"s_cmp_lt_u32 s{sTC}, 0x100000", f"s_cselect_b32 s{sPF+2}, {4096*1024-512}, 0", f"s_cselect_b32 s{sTO}, s{sTC}, 0"],
                           f"buffer_load_dword v{VTO+1}, v{VTO}, {srd(sPF)}, s{sTO} offen"))
            place_group(sc, dm, idx[B + c.DPOS], end, sp=c.DSP)
        ops = [(l, max(lo, idx[B - 32 + g]), idx[B + g] - c.MG) for g, l in enumerate(k_reads(k))]
        ops += [(l, lo if PVO[n_ // 2][0] < NVX else idx[B + 16 + n_ // 2], idx[B + 48 + n_ // 2] - c.MG) for n_, l in enumerate(v_reads(k))]
        fc = f_group(k - 1)
        if fc:
            for h in range(fc[2]):
                ops += [(l, idx[B], min(fidx[(k, h, n_ // 2)] - c.MG, hi)) for n_, l in enumerate(f_part(fc[1], fc[2], h)[0])]
        if k == 29:
            sc.place_edf(ops); ops = []
            for pre, l in dm + [([f"s_bitcmp1_b32 s{sRC}, s{sLOOP}", "s_cbranch_scc1 L_rc_a"], "L_rc_a_back:")]:
                for x in range(idx[B + 32], nb):
                    for lst in (sc.sal[x], sc.mem[x], sc.post[x]):
                        for y in pre + [l]:
                            if y in lst: lst.remove(y)
        def hold_in(g0, g1, vm, sp=4):
            w, rd, dep, sl = ws.take()
            g0 = next(x for x in range(g0, g1) if not sc.sal[x]); sc.sal[g0].append(w)
            ops.extend((l, g0, g1) for l in rd)
            g2 = next(x for x in range(max(g1 + 3, vm), end) if not sc.sal[x]); sc.sal[g2].append(dep)
            return place_group(sc, ws.fill(sl), g2, end, sp, 1 if sp == 2 else None)
        pg = [([], f"buffer_load_dword v{90+i}, off, {srd(d)}, {o} sc1") for i, (d, o) in enumerate(((sOT, f"s{sOS}"), (sOL, f"s{sOB}"), (sOUT, 0)))] if c.pg & 2 else []
        if k == 29: place_group(sc, pg + f_loads(c, *fg) + ws.fill("K0") + ws.fill("V0"), idx[B + (33 if pg else 40)], end, sp=3 if pg else 4)
        xt = [([f"s_lshl_b32 s{sT+4}, s{sW}, 11", f"s_add_u32 m0, s{sT+4}, {XT}"], f"buffer_load_dwordx4 v{VOB}, {srd(sXX)}, 0 offen lds ;tag=xt"),
              ([f"s_mov_b32 s{sT+4}, 7168"], f"buffer_load_dwordx4 v{VOB}, {srd(sXX)}, s{sT+4} offen offset:1024 lds ;tag=xt")]
        if k == 30:
            cur = place_group(sc, ws.fill("K1") + ws.fill("V1") + xt, lo, end)
            for g0, g1 in c.H30W: cur = hold_in(idx[B + g0], idx[B + g1], cur, c.HSP)
        if k == 31:
            cur = place_group(sc, ws.fill("K2") + ws.fill("V2") + ws.fill("X"), lo, end)
            g_ = next(x for x in range(idx[B + 13], end) if not sc.sal[x]); sc.sal[g_] += ["s_waitcnt lgkmcnt(0)", "s_barrier"]
            cur = place_group(sc, ws.fill("K3"), max(cur, g_), end)
            for g0, g1 in c.H31W: cur = hold_in(idx[B + g0], idx[B + g1], cur)
        if ops: sc.place_edf(ops)
    late = None
    if c.stagger:
        cut = idx[126 * 32]; scA, wsA = sc, ws
        assert not any(m.startswith("buffer_") for x in range(cut, sc.n()) for m in sc.mem[x])
        sc, ws = copy.deepcopy(scA), copy.deepcopy(wsA); ops = []; end = sc.n() - 1; cur = cut
        for g0, g1 in c.HLW: cur = hold_in(idx[126 * 32 + g0], idx[126 * 32 + g1], cur)
        sc.place_edf(ops)
        for lst in (sc.mf, sc.sal, sc.mem, sc.valu, sc.post): del lst[:cut]
        late = (sc.lines(), ws); sc, ws = scA, wsA
        sc.sal[cut - 2].append(f"s_bitcmp1_b32 s2, {c.stagger}")
        sc.post[cut - 1] += ["s_cbranch_scc1 L_late", "@cut"]
    if c.NE: sc.sal[idx[(129 - c.NE) * 32] - 1].append("s_setreg_imm32_b32 hwreg(HW_REG_MODE, 4, 2), 3")
    for qt in range(c.NE):
        n = 129 - c.NE + qt
        va, st = o_finish(c, qt, False)
        g0, g1 = idx[32 * n + (3 if n < 128 else 12)], idx[32 * n + 31]
        for m in range(4):
            a0 = g0 + (g1 - g0) * m // 4; a1 = g0 + (g1 - g0) * (m + 1) // 4 - 1
            spread(va[m], a0, a1); sc.mem[a1 + 1].append(st[m])
    ge = lambda x: max(16, 16 - sc.budget(x) + sc.cost(x)) if sc.mf[x] else sc.cost(x)
    pe = [sum(ge(x) - (16 if sc.mf[x] else 0) for x in range(idx[32 * n], idx[32 * n + 31] + 1)) for n in list(range(37, 53)) + list(range(117, 129))]
    print("attention est cycles", sc.est(), "overflow per period", pe, file=sys.stderr)
    g4 = idx[128]
    if c.estonly: return pe
    early = sum((sc.mem[x] for x in range(g4)), [])
    assert all(l.startswith("ds_read") for l in early) and not any(sc.sal[x] or sc.post[x] for x in range(g4))
    for lst in (sc.mf, sc.sal, sc.mem, sc.valu, sc.post): del lst[:g4]
    return early, sc.lines(), late

class Pump:
    def __init__(self, a, ws): self.a = a; self.ws = ws; self.pend = []; self.nxt = None
    def busy(self): return bool(self.pend or self.nxt)
    def __call__(self, nload, limit):
        a, ws = self.a, self.ws
        for _ in range(nload):
            if not self.pend:
                prev = self.nxt; self.nxt = None
                if ws.held < limit:
                    w, rd, dep, sl = ws.take(); a(w)
                    for l in rd: a(l)
                    self.nxt = (dep, sl)
                if prev:
                    g = ws.fill(prev[1])
                    if g: a(prev[0]); self.pend.extend(g)
            if self.pend:
                pre, l = self.pend.pop(0)
                for x in pre + [l]: a(x)

def gate(c):
    G = FA; TT = 48
    b = Asm()
    b(f"""v_lshrrev_b32 v31, 4, v0
v_lshlrev_b32 v31, 3, v31
v_and_b32 v30, 15, v0
s_lshl_b32 s{sT}, s{sW}, 11
s_add_u32 s{sT}, s{sT}, {XT}
v_lshl_add_u32 v29, v30, 7, v31
v_add_u32 v29, s{sT}, v29
v_mul_u32_u24 v30, 144, v30
v_add3_u32 v30, v30, v31, s{sKM}
v_lshrrev_b32 v31, 3, v0
v_mul_u32_u24 v31, 144, v31
v_and_b32 v28, 7, v0
v_lshl_add_u32 v31, v28, 4, v31
v_add_u32 v31, s{sKM}, v31""")
    for i in range(16): b(f"v_mul_f32 v{TT+i}, {f2u(-math.log2(math.e))}, v{G+i}")
    for i in range(16): b(f"v_exp_f32 v{TT+i}, v{TT+i}")
    for i in range(0, 16, 2): b(f"v_pk_add_f32 {vr(TT+i,2)}, {vr(TT+i,2)}, 1.0 op_sel_hi:[1,0]")
    for i in range(16): b(f"v_rcp_f32 v{TT+i}, v{TT+i}")
    for i in range(0, 16, 2): b(f"v_pk_mul_f32 {vr(G+i,2)}, {vr(G+i,2)}, {vr(TT+i,2)}")
    return b.lines

def tail1(c, ws, late=False):
    a = Asm()
    T = 88; EX = S0
    pump = Pump(a, ws)
    if not c.NE: a("s_setreg_imm32_b32 hwreg(HW_REG_MODE, 4, 2), 3")
    pump(1, c.NB1)
    for qt in range(0 if late else c.NE, 4):
        va, st = o_finish(c, qt, True)
        for m in range(4):
            for l in va[m] + [st[m]]: a(l)
    pump(c.NP0, c.NB1)
    if not c.early_gate:
        while pump.busy() or ws.held < c.NB1: pump(1, c.NB1)
    a(f"s_mov_b32 s{sT+4}, 0x100\ns_mov_b64 s[{sT+6}:{sT+7}], -1")
    for qt in range(4):
        for r in (NEGM + 4 * qt, NEGM + 4 * qt + 1, NEGM + 4 * qt + 2):
            a(f"v_cmp_class_f32 vcc, v{r}, s{sT+4}\ns_and_b64 s[{sT+6}:{sT+7}], s[{sT+6}:{sT+7}], vcc")
    a(f"s_cmp_eq_u64 s[{sT+6}:{sT+7}], -1\ns_cselect_b32 s{sT+4}, 0, 1")
    if c.force_fallback: a(f"s_mov_b32 s{sT+4}, 1")
    if c.nofb: a(f"s_mov_b32 s{sT+4}, 0")
    a(f"""s_lshl_b32 s{sT+5}, s{sW}, 2
s_add_u32 s{sT+5}, s{sT+5}, {FLBASE}
v_mov_b32 v{T}, s{sT+5}
v_mov_b32 v{T+1}, s{sT+4}
ds_write_b32 v{T}, v{T+1}
s_setreg_imm32_b32 hwreg(HW_REG_MODE, 4, 2), 0
v_mov_b32 v{EX+8}, {FLBASE}
v_mov_b32 v{EX+9}, 1
s_lshl_b32 s{sT+7}, s{sGX}, 8
s_add_u32 s{sT+7}, s{sT+7}, {0 if c.pollall else 's%d' % sKW}
s_add_u32 s{sT+7}, s{sT+7}, {WS_FL}""")
    if c.early_gate:
        for l in gate(c): a(l)
    if c.hop and late:
        for l in hop(c, "L_hoq")[:-2] + ["L_late_back:"]: a(l)
    elif c.hop:
        for l in hop(c, "L_hoq"): a(l)
        if c.stagger: a(f"s_bitcmp1_b32 s2, {c.stagger}\ns_cbranch_scc1 L_late_back")
    while pump.busy() or ws.held < c.NB1: pump(1, c.NB1)
    a("@waitvm ost lgkm0")
    return [l.strip() for l in a.lines]

def tail2(c, ws):
    a = Asm()
    SA = 128; AB = S0; XR = 16; G = FA; TT = 48; EX = AB
    def acc(ct, j): return SA + (j * 4 + ct) * 4
    def abuf(n): return lambda ct, t=None: vr(AB + (n & 1) * 16 + ct * 4, 4) if t is None else vr(AB + (n & 1) * 16 + ct * 4 + 2 * t, 2)
    def emit(ls):
        for l in ls: a(l)
    pump = Pump(a, ws)
    a(f"""L_bar1:
s_barrier
ds_read_b128 {vr(EX+12,4)}, v{EX+8}
v_or3_b32 v{EX+12}, v{EX+12}, v{EX+13}, v{EX+14}
v_or_b32 v{EX+12}, v{EX+12}, v{EX+15}
v_readfirstlane_b32 s{sT+4}, v{EX+12}
s_andn2_b32 s{sT+4}, s{sT+4}, s{sTRY}
s_cmp_lg_u32 s{sT+4}, 0
s_cbranch_scc1 L_fallback
""")
    a("@stamp bar1 rt")
    if c.flagmode == "store": a(f"buffer_store_dword v{EX+9}, v{VONE}, {srd(sWS)}, s{sFLO} offen sc1")
    elif c.flagmode == "vatomic": a(f"buffer_atomic_add v{EX+9}, v{VONE}, {srd(sWS)}, s{sFLO} offen sc1")
    elif c.flagmode == "satomic":
        a(f"""s_cmp_lg_u32 s{sW}, 0
s_cbranch_scc1 L_noflag
s_mov_b32 s{sT+4}, 1
s_atomic_add s{sT+4}, s[{sWS}:{sWS+1}], s{sFLO}
L_noflag:""")
    pump.pend.extend(ws.fill("V3"))
    if not c.early_gate:
        for n_, l in enumerate(gate(c)):
            if n_ % 8 == 0: pump(1, c.NR)
            a(l)
    while ws.held < c.NR: pump(1, c.NR)
    a(FL_LOAD.replace("sc1", c.pollflags))
    while pump.busy(): pump(1, c.NR)
    a("@waitvm xt")
    for ct in range(4): a(f"ds_read_b64 {vr(XR+2*ct,2)}, v29 offset:{ct*32}")
    a("@stamp held rt")
    a(FL_OK + ("\ns_cbranch_scc0 L_spin_fl" if c.flagmode != "none" else "") + "\nL_ok_fl:")
    a("@stamp flags rt")
    if c.chain2:
        ND = c.ND; assert ND % 2 == 0 and 4 <= ND <= 14
        NP = 16 - ND // 2; pairs = make_pairs(c)
        units = [(p, j) for p in range(16) for j in range(4) if j or p < NP] + [(p, 0) for p in range(NP, 16)]
        NU = len(units); NM = NU - ND // 2
        frag = lambda u, h: vr(192 + ((2 * u + h) % 16) * 4, 4)
        def uload(u):
            p, j = units[u]
            return [t_bload(c, pairs[p][h], lambda jj: frag(u, h))[j] for h in range(2)]
        free = [quads("v", AB), quads("v", AB + 16)]; home = {n: HOLD[n] for n in range(c.NR)}
        def areads(n):
            home[n] = free.pop(0)
            return t_reads(ws.slot[n], lambda ct, t: rr(home[n][ct], 2, 2 * t))
        for u in range(c.DU0): emit(flat(uload(u)))
        a(f"@waitvm t{pairs[0][0]}")
        emit(areads(pairs[0][0]))
        L = a.lines
        sc = Sched(); nu = c.DU0; wq = []; pstart = {}; rds = []
        for u, (p, j) in enumerate(units):
            st = sc.n()
            for ct in range(4):
                for k_ in range(2):
                    h = k_ ^ (ct & 1); d = vr(acc(ct, j), 4)
                    sc.add(f"{M16} {d}, {rr(home[pairs[p][h]][ct], 4)}, {frag(u, h)}, {'0' if p == 0 and k_ == 0 else d}")
            if p not in pstart:
                pstart[p] = st
                if p: free.extend(home[n] for n in pairs[p - 1] if p - 1 < NP)
                for n in pairs[p]:
                    if n >= c.NR and ws.nxt < 32:
                        sc.sal[st].append(f"@dep {home[n][3][0]}{home[n][3][1] + 3}"); wq += ws.fill(ws.slot[n])
                nl_ = [n for n in pairs[p + 1] if n >= c.NR] if p < 15 else []
                if nl_:
                    assert not any(f"tag=t{n}" == l.split(";")[-1] for _, l in wq for n in nl_), p
                    sc.sal[st].append("@waitvm " + ",".join(f"t{n}" for n in nl_))
                    rds.append((st, sum((areads(n) for n in nl_), [])))
                if p in (1, 5, 9): sc.sal[st].append(f"@stamp o{2*p if p > 5 else 2*p-1}")
            grp = []
            if nu < NU and nu <= u + c.DU: grp += uload(nu); nu += 1
            if wq and u % c.WSK != c.WSK - 1: grp.append(wq.pop(0))
            elif wq: pass
            elif nu < NU and nu <= u + c.DU: grp += uload(nu); nu += 1
            if grp: place_group(sc, grp, st, st + 7, sp=(1 if len(grp) > 3 else 2))
        assert not wq
        for st, rd in rds: sc.place_edf([(l, st, st + 27) for l in rd])
        st0 = {32: 8 * NM}; N1 = "x"; st0["x"] = pstart[NP]
    else:
        RING = [192, 208, 224, 240]
        ND = c.ND; N1 = 32 - max(ND, 3)
        assert c.DO < len(RING) and ND <= 8
        lds_steps = list(range(c.NR, 32)); held_steps = list(range(c.NR))
        steps = []; li = hi_ = 0
        for i in range(32):
            if li < len(lds_steps) and (li * N1 <= i * len(lds_steps) or hi_ >= c.NR - (32 - N1)): steps.append(lds_steps[li]); li += 1
            else: steps.append(held_steps[hi_]); hi_ += 1
        lpos = {n: k_ for k_, n in enumerate(lds_steps)}
        assert steps[0] in lpos and all(n < c.NR for n in steps[N1:]) and 0 in steps[:24] and 1 in steps[:24]
        def ring(i): return lambda j: vr(RING[i % (c.DO + 1)] + 4 * j, 4) if j or i < 32 - ND else rr((HOLD[0] + HOLD[1])[i - 32 + ND], 4)
        def bload(i):
            g = t_bload(c, steps[i], ring(i))
            return g if i < 32 - ND else g[1:]
        for i in range(c.DO0): emit(flat(bload(i)))
        a(f"@waitvm t{steps[0]}")
        emit(t_reads(ws.slot[steps[0]], abuf(0)))
        L = a.lines
        sc = Sched(); st0 = []
        def mf(i, ct, j):
            n = steps[i]; A = abuf(lpos[n]) if n in lpos else hold(n); d = vr(acc(ct, j), 4)
            return sc.add(f"{M16} {d}, {A(ct)}, {ring(i)(j)}, {'0' if i == 0 else d}")
        for i in range(32):
            st0.append(sc.n())
            order = [(ct, j) for ct in range(4) for j in range(4)] if i < 31 else [(ct, j) for j in (1, 2, 3, 0) for ct in range(4)]
            for ct, j in order:
                if j or i < 32 - ND: mf(i, ct, j)
        st0.append(sc.n())
        for i in range(32 - ND, 32):
            for ct in range(4): mf(i, ct, 0)
        nb = c.DO0
        wq = []
        dq = [t_bload(c, steps[i], ring(i))[0] for i in range(32 - ND, 32)]
        for i, n in enumerate(steps):
            st, en = st0[i], st0[i + 1] - 1
            grp = []
            if nb < 32 and nb <= i + c.DO: grp += bload(nb); nb += 1
            elif nb == 32: k_ = -(-len(dq) // (32 - i)); grp += dq[:k_]; dq = dq[k_:]
            if n in lpos and ws.nxt < 32:
                sc.sal[st].append(f"@dep v{AB + (lpos[n] & 1) * 16 + 15}")
                wq += ws.fill(ws.slot[n])
            k_ = min(len(wq), c.WPS)
            grp += wq[:k_]; wq = wq[k_:]
            if not k_ and nb < 32 and nb <= i + c.DO: grp += bload(nb); nb += 1
            if i in (1, 9, 18): sc.sal[st].append(f"@stamp o{i}")
            if grp: place_group(sc, grp, st, en, sp=(1 if len(grp) > 6 else 2 if len(grp) > 4 else 3))
            if i + 1 < 32 and steps[i + 1] in lpos:
                assert not any(f"tag=t{steps[i+1]}" == l.split(";")[-1] for _, l in wq + grp), i
                sc.sal[st].append(f"@waitvm t{steps[i+1]}")
                cur = st
                for l in t_reads(ws.slot[steps[i + 1]], abuf(lpos[steps[i + 1]])): cur = sc.place_mem(l, cur, en - 1)
        assert not wq and not dq
    b = Asm()
    for j in range(1, 4):
        b(f"""s_add_u32 s{sT}, s{sVM}, {(j-1)*VSLOT}
v_add_u32 v{EX+j-1}, s{sT}, v{VL}
s_xor_b32 s{sT}, s{sW}, {j}
s_mul_i32 s{sT}, s{sT}, {VCH}
s_add_u32 s{sT}, s{sT}, {VBASE+(j-1)*VSLOT}
v_add_u32 v{EX+4+j-1}, s{sT}, v{VL}""")
    XU = EX + 16
    for i in range(8): b(f"v_lshlrev_b32 v{XU+2*i}, 16, v{XR+i}\nv_and_b32 v{XU+2*i+1}, 0xffff0000, v{XR+i}")
    for n_, l in enumerate(b.lines): sc.valu[st0[N1] + n_].append(l.strip())
    wr = [f"ds_write_b128 v{EX+j-1}, {vr(acc(ct,j),4)} offset:{ct*1024}" for j in range(1, 4) for ct in range(4)]
    rd = [f"ds_read_b128 {vr(acc(ct,j),4)}, v{EX+4+j-1} offset:{ct*1024}" for ct in range(4) for j in range(1, 4)]
    a = Asm()
    if ND >= 4:
        g = st0[32] - (10 if c.chain2 else 4)
        for n_, l in enumerate(wr):
            if c.chain2 and n_ in (4, 8): g = max(g, st0[32] - (4 if n_ == 4 else -2))
            sc.mem[g].append(l); g += 1
        g = min(g + 3, sc.n() - 1)
        sc.sal[g] += ["@stamp oproj rt", "s_waitcnt lgkmcnt(0)", "s_barrier"]
        g_rd = g
        for l in rd: sc.mem[g].append(l); g = min(g + 1, sc.n() - 1)
        if c.fold:
            va = []
            for ct in range(4):
                p1, p2, p3 = acc(ct, 1), acc(ct, 2), acc(ct, 3)
                va += [f"v_add_f32 v{p1+e}, v{p1+e}, v{p2+e}" for e in range(4)] + [f"v_add_f32 v{p1+e}, v{p1+e}, v{p3+e}" for e in range(4)]
                va += [f"v_fmac_f32 v{XU+4*ct+e}, v{p1+e}, v{G+4*ct+e}" for e in range(4)]
            gaps = list(range(min(g_rd + 8, sc.n() - 1), sc.n()))
            for n_, l in enumerate(va): sc.valu[gaps[n_ * len(gaps) // len(va)]].append(l)
    else:
        a("@stamp oproj rt")
        emit(wr + ["s_waitcnt lgkmcnt(0)", "s_barrier"] + rd)
    L += sc.lines()
    for j in (2, 3) if not c.fold else ():
        for ct in range(4):
            for h in (0, 2): a(f"v_pk_add_f32 {vr(acc(ct,1)+h,2)}, {vr(acc(ct,1)+h,2)}, {vr(acc(ct,j)+h,2)}")
    for cp in (0, 2):
        it = [(acc(ct, 0) + h, acc(ct, 1) + h, 4 * ct + h) for ct in (cp, cp + 1) for h in (0, 2)]
        for r, p, o in it if not c.fold else (): a(f"v_pk_add_f32 {vr(r,2)}, {vr(r,2)}, {vr(p,2)}")
        for r, p, o in it: a(f"v_pk_fma_f32 {vr(r,2)}, {vr(r,2)}, {vr(G+o,2)}, {vr(XU+o,2)}")
        for r, p, o in it: a(f"v_cvt_pk_bf16_f32 v{XR+o//2}, v{r}, v{r+1}")
        for ct in (cp, cp + 1): a(f"ds_write_b64 v30, {vr(XR+2*ct,2)} offset:{ct*32}")
    a(f"s_mov_b32 s{sT}, 8192")
    for i in range(2): a(f"ds_read_b128 {vr(SA+4*i,4)}, v31 offset:{i*8*144}")
    for i in range(2): a(f"buffer_store_dwordx4 {vr(SA+4*i,4)}, v{VOB}, {srd(sOUT)}, {'s%d' % sT if i else 0} offen {c.outflags}")
    return L + a.lines

def fallback(c, early):
    a = Asm()
    T = 88; U = P0
    def emit(ls):
        for l in ls: a(l)
    def reads(ls):
        for i in range(0, len(ls), 8): emit(ls[i:i + 8] + ["s_waitcnt lgkmcnt(0)"])
    a(f"L_fallback:\ns_mov_b32 s{sTRY}, 1\ns_mov_b32 s{sRC}, 0\ns_mov_b32 s{sLOOP}, 0")
    for qt in range(4): a(f"v_mov_b32 v{T+qt}, 0xff800000")
    a(f"""L_fb_loop:
s_waitcnt vmcnt(0) lgkmcnt(0)
s_barrier
s_mov_b32 m0, s{sKM}
s_nop 0""")
    for i in range(4): a(f"buffer_load_dwordx4 v{VD}, {srd(sK)}, s{sLOOP} offen offset:{i*1024} lds")
    a("s_waitcnt vmcnt(0)\ns_barrier")
    reads(k_reads(0))
    for qt in range(4): emit(qk_mfmas(qt, True))
    a("s_nop 7")
    for qt in range(4):
        for e in range(0, 16, 2): a(f"v_max3_f32 v{T+qt}, v{T+qt}, v{S(qt,e//4)+e%4}, v{S(qt,e//4)+e%4+1}")
    a(f"s_add_u32 s{sLOOP}, s{sLOOP}, 0x4000\ns_cmp_lt_u32 s{sLOOP}, 0x80000\ns_cbranch_scc1 L_fb_loop")
    for sw in ("v_permlane32_swap_b32", "v_permlane16_swap_b32"):
        for qt in range(4): a(f"v_mov_b32 v{U+qt}, v{T+qt}")
        for qt in range(4): a(f"{sw} v{T+qt}, v{U+qt}")
        for qt in range(4): a(f"v_max_f32 v{T+qt}, v{T+qt}, v{U+qt}")
    a("s_barrier")
    for t in range(4): emit(flat(dma_kv("K", t) + dma_kv("V", t)))
    b2_init(a)
    emit(scalar_init(c) + flat(f_zero()) + (l2_addr(c) if c.l2n else []))
    a("s_waitcnt vmcnt(0)\ns_barrier")
    reads(k_reads(0) + v_reads(0))
    emit(attn_init())
    for qt in range(4):
        for k in range(4): a(f"v_sub_f32 v{NEGM+qt*4+k}, 0, v{T+qt}")
    for qt in range(4): emit(qk_mfmas(qt))
    for qt in range(4):
        for p in range(32 if qt < 3 else 32 - c.SM0): emit(sm_ops(qt, p))
        if qt < 3: emit([smf(qt)] + pv_mfmas(qt))
    a("s_barrier")
    reads(early)
    a("s_nop 7\ns_branch L_attn")
    return a.lines

def recenter(c):
    a = Asm()
    for nm, qs in (("a", (2, 3)), ("b", (0, 1))):
        a(f"L_rc_{nm}:\ns_mov_b32 s{sT+6}, -120\ns_setreg_imm32_b32 hwreg(HW_REG_MODE, 4, 2), 3")
        for op in ("v_accvgpr_read_b32 v{x}, a{l}", "v_accvgpr_read_b32 v{y}, a{l1}", "v_add_f32 v{x}, v{x}, v{y}", "v_frexp_exp_i32_f32 v{f}, v{x}",
                   "v_sub_u32 v{f}, %d, v{f}" % (1 - int(c.shift)), "v_med3_i32 v{f}, v{f}, 0, s%d" % (sT + 6), "v_cvt_f32_i32 v{y}, v{f}",
                   "v_ldexp_f32 v{x}, v{x}, v{f}", "v_ldexp_f32 v{f}, 1.0, v{f}", "v_accvgpr_write_b32 a{l}, v{x}", "v_accvgpr_write_b32 a{l1}, 0",
                   "v_add_f32 v{n}, v{n}, v{y}", "v_add_f32 v{n1}, v{n1}, v{y}", "v_add_f32 v{n2}, v{n2}, v{y}", "v_add_f32 v{n3}, v{n3}, v{y}"):
            for qt in qs:
                n = NEGM + 4 * qt; h = qt & 1
                a(op.format(f=88 + h, x=90 + h, y=92 + h, l=LA(qt), l1=LA(qt) + 1, n=n, n1=n + 1, n2=n + 2, n3=n + 3))
        for qt in qs:
            sel = "op_sel:[0,1] op_sel_hi:[1,1]" if qt & 1 else "op_sel_hi:[1,0]"
            for dt in range(8):
                for h in (0, 2): a(f"v_pk_mul_f32 {vr(O(dt,qt)+h,2)}, {vr(O(dt,qt)+h,2)}, v[88:89] {sel}")
        a(f"s_setreg_imm32_b32 hwreg(HW_REG_MODE, 4, 2), 0\ns_branch L_rc_{nm}_back")
    return [l.strip() for l in a.lines]

def recenter_woven(c, lines):
    out = []; cuts = [i for i, l in enumerate(lines) if l.startswith("@rc")] + [len(lines)]
    for q in range(4):
        qt = (q + 1) & 3; n = NEGM + 4 * qt; l0 = LA(qt)
        ops = [f"v_accvgpr_read_b32 v90, a{l0}", f"v_accvgpr_read_b32 v92, a{l0+1}", "v_add_f32 v90, v90, v92", "v_frexp_exp_i32_f32 v88, v90",
               f"v_sub_u32 v88, {1 - int(c.shift)}, v88", f"v_med3_i32 v88, v88, 0, s{sT+6}", "v_cvt_f32_i32 v92, v88", "v_ldexp_f32 v90, v90, v88",
               "v_ldexp_f32 v88, 1.0, v88", f"v_accvgpr_write_b32 a{l0}, v90", f"v_accvgpr_write_b32 a{l0+1}, 0"]
        ops += [f"v_add_f32 v{n+k}, v{n+k}, v92" for k in range(4)]
        ops += [f"v_mul_f32 v{O(dt,qt)+e}, v{O(dt,qt)+e}, v88" for dt in range(8) for e in range(4)]
        gaps = []
        for l in lines[cuts[q]:cuts[q + 1]]:
            if l.startswith(("v_mfma", "v_smfmac")) or not gaps: gaps.append([l])
            else: gaps[-1].append(l)
        cost = lambda g: sum(icost(l) for l in g[1:] if not l.startswith("@")) + (4 if g[0].startswith("v_smfmac") else 0)
        real = [g for g in gaps if g[0].startswith("v_")]
        tot = 4 * len(ops) + sum(cost(g) for g in real); acc_ = 0
        for n_, g in enumerate(real):
            acc_ += cost(g)
            while ops and (acc_ < tot * (n_ + 1) / len(real) - 2 or n_ == len(real) - 1): acc_ += 4; g.append(ops.pop(0))
        out += sum(gaps, [])
    return [f"s_mov_b32 s{sT+6}, -120", "s_setreg_imm32_b32 hwreg(HW_REG_MODE, 4, 2), 3"] + out + ["s_setreg_imm32_b32 hwreg(HW_REG_MODE, 4, 2), 0"]

def resolve_deps(lines):
    return [f"v_cmp_eq_u32 vcc, {l.split()[1]}, {l.split()[1]} ;dep" if l.startswith("@dep") else l for l in lines]

def kernel_A(c):
    ws = WStream(); FAKE[0] = c.fakew; WFL[:] = [c.woflags, c.wqflags]
    if c.chain2 and c.adj:
        for p, pr in enumerate(make_pairs(c)):
            for h, n in enumerate(pr): SIG[n] = 2 * p + h if c.adj == 1 else (p & 3) + 4 * h + 8 * (p >> 2)
    early, att, late = attention(c, ws)
    L = gemm1(c) + ["@stamp gemm_end rt"] + epi1(c) + head(c, early) + ["@stamp loop_start rt", "L_attn:"] + att
    L += ["@stamp loop_end rt"] + tail1(c, ws)
    if late:
        late = late[0] + tail1(c, late[1], True), late[1]
        assert late[1].__dict__ == ws.__dict__
    L += tail2(c, ws)
    L, _, _ = auto_wait(resolve_deps([l.strip() for l in L]))
    L = fix_hazards(L)
    LB = []
    if c.trace:
        for t in salu_trace(L, {"s2": c.trace[0], "rfl": c.trace[1]}): print(t, file=sys.stderr)
    pos = {int(l.split()[1]): i for i, l in enumerate(L) if l.startswith("@seg")}
    k0, k1 = 1, 29
    core = lambda l: l.split()[0] if l.startswith("@") else l.split(";")[0].strip()
    def split(ls):
        out = []; w = {}
        for l in ls:
            if l.startswith("s_waitcnt"):
                for n_, v in _w.findall(l): w[n_] = min(int(v), w.get(n_, 99))
            else: out.append((l, w)); w = {}
        assert not w
        return out
    V = L; first = True
    while True:
        pos = {int(l.split()[1]): i for i, l in enumerate(V) if l.startswith("@seg")}
        trips = [split(V[pos[k]:pos[k + 4]]) for k in range(k0, k1, 4)]
        for t in trips: assert [core(x[0]) for x in t] == [core(x[0]) for x in trips[2]]
        W = []
        for col in zip(*(trips[2:3] if first else trips)):
            w = {}
            for _, x in col:
                for n_, v in x.items(): w[n_] = min(v, w.get(n_, 99))
            W.append(w)
        first = False
        U = V[:pos[k0]]
        for t in trips:
            for (l, _), w in zip(t, W):
                if w: U.append("s_waitcnt " + " ".join(f"{n_}({v})" for n_, v in sorted(w.items(), reverse=True)))
                U.append(l.replace("@chk", "@waitvm"))
        U += [l.replace("@chk", "@waitvm") for l in V[pos[k1]:]]
        V = auto_wait(U, keep=True)[0]
        if [l for l in V if not l.startswith("@")] == [l for l in U if not l.startswith("@")]: break
    L = V
    if late:
        ic, ib = V.index("@cut"), V.index("L_bar1:")
        W_ = auto_wait([l.replace("@chk", "@waitvm") for l in V[:ic + 1]] + resolve_deps([l.strip() for l in late[0]]), keep=True)[0]
        assert [l for l in W_[:W_.index("@cut")] if not l.startswith("@")] == [l for l in V[:ic] if not l.startswith("@")]
        W_ = fix_hazards(W_[W_.index("@cut") - 40:]); W_ = W_[W_.index("@cut") + 1:]
        full = V[:ic + 1] + W_ + V[ib:]
        assert auto_wait(full)[0] == full
        full = [l for l in full if not l.endswith(";dep")]
        assert not check_hazards(full) and not check_dead_loads(full), (check_hazards(full)[:3], check_dead_loads(full)[:3])
        L = V[:ib] + ["s_branch L_bar1", "L_late:"] + [l for l in W_ if not l.startswith("@stamp")] + V[ib:]
    V = [l for l in V if not l.endswith(";dep")]
    assert not check_hazards(V), check_hazards(V)[:5]
    assert not check_dead_loads(V), check_dead_loads(V)[:5]
    if c.recenter and c.rcw:
        i0 = [i for i, l in enumerate(V) if l == "@rc 0"][1]; i1 = V.index("L_rc_back:", i0)
        alt = fix_hazards(V[i0 - 40:i0] + ["@alt"] + recenter_woven(c, V[i0:i1])); alt = alt[alt.index("@alt") + 1:]
        full = V[:i0] + alt + V[i1:]
        assert auto_wait(full)[0] == full and not check_hazards(full) and not check_dead_loads(full)
        LB += ["L_rc_a:"] + [l for l in alt if not l.startswith("@")] + ["s_branch L_rc_back", "L_rc_end:"]
    L = [l for l in L if not l.endswith(";dep")]
    pos = {int(l.split()[1]): i for i, l in enumerate(L) if l.startswith("@seg")}
    body = [core(l) for l in L[pos[9]:pos[13]] if not l.startswith("@")]
    im = [i for i, l in enumerate(body) if l.startswith("v_mfma")]
    j = max(i for i, l in enumerate(body) if l.startswith(("s_add", "s_min", "s_mul", "s_xor", "s_lshl", "s_cmp", "s_csel", "s_and", "s_bitcmp")))
    cand = [i for i in im if i > j and not body[i + 1].startswith("s_")]
    body.insert(cand[1] + 1, f"s_cmp_lg_u32 s{sLOOP}, 0"); body.insert(cand[0] + 1, f"s_sub_u32 s{sLOOP}, s{sLOOP}, 1")
    if c.tripstamp: body = ["s_memrealtime s[96:97]", f"s_add_u32 s98, s{sLOOP}, 54", "s_waitcnt lgkmcnt(0)", "s_mov_b32 m0, s98", f"v_writelane_b32 v{VDG}, s96, m0"] + body
    out = L[:pos[k0]] + ["@seg 1", "L_loop:"] + body + ["s_cbranch_scc1 L_loop", "L_loop_end:"] + L[pos[k1]:]
    a = Asm()
    a("s_cmp_ge_u32 s2, 256\ns_cbranch_scc1 L_endA")
    if c.scr == 1: a("s_lshr_b32 s3, s2, 3\ns_and_b32 s3, s3, 7\ns_xor_b32 s2, s2, s3\ns_lshr_b32 s3, s2, 6\ns_xor_b32 s2, s2, s3")
    if c.scr == 2: a("s_and_b32 s3, s2, 7\ns_lshl_b32 s3, s3, 3\ns_bfe_u32 s4, s2, 0x30003\ns_and_b32 s2, s2, 0xc0\ns_or_b32 s2, s2, s3\ns_or_b32 s2, s2, s4")
    stamp = Stamps()
    stamp(c, a, "start", True)
    for l in out:
        if l.startswith("@stamp"): stamp(c, a, l.split()[1], len(l.split()) > 2)
        elif l.startswith("@seg"): stamp(c, a, "seg" + l.split()[1], l.split()[1] in ("1", "29"))
        elif l.startswith("@"): continue
        else: a(l.split(";tag")[0].rstrip())
    if c.diag:
        stamp(c, a, "final"); a("s_waitcnt vmcnt(0)"); stamp(c, a, "end", True); stamp.out(c, a, WS_ST, sWS, sW)
    if c.probe:
        stamp(c, a, "end")
        a(f"""s_nop 1
v_readlane_b32 s52, v{VDG}, 0
v_readlane_b32 s53, v{VDG}, 1
s_memrealtime s[96:97]
s_waitcnt lgkmcnt(0)
s_sub_u32 s52, s53, s52
s_mul_i32 s52, s52, 4
s_min_u32 s52, s52, 100000
s_mov_b32 s53, s96
L_probe:
s_memrealtime s[96:97]
s_waitcnt lgkmcnt(0)
s_sub_u32 s54, s96, s53
s_cmp_lt_u32 s54, s52
s_cbranch_scc1 L_probe""")
    a("L_endA:\ns_endpgm")
    if c.recenter and not c.rcw: LB += fix_hazards(recenter(c))
    for n_, l in enumerate(body):
        if l.startswith(("s_cmp", "s_bitcmp")):
            for m_ in body[n_ + 1:] + ["s_cbranch"]:
                if m_.startswith(("s_cbranch", "s_cselect")): break
                assert not m_.startswith(("s_add", "s_sub", "s_min", "s_lshl", "s_xor", "s_and", "s_cmp", "s_bitcmp")), (l, m_)
    for l in LB: a(l.split(";tag")[0].rstrip())
    for l in spin("st", ST_LOAD, CNT_OK, "L_ok_st") + spin("cnt", CNT_LOAD, CNT_OK, "L_ok_cnt") + spin("fl", FL_LOAD.replace("sc1", c.pollflags), FL_OK, "L_ok_fl", c.slp): a(l)
    for l in fix_hazards([l.strip() for l in fallback(c, early)]): a(l.split(";tag")[0].rstrip())
    a("L_last:\ns_endpgm")
    return a.lines
import re
_w = re.compile(r"(vmcnt|lgkmcnt)\((\d+)\)")

HEADER = """; out = x + (softmax(LN(x) wq K^T / sqrt(128)) V wo) * silu(gelu(LN(x) w1 + b1) w2 + b2), one launch, 256 workgroups of 4 waves.
; Kernarg (104 bytes, s[0:1]): 0 A_x, 8 A_k_cache, 16 A_v_cache, 24 A_wq, 32 A_wo, 40 B_x (unused by the reference), 48 B_w1,
;     rstd * (acc - mean * colsum(W)). Each workgroup computes mean / rstd of 8 rows and hands them over through d_ws.
;     maximum: the maximum over the first 64 keys, moved once to the row sum reached so far (exact power-of-two rescale), placed
;     normal number the workgroup computes the true row maxima (L_fallback) and runs the attention again with them.
;     The second FFN GEMM (64x64 tile per workgroup) runs inside this loop.
;  4. O goes to d_ws; every workgroup computes a 64x64 output tile of O wo (K split over its waves), gates it and adds x.
; Hand-offs between workgroups: write-through stores, s_waitcnt, barrier, then a counter in d_debug or a flag word in d_ws that
;   its owner cleared before that counter was raised; readers poll (bounded) and load with sc1.
; The s_cbranch_execz behind each 4 KB page start is never taken in normal flow: a visit with EXEC = 0 (branches only) fetches
;   those code lines ahead of time."""

def gen(c):
    A = kernel_A(c)
    a = Asm()
    k = NAME + "_kernel"
    a(HEADER)
    a(f"; @launch grid=(256,1,1) block=(256,1,1) lds={LDS_A}")
    a('.amdgcn_target "amdgcn-amd-amdhsa--gfx950"\n.text')
    if c.hop: a(".p2align 12")
    a(f".globl {k}\n.p2align 8\n.type {k},@function\n{k}:")
    a.lines += [re.sub(r"(?<=\S)  +", " ", l) for l in A if l.strip() != ";"]
    a('.section .rodata,"a"\n.p2align 6')
    a(kdesc(k, 512, 256))
    if c.hop:
        rc = ["L_rc_a", ("L_rc_a", "L_rc_end") if c.rcw else "L_rc_b"] if c.recenter else []
        mid = "L_bar1" if c.stagger else "L_hoq_back"
        ses = [("L_hoq", mid, "L_endA", [mid] if c.stagger else [])]
        if c.hop0: ses += [("L_hop", "L_hop_back", c.hop0, rc[c.hop0rc:]), ("L_hoo", c.hop0, mid, rc[:c.hop0rc] + (["L_late"] if c.stagger else []))]
        else: ses += [("L_hop", "L_hop_back", "L_hoq_back", rc)]
        t, n = page_hooks(a.text(), c.align, ses)
        print("page hooks", n, file=sys.stderr)
        return t
    return align8(a.text(), c.align) if c.align else a.text()

if __name__ == "__main__":
    kw = {}
    for s in sys.argv[2:]:
        k, v = s.split("=", 1); kw[k] = eval(v)
    open(sys.argv[1], "w").write(gen(Cfg(**kw)))
```

```python
import sys, math, copy
from asmlib import *
NAME = "recurrent_scan__gqa_block_cached__dense_activation_gelu__prompt"
M16 = "v_mfma_f32_16x16x32_bf16"
SMF = "v_smfmac_f32_16x16x64_bf16"

class Cfg:
    diag = False
    shift = 102.0
    SM0 = 8
    BAR = 29
    pvorder = "bshare"
    stflags = "sc1"
    ldflags = "sc1"
    NR = 16
    DO0 = 3
    ND = 8
    chain2 = True
    DU = 6
    DU0 = 6
    LL0 = 2
    LLS = 3
    adj = 1
    zig = 1
    gzig = 0
    WPS = 2
    DO = 3
    rot = 0
    rot2 = 5
    touch = 'wo'
    fakew = False
    fakeo = False
    kvflags = 'nt'
    fwflags = ''
    fhflags = 'sc1'
    FPOS = (47, 95)
    MG = 6
    align = 3
    HB = 2
    scr = 0
    tlb = 0
    rotw = 0
    PADR = 1024
    early_gate = True
    NP0 = 0
    ksplit = True
    split_bar = True
    NB2 = 7
    NB3 = 2
    f2s = False
    xbf = True
    fsplit = True
    XP3, XC3, XG3 = 100, 160, 215
    early_x = False
    lean = 3
    NL1 = 4
    xtouch = False
    FLS = 7
    KHF = 1
    CL = 2
    DF = 12
    NPOLL = -1
    XB1, XPL, XCK = 64, 128, 180
    l2end = 28
    pollall = False
    rcw = False
    tripstamp = False
    SORD = 0
    HLW = ((0, 10), (8, 24), (37, 46), (44, 56))
    fold = False
    WSK = 99
    tmap = 1
    PADW = 0
    rotx = 7
    probe = None
    last_h = None
    estonly = False
    DPOS = 56
    DSP = 4
    H30W = ((0, 20), (46, 58), (54, 68), (64, 78))
    H31W = ()
    HSP = 2
    NE = 3
    RS = 0
    H31 = 2
    NB1 = 0
    force_fallback = False
    trace = None
    nostamp = ('b3', 'b4', 'b5')
    codepf = True
    codepf2 = True
    GBAR = 14
    GBAR8 = 26
    STB = 6
    sat = 0
    woflags = ''
    wqflags = ''
    pg = 0
    ipg = 0
    hop = 20
    hop0 = 'L_loop_end'
    hop0rc = 1
    hopend = 'L_endA'
    palign = False
    XFULL = 9
    XFIRST = 1
    GSP0 = 4
    RSC = 16
    smtest = 0
    K2 = 1
    TP = 1
    RSPOS = 0
    GLO = 4
    G0 = 4
    nofb = False
    slp = 0
    recenter = 1 << 6
    l2n = 0
    stagger = 0
    NLATE = 10
    flagmode = 'store'
    pollflags = 'sc1'
    outflags = 'sc1'
    GSP = 4
    def __init__(self, **kw):
        for k, v in kw.items():
            assert hasattr(self, k), k
            setattr(self, k, v)

WS_O = 0x2000000
WS_H = 0x1000000
H_RT = 43 * 4096
WS_FL = 0x1800000
WS_RS = 0x1810000
WS_F2 = 0x1804000
WS_X = 0x1900000
WS_ST = 0x8000000
NS = 4
KSLOT = 16416; VCH = 4128; VSLOT = 4 * VCH
VBASE = NS * KSLOT
XBASE = KSLOT; XSLOT = 32832
WCH = 6176; WSLOT = 4 * WCH
WBASE = VBASE + VSLOT
CWBASE = WBASE + 3 * WSLOT
FLBASE = CWBASE + 768
LDS_A = FLBASE + 64
assert XBASE + XSLOT + 32768 <= WBASE and XBASE + XSLOT >= 3 * KSLOT and LDS_A <= 163840 and VBASE + NS * VSLOT <= LDS_A
VK, VV, VD, VIDX, VOA, VOB = 2, 3, 4, 5, 6, 7
SMA = 8
VDW, VL, VFE, VFO = 12, 13, 14, 15
NEGM = 16; S0 = 32; P0 = 48; O0 = 128; VXT = 96
FA = 64
VRA = 80
VPA, VONE, VPD, VDG = 86, 87, 1, 95
VX0, VX1, VXR, VWQ, VW1, VWR, VCQ, VCF, VC0, VC1, VCR, VH1 = range(16, 28)
B1F = 32; SX = 48
def S(n, i): return S0 + 4 * i if n >= 4 else O(i, n)
def P(n): return P0 + (n & 1) * 8
def O(dt, qt): return O0 + (dt * 4 + qt) * 4
def ACC(T, qt): return O0 + (T * 4 + qt) * 4 if T < 8 else 96 + ((T - 8) * 4 + qt) * 4 if T < 10 else 64 + ((T - 10) * 2 + qt) * 4
def Q(qt, ks): return (qt * 4 + ks) * 4
def KF(i, ks): return 64 + (i * 4 + ks) * 4
NVX = 2
def VF(T, u, dt): return ("v", VXT + (u * NVX + dt) * 4) if (T & 1 and dt < NVX) else ("a", 128 + u * 32 + dt * 4)
def rr(kb, n, o=0): return vr(kb[1] + o, n, kb[0])
def LA(qt): return 192 + qt * 4
def XF(kb, qt, s): return (kb & 1) * 32 + qt * 8 + s * 4
NWR = 6
def WF(n, s): return 128 + (n % NWR) * 8 + s * 4
def CF(j, s): return 64 + j * 8 + s * 4
CWA = 88
sK, sV, sWS, sX, sWQ, sF0, sF1, sDBG = 4, 8, 12, 16, 20, 24, 28, 32
sW, sHEAD, sQB, sPAR, sKM, sVM, sVO, sLOOP, sROT, sKO, sXM, sWM, sP0, sP1, sTRY, sSH = range(36, 52)
sT = 52
sWO, sXX, sW2, sOUT, sB2 = 60, 64, 68, 72, 76
sRO, sFM, sKW, sOB, sHB, sFW, sFH, sHS0, sHS1, sFLO = range(80, 90)
sGX = 3
sRT = 101; sCT = sP1
sXA, sXB = 94, 95
sTO, sTC = 94, 95; VTO = 112; sPF = sF0
sRC = 93; VCP = 94; sOS = 100
sOP = sF0
sOL, sOT = sX, sWQ
XB = VBASE + 4 * VSLOT
XT = XB + VSLOT
assert XT + 8192 <= FLBASE
def srd(b): return f"s[{b}:{b+3}]"

class Stamps:
    def __init__(self): self.names = []; self.rt = []
    def __call__(self, c, a, name, rt=False):
        if c.probe and name in c.probe:
            a(f"s_memrealtime s[96:97]\ns_waitcnt lgkmcnt(0)\nv_writelane_b32 v{VDG}, s96, {c.probe.index(name)}")
        if not c.diag or name in c.nostamp: return
        i = len(self.names); self.names.append(name); assert i < 40
        a(f"s_memtime s[96:97]\ns_waitcnt lgkmcnt(0)\nv_writelane_b32 v{VDG}, s96, {i}")
        if rt:
            a(f"s_memrealtime s[96:97]\ns_waitcnt lgkmcnt(0)\nv_writelane_b32 v{VDG}, s96, {40+len(self.rt)}"); self.rt.append(name)
    def out(self, c, a, base, ws, wave):
        if not c.diag: return
        a(f"""s_lshl_b32 s{sT}, s2, 2
s_add_u32 s{sT}, s{sT}, s{wave}
s_lshl_b32 s{sT}, s{sT}, 8
s_add_u32 s{sT}, s{sT}, {base}
v_lshlrev_b32 v1, 2, v0
buffer_store_dword v{VDG}, v1, {srd(ws)}, s{sT} offen""")

def mk_srd(a, d, lo, hi, off, size):
    if off is None: a(f"s_mov_b32 s{d}, s{lo}\ns_mov_b32 s{d+1}, s{hi}")
    else: a(f"s_add_u32 s{d}, s{lo}, {off}\ns_addc_u32 s{d+1}, s{hi}, 0")
    a(f"s_mov_b32 s{d+2}, {size}\ns_mov_b32 s{d+3}, 0x20000")

L3, L23, L4 = 28, 29, 30
RSV = 48
def setup_A(c):
    a = Asm()
    a(f"""s_load_dwordx16 s[64:79], s[0:1], 0
s_load_dwordx8 s[80:87], s[0:1], 64
s_load_dwordx2 s[88:89], s[0:1], 96
s_getpc_b64 s[90:91]
L_pc:
s_lshr_b32 s{sT}, s2, 3
s_lshl_b32 s{sT}, s{sT}, 11
v_lshrrev_b32 v{VCP}, 4, v0
v_lshl_add_u32 v{VCP}, v{VCP}, 7, s{sT}
v_min_u32 v{VCP}, L_last-L_pc, v{VCP}
global_load_dword v255, v{VCP}, s[90:91]
v_lshrrev_b32 v1, 6, v0
v_and_b32 v0, 63, v0
s_and_b32 s{sGX}, s2, 7
v_readfirstlane_b32 s{sW}, v1
s_bfe_u32 s{sQB}, s2, 0x30003
s_lshr_b32 s{sT+1}, s2, 6
s_lshl_b32 s{sHEAD}, s{sGX}, 2
s_add_u32 s{sHEAD}, s{sHEAD}, s{sT+1}
s_and_b32 s{sPAR}, s{sHEAD}, 1
s_xor_b32 s{sROT}, s{sT+1}, s{sQB}
s_and_b32 s{sROT}, s{sROT}, {c.rot}
s_and_b32 s{sT}, s{sGX}, {c.rotx}
s_xor_b32 s{sROT}, s{sROT}, s{sT}
s_lshr_b32 s{sT}, s{sHEAD}, 1
s_mul_i32 s{sT}, s{sT}, 3
s_add_u32 s{sP1}, s{sT}, 1
s_lshl_b32 s{sT+1}, s{sPAR}, 1
s_add_u32 s{sP0}, s{sT}, s{sT+1}
s_add_u32 s{sT+1}, s{sHEAD}, 11
s_cmp_lt_u32 s{sHEAD}, 22
s_cselect_b32 s{sP0}, s{sP0}, s{sT+1}
s_cselect_b32 s{sP1}, s{sP1}, 0
s_lshl_b32 s{sXM}, s{sW}, 13
s_add_u32 s{sXM}, s{sXM}, {XBASE}
s_mul_i32 s{sWM}, s{sW}, {WCH}
s_add_u32 s{sWM}, s{sWM}, {WBASE}
v_and_b32 v{L3}, 3, v0
v_bfe_u32 v{L23}, v0, 2, 2
v_lshrrev_b32 v{L4}, 4, v0
v_lshlrev_b32 v{VL}, 4, v0
s_lshl_b32 s{sT+2}, s{sQB}, 8
s_lshl_b32 s{sT+3}, s{sHEAD}, 3
s_add_u32 s{sT+2}, s{sT+2}, s{sT+3}
s_lshl_b32 s{sT+3}, s{sW}, 1
s_add_u32 s{sKO}, s{sT+2}, s{sT+3}
s_lshl_b32 s{sT+2}, s{sKO}, 10
v_add_u32 v91, s{sT+2}, v{VL}
v_and_b32 v1, 1, v{L4}
v_lshlrev_b32 v1, 1, v1
v_xor_b32 v1, v1, v{L3}
v_lshlrev_b32 v{VDW}, 4, v1
v_lshrrev_b32 v31, 2, v0
v_lshl_add_u32 v{VX0}, v31, 10, v{VDW}
s_bfe_u32 s{sT}, s{sHEAD}, 0x10001
s_lshl_b32 s{sT+1}, s{sT}, 14
v_add_u32 v{VX0}, s{sT+1}, v{VX0}
v_xor_b32 v{VX1}, 0x4000, v{VX0}
s_lshl_b32 s{sT}, s{sT}, 11
s_add_u32 s{sXA}, s{sXM}, s{sT}
s_xor_b32 s{sT}, s{sT}, 0x800
s_add_u32 s{sXB}, s{sXM}, s{sT}
s_lshl_b32 s{sT}, s{sW}, 3
v_add_u32 v1, s{sT}, v{L23}
v_lshlrev_b32 v31, 4, v{L3}
v_lshl_add_u32 v{VD}, v{L4}, 6, v31
v_lshl_add_u32 v{VWQ}, v1, 13, v{VD}
v_lshrrev_b32 v{VW1}, 5, v0
v_lshl_add_u32 v1, v{VW1}, 5, v1
v_and_b32 v{VW1}, 1, v{L4}
v_lshl_add_u32 v1, v{VW1}, 2, v1
v_mul_u32_u24 v1, 2752, v1
v_add_u32 v{VW1}, v1, v31
s_lshl_b32 s{sT}, s{sQB}, 2
s_add_u32 s{sT+1}, s{sT}, s{sW}
s_lshl_b32 s{sT}, s{sT+1}, 16""")
    a("s_waitcnt lgkmcnt(0)")
    a("@stamp karg")
    if c.tlb:
        a(f"""s_load_dword s101, s[70:71], 0
s_load_dword s101, s[76:77], 0
s_mov_b32 s{sT+1}, {WS_RS + 0x8000}
s_load_dword s101, s[88:89], s{sT+1}
s_load_dword s101, s[78:79], 0
s_load_dword s101, s[86:87], 0
s_mov_b32 s{sT+1}, 0x200000
s_load_dword s101, s[70:71], s{sT+1}""")
    mk_srd(a, sX, 64, 65, f"s{sT}", 65536)
    L = a.lines + flat(dma_x(0)[:2])
    a = Asm()
    a(f"s_lshl_b32 s{sT}, s{sHEAD}, 8")
    mk_srd(a, sWQ, 70, 71, f"s{sT}", 512 * 8192 - 8192 + 256)
    a(f"s_lshl_b32 s{sT}, s{sP0}, 6")
    mk_srd(a, sF0, 76, 77, f"s{sT}", 512 * 2752 - 2752 + 64)
    a(f"s_lshl_b32 s{sT}, s{sP1}, 6")
    mk_srd(a, sF1, 76, 77, f"s{sT}", 512 * 2752 - 2752 + 64)
    a(f"s_cmp_lt_u32 s{sHEAD}, 22\ns_cselect_b32 s{sF1+2}, s{sF1+2}, 0\ns_mov_b64 s[98:99], s[64:65]")
    return L + a.lines + flat(dma_w(0))

B1R = [96, 98, 60, 62]
def side_loads():
    return [([], f"global_load_dwordx4 {vr(RSV+4*i,4)}, v91, s[98:99] offset:{i*1024}") for i in range(2)] + \
           [([], f"global_load_dwordx2 {vr(B1R[i],2)}, v{88 + i//2}, s[92:93] offset:{(i&1)*32}") for i in range(4)]

def setup_A2(c):
    a = Asm()
    a(f"""; b1 (D layout): 4 bf16 at (pair*32 + 16a + 4g)
s_lshl_b32 s{sT}, s{sP0}, 6
s_lshl_b32 s{sT+1}, s{sP1}, 6
v_lshl_add_u32 v88, v{L4}, 3, s{sT}
v_lshl_add_u32 v89, v{L4}, 3, s{sT+1}
s_mov_b64 s[92:93], s[78:79]
s_lshl_b32 s{sT}, s{sHEAD}, 19""")
    if c.SORD >= 1:
        for l in flat(side_loads()[2:]): a(l)
    if c.SORD == 2:
        for l in flat(side_loads()[:2]): a(l)
    mk_srd(a, sK, 66, 67, f"s{sT}", 0x80000)
    mk_srd(a, sV, 68, 69, f"s{sT}", 0x80000)
    mk_srd(a, sWS, 88, 89, None, 0x10000000)
    mk_srd(a, sDBG, 86, 87, None, 256)
    if c.ksplit: a(f"""s_and_b32 s{sRT}, s{sHEAD}, 15
s_lshl_b32 s{sRT}, s{sRT}, 1
s_lshr_b32 s{sT+7}, s{sHEAD}, 4
s_add_u32 s{sRT}, s{sRT}, s{sT+7}
s_mov_b32 s{sT+7}, s{sQB}
s_lshr_b32 s{sGX}, s{sRT}, 2""")
    elif c.tmap == 0: a(f"s_mov_b32 s{sRT}, s{sHEAD}\ns_mov_b32 s{sT+7}, s{sQB}")
    else: a(f"""s_and_b32 s{sRT}, s{sHEAD}, 24
s_add_u32 s{sRT}, s{sRT}, s{sQB}
s_and_b32 s{sT+7}, s{sHEAD}, 7
s_lshr_b32 s{sGX}, s{sRT}, 2""")
    a(f"s_lshl_b32 s{sT}, s{sT+7}, 7")
    mk_srd(a, sWO, 72, 73, f"s{sT}", 4096 * 1024 - 896)
    mk_srd(a, sW2, 80, 81, f"s{sT}", 1376 * 1024 - 896)
    mk_srd(a, sB2, 82, 83, f"s{sT}", 128)
    a(f"s_lshl_b32 s{sT+1}, s{sRT}, 16\ns_add_u32 s{sT+1}, s{sT+1}, s{sT}")
    mk_srd(a, sXX, 64, 65, f"s{sT+1}", 65536 - 896)
    mk_srd(a, sOUT, 84, 85, f"s{sT+1}", 65536 - 896)
    T = 31
    a(f"""s_lshr_b32 s{sRO}, s2, 6
s_lshl_b32 s{sRO}, s{sRO}, 1
s_xor_b32 s{sRO}, s{sRO}, s{sQB}
s_and_b32 s{sRO}, s{sRO}, {c.rot2}
s_and_b32 s{sT+4}, s{sW}, {c.rotw}
s_xor_b32 s{sRO}, s{sRO}, s{sT+4}
s_lshl_b32 s{sKW}, s{sW}, {4 if c.ksplit else 5}
s_and_b32 s{sT+4}, s{sRT}, {1 if c.ksplit else 0}
s_xor_b32 s{sT+4}, s{sT+4}, {c.KHF if c.ksplit else 0}
s_lshl_b32 s{sT+4}, s{sT+4}, 6
s_add_u32 s{sKW}, s{sKW}, s{sT+4}
s_lshl_b32 s{sT+4}, s{sW}, 10
s_add_u32 s{sFM}, s{sT+4}, {XB}
s_lshl_b32 s{sOB}, s{sW}, 12
s_add_u32 s{sRO}, s{sRO}, s{sKW}
s_lshr_b32 s{sT+5}, s{sRO}, 2
s_lshl_b32 s{sT+5}, s{sT+5}, 14
s_add_u32 s{sOB}, s{sOB}, s{sT+5}
s_and_b32 s{sT+5}, s{sRO}, 3
s_lshl_b32 s{sT+5}, s{sT+5}, 10
s_add_u32 s{sOB}, s{sOB}, s{sT+5}
s_lshl_b32 s{sRO}, s{sRO}, 15
s_lshl_b32 s{sOS}, s{sHEAD}, 1
s_add_u32 s{sOS}, s{sOS}, s{sPAR}
s_lshl_b32 s{sOS}, s{sOS}, 13
s_mul_i32 s{sHB}, s{sRT}, {H_RT}
s_add_u32 s{sHB}, s{sHB}, s{sT+4}
s_add_u32 s{sHB}, s{sHB}, {WS_H}
s_lshl_b32 s{sT+4}, s{sQB}, 2
s_add_u32 s{sT+4}, s{sT+4}, s{sW}
s_mul_i32 s{sT+4}, s{sT+4}, {H_RT}
s_add_u32 s{sT+4}, s{sT+4}, {WS_H}
s_lshl_b32 s{sHS0}, s{sP0}, 12
s_add_u32 s{sHS0}, s{sHS0}, s{sT+4}
s_lshl_b32 s{sHS1}, s{sP1}, 12
s_add_u32 s{sHS1}, s{sHS1}, s{sT+4}
s_lshl_b32 s{sFLO}, s{sQB}, {c.FLS + 3}
s_lshr_b32 s{sT+4}, s{sHEAD}, 2
s_lshl_b32 s{sT+4}, s{sT+4}, {c.FLS}
s_add_u32 s{sFLO}, s{sFLO}, s{sT+4}
s_and_b32 s{sT+4}, s{sHEAD}, 3
s_lshl_b32 s{sT+4}, s{sT+4}, 2
s_add_u32 s{sFLO}, s{sFLO}, s{sT+4}
s_add_u32 s{sFLO}, s{sFLO}, {WS_FL}
s_lshr_b32 s{sT+4}, s{sW}, 1
s_lshl_b32 s{sT+4}, s{sT+4}, 4
s_lshl_b32 s{sKM}, s{sW}, 12
s_add_u32 s{sKM}, s{sKM}, s{sT+4}
s_mul_i32 s{sVM}, s{sW}, {VCH}
s_add_u32 s{sVM}, s{sVM}, {VBASE}
s_mov_b32 s{sTRY}, 0
s_mov_b32 s{sCT}, s{sT+7}
s_mov_b32 s{sSH}, {f2u(c.shift)}
@pg1
v_lshl_add_u32 v{VD}, v{L23}, 8, v{VD}
s_lshl_b32 s{sT+4}, s{sW}, 12
v_add_u32 v{VD}, s{sT+4}, v{VD}
v_and_b32 v1, 1, v{L23}
v_lshlrev_b32 v1, 1, v1
v_xor_b32 v1, v1, v{L4}
v_lshlrev_b32 v1, 4, v1
v_and_b32 v{T}, 15, v0
v_lshl_add_u32 v1, v{T}, 6, v1
v_add_u32 v{VXR}, s{sXM}, v1
s_lshl_b32 s{sT+4}, s{sW}, 7
s_add_u32 s{sT+4}, s{sT+4}, {CWBASE}
s_lshl_b32 s{sT+5}, s{sW}, 6
s_add_u32 s{sT+5}, s{sT+5}, {CWBASE+512}
v_lshl_add_u32 v{VC0}, v{T}, 2, s{sT+4}
v_lshl_add_u32 v{VC1}, v{T}, 2, s{sT+5}
v_lshlrev_b32 v{VCR}, 4, v{L4}
v_add_u32 v{VCR}, {CWBASE}, v{VCR}
s_lshl_b32 s{sT+4}, s{sPAR}, 8
v_lshl_add_u32 v92, v{T}, 3, s{sT+4}
v_xor_b32 v93, 0x100, v92
v_lshlrev_b32 v1, 3, v{L3}
v_lshl_add_u32 v1, v{L23}, 6, v1
v_mul_u32_u24 v{VWR}, {WCH}, v{L4}
v_add_u32 v{VWR}, v{VWR}, v1
v_add_u32 v{VWR}, {WBASE}, v{VWR}
v_mul_u32_u24 v{VV}, {VCH}, v{L4}
v_add_u32 v{VV}, v{VV}, v1
v_add_u32 v{VV}, {VBASE}, v{VV}
s_lshl_b32 s{sT+4}, s{sW}, 8
v_add_u32 v{VCQ}, s{sT+4}, v{VWR}
s_lshr_b32 s{sT+4}, s{sW}, 1
s_lshl_b32 s{sT+4}, s{sT+4}, 10
s_and_b32 s{sT+5}, s{sW}, 1
s_lshl_b32 s{sT+5}, s{sT+5}, 5
s_add_u32 s{sT+4}, s{sT+4}, s{sT+5}
v_add_u32 v{VCF}, s{sT+4}, v{VWR}
; wo / w2 transposed read: (g>>1)*1024 + (g&1)*256 + rk*64 + c*8 + ((ct&1)^(g&1))*32
v_lshrrev_b32 v{T}, 1, v{L4}
v_lshl_add_u32 v1, v{T}, 10, v1
v_lshl_add_u32 v{VDW}, v{T}, 6, v{VDW}
v_and_b32 v{T}, 1, v{L4}
v_lshl_add_u32 v1, v{T}, 8, v1
v_lshl_add_u32 v1, v{T}, 5, v1
v_xor_b32 v{T}, 32, v1
v_add_u32 v{VRA}, s{sKM}, v1
v_add_u32 v{VRA+1}, s{sKM}, v{T}
v_add_u32 v{VRA+2}, s{sVM}, v1
v_add_u32 v{VRA+3}, s{sVM}, v{T}
v_add_u32 v{VRA+4}, {4*VSLOT}, v{VRA+2}
v_add_u32 v{VRA+5}, {4*VSLOT}, v{VRA+3}
v_add_u32 v{VFE}, {XB}, v1
v_add_u32 v{VFO}, {XB}, v{T}
; wo / w2 DMA voffset: row r8=(l>>2)&7 (stride 1024), half = l>>5 (64B), chunk (l&3)^(2*(r8>>2))
v_bfe_u32 v{T}, v0, 2, 3
v_lshl_add_u32 v{VDW}, v{T}, 10, v{VDW}
v_and_b32 v{VPA}, {31 if c.pollall else 3 if c.ksplit else 7}, v0
v_lshlrev_b32 v{VPA}, 2, v{VPA}
v_lshrrev_b32 v1, 1, v{L23}
v_lshlrev_b32 v1, 4, v1
v_lshl_add_u32 v1, v{L23}, 12, v1
v_lshl_add_u32 v1, v{L3}, 6, v1
v_and_b32 v{VK}, 1, v{L4}
v_lshl_add_u32 v1, v{VK}, 5, v1
v_lshrrev_b32 v{VK}, 1, v{L4}
v_lshl_add_u32 v{VK}, v{VK}, 4, v1
; store voffsets (workgroups without an extra FFN pair send those stores out of range)
s_lshl_b32 s{sT+4}, s{sPAR}, 11
v_add_u32 v{VOA}, s{sT+4}, v{VL}
v_xor_b32 v{VOB}, 0x800, v{VOA}
s_cmp_lt_u32 s{sHEAD}, 22
s_cselect_b32 s{sT+4}, 0, 0x10000000
v_add_u32 v{VH1}, s{sT+4}, v{VOA}
v_or_b32 v1, s{sW}, v0
v_cmp_eq_u32 vcc, 0, v1
v_mov_b32 v1, 0x10000000
v_cndmask_b32 v{VONE}, v1, 0, vcc
; row-sum operand: ones in rows 0,1 mod 4; index picks k%4 in (0,1) / (2,3)
v_cmp_gt_u32 vcc, 2, v{L3}
v_mov_b32 v1, 0x3f803f80
v_mov_b32 v{T}, 0x44444444
v_cndmask_b32 v{SMA}, 0, v1, vcc
v_cndmask_b32 v{SMA+1}, 0, v1, vcc
v_cndmask_b32 v{SMA+2}, 0, v1, vcc
v_cndmask_b32 v{SMA+3}, 0, v1, vcc
v_cmp_eq_u32 vcc, 1, v{L3}
v_mov_b32 v{VIDX}, 0xeeeeeeee
v_cndmask_b32 v{VIDX}, v{T}, v{VIDX}, vcc""")
    for r in range(12): a(f"v_accvgpr_write_b32 a{CWA+r}, 0")
    for l in attn_init()[:24]: a(l)
    pg = f"""s_xor_b32 s{sT+4}, s{sROT}, 4
s_lshl_b32 s{sT+4}, s{sT+4}, 19
s_cmp_lt_u32 s{sW}, 2
s_cselect_b64 s[96:97], s[{sWQ}:{sWQ+1}], s[{sWS}:{sWS+1}]
s_cselect_b32 s{sT+4}, s{sT+4}, s{sHS0}
v_mov_b32 v252, s{sT+4}
global_load_dword v253, v252, s[96:97] sc1
s_cselect_b64 s[96:97], s[{sK}:{sK+1}], s[{sV}:{sV+1}]
v_mov_b32 v252, 0
global_load_dword v254, v252, s[96:97]""".split("\n") if c.pg & 1 else []
    i_ = next(i for i, l in enumerate(a.lines) if l.strip() == "@pg1")
    a.lines[i_:i_ + 1] = pg
    if c.tlb > 1:
        for d, off in ((sK, 0), (sV, 0), (sWS, f"s{sHS0}"), (sB2, 0), (sW2, 0), (sWS, f"s{sHB}"), (sWO, f"s{sRO}"), (sWS, f"s{sOS}"), (sWS, f"s{sOB}"), (sOUT, 0), (sXX, 0)):
            a(f"s_load_dword s101, s[{d}:{d+1}], {off}")
    return a.lines

def stat_stores(c):
    return [([], f"buffer_store_dwordx2 v[88:89], v1, {srd(sWS)}, s{sKO} offen sc1 ;tag=sst"),
            ([], f"buffer_store_dword v91, v{VONE}, {srd(sWS)}, s{sFLO} offen sc1 ;tag=sst")] + \
           ([([f"s_lshl_b32 s{sT}, s2, 7", f"s_add_u32 s{sT}, s{sT}, {WS_F2}"], f"buffer_store_dword v91, v{VONE}, {srd(sWS)}, s{sT} offen sc1 ;tag=sst")] if c.ksplit else [])
def row_stats(c):
    a = Asm()
    s0, s1, q0, q1 = RSV + 8, RSV + 9, RSV + 10, RSV + 11
    a(f"v_mov_b32 v{s0}, 0\nv_mov_b32 v{s1}, 0\nv_mov_b32 v{q0}, 0\nv_mov_b32 v{q1}, 0\nv_mov_b32 v1, 0x3f803f80")
    for e in range(4):
        a(f"v_dot2c_f32_bf16 v{s0}, v{RSV+e}, v1\nv_dot2c_f32_bf16 v{q0}, v{RSV+e}, v{RSV+e}")
        a(f"v_dot2c_f32_bf16 v{s1}, v{RSV+4+e}, v1\nv_dot2c_f32_bf16 v{q1}, v{RSV+4+e}, v{RSV+4+e}")
    a(f"""s_nop 2
v_permlane32_swap_b32 v{s0}, v{s1}
v_permlane32_swap_b32 v{q0}, v{q1}
v_add_f32 v{s0}, v{s0}, v{s1}
v_add_f32 v{q0}, v{q0}, v{q1}
v_mov_b32 v{s1}, v{s0}
v_mov_b32 v{q1}, v{q0}
v_permlane16_swap_b32 v{s0}, v{s1}
v_permlane16_swap_b32 v{q0}, v{q1}
v_add_f32 v{s0}, v{s0}, v{s1}
v_add_f32 v{q0}, v{q0}, v{q1}""")
    for sh in (8, 4, 2, 1):
        a(f"v_add_f32_dpp v{s0}, v{s0}, v{s0} row_ror:{sh} row_mask:0xf bank_mask:0xf\nv_add_f32_dpp v{q0}, v{q0}, v{q0} row_ror:{sh} row_mask:0xf bank_mask:0xf")
    a(f"""v_mul_f32 v88, {f2u(-1/512)}, v{s0}
v_mul_f32 v{q0}, {f2u(1/512)}, v{q0}
v_fma_f32 v{q0}, -v88, v88, v{q0}
v_max_f32 v{q0}, 0, v{q0}
v_add_f32 v{q0}, {f2u(1e-5)}, v{q0}
v_rsq_f32 v89, v{q0}
v_lshrrev_b32 v1, 5, v0
v_lshlrev_b32 v1, 3, v1
s_lshl_b32 s{sKO}, s{sKO}, 3
s_add_u32 s{sKO}, s{sKO}, {WS_RS}
v_mov_b32 v91, 0
v_mov_b32 v90, 1""")
    for i in range(8): a(f"v_lshlrev_b32 v{B1F+2*i}, 16, v{B1R[i//2]+(i&1)}\nv_and_b32 v{B1F+2*i+1}, 0xffff0000, v{B1R[i//2]+(i&1)}")
    return [l.strip() for l in a.lines]

def dma_x(kb):
    A, B = sT + 2, sT + 3
    g = []
    for qt in range(4):
        for s in range(2):
            pre = []
            if qt == 0 and s == 0:
                pre += [f"s_xor_b32 s{A}, s{sROT}, {kb}", f"s_lshl_b32 s{A}, s{A}, 7", f"s_lshl_b32 s{B}, s{sPAR}, 15",
                        f"s_add_u32 s{A}, s{A}, s{B}", f"s_xor_b32 s{B}, s{A}, 0x8000"]
            pre.append(f"s_add_u32 m0, s{sXB if qt & 1 else sXA}, {(kb & 1) * XSLOT + (qt >> 1) * 4096 + s * 960}")
            g.append((pre, f"buffer_load_dwordx4 v{VX1 if qt & 1 else VX0}, {srd(sX)}, s{B if qt >= 2 else A} offen offset:{s*64} lds ;tag=x{kb}"))
    return g
def dma_w(kb):
    A, B, C = sT + 4, sT + 5, sT + 6
    base = (kb % 3) * WSLOT
    g = []
    for i in range(4):
        s, t = i >> 1, i & 1
        if i == 0:
            pre = [f"s_xor_b32 s{C}, s{sROT}, {kb}", f"s_lshl_b32 s{A}, s{C}, 19", f"s_mul_i32 s{C}, s{C}, {64*2752}", f"s_add_u32 m0, s{sWM}, {base}"]
            so = A
        else:
            pre = [f"s_add_u32 s{B}, s{A}, {(32*s+4*t)*8192 - i*1024}"]; so = B
        g.append((pre, f"buffer_load_dwordx4 v{VWQ}, {srd(sWQ)}, s{so} offen offset:{i*1024} {WFL[1]} lds ;tag=w{kb}"))
    g.append(([f"s_add_u32 m0, s{sWM}, {base+4096}"], f"buffer_load_dwordx4 v{VW1}, {srd(sF0)}, s{C} offen lds ;tag=w{kb}"))
    g.append(([f"s_add_u32 m0, s{sWM}, {base+5120}"], f"buffer_load_dwordx4 v{VW1}, {srd(sF1)}, s{C} offen lds ;tag=w{kb}"))
    return g
WFL = ['', '']
def dma_kv(kind, tile, A=sT + 7):
    g = []
    for i in range(4):
        pre = [f"s_mov_b32 s{A}, {tile*16384}", f"s_add_u32 m0, s{sKM if kind=='K' else sVM}, {(tile%NS)*(KSLOT if kind=='K' else VSLOT)}"] if i == 0 else []
        g.append((pre, f"buffer_load_dwordx4 v{VD}, {srd(sK if kind=='K' else sV)}, s{A} offen offset:{i*1024} lds ;tag={kind}{tile}"))
    return g
def flat(g):
    out = []
    for pre, l in g: out += pre + [l]
    return out
def place_group(sc, g, lo, hi, sp=4, look=None):
    cur = lo
    for n_, (pre, l) in enumerate(g):
        start = cur
        h_ = hi - (len(g) - 1 - n_)
        l_ = min(cur + max(len(pre), sp if n_ else 1), h_)
        gp = sc.place_mem(l, l_, min(h_, l_ + look) if look is not None else h_)
        assert gp > start
        free = [x for x in range(start, gp) if not sc.sal[x]]
        free = [x for x in free if x > start or not any(m.startswith(("buffer_", "global_")) for m in sc.mem[x])]
        if len(free) < 1 and len(pre) == 1 and "m0" not in pre[0] and pre[0].startswith("s_") and not sc.sal[gp] and len(sc.mem[gp]) == 1:
            sc.sal[gp].append(pre[0])
        elif len(free) >= len(pre):
            for x, s_ in zip(free[-len(pre):] if pre else [], pre): sc.sal[x].append(s_)
        else:
            sc.post[gp - 1] += pre
        cur = gp
    return cur

def x_reads(kb):
    return [f"ds_read_b128 {ar(XF(kb,qt,s),4)}, v{VXR} offset:{(kb&1)*XSLOT+(qt*2+s)*1024}" for qt in range(4) for s in range(2)]
def w_off(kb, T, s, t):
    b = (kb % 3) * WSLOT
    return b + (2*s+t)*1024 + (T >> 1)*256 + (T & 1)*32 if T < 8 else b + 4096 + ((T-8) >> 1)*1024 + (2*s+t)*256 + (T & 1)*32
def w_reads(kb, T, n):
    return [f"ds_read_b64_tr_b16 {ar(WF(n,s)+2*t,2)}, v{VWR} offset:{w_off(kb,T,s,t)}" for s in range(2) for t in range(2)]
def c_reads(kb):
    out = []
    for j in range(3):
        for s in range(2):
            for t in range(2):
                if j < 2: out.append(f"ds_read_b64_tr_b16 {ar(CF(j,s)+2*t,2)}, v{VCQ} offset:{w_off(kb,j,s,t)}")
                else: out.append(f"ds_read_b64_tr_b16 {ar(CF(j,s)+2*t,2)}, v{VCF} offset:{w_off(kb,8,s,t)}")
    return out

CWR = [28, 88, 16, 20]
def s_count(name, off):
    return [f"s_lshl_b32 s{sT}, s{sQB}, 5", f"s_add_u32 s{sT}, s{sT}, {off}", f"s_mov_b32 s{sT+1}, 1", f"s_cmp_lg_u32 s{sW}, 0",
            f"s_cbranch_scc1 L_sc_{name}", f"s_atomic_add s{sT+1}, s[{sDBG}:{sDBG+1}], s{sT}", f"L_sc_{name}:"]
def hop(c, p="L_hop"):
    return ["s_mov_b64 exec, 0"] + sum(([f"s_cmp_eq_u32 s{sW}, {w}", f"s_cbranch_scc1 {p}{w}"] for w in range(3)), []) + [f"s_branch {p}3"] + ([".p2align 12"] if p == "L_hop" else []) + [f"{p}_back:", "s_mov_b64 exec, -1"]
def gemm1(c):
    L = setup_A(c) + ["@stamp first"] + setup_A2(c) + ["@stamp setup"] + (hop(c, "L_hoo") if c.hop and c.hop0 else [])
    no = [([], "; ")]
    g_ = [side_loads() + dma_x(0)[2:], no * 4 + dma_x(0)[2:] + side_loads()[:2], no * 6 + dma_x(0)[2:], no * 4 + side_loads()[:2] + dma_x(0)[2:]][c.SORD] + dma_w(1) + dma_x(1)[:2]
    for n_ in range(len(g_) + 2):
        if n_ == c.RSC: L += row_stats(c)
        if n_ == c.hop: L += hop(c)
        L += flat(g_[n_:n_ + 1])
    L += ["@stamp issued", "@waitvm x0"] + x_reads(0) + ["@waitvm w0 lgkm0", "s_barrier", "@stamp b0 rt"]
    TORD = [0, 1, 2, 10, 3, 4, 5, 11, 6, 7, 8, 9]
    L += w_reads(0, TORD[0], 0) + w_reads(0, TORD[1], 1)
    sc = Sched()
    first = {}; last = {}; start = {}; cwg = {}
    for kb in range(8):
        start[kb] = sc.n()
        for n, T in enumerate(TORD if kb < 7 else [0, 1, 8, 10, 9, 2, 11, 3, 4, 5, 6, 7]):
            N = kb * 12 + n
            for nq, qt in enumerate(range(4 if T < 10 else 2)):
                if c.gzig == 2 and T < 10 and (T & 1): qt = 3 - qt
                for i_ in range(2):
                    s = i_ ^ (nq & 1) if c.gzig else i_
                    d = vr(ACC(T, qt), 4)
                    g = sc.add(f"{M16} {d}, {ar(WF(N,s),4)}, {ar(XF(kb,qt,s),4)}, {'0' if kb == 0 and i_ == 0 else d}")
                    first.setdefault(N, (g, T)); last[N] = g
            j_ = n - (4 if kb < 7 else 3)
            if 0 <= j_ < 3: cwg[(kb, j_)] = sc.add(f"{SMF} {ar(CWA+4*j_,4)}, {vr(SMA,4)}, {ar(CF(j_,0),8)}, v{VIDX}")
    start[8] = sc.n()
    bar = {kb: start[kb] - c.GBAR for kb in range(1, 9)}
    bar[0] = -1; bar[8] = start[8] - c.GBAR8
    CNT2 = f"s_lshl_b32 s{sT+7}, s{sQB}, 5"
    for kb in range(8):
        lo, hi = bar[kb] + 1, bar[kb + 1]
        sc.sal[hi] += [f"@waitvm {('sst,' if kb else '') + 'w%d' % (kb+1) if kb < 7 else 'K0'} lgkm0", "s_barrier"] + ([f"@stamp b{kb+1}"] if kb < 7 else [])
        grp = []
        if kb + 1 < 8 and kb <= c.XFULL: grp += dma_x(kb + 1)[2:]
        if kb + 2 < 8 and kb > c.XFULL and c.XFIRST: grp += dma_x(kb + 2)
        if kb == 0: grp += stat_stores(c)
        if kb == 2 and not c.sat & 1: grp += [([CNT2], f"buffer_atomic_add v90, v{VONE}, {srd(sDBG)}, s{sT+7} offen offset:4 sc1")]
        if kb == 2 and c.sat & 1:
            for n_, l in enumerate(s_count("a", 4)): sc.sal[lo + min(n_, 4)].append(l)
        if kb == c.STB: grp += [([CNT2], ST_LOAD)]
        if kb + 2 < 8: grp += dma_w(kb + 2) + (dma_x(kb + 2)[:2] if kb < c.XFULL else dma_x(kb + 2) if kb == c.XFULL or not c.XFIRST else [])
        if kb == 6: grp += dma_kv("K", 0, sT + 6) + dma_kv("K", 1, sT + 6)
        if kb == 7:
            sc.post[lo + 1] += CNT_OK.split("\n") + ["s_cbranch_scc0 L_spin_st", "L_ok_st:"]
            A = sT + 6
            grp += [([f"s_lshl_b32 s{A}, s{sQB}, 2", f"s_add_u32 s{A}, s{A}, s{sW}", f"s_lshl_b32 s{A}, s{A}, 9", f"s_add_u32 s{A}, s{A}, {WS_RS}"] if qt == 0 else [],
                     f"buffer_load_dwordx2 {vr(SX+4*qt,2)}, v{92 + (qt >> 1)}, {srd(sWS)}, s{A} offen offset:{(qt&1)*128} sc1") for qt in range(4)]
            grp += dma_kv("V", 0) + (dma_kv("K", 2) if c.K2 else []) + (touches(c) if c.TP == 0 else [])
        g0 = lo + max(c.GLO, 5 if kb == 2 and c.sat & 1 else 0) if kb else c.G0
        if kb == 0 and not c.RSC: sc.post[g0 - 1] += row_stats(c)
        cur = place_group(sc, grp, g0, hi - 1, sp=min(c.GSP if kb else c.GSP0, (hi - g0 - 8) // len(grp)))
        xlast = next((g for g in range(hi, lo, -1) if any(f"tag=x{kb+1}" in m for m in sc.mem[g])), lo)
        ops = []
        for n in range(12):
            N = kb * 12 + n
            if N >= 2: ops += [(l, max(lo, last[N - NWR] if N >= NWR else 0), min(first[N][0] - 5, hi - 4)) for l in w_reads(kb, first[N][1], N)]
        ops += [(l, max(lo, 0), cwg[(kb, n_ // 4)] - 5) for n_, l in enumerate(c_reads(kb))]
        if kb + 1 < 8:
            g = next(x for x in range(max(hi - 22, xlast + 1), sc.n()) if not sc.sal[x])
            sc.sal[g].append(f"@waitvm x{kb+1}")
            if c.hop == f"x{kb+1}": sc.post[g - 1] += hop(c)
            ops += [(l, g, hi - 3) for l in x_reads(kb + 1)]
        else:
            g = cwg[(7, 2)] + 6
            for j in range(3):
                sc.valu[g + 2 * j] += [f"v_accvgpr_read_b32 v{28+j}, a{CWA+4*j}"]
                sc.valu[g + 2 * j + 1] += [f"v_accvgpr_read_b32 v31, a{CWA+4*j+1}"]
                sc.valu[g + 2 * j + 2] += [f"v_add_f32 v{28+j}, v{28+j}, v31"]
            ops += [(f"ds_write_b32 v{VC0}, v28", g + 8, hi - 3), (f"ds_write_b32 v{VC0}, v29 offset:64", g + 8, hi - 3), (f"ds_write_b32 v{VC1}, v30", g + 8, hi - 3)]
            cs = math.log2(math.e) / math.sqrt(128.0)
            for qt in range(4): sc.valu[start[8] - 5 + qt].append(f"v_mul_f32 v{SX+4*qt+2}, {f2u(cs)}, v{SX+4*qt+1}")
        sc.place_edf(ops)
    place_group(sc, dma_kv("V", 1), bar[8] + 1, start[8] - 1, sp=5)
    ops = [(f"ds_read_b128 {vr(CWR[j],4)}, v{VCR} offset:{(8+j)*64}", bar[8] + 1, start[8] - 1) for j in range(4)]
    ops += [(l, bar[8] + 1, start[8] - 1) for l in k_reads(0)]
    sc.place_edf(ops)
    g = start[7]; ls = late_scalars(c)
    while ls:
        g = next(x for x in range(g + 1, start[8]) if not sc.sal[x])
        sc.sal[g].append(ls.pop(0))
        if ls and ls[0].startswith(("s_addc", "s_subb")): sc.sal[g].append(ls.pop(0))
    print("gemm1 est cycles", sc.est(), file=sys.stderr)
    return L + sc.lines()

def touches(c, v=1, d0="a254", d1="a255"):
    if not c.touch: return []
    A, B = sT + 4, sT + 5
    return [([f"s_lshl_b32 s{A}, s2, 2", f"s_add_u32 s{A}, s{A}, s{sW}", f"s_lshl_b32 s{B}, s{A}, 5", f"s_sub_u32 s{B}, s{B}, s{sCT}",
              f"v_lshrrev_b32 v{v}, 1, v0", f"v_add_lshl_u32 v{v}, v{v}, s{B}, 7"], f"buffer_load_dword {d0}, v{v}, {srd(sWO)}, 0 offen"),
            ([f"s_mul_i32 s{B}, s{A}, 11", f"s_sub_u32 s{B}, s{B}, s{sCT}", f"v_min_u32 v{v}, 10, v0", f"v_add_lshl_u32 v{v}, v{v}, s{B}, 7"],
             f"buffer_load_dword {d1}, v{v}, {srd(sW2)}, 0 offen")][:1 if c.touch == "wo" else 2]

def sprinkle(lines, groups, every):
    out = []; groups = list(groups); k = 0
    for l in lines:
        out.append(l); k += 1
        if groups and k >= every and not l.strip().startswith(("s_cmp", "v_cmp", "s_add", "s_cselect")):
            pre, v = groups.pop(0); out += pre + [v]; k = 0
    return out + flat(groups)

def b2_init(a, v=1):
    a(f"v_lshrrev_b32 v{v}, 4, v0\nv_lshlrev_b32 v{v}, 3, v{v}")
    for ct in range(4): a(f"buffer_load_dwordx2 {vr(B2R+2*ct,2)}, v{v}, {srd(sB2)}, 0 offen offset:{ct*32}")
def attn_init():
    out = [f"v_accvgpr_write_b32 a{LA(0)+r}, 0" for r in range(16)] + [f"v_accvgpr_write_b32 a{FH(0,0)+r}, 0" for r in range(8)]
    for i in range(8): out += [f"v_lshlrev_b32 v{FA+2*i}, 16, v{B2R+i}", f"v_and_b32 v{FA+2*i+1}, 0xffff0000, v{B2R+i}"]
    return out
B2R = FA + 8
def epi1(c):
    a = Asm()
    k1 = -2.0 * math.sqrt(2.0 / math.pi) * math.log2(math.e); k2 = k1 * 0.044715
    kk = f"s[{sT+2}:{sT+3}]"
    a(f"s_mov_b32 s{sT+2}, {f2u(k2)}\ns_mov_b32 s{sT+3}, {f2u(k1)}")
    items = [(T, qt, h, vr(ACC(T, qt) + 2 * h, 2)) for T in range(8, 12) for qt in range(4 if T < 10 else 2) for h in range(2)]
    for T, qt, h, r in items: a(f"v_pk_fma_f32 {r}, {vr(CWR[T-8]+2*h,2)}, {vr(SX+4*qt,2)}, {r} op_sel_hi:[1,0,1]")
    for T, qt, h, r in items: a(f"v_pk_fma_f32 {r}, {r}, {vr(SX+4*qt,2)}, {vr(B1F+(T-8)*4+2*h,2)} op_sel:[0,1,0] op_sel_hi:[1,1,1]")
    st = []
    for T0, q0 in ((8, 0), (8, 2), (10, 0)):
        regs_ = [ACC(T0 + t, q0 + q) + e for q in range(2) for t in range(2) for e in (0, 2)]
        prs = [(r, B1F + 2 * i) for i, r in enumerate(regs_)]
        for r, t in prs: a(f"v_pk_mul_f32 {vr(t,2)}, {vr(r,2)}, {vr(r,2)}")
        for r, t in prs: a(f"v_pk_fma_f32 {vr(t,2)}, {vr(t,2)}, {kk}, {kk} op_sel:[0,0,1] op_sel_hi:[1,0,1]")
        for r, t in prs: a(f"v_pk_mul_f32 {vr(t,2)}, {vr(t,2)}, {vr(r,2)}")
        for r, t in prs: a(f"v_exp_f32 v{t}, v{t}\nv_exp_f32 v{t+1}, v{t+1}")
        for r, t in prs: a(f"v_pk_add_f32 {vr(t,2)}, {vr(t,2)}, 1.0 op_sel_hi:[1,0]")
        for r, t in prs: a(f"v_rcp_f32 v{t}, v{t}\nv_rcp_f32 v{t+1}, v{t+1}")
        for r, t in prs: a(f"v_pk_mul_f32 {vr(t,2)}, {vr(t,2)}, {vr(r,2)}")
        for i, (r, t) in enumerate(prs): a(f"v_cvt_pk_bf16_f32 v{ACC(T0, q0 + i // 4) + i % 4}, v{t}, v{t+1}")
        vo = VH1 if T0 == 10 else (VOA if q0 < 2 else VOB)
        st = [([], f"buffer_store_dwordx4 {vr(ACC(T0,q0+q),4)}, v{vo}, {srd(sWS)}, s{sHS0 if T0 == 8 else sHS1} offen offset:{q*1024} {c.stflags} ;tag=hst") for q in range(2)]
        if (T0, q0) == (8, 0): a("@waitvm V0\ns_barrier")
        if T0 == 8:
            a(st[0][1])
            if q0:
                for T in (4, 5, 6, 7): a(f"ds_read_b128 {vr(96+4*T,4)}, v{VCR} offset:{T*64}")
            a(st[1][1])
            if q0:
                for T in (0, 1, 2, 3): a(f"ds_read_b128 {vr(96+4*T,4)}, v{VCR} offset:{T*64}")
    c.last_h = st
    a("@stamp gelu")
    return a.lines

def scalar_init(c):
    out = f"""s_mov_b32 s{sVO}, {3*16384}
s_lshl_b32 s{sFW}, s{sW}, 13
s_sub_u32 s{sFW}, s{sFW}, 0x8000
s_sub_u32 s{sFH}, s{sHB}, 0x1000
s_and_b32 s{sT}, s{sRT}, {1 if c.fsplit else 0}
s_mul_i32 s{sT}, s{sT}, {21*0x1000}
s_add_u32 s{sFH}, s{sFH}, s{sT}
s_lshl_b32 s{sT}, s{sT}, 3
s_add_u32 s{sFW}, s{sFW}, s{sT}
s_mov_b32 s{sLOOP}, 7
s_mov_b32 s{sTC}, {-(c.l2end + 1 - c.l2n) * (0x100000 // max(c.l2n, 1))}
v_mov_b32 v{VPD}, 0x10000000""".split("\n")
    return [l for l in out if c.l2n or f"s{sTC}," not in l]
def late_scalars(c):
    a = Asm()
    for l in scalar_init(c)[:-1]: a(l)
    RS_ = 0x80000 + 4 * c.PADW + c.PADR
    a(f"""s_mul_i32 s{sT}, s{sRT}, {RS_}
s_mul_i32 s{sT+1}, s{sW}, {c.PADW}
s_add_u32 s{sT}, s{sT}, s{sT+1}
s_add_u32 s{sT}, s{sT}, {WS_O}""")
    mk_srd(a, sOL, sWS, sWS + 1, f"s{sT}", 0x80000)
    a(f"""s_lshl_b32 s{sT}, s{sQB}, 2
s_add_u32 s{sT}, s{sT}, s{sW}
s_mul_i32 s{sT}, s{sT}, {RS_}
s_lshr_b32 s{sT+1}, s{sHEAD}, 3
s_mul_i32 s{sT+1}, s{sT+1}, {c.PADW}
s_add_u32 s{sT}, s{sT}, s{sT+1}
s_add_u32 s{sT}, s{sT}, {WS_O}""")
    mk_srd(a, sOT, sWS, sWS + 1, f"s{sT}", 0x80000)
    if c.recenter: a(f"s_mov_b32 s{sRC}, {c.recenter}")
    if c.fsplit:
        assert c.ksplit and c.xbf and c.lean
        a(f"s_and_b32 s{sT}, s{sRT}, 1\ns_mul_i32 s{sT}, s{sT}, {2*H_RT}\ns_sub_u32 s{sDH}, {H_RT}, s{sT}")
    if c.ksplit:
        assert not c.PADW and not c.l2n
        a(f"s_xor_b32 s{sT}, s{sRT}, 1\ns_mul_i32 s{sT}, s{sT}, {RS_}\ns_add_u32 s{sT}, s{sT}, {WS_O}")
        mk_srd(a, sOP, sWS, sWS + 1, f"s{sT}", 0x80000)
    if c.l2n:
        a(f"s_and_b32 s{sT}, s{sHEAD}, 3\ns_lshl_b32 s{sT}, s{sT}, 7\ns_sub_u32 s{sPF}, s{sWO}, s{sT}\ns_subb_u32 s{sPF+1}, s{sWO+1}, 0")
    return [l.strip() for l in a.lines]
def l2_addr(c):
    R = 32 // c.l2n; sh = (64 // R).bit_length() - 1
    return [f"s_lshr_b32 s{sT}, s2, 3", f"s_mul_i32 s{sT}, s{sT}, {R * 1024}", f"s_lshl_b32 s{sT+1}, s{sW}, 20", f"s_add_u32 s{sT}, s{sT}, s{sT+1}",
            f"v_lshrrev_b32 v{VTO}, {sh}, v0", f"v_lshl_add_u32 v{VTO}, v{VTO}, 10, s{sT}", f"v_bfe_u32 v{VTO+1}, v0, {sh-2}, 2", f"v_lshl_add_u32 v{VTO}, v{VTO+1}, 7, v{VTO}"]
def fa2_init(c): return [f"v_mov_b32 v{FA2+i}, 0" for i in range(16)] if c.fsplit else []
def f_zero():
    return [([f"s_add_u32 m0, s{sFM}, {i*4096}"], f"buffer_load_dwordx4 v{VPD}, {srd(sW2)}, 0 offen lds ;tag=fz") for i in range(1 if FSP[0] else 2)]

def head(c, early):
    a = Asm()
    TQ = S0
    def weave(va, mf, mem=()):
        va = list(va); mem = list(mem); tot = sum(icost(l) for l in va); done = 0
        for n_, m in enumerate(mf):
            a(m)
            for _ in range(-(-len(mem) // (len(mf) - n_))):
                x = mem.pop(0)
                for l in ([x] if isinstance(x, str) else x[0] + [x[1]]): a(l)
            while va and done < tot * (n_ + 1) / len(mf): done += icost(va[0]); a(va.pop(0))
        for l in va: a(l)
    def corr(qt):
        it = [(T, h, vr(ACC(T, qt) + 2 * h, 2)) for T in range(8) for h in range(2)]
        for T, h, r in it: a(f"v_pk_fma_f32 {r}, {vr(96+4*T+2*h,2)}, {vr(SX+4*qt,2)}, {r} op_sel_hi:[1,0,1]")
        for T, h, r in it: a(f"v_pk_mul_f32 {r}, {r}, {vr(SX+4*qt+2,2)} op_sel_hi:[1,0]")
    def frag(qt):
        va = []
        for ks in range(4):
            t = TQ + 4 * ks; X, Y = ACC(2 * ks, qt), ACC(2 * ks + 1, qt)
            va += [f"v_cvt_pk_bf16_f32 v{t}, v{X}, v{X+1}", f"v_cvt_pk_bf16_f32 v{t+2}, v{Y}, v{Y+1}",
                   f"v_cvt_pk_bf16_f32 v{t+1}, v{X+2}, v{X+3}", f"v_cvt_pk_bf16_f32 v{t+3}, v{Y+2}, v{Y+3}"]
        for ks in range(4):
            t = TQ + 4 * ks
            va += [f"v_permlane16_swap_b32 v{t}, v{t+2}", f"v_permlane16_swap_b32 v{t+1}, v{t+3}"]
        return va + [f"v_accvgpr_write_b32 a{Q(qt,0)+e}, v{TQ+e}" for e in range(16)]
    def rowmax(qt):
        r = [S(qt, e // 4) + e % 4 for e in range(16)]; n = NEGM + 4 * qt
        va = []
        for k in range(0, 8, 2):
            for h, t in ((0, 88), (8, 89)):
                va.append(f"v_max3_f32 v{t}, v{r[h+k]}, v{r[h+k+1]}, v{t}" if k else f"v_max_f32 v{t}, v{r[h]}, v{r[h+1]}")
        va += ["v_max_f32 v88, v88, v89", "v_mov_b32 v89, v88", "v_permlane32_swap_b32 v88, v89", "v_max_f32 v88, v88, v89",
               "v_mov_b32 v89, v88", "v_permlane16_swap_b32 v88, v89", "v_max_f32 v88, v88, v89", "v_floor_f32 v88, v88",
               f"v_sub_f32 v{n}, -v88, s{sSH}"]
        return va + [f"v_add_f32 v{x}, v{x}, v{n}" for x in r] + [f"v_mov_b32 v{n+k}, v{n}" for k in (1, 2, 3)]
    def mix(x, y):
        out = []; x = list(x); y = list(y); nx, ny = len(x), len(y)
        while x or y:
            if x and (not y or (nx - len(x)) * ny <= (ny - len(y)) * nx): out.append(x.pop(0))
            else: out.append(y.pop(0))
        return out
    vob = [f"v_lshrrev_b32 v{VOB}, 3, v0", f"v_lshl_add_u32 v{VOB}, s{sW}, 4, v{VOB}", f"v_and_b32 v{VOA}, 7, v0",
           f"v_lshlrev_b32 v{VOA}, 4, v{VOA}", f"v_lshl_add_u32 v{VOB}, v{VOB}, 10, v{VOA}"]
    sm = lambda n, upto=32: sum((sm_ops(n, p) for p in range(upto)), [])
    qk = lambda n: qk_mfmas(n, czero=True)
    pv = lambda n: [smf(n)] + pv_mfmas(n)
    vr0 = v_reads(0)
    ini = attn_init()
    a(scalar_init(c)[-1])
    if c.smtest:
        a(f"v_and_b32 v88, 15, v0\nv_cmp_gt_u32 vcc, {c.smtest}, v88")
        for r in range(4): a(f"v_cndmask_b32 v{SMA+r}, 0, v{SMA+r}, vcc")
    b = Asm(); b2_init(b, 90)
    for l in flat(c.last_h) + b.lines[:2]: a(l)
    corr(0)
    for l in frag(0): a(l)
    a("@stamp h0")
    corr(1); weave(frag(1), qk(0), mix(f_zero() + b.lines[2:], vr0[:14]))
    a("@stamp h1")
    kv3 = ([] if c.K2 else dma_kv("K", 2)) + dma_kv("V", 2) + dma_kv("K", 3) + dma_kv("V", 3)
    bar = f"""s_lshl_b32 s{sT}, s{sQB}, 5
v_mov_b32 v90, 1
@waitvm K1,V1,hst,fz lgkm0
s_barrier
buffer_atomic_add v90, v{VONE}, {srd(sDBG)}, s{sT} offen sc1
@stamp hb"""
    if c.sat & 2: bar = "\n".join(s_count("b", 0)[:4] + ["@waitvm K1,V1,hst,fz lgkm0", "s_barrier"] + s_count("b", 0)[4:])
    corr(2); weave(mix(rowmax(0), frag(2)), qk(1), vr0[14:] if c.HB == 2 else vr0[14:28])
    a("@stamp h2")
    corr(3)
    if c.HB == 2: a(bar)
    weave(mix(rowmax(1) + ini[24:], sm(0) + frag(3)), qk(2), ([] if c.HB == 2 else vr0[28:]) + sum(([x, "; "] for x in kv3[:len(kv3) // 2]), []))
    a("@stamp h3")
    if c.HB == 3: a(bar)
    weave(mix((fa2_init(c) or ["s_nop 0"] * 6) + rowmax(2), sm(1)), qk(3) + pv(0), sum(([x, "; ", "; ", "; "] for x in kv3[len(kv3) // 2:]), []))
    a("@stamp h4")
    h_ = len(early) // 2
    weave(mix(rowmax(3), sm(2)), pv(1), early[:h_] + (touches(c, 91, 'v92', 'v93') if c.TP else []) +
          ([([f"s_lshl_b32 s{sT+4}, s{sT+4}, 12", f"s_add_u32 s{sT+4}, s{sT+4}, {WS_X}", "v_lshlrev_b32 v91, 6, v0"], f"buffer_load_dword v93, v91, {srd(sWS)}, s{sT+4} offen sc1")] if c.xtouch else []))
    weave(vob + (l2_addr(c) if c.l2n else []) + sm(3, 32 - c.SM0), pv(2), early[h_:])
    return a.lines

SLOTS = {"X": ("V", XB)}
for _i in range(4): SLOTS[f"K{_i}"] = ("K", _i * KSLOT); SLOTS[f"V{_i}"] = ("V", VBASE + _i * VSLOT)
FAKE = [False]
SIG = {n: n for n in range(32)}
def make_pairs(c):
    Ls = list(range(c.NR, 32)); Hs = list(range(c.NR)); NP = 16 - c.ND // 2
    nll = len(Ls) - NP; assert nll >= 0
    llpos = {c.LL0 + c.LLS * k_ for k_ in range(nll)}; assert all(p < NP for p in llpos)
    return [(Hs.pop(0), Hs.pop(0)) if p >= NP else (Ls.pop(0), Ls.pop(0)) if p in llpos else (Ls.pop(0), Hs.pop(0)) for p in range(16)]
def t_wload(n, slot):
    A = sT + 2
    kind, base = SLOTS[slot]
    pre = [f"s_xor_b32 s{A}, s{sRO}, {SIG[n] << 15}",
           f"s_add_u32 m0, s{sKM if kind == 'K' else sVM}, {base if kind == 'K' else base - VBASE}"]
    g = []
    for i in range(4):
        if i: pre = [f"s_add_u32 s{A}, s{A}, 7168"]
        g.append((pre, f"buffer_load_dwordx4 v{VDW}, {srd(sWO)}, s{A} offen offset:{i*1024} {WFL[0]} lds ;tag=t{n}"))
    return g
def t_bload(c, n, dst):
    B = sT + 3
    return [([f"s_xor_b32 s{B}, s{sOB}, {((SIG[n] >> 2) << 14) + ((SIG[n] & 3) << 10) + (j << 12)}"],
             f"buffer_load_dwordx4 {dst(j)}, v{VL}, {srd(sOL)}, s{B} offen {c.ldflags} ;tag=b{n}") for j in range(4)]
def t_reads(slot, dst):
    kind, base = SLOTS[slot]
    r = VRA + (4 if slot == "X" else 0 if kind == "K" else 2)
    off = 0 if slot == "X" else base if kind == "K" else base - VBASE
    return [f"ds_read_b64_tr_b16 {dst(ct, t)}, v{r + (ct & 1)} offset:{off + t*2048 + (ct>>1)*512}" for ct in range(4) for t in range(2)]
def quads(k, b): return [(k, b + 4 * i) for i in range(4)]
HOLD = [quads("v", 112), quads("a", 240), quads("a", 208), quads("a", 224), [("a", 128), ("a", 132), ("a", 160), ("a", 164)]] + \
       [quads("a", b) for b in (64, 80, 96, 112, 136)] + [[("a", 152), ("a", 156), ("a", 168), ("a", 172)]] + \
       [quads("a", 176), quads("v", 96), quads("a", 192)] + [quads("a", b) for b in (0, 16, 32, 48)]
def hold(i): return lambda ct, t=None: rr(HOLD[i][ct], 4) if t is None else rr(HOLD[i][ct], 2, 2 * t)
class WStream:
    def __init__(self, total=32): self.slot = {}; self.nxt = 0; self.held = 0; self.total = total
    def fill(self, sl):
        if self.nxt >= self.total: return []
        n = self.nxt; self.nxt += 1; self.slot[n] = sl
        return t_wload(n, sl)
    def take(self):
        n = self.held; self.held += 1
        return f"@waitvm t{n}", t_reads(self.slot[n], hold(n)), f"@dep {HOLD[n][3][0]}{HOLD[n][3][1] + 3}", self.slot[n]
FAF = 208
def FH(buf, i): return 224 + buf * 8 + i * 4
FSP = [False]; FA2 = 112; sDH, sH2 = 94, 95
def f_loads(c, gam, buf, nk):
    g = []
    if c.fsplit:
        w = [f"s_add_u32 s{sFW}, s{sFW}, 0x8000"] if nk == 2 else [f"s_lshl_b32 s{sFW}, s{sW}, 13", f"s_add_u32 s{sFW}, s{sFW}, {42*0x8000}"]
        g.append((w + [f"s_add_u32 m0, s{sFM}, {buf*8192}"], f"buffer_load_dwordx4 v{VDW}, {srd(sW2)}, s{sFW} offen {c.fwflags} lds ;tag=f{gam}"))
        g.append(([f"s_add_u32 s{sFH}, s{sFH}, 0x1000" if nk == 2 else f"s_add_u32 s{sFH}, s{sHB}, {42*0x1000}"],
                  f"buffer_load_dwordx4 {ar(FH(buf,0),4)}, v{VL}, {srd(sWS)}, s{sFH} offen {c.fhflags} ;tag=f{gam}"))
        if nk == 2: g.append(([f"s_add_u32 s{sH2}, s{sFH}, s{sDH}"], f"buffer_load_dwordx4 {ar(FH(buf,1),4)}, v{VL}, {srd(sWS)}, s{sH2} offen {c.fhflags} ;tag=f{gam}"))
        return g
    for i in range(nk):
        g.append(([f"s_add_u32 s{sFW}, s{sFW}, 0x8000", f"s_add_u32 m0, s{sFM}, {buf*8192 + i*4096}"],
                  f"buffer_load_dwordx4 v{VDW}, {srd(sW2)}, s{sFW} offen {c.fwflags} lds ;tag=f{gam}"))
        g.append(([f"s_add_u32 s{sFH}, s{sFH}, 0x1000"],
                  f"buffer_load_dwordx4 {ar(FH(buf,i),4)}, v{VL}, {srd(sWS)}, s{sFH} offen {c.fhflags} ;tag=f{gam}"))
    return g
def f_part(buf, nk, g):
    it = [(2*g, 0), (2*g, 1), (2*g+1, 1), (2*g+1, 0)] if nk == 2 else [(ct, 0) for ct in range(4)]
    if FSP[0] and nk == 2:
        rd = [f"ds_read_b64_tr_b16 {ar(FAF+4*ct+2*t,2)}, v{VFO if ct & 1 else VFE} offset:{buf*8192 + t*2048 + (ct>>1)*512}" for ct in (2*g, 2*g+1) for t in range(2)]
        return rd, [f"{M16} {vr((FA2 if i else FA)+4*ct,4)}, {ar(FAF+4*ct,4)}, {ar(FH(buf,i),4)}, {vr((FA2 if i else FA)+4*ct,4)}" for ct, i in it]
    FB = 240 if g else FAF
    rd = [f"ds_read_b64_tr_b16 {ar(FB+4*n+2*t,2)}, v{VFO if ct & 1 else VFE} offset:{buf*8192 + i*4096 + t*2048 + (ct>>1)*512}" for n, (ct, i) in enumerate(it) for t in range(2)]
    return rd, [f"{M16} {vr(FA+4*ct,4)}, {ar(FB+4*n,4)}, {ar(FH(buf,i),4)}, {vr(FA+4*ct,4)}" for n, (ct, i) in enumerate(it)]
def f_group(k):
    if k == 0: return (-1, 0, 2)
    if k == 29: return (21, 1, 1)
    if 1 <= k <= 28 and (k - 1) % 4: return (3 * ((k - 1) // 4) + (k - 1) % 4 - 1, 1 if (k - 1) % 4 == 2 else 0, 2)
    return None

def spin(name, load, okcmp, back, slp=0):
    return f"""L_spin_{name}:
s_mov_b32 s{sT+6}, 0x40000
L_spin_{name}_l:{chr(10) + 's_sleep %d' % slp if slp else ''}
{load}
s_waitcnt vmcnt(0)
{okcmp}
s_cbranch_scc1 {back}
s_sub_u32 s{sT+6}, s{sT+6}, 1
s_cmp_lg_u32 s{sT+6}, 0
s_cbranch_scc1 L_spin_{name}_l
s_branch {back}""".split("\n")
CNT_LOAD = f"buffer_load_dword v{VPD}, off, {srd(sDBG)}, s{sT+7} sc1"
ST_LOAD = f"buffer_load_dword v{VPD}, off, {srd(sDBG)}, s{sT+7} offset:4 sc1"
CNT_OK = f"v_cmp_le_u32 vcc, 32, v{VPD}\ns_nop 0\ns_cmp_eq_u64 vcc, -1"
FL_LOAD = f"buffer_load_dword v{VPD}, v{VPA}, {srd(sWS)}, s{sT+7} offen sc1"
FL_OK = f"v_cmp_eq_u32 vcc, 1, v{VPD}\ns_nop 0\ns_cmp_eq_u64 vcc, -1"

QKO = [(i, 3 - k if i & 1 else k) for i in range(4) for k in range(4)]
PVO = [(dt, u ^ (dt & 1)) for dt in range(8) for u in range(2)]
def k_reads(T):
    return [f"ds_read_b128 {ar(KF(i,ks),4)}, v{VK} offset:{(T % NS)*KSLOT + i*1024 + ks*256}" for i, ks in QKO]
def v_reads(T):
    return [f"ds_read_b64_tr_b16 {rr(VF(T,u,dt),2,2*t)}, v{VV} offset:{(T % NS)*VSLOT + (2*u+t)*1024 + (dt>>1)*256 + (dt&1)*32}" for dt, u in PVO for t in range(2)]
def qk_mfmas(n, czero=False):
    qt = n & 3
    return [f"{M16} {vr(S(n,i),4)}, {ar(KF(i,ks),4)}, {ar(Q(qt,ks),4)}, " + (vr(S(n,i),4) if g & 3 else "0" if czero else vr(NEGM+qt*4,4)) for g, (i, ks) in enumerate(QKO)]
def pv_mfmas(n):
    qt = n & 3
    return [f"{M16} {vr(O(dt,qt),4)}, {rr(VF(n>>2,u,dt),4)}, {vr(P(n)+4*u,4)}, " + (vr(O(dt,qt),4) if n >= 4 or g & 1 else "0") for g, (dt, u) in enumerate(PVO)]
def smf(n): return f"{SMF} {ar(LA(n&3),4)}, {vr(SMA,4)}, {vr(P(n),8)}, v{VIDX}"
def sm_ops(n, p):
    e = p // 2
    if p < 0 or e >= 16: return []
    r = S(n, e // 4) + e % 4
    if p % 2 == 0: return [f"v_exp_f32 v{r}, v{r}"]
    return [f"v_cvt_pk_bf16_f32 v{P(n)+e//2}, v{r-1}, v{r}"] if e % 2 else []
def o_finish(c, qt, packed):
    L_, RC, MX = NEGM + 4 * qt, NEGM + 4 * qt + 2, NEGM + 4 * qt + 1
    va = [[f"v_accvgpr_read_b32 v{L_}, a{LA(qt)}", f"v_accvgpr_read_b32 v{RC}, a{LA(qt)+1}", f"v_add_f32 v{L_}, v{L_}, v{RC}", f"v_rcp_f32 v{RC}, v{L_}"], [], [], []]
    st = []
    for m in range(4):
        src = [O(2*m, qt) + e for e in range(4)] + [O(2*m+1, qt) + e for e in range(4)]
        for i in range(0, 8, 2):
            r = src[i]
            va[m].append(f"v_maximum3_f32 v{MX}, |v{r}|, |v{r+1}|, " + (f"v{MX}" if m or i else "0"))
            if packed: va[m].append(f"v_pk_mul_f32 {vr(r,2)}, {vr(r,2)}, {vr(RC,2)} op_sel_hi:[1,0]")
            else: va[m] += [f"v_mul_f32 v{r}, v{r}, v{RC}", f"v_mul_f32 v{r+1}, v{r+1}, v{RC}"]
        va[m] += [f"v_cvt_pk_bf16_f32 v{src[e]}, v{src[2*e]}, v{src[2*e+1]}" for e in range(4)]
        st.append(f"buffer_store_dwordx4 {vr(src[0],4)}, v{VL}, {srd(sOT)}, s{sT} offen offset:{m*1024} {c.stflags} ;tag=ost")
    va[0].insert(0, f"s_xor_b32 s{sT}, s{sOS}, {qt << 12}")
    return va, st

def attention(c, ws):
    sc = Sched(); idx = {}; fidx = {}
    for G in range(2 * 32 + c.BAR + 1, 129 * 32):
        n, g = divmod(G, 32)
        m = (qk_mfmas(n)[g] if n < 128 else None) if g < 16 else pv_mfmas(n - 1)[g - 16]
        idx[G] = sc.add(m)
        for nn in (n - 1, n):
            if nn < 128: sc.valu[idx[G]] += sm_ops(nn, G - 32 * nn - c.SM0)
        if g == 15: sc.add(smf(n - 1))
        k = G // 128
        fc = f_group(k - 1) if k >= 1 else (0, 0, 2)
        if fc:
            for h in range(fc[2]):
                if G - 128 * k == c.FPOS[h]:
                    for n_, m in enumerate(f_part(fc[1], fc[2], h)[1]): fidx[(k, h, n_)] = sc.add(m)
    def spread(lines, g0, g1):
        gaps = list(range(g0, g1 + 1)); lines = list(lines)
        tot = sum(icost(l) for l in lines) + sum(sc.cost(x) for x in gaps); acc_ = 0; last = g0
        for n_, x in enumerate(gaps):
            acc_ += sc.cost(x)
            while lines and (acc_ < tot * (n_ + 1) / len(gaps) - 2 or n_ == len(gaps) - 1):
                acc_ += icost(lines[0]); sc.valu[x].append(lines.pop(0)); last = x
        return last
    for k in range(1, 32):
        B = 128 * k
        lo = idx[B - 64 + c.BAR + 1]; nb = idx[B + 64 + c.BAR]; hi = nb - 4; end = nb - 1
        fg = f_group(k); p = (k - 1) % 4
        tags = f"V{k+1},K{k+1}" + (f",f{fg[0]}" if fg else "")
        if k < 31: sc.sal[nb] += [f"@waitvm {tags} lgkm0", "s_barrier"]
        if k <= 29: sc.post[idx[B + 32] - 1].append(f"@seg {k}")
        if k >= 30:
            for q_ in (-32, 32, 64, 96)[:2 if k == 30 else 4]: sc.post[idx[B + q_] - 1].append(f"@stamp p{(B + q_) // 32}")
        if c.recenter and c.rcw and k <= 28 and p == 1:
            sc.sal[idx[B] - 2].append(f"s_bitcmp1_b32 s{sRC}, s{sLOOP}")
            sc.post[idx[B] - 1] += ["s_cbranch_scc1 L_rc_a", "@rc 0"]
            for q_ in (1, 2, 3): sc.post[idx[B + 32 * q_] - 1].append(f"@rc {q_}")
            sc.post[idx[B + 128] - 1].append("L_rc_back:")
        if c.recenter and not c.rcw and k <= 29:
            for nm, p_, g_ in (("a", 0, 64), ("b", 1, 0)):
                if p == p_:
                    sc.sal[idx[B + g_] - 2].append(f"s_bitcmp1_b32 s{sRC}, s{sLOOP}")
                    sc.post[idx[B + g_] - 1] += [f"s_cbranch_scc1 L_rc_{nm}", f"L_rc_{nm}_back:"]
        if fg and k <= 28: place_group(sc, f_loads(c, *fg), idx[B], end)
        elif k <= 29 and c.codepf2: place_group(sc, [([], f"global_load_dword v{VOA}, v{VCP}, s[90:91]")], idx[B], end)
        if p == 1 and k <= 28: sc.post[idx[B - 3]] += CNT_OK.split("\n") + ["s_cbranch_scc0 L_spin_cnt", "L_ok_cnt:"]
        dm = []
        if k <= 29:
            for kind, sM, SL, d in (("K", sKM, KSLOT, sK), ("V", sVM, VSLOT, sV)):
                dm += [(([f"s_add_u32 s{sVO}, s{sVO}, 0x4000"] if kind == "K" else []) + [f"s_add_u32 m0, s{sM}, {((k+3)%NS)*SL}"] if i == 0 else [],
                        f"buffer_load_dwordx4 v{VD}, {srd(d)}, s{sVO} offen offset:{i*1024} {c.kvflags} lds ;tag={kind}{k+3}") for i in range(4)]
            if p == 0: dm = [([f"s_lshl_b32 s{sT+7}, s{sGX}, 5"], CNT_LOAD)] + dm
            if c.l2n:
                dm.append(([f"s_add_u32 s{sTC}, s{sTC}, {0x100000 // c.l2n}", f"s_cmp_lt_u32 s{sTC}, 0x100000", f"s_cselect_b32 s{sPF+2}, {4096*1024-512}, 0", f"s_cselect_b32 s{sTO}, s{sTC}, 0"],
                           f"buffer_load_dword v{VTO+1}, v{VTO}, {srd(sPF)}, s{sTO} offen"))
            place_group(sc, dm, idx[B + c.DPOS], end, sp=c.DSP)
        ops = [(l, max(lo, idx[B - 32 + g]), idx[B + g] - c.MG) for g, l in enumerate(k_reads(k))]
        ops += [(l, lo if PVO[n_ // 2][0] < NVX else idx[B + 16 + n_ // 2], idx[B + 48 + n_ // 2] - c.MG) for n_, l in enumerate(v_reads(k))]
        fc = f_group(k - 1)
        if fc:
            for h in range(fc[2]):
                ops += [(l, idx[B], min(fidx[(k, h, n_ // 2)] - c.MG, hi)) for n_, l in enumerate(f_part(fc[1], fc[2], h)[0])]
        if k == 29:
            sc.place_edf(ops); ops = []
            for pre, l in dm + [([f"s_bitcmp1_b32 s{sRC}, s{sLOOP}", "s_cbranch_scc1 L_rc_a"], "L_rc_a_back:")]:
                for x in range(idx[B + 32], nb):
                    for lst in (sc.sal[x], sc.mem[x], sc.post[x]):
                        for y in pre + [l]:
                            if y in lst: lst.remove(y)
        def hold_in(g0, g1, vm, sp=4):
            w, rd, dep, sl = ws.take()
            g0 = next(x for x in range(g0, g1) if not sc.sal[x]); sc.sal[g0].append(w)
            ops.extend((l, g0, g1) for l in rd)
            g2 = next(x for x in range(max(g1 + 3, vm), end) if not sc.sal[x]); sc.sal[g2].append(dep)
            return place_group(sc, ws.fill(sl), g2, end, sp, 1 if sp == 2 else None)
        pg = [([], f"buffer_load_dword v{90+i}, off, {srd(d)}, {o} sc1") for i, (d, o) in enumerate(((sOT, f"s{sOS}"), (sOL, f"s{sOB}"), (sOUT, 0)))] if c.pg & 2 else []
        if k == 29: place_group(sc, pg + f_loads(c, *fg) + ws.fill("K0") + ws.fill("V0"), idx[B + (33 if pg else 40)], end, sp=3 if pg else 4)
        xt = [([f"s_lshl_b32 s{sT+4}, s{sW}, 11", f"s_add_u32 m0, s{sT+4}, {XT}"], f"buffer_load_dwordx4 v{VOB}, {srd(sXX)}, 0 offen lds ;tag=xt"),
              ([f"s_mov_b32 s{sT+4}, 7168"], f"buffer_load_dwordx4 v{VOB}, {srd(sXX)}, s{sT+4} offen offset:1024 lds ;tag=xt")]
        if k == 30:
            cur = place_group(sc, ws.fill("K1") + ws.fill("V1") + xt, lo, end)
            if c.fsplit:
                g_ = spread([f"v_cvt_pk_bf16_f32 v{FA2+e}, v{FA2+2*e}, v{FA2+2*e+1}" for e in range(8)], idx[B - 24], idx[B - 8])
                A_ = sT + 5
                cur = place_group(sc, [([f"s_lshl_b32 s{A_}, s2, 2", f"s_add_u32 s{A_}, s{A_}, s{sW}", f"s_lshl_b32 s{A_}, s{A_}, 12", f"s_add_u32 s{A_}, s{A_}, {WS_X}"] if i == 0 else [],
                                        f"buffer_store_dwordx4 {vr(FA2+4*i,4)}, v{VL}, {srd(sWS)}, s{A_} offen offset:{2048+i*1024} sc1 ;tag=ost") for i in range(2)], max(cur, g_), end)
                assert cur < idx[B + c.H30W[1][0]]
            for g0, g1 in c.H30W: cur = hold_in(idx[B + g0], idx[B + g1], cur, c.HSP)
        if k == 31:
            cur = place_group(sc, ws.fill("K2") + ws.fill("V2") + ws.fill("X"), lo, end)
            g_ = next(x for x in range(idx[B + 13], end) if not sc.sal[x]); sc.sal[g_] += ["s_waitcnt lgkmcnt(0)", "s_barrier"]
            cur = place_group(sc, ws.fill("K3"), max(cur, g_), end)
            for g0, g1 in c.H31W: cur = hold_in(idx[B + g0], idx[B + g1], cur)
        if ops: sc.place_edf(ops)
    late = None
    if c.stagger:
        cut = idx[126 * 32]; scA, wsA = sc, ws
        assert not any(m.startswith("buffer_") for x in range(cut, sc.n()) for m in sc.mem[x])
        sc, ws = copy.deepcopy(scA), copy.deepcopy(wsA); ops = []; end = sc.n() - 1; cur = cut
        for g0, g1 in c.HLW: cur = hold_in(idx[126 * 32 + g0], idx[126 * 32 + g1], cur)
        sc.place_edf(ops)
        for lst in (sc.mf, sc.sal, sc.mem, sc.valu, sc.post): del lst[:cut]
        late = (sc.lines(), ws); sc, ws = scA, wsA
        sc.sal[cut - 2].append(f"s_bitcmp1_b32 s2, {c.stagger}")
        sc.post[cut - 1] += ["s_cbranch_scc1 L_late", "@cut"]
    if c.NE: sc.sal[idx[(129 - c.NE) * 32] - 1].append("s_setreg_imm32_b32 hwreg(HW_REG_MODE, 4, 2), 3")
    for qt in range(c.NE):
        n = 129 - c.NE + qt
        va, st = o_finish(c, qt, False)
        g0, g1 = idx[32 * n + (3 if n < 128 else 12)], idx[32 * n + 31]
        for m in range(4):
            a0 = g0 + (g1 - g0) * m // 4; a1 = g0 + (g1 - g0) * (m + 1) // 4 - 1
            spread(va[m], a0, a1); sc.mem[a1 + 1].append(st[m])
    ge = lambda x: max(16, 16 - sc.budget(x) + sc.cost(x)) if sc.mf[x] else sc.cost(x)
    pe = [sum(ge(x) - (16 if sc.mf[x] else 0) for x in range(idx[32 * n], idx[32 * n + 31] + 1)) for n in list(range(37, 53)) + list(range(117, 129))]
    print("attention est cycles", sc.est(), "overflow per period", pe, file=sys.stderr)
    g4 = idx[128]
    if c.estonly: return pe
    early = sum((sc.mem[x] for x in range(g4)), [])
    assert all(l.startswith("ds_read") for l in early) and not any(sc.sal[x] or sc.post[x] for x in range(g4))
    for lst in (sc.mf, sc.sal, sc.mem, sc.valu, sc.post): del lst[:g4]
    return early, sc.lines(), late

class Pump:
    def __init__(self, a, ws): self.a = a; self.ws = ws; self.pend = []; self.nxt = None
    def busy(self): return bool(self.pend or self.nxt)
    def __call__(self, nload, limit):
        a, ws = self.a, self.ws
        for _ in range(nload):
            if not self.pend:
                prev = self.nxt; self.nxt = None
                if ws.held < limit:
                    w, rd, dep, sl = ws.take(); a(w)
                    for l in rd: a(l)
                    self.nxt = (dep, sl)
                if prev:
                    g = ws.fill(prev[1])
                    if g: a(prev[0]); self.pend.extend(g)
            if self.pend:
                pre, l = self.pend.pop(0)
                for x in pre + [l]: a(x)

def gate(c, plain=False, TT=48):
    G = FA
    b = Asm()
    b(f"""v_lshrrev_b32 v31, 4, v0
v_lshlrev_b32 v31, 3, v31
v_and_b32 v30, 15, v0
s_lshl_b32 s{sT}, s{sW}, 11
s_add_u32 s{sT}, s{sT}, {XT}
v_lshl_add_u32 v29, v30, 7, v31
v_add_u32 v29, s{sT}, v29
v_mul_u32_u24 v30, 144, v30
v_add3_u32 v30, v30, v31, s{sKM}
v_lshrrev_b32 v31, 3, v0
v_mul_u32_u24 v31, 144, v31
v_and_b32 v28, 7, v0
v_lshl_add_u32 v31, v28, 4, v31
v_add_u32 v31, s{sKM}, v31""")
    if plain:
        n0 = len(b.lines)
        for op in ("v_mul_f32 v{t}, %s, v{g}" % f2u(-math.log2(math.e)), "v_exp_f32 v{t}, v{t}", "v_add_f32 v{t}, 1.0, v{t}", "v_rcp_f32 v{t}, v{t}", "v_mul_f32 v{g}, v{g}, v{t}"):
            for i in range(16): b(op.format(t=TT + i, g=G + i))
        return b.lines[:n0], [l.strip() for l in b.lines[n0:]]
    for i in range(16): b(f"v_mul_f32 v{TT+i}, {f2u(-math.log2(math.e))}, v{G+i}")
    for i in range(16): b(f"v_exp_f32 v{TT+i}, v{TT+i}")
    for i in range(0, 16, 2): b(f"v_pk_add_f32 {vr(TT+i,2)}, {vr(TT+i,2)}, 1.0 op_sel_hi:[1,0]")
    for i in range(16): b(f"v_rcp_f32 v{TT+i}, v{TT+i}")
    for i in range(0, 16, 2): b(f"v_pk_mul_f32 {vr(G+i,2)}, {vr(G+i,2)}, {vr(TT+i,2)}")
    return b.lines

def tail1(c, ws, late=False):
    a = Asm()
    T = 88; EX = S0
    pump = Pump(a, ws)
    if not c.NE: a("s_setreg_imm32_b32 hwreg(HW_REG_MODE, 4, 2), 3")
    if not c.split_bar: pump(1, c.NB1)
    for qt in range(0 if late else c.NE, 4):
        va, st = o_finish(c, qt, True)
        for m in range(4):
            for l in va[m] + [st[m]]: a(l)
    pump(c.NP0, c.NB1)
    if not c.early_gate:
        while pump.busy() or ws.held < c.NB1: pump(1, c.NB1)
    a(f"s_mov_b32 s{sT+4}, 0x100\ns_mov_b64 s[{sT+6}:{sT+7}], -1")
    for qt in range(4):
        for r in (NEGM + 4 * qt, NEGM + 4 * qt + 1, NEGM + 4 * qt + 2):
            a(f"v_cmp_class_f32 vcc, v{r}, s{sT+4}\ns_and_b64 s[{sT+6}:{sT+7}], s[{sT+6}:{sT+7}], vcc")
    a(f"s_cmp_eq_u64 s[{sT+6}:{sT+7}], -1\ns_cselect_b32 s{sT+4}, 0, 1")
    if c.force_fallback: a(f"s_mov_b32 s{sT+4}, 1")
    if c.nofb: a(f"s_mov_b32 s{sT+4}, 0")
    a(f"""s_lshl_b32 s{sT+5}, s{sW}, 2
s_add_u32 s{sT+5}, s{sT+5}, {FLBASE}
v_mov_b32 v{T}, s{sT+5}
v_mov_b32 v{T+1}, s{sT+4}
ds_write_b32 v{T}, v{T+1}
s_setreg_imm32_b32 hwreg(HW_REG_MODE, 4, 2), 0
v_mov_b32 v{EX+8}, {FLBASE}
v_mov_b32 v{EX+9}, 1
s_lshl_b32 s{sT+7}, s{sGX}, 7
s_add_u32 s{sT+7}, s{sT+7}, s{sKW}
s_lshl_b32 s{sT+7}, s{sT+7}, {c.FLS - 4}
s_add_u32 s{sT+7}, s{sT+7}, {WS_FL}""")
    if c.early_gate and not c.lean:
        for l in gate(c): a(l)
    if c.lean & 2: pass
    elif c.hop and late:
        for l in hop(c, "L_hoq")[:-2] + ["L_late_back:"]: a(l)
    elif c.hop:
        for l in hop(c, "L_hoq"): a(l)
        if c.stagger: a(f"s_bitcmp1_b32 s2, {c.stagger}\ns_cbranch_scc1 L_late_back")
    if c.ksplit and c.NPOLL >= 0:
        pump(c.NPOLL, c.NB1); a(FL_LOAD)
    while pump.busy() or ws.held < c.NB1: pump(1, c.NB1)
    if c.split_bar: a("s_waitcnt lgkmcnt(0)")
    else: a("@waitvm ost lgkm0")
    return [l.strip() for l in a.lines]

def tail2(c, ws):
    a = Asm()
    SA = 128; AB = S0; XR = 16; G = FA; TT = 48; EX = AB
    def acc(ct, j): return SA + (j * 4 + ct) * 4
    def abuf(n): return lambda ct, t=None: vr(AB + (n & 1) * 16 + ct * 4, 4) if t is None else vr(AB + (n & 1) * 16 + ct * 4 + 2 * t, 2)
    def emit(ls):
        for l in ls: a(l)
    pump = Pump(a, ws)
    a(f"""L_bar1:
s_barrier
ds_read_b128 {vr(EX+12,4)}, v{EX+8}
v_or3_b32 v{EX+12}, v{EX+12}, v{EX+13}, v{EX+14}
v_or_b32 v{EX+12}, v{EX+12}, v{EX+15}
v_readfirstlane_b32 s{sT+4}, v{EX+12}
s_andn2_b32 s{sT+4}, s{sT+4}, s{sTRY}
s_cmp_lg_u32 s{sT+4}, 0
s_cbranch_scc1 L_fallback
""")
    freed = ["V3"]
    if c.split_bar:
        while ws.held < c.NB2:
            w, rd, dep, sl = ws.take(); emit([w] + rd); freed.append(sl)
        if c.early_x: emit(t3_setup(c))
        a("s_waitcnt lgkmcnt(0)")
        for _ in range(c.NB3): emit(flat(ws.fill(freed.pop(0))))
        a("@waitvm ost\ns_barrier")
    a("@stamp bar1 rt")
    if c.flagmode == "store": a(f"buffer_store_dword v{EX+9}, v{VONE}, {srd(sWS)}, s{sFLO} offen sc1")
    elif c.flagmode == "vatomic": a(f"buffer_atomic_add v{EX+9}, v{VONE}, {srd(sWS)}, s{sFLO} offen sc1")
    elif c.flagmode == "satomic":
        a(f"""s_cmp_lg_u32 s{sW}, 0
s_cbranch_scc1 L_noflag
s_mov_b32 s{sT+5}, 1
s_atomic_add s{sT+5}, s[{sWS}:{sWS+1}], s{sFLO}
L_noflag:""")
    if c.ksplit:
        for sl in freed: pump.pend.extend(ws.fill(sl))
        if c.NPOLL < 0: pump(-c.NPOLL - 1, 16); a(FL_LOAD)
        if c.lean:
            assert ws.nxt == 16 and not c.early_x
            pump(min(c.NL1, len(pump.pend)), 16)
            if c.lean & 2 and c.hop: emit(hop(c, "L_hoq"))
            side = [gate(c, True)[0], t3_setup(c)]
            while ws.held < 12:
                w, rd, dep, sl = ws.take(); side.append([w] + rd)
            for x in side:
                emit(x)
                if pump.pend: pump(1, 16)
        while pump.pend or ws.nxt < 16: pump(1, 16)
        return a.lines + tail3(c, ws)
    pump.pend.extend(ws.fill("V3"))
    if not c.early_gate:
        for n_, l in enumerate(gate(c)):
            if n_ % 8 == 0: pump(1, c.NR)
            a(l)
    while ws.held < c.NR: pump(1, c.NR)
    a(FL_LOAD.replace("sc1", c.pollflags))
    while pump.busy(): pump(1, c.NR)
    a("@waitvm xt")
    for ct in range(4): a(f"ds_read_b64 {vr(XR+2*ct,2)}, v29 offset:{ct*32}")
    a("@stamp held rt")
    a(FL_OK + ("\ns_cbranch_scc0 L_spin_fl" if c.flagmode != "none" else "") + "\nL_ok_fl:")
    a("@stamp flags rt")
    if c.chain2:
        ND = c.ND; assert ND % 2 == 0 and 4 <= ND <= 14
        NP = 16 - ND // 2; pairs = make_pairs(c)
        units = [(p, j) for p in range(16) for j in range(4) if j or p < NP] + [(p, 0) for p in range(NP, 16)]
        NU = len(units); NM = NU - ND // 2
        frag = lambda u, h: vr(192 + ((2 * u + h) % 16) * 4, 4)
        def uload(u):
            p, j = units[u]
            return [t_bload(c, pairs[p][h], lambda jj: frag(u, h))[j] for h in range(2)]
        free = [quads("v", AB), quads("v", AB + 16)]; home = {n: HOLD[n] for n in range(c.NR)}
        def areads(n):
            home[n] = free.pop(0)
            return t_reads(ws.slot[n], lambda ct, t: rr(home[n][ct], 2, 2 * t))
        for u in range(c.DU0): emit(flat(uload(u)))
        a(f"@waitvm t{pairs[0][0]}")
        emit(areads(pairs[0][0]))
        L = a.lines
        sc = Sched(); nu = c.DU0; wq = []; pstart = {}; rds = []
        for u, (p, j) in enumerate(units):
            st = sc.n()
            for ct in range(4):
                for k_ in range(2):
                    h = k_ ^ (ct & 1); d = vr(acc(ct, j), 4)
                    sc.add(f"{M16} {d}, {rr(home[pairs[p][h]][ct], 4)}, {frag(u, h)}, {'0' if p == 0 and k_ == 0 else d}")
            if p not in pstart:
                pstart[p] = st
                if p: free.extend(home[n] for n in pairs[p - 1] if p - 1 < NP)
                for n in pairs[p]:
                    if n >= c.NR and ws.nxt < 32:
                        sc.sal[st].append(f"@dep {home[n][3][0]}{home[n][3][1] + 3}"); wq += ws.fill(ws.slot[n])
                nl_ = [n for n in pairs[p + 1] if n >= c.NR] if p < 15 else []
                if nl_:
                    assert not any(f"tag=t{n}" == l.split(";")[-1] for _, l in wq for n in nl_), p
                    sc.sal[st].append("@waitvm " + ",".join(f"t{n}" for n in nl_))
                    rds.append((st, sum((areads(n) for n in nl_), [])))
                if p in (1, 5, 9): sc.sal[st].append(f"@stamp o{2*p if p > 5 else 2*p-1}")
            grp = []
            if nu < NU and nu <= u + c.DU: grp += uload(nu); nu += 1
            if wq and u % c.WSK != c.WSK - 1: grp.append(wq.pop(0))
            elif wq: pass
            elif nu < NU and nu <= u + c.DU: grp += uload(nu); nu += 1
            if grp: place_group(sc, grp, st, st + 7, sp=(1 if len(grp) > 3 else 2))
        assert not wq
        for st, rd in rds: sc.place_edf([(l, st, st + 27) for l in rd])
        st0 = {32: 8 * NM}; N1 = "x"; st0["x"] = pstart[NP]
    else:
        RING = [192, 208, 224, 240]
        ND = c.ND; N1 = 32 - max(ND, 3)
        assert c.DO < len(RING) and ND <= 8
        lds_steps = list(range(c.NR, 32)); held_steps = list(range(c.NR))
        steps = []; li = hi_ = 0
        for i in range(32):
            if li < len(lds_steps) and (li * N1 <= i * len(lds_steps) or hi_ >= c.NR - (32 - N1)): steps.append(lds_steps[li]); li += 1
            else: steps.append(held_steps[hi_]); hi_ += 1
        lpos = {n: k_ for k_, n in enumerate(lds_steps)}
        assert steps[0] in lpos and all(n < c.NR for n in steps[N1:]) and 0 in steps[:24] and 1 in steps[:24]
        def ring(i): return lambda j: vr(RING[i % (c.DO + 1)] + 4 * j, 4) if j or i < 32 - ND else rr((HOLD[0] + HOLD[1])[i - 32 + ND], 4)
        def bload(i):
            g = t_bload(c, steps[i], ring(i))
            return g if i < 32 - ND else g[1:]
        for i in range(c.DO0): emit(flat(bload(i)))
        a(f"@waitvm t{steps[0]}")
        emit(t_reads(ws.slot[steps[0]], abuf(0)))
        L = a.lines
        sc = Sched(); st0 = []
        def mf(i, ct, j):
            n = steps[i]; A = abuf(lpos[n]) if n in lpos else hold(n); d = vr(acc(ct, j), 4)
            return sc.add(f"{M16} {d}, {A(ct)}, {ring(i)(j)}, {'0' if i == 0 else d}")
        for i in range(32):
            st0.append(sc.n())
            order = [(ct, j) for ct in range(4) for j in range(4)] if i < 31 else [(ct, j) for j in (1, 2, 3, 0) for ct in range(4)]
            for ct, j in order:
                if j or i < 32 - ND: mf(i, ct, j)
        st0.append(sc.n())
        for i in range(32 - ND, 32):
            for ct in range(4): mf(i, ct, 0)
        nb = c.DO0
        wq = []
        dq = [t_bload(c, steps[i], ring(i))[0] for i in range(32 - ND, 32)]
        for i, n in enumerate(steps):
            st, en = st0[i], st0[i + 1] - 1
            grp = []
            if nb < 32 and nb <= i + c.DO: grp += bload(nb); nb += 1
            elif nb == 32: k_ = -(-len(dq) // (32 - i)); grp += dq[:k_]; dq = dq[k_:]
            if n in lpos and ws.nxt < 32:
                sc.sal[st].append(f"@dep v{AB + (lpos[n] & 1) * 16 + 15}")
                wq += ws.fill(ws.slot[n])
            k_ = min(len(wq), c.WPS)
            grp += wq[:k_]; wq = wq[k_:]
            if not k_ and nb < 32 and nb <= i + c.DO: grp += bload(nb); nb += 1
            if i in (1, 9, 18): sc.sal[st].append(f"@stamp o{i}")
            if grp: place_group(sc, grp, st, en, sp=(1 if len(grp) > 6 else 2 if len(grp) > 4 else 3))
            if i + 1 < 32 and steps[i + 1] in lpos:
                assert not any(f"tag=t{steps[i+1]}" == l.split(";")[-1] for _, l in wq + grp), i
                sc.sal[st].append(f"@waitvm t{steps[i+1]}")
                cur = st
                for l in t_reads(ws.slot[steps[i + 1]], abuf(lpos[steps[i + 1]])): cur = sc.place_mem(l, cur, en - 1)
        assert not wq and not dq
    b = Asm()
    for j in range(1, 4):
        b(f"""s_add_u32 s{sT}, s{sVM}, {(j-1)*VSLOT}
v_add_u32 v{EX+j-1}, s{sT}, v{VL}
s_xor_b32 s{sT}, s{sW}, {j}
s_mul_i32 s{sT}, s{sT}, {VCH}
s_add_u32 s{sT}, s{sT}, {VBASE+(j-1)*VSLOT}
v_add_u32 v{EX+4+j-1}, s{sT}, v{VL}""")
    XU = EX + 16
    for i in range(8): b(f"v_lshlrev_b32 v{XU+2*i}, 16, v{XR+i}\nv_and_b32 v{XU+2*i+1}, 0xffff0000, v{XR+i}")
    for n_, l in enumerate(b.lines): sc.valu[st0[N1] + n_].append(l.strip())
    wr = [f"ds_write_b128 v{EX+j-1}, {vr(acc(ct,j),4)} offset:{ct*1024}" for j in range(1, 4) for ct in range(4)]
    rd = [f"ds_read_b128 {vr(acc(ct,j),4)}, v{EX+4+j-1} offset:{ct*1024}" for ct in range(4) for j in range(1, 4)]
    a = Asm()
    if ND >= 4:
        g = st0[32] - (10 if c.chain2 else 4)
        for n_, l in enumerate(wr):
            if c.chain2 and n_ in (4, 8): g = max(g, st0[32] - (4 if n_ == 4 else -2))
            sc.mem[g].append(l); g += 1
        g = min(g + 3, sc.n() - 1)
        sc.sal[g] += ["@stamp oproj rt", "s_waitcnt lgkmcnt(0)", "s_barrier"]
        g_rd = g
        for l in rd: sc.mem[g].append(l); g = min(g + 1, sc.n() - 1)
        if c.fold:
            va = []
            for ct in range(4):
                p1, p2, p3 = acc(ct, 1), acc(ct, 2), acc(ct, 3)
                va += [f"v_add_f32 v{p1+e}, v{p1+e}, v{p2+e}" for e in range(4)] + [f"v_add_f32 v{p1+e}, v{p1+e}, v{p3+e}" for e in range(4)]
                va += [f"v_fmac_f32 v{XU+4*ct+e}, v{p1+e}, v{G+4*ct+e}" for e in range(4)]
            gaps = list(range(min(g_rd + 8, sc.n() - 1), sc.n()))
            for n_, l in enumerate(va): sc.valu[gaps[n_ * len(gaps) // len(va)]].append(l)
    else:
        a("@stamp oproj rt")
        emit(wr + ["s_waitcnt lgkmcnt(0)", "s_barrier"] + rd)
    L += sc.lines()
    for j in (2, 3) if not c.fold else ():
        for ct in range(4):
            for h in (0, 2): a(f"v_pk_add_f32 {vr(acc(ct,1)+h,2)}, {vr(acc(ct,1)+h,2)}, {vr(acc(ct,j)+h,2)}")
    for cp in (0, 2):
        it = [(acc(ct, 0) + h, acc(ct, 1) + h, 4 * ct + h) for ct in (cp, cp + 1) for h in (0, 2)]
        for r, p, o in it if not c.fold else (): a(f"v_pk_add_f32 {vr(r,2)}, {vr(r,2)}, {vr(p,2)}")
        for r, p, o in it: a(f"v_pk_fma_f32 {vr(r,2)}, {vr(r,2)}, {vr(G+o,2)}, {vr(XU+o,2)}")
        for r, p, o in it: a(f"v_cvt_pk_bf16_f32 v{XR+o//2}, v{r}, v{r+1}")
        for ct in (cp, cp + 1): a(f"ds_write_b64 v30, {vr(XR+2*ct,2)} offset:{ct*32}")
    a(f"s_mov_b32 s{sT}, 8192")
    for i in range(2): a(f"ds_read_b128 {vr(SA+4*i,4)}, v31 offset:{i*8*144}")
    for i in range(2): a(f"buffer_store_dwordx4 {vr(SA+4*i,4)}, v{VOB}, {srd(sOUT)}, {'s%d' % sT if i else 0} offen {c.outflags}")
    return L + a.lines

F2_LOAD = f"buffer_load_dword v{VPD}, off, {srd(sWS)}, s{sT+7} sc1"
def t3_setup(c):
    a = Asm(); XR = 16; EX = S0; XU = EX + 16
    a("@waitvm xt")
    for ct in range(4): a(f"ds_read_b64 {vr(XR+2*ct,2)}, v29 offset:{ct*32}")
    for j in range(1, 4):
        a(f"""s_add_u32 s{sT}, s{sVM}, {(j-1)*VSLOT}
v_add_u32 v{EX+j-1}, s{sT}, v{VL}
s_xor_b32 s{sT}, s{sW}, {j}
s_mul_i32 s{sT}, s{sT}, {VCH}
s_add_u32 s{sT}, s{sT}, {VBASE+(j-1)*VSLOT}
v_add_u32 v{EX+4+j-1}, s{sT}, v{VL}""")
    sXS, sXL, sF2 = sT, sT + 1, sT + 4
    a(f"""s_lshl_b32 s{sXS}, s2, 2
s_add_u32 s{sXS}, s{sXS}, s{sW}
s_lshl_b32 s{sXS}, s{sXS}, 12
s_add_u32 s{sXS}, s{sXS}, {WS_X}
s_xor_b32 s{sXL}, s{sXS}, {4 << 14}
s_lshl_b32 s{sF2}, s2, 7
s_add_u32 s{sF2}, s{sF2}, {WS_F2}""")
    for i in range(8): a(f"v_lshlrev_b32 v{XU+2*i}, 16, v{XR+i}\nv_and_b32 v{XU+2*i+1}, 0xffff0000, v{XR+i}")
    return a.lines
def tail3(c, ws):
    assert ws.nxt == 16 and c.early_gate
    a = Asm()
    SA = 128; XR = 16; G = FA; EX = S0; XU = EX + 16; PP = 96; CL = c.CL
    def acc(ct, j): return SA + (j * 4 + ct) * 4
    def emit(ls):
        for l in ls: a(l)
    a("@stamp held rt")
    a(FL_OK + "\ns_cbranch_scc0 L_spin_fl\nL_ok_fl:")
    a("@stamp flags rt")
    fr = [(ps, j, n) for ps in range(2) for j in (1, 2, 3, 0) for n in range(16)]
    RG = [("v", 192 + 4 * i) for i in range(16)] + HOLD[16]
    frag = lambda f: rr(RG[f % 20], 4)
    def fload(f):
        ps, j, n = fr[f]; pre, l = t_bload(c, n, lambda jj: frag(f))[j]
        return pre, (l if ps else l.replace(srd(sOL), srd(sOP)))
    for f in range(c.DF): emit(flat([fload(f)]))
    while ws.held < 16:
        w, rd, dep, sl = ws.take(); emit([w] + rd)
    sXS, sXL, sF2 = sT, sT + 1, sT + 4
    if not c.early_x and not c.lean: emit(t3_setup(c))
    a(f"s_xor_b32 s{sT+7}, s{sFLO}, {4 << c.FLS}" if c.fsplit else f"s_xor_b32 s{sT+7}, s{sF2}, {4 << 7}")
    L = a.lines
    sc = Sched()
    for f0 in range(0, 128, CL):
        ps, j, n0 = fr[f0]
        for ct in range(4):
            for k_ in range(CL):
                h = CL - 1 - k_ if ct & 1 else k_; d = vr(acc(ct, j), 4)
                sc.add(f"{M16} {d}, {rr(HOLD[n0+h][ct], 4)}, {frag(f0+h)}, {'0' if n0 == 0 and k_ == 0 else d}")
    assert c.DF + CL <= 20
    for f0 in range(0, 128, CL):
        grp = [fload(f) for f in range(f0 + c.DF, min(f0 + c.DF + CL, 128))]
        if grp: place_group(sc, grp, 4 * f0, 4 * f0 + 4 * CL - 1, sp=4)
    for g in (1, 64, 192, 256, 320, 384, 448): sc.sal[g].append(f"@stamp g{g}")
    def put(lines, g, step=1):
        for l in lines: g = sc.place_mem(l, g, g + 3) + step
        return g
    def vput(lines, g0, g1):
        for n_, l in enumerate(lines): sc.valu[g0 + n_ * (g1 - g0) // len(lines)].append(l)
    def salat(g, lines):
        g = next(x for x in range(g, sc.n()) if not sc.sal[x]); sc.sal[g] += lines; return g
    if c.fsplit:
        put([F2_LOAD], c.XP3)
        sc.post[c.XC3] += FL_OK.split("\n") + ["s_cbranch_scc0 L_spin_f3", "L_ok_f3:", f"s_xor_b32 s{sT+7}, s{sF2}, {4 << 7}"]
        put([f"buffer_load_dwordx4 {vr(PP+8+4*i,4)}, v{VL}, {srd(sWS)}, s{sXL} offen offset:{2048+i*1024} sc1" for i in range(2)], c.XC3 + 1)
    for ps in range(2):
        B = 256 * ps
        if ps:
            vput([f"v_add_f32 v{acc(0,0)+e}, v{acc(0,0)+e}, v{acc(0,3)+e}" for e in range(16)], B + 4, B + 12)
            NX = 2 if c.xbf else 4
            if c.xbf: vput([f"v_cvt_pk_bf16_f32 v{acc(0,0)+e}, v{acc(0,0)+2*e}, v{acc(0,0)+2*e+1}" for e in range(8)], B + 12, B + 16)
            put([f"buffer_store_dwordx4 {vr(acc(ct,0),4)}, v{VL}, {srd(sWS)}, s{sXS} offen offset:{ct*1024} sc1 ;tag=xst" for ct in range(NX)], B + (16 if c.xbf else 12))
            gb = salat(B + c.XB1, ["@waitvm xst lgkm0", "s_barrier"])
            if c.f2s: sc.sal[gb] += [f"s_mov_b32 s{sT+5}, 1", f"s_cmp_lg_u32 s{sW}, 0", "s_cbranch_scc1 L_nof2", f"s_atomic_add s{sT+5}, s[{sWS}:{sWS+1}], s{sF2}", "L_nof2:"]
            else: put([f"buffer_store_dword v{EX+9}, v{VONE}, {srd(sWS)}, s{sF2} offen sc1"], gb)
            put([F2_LOAD], B + c.XPL)
            sc.post[B + c.XCK] += FL_OK.split("\n") + ["s_cbranch_scc0 L_spin_f2", "L_ok_f2:"]
            put([f"buffer_load_dwordx4 {vr(PP+16-4*NX+4*ct,4)}, v{VL}, {srd(sWS)}, s{sXL} offen offset:{ct*1024} sc1" for ct in range(NX)], B + c.XCK + 1)
            if c.xbf: vput(sum(([f"v_lshlrev_b32 v{PP+2*i}, 16, v{PP+8+i}", f"v_and_b32 v{PP+2*i+1}, 0xffff0000, v{PP+8+i}"] for i in range(8)), []), B + 240, B + 256)
        for j in range(1, 4):
            g = put([f"ds_write_b128 v{EX+j-1}, {vr(acc(ct,j),4)} offset:{ct*1024}" for ct in range(4)], max(B + 64 * j + 4, gb + 1 if ps else 0), 2)
        g = salat(g + 3, (["@stamp oproj rt"] if ps else []) + ["s_waitcnt lgkmcnt(0)", "s_barrier"])
        g = put([f"ds_read_b128 {vr(acc(ct,j),4)}, v{EX+4+j-1} offset:{ct*1024}" for ct in range(4) for j in range(1, 4)], g)
        va = [f"v_add_f32 v{acc(ct,3)+e}, v{acc(ct,3)+e}, v{acc(ct,j)+e}" for ct in range(4) for j in (1, 2) for e in range(4)]
        vput(va, g - 4, B + 254)
    if c.lean:
        g = 8; va = gate(c, True, PP)[1]
        if c.fsplit:
            g = c.XG3
            va = sum(([f"v_lshlrev_b32 v{PP+2*i}, 16, v{PP+8+i}", f"v_and_b32 v{PP+2*i+1}, 0xffff0000, v{PP+8+i}"] for i in range(8)), []) + \
                 [f"v_add_f32 v{G+i}, v{G+i}, v{PP+i}" for i in range(16)] + va
        for l in va:
            g = next(x for x in range(g, 256 + c.XCK) if sc.cost(x) + icost(l) <= 8); sc.valu[g].append(l); g += 1
    L += sc.lines()
    a = Asm()
    for ct in range(4):
        for h in (0, 2): a(f"v_pk_add_f32 {vr(acc(ct,3)+h,2)}, {vr(acc(ct,3)+h,2)}, {vr(PP+4*ct+h,2)}")
    for cp in (0, 2):
        it = [(acc(ct, 0) + h, acc(ct, 3) + h, 4 * ct + h) for ct in (cp, cp + 1) for h in (0, 2)]
        for r, p, o in it: a(f"v_pk_add_f32 {vr(r,2)}, {vr(r,2)}, {vr(p,2)}")
        for r, p, o in it: a(f"v_pk_fma_f32 {vr(r,2)}, {vr(r,2)}, {vr(G+o,2)}, {vr(XU+o,2)}")
        for r, p, o in it: a(f"v_cvt_pk_bf16_f32 v{XR+o//2}, v{r}, v{r+1}")
        for ct in (cp, cp + 1): a(f"ds_write_b64 v30, {vr(XR+2*ct,2)} offset:{ct*32}")
    a(f"s_mov_b32 s{sT}, 8192")
    for i in range(2): a(f"ds_read_b128 {vr(SA+4*i,4)}, v31 offset:{i*8*144}")
    for i in range(2): a(f"buffer_store_dwordx4 {vr(SA+4*i,4)}, v{VOB}, {srd(sOUT)}, {'s%d' % sT if i else 0} offen {c.outflags}")
    return L + a.lines

def fallback(c, early):
    a = Asm()
    T = 88; U = P0
    def emit(ls):
        for l in ls: a(l)
    def reads(ls):
        for i in range(0, len(ls), 8): emit(ls[i:i + 8] + ["s_waitcnt lgkmcnt(0)"])
    a(f"L_fallback:\ns_mov_b32 s{sTRY}, 1\ns_mov_b32 s{sRC}, 0\ns_mov_b32 s{sLOOP}, 0")
    for qt in range(4): a(f"v_mov_b32 v{T+qt}, 0xff800000")
    a(f"""L_fb_loop:
s_waitcnt vmcnt(0) lgkmcnt(0)
s_barrier
s_mov_b32 m0, s{sKM}
s_nop 0""")
    for i in range(4): a(f"buffer_load_dwordx4 v{VD}, {srd(sK)}, s{sLOOP} offen offset:{i*1024} lds")
    a("s_waitcnt vmcnt(0)\ns_barrier")
    reads(k_reads(0))
    for qt in range(4): emit(qk_mfmas(qt, True))
    a("s_nop 7")
    for qt in range(4):
        for e in range(0, 16, 2): a(f"v_max3_f32 v{T+qt}, v{T+qt}, v{S(qt,e//4)+e%4}, v{S(qt,e//4)+e%4+1}")
    a(f"s_add_u32 s{sLOOP}, s{sLOOP}, 0x4000\ns_cmp_lt_u32 s{sLOOP}, 0x80000\ns_cbranch_scc1 L_fb_loop")
    for sw in ("v_permlane32_swap_b32", "v_permlane16_swap_b32"):
        for qt in range(4): a(f"v_mov_b32 v{U+qt}, v{T+qt}")
        for qt in range(4): a(f"{sw} v{T+qt}, v{U+qt}")
        for qt in range(4): a(f"v_max_f32 v{T+qt}, v{T+qt}, v{U+qt}")
    a("s_barrier")
    for t in range(4): emit(flat(dma_kv("K", t) + dma_kv("V", t)))
    b2_init(a)
    emit(scalar_init(c) + flat(f_zero()) + (l2_addr(c) if c.l2n else []))
    a("s_waitcnt vmcnt(0)\ns_barrier")
    reads(k_reads(0) + v_reads(0))
    emit(attn_init() + fa2_init(c))
    for qt in range(4):
        for k in range(4): a(f"v_sub_f32 v{NEGM+qt*4+k}, 0, v{T+qt}")
    for qt in range(4): emit(qk_mfmas(qt))
    for qt in range(4):
        for p in range(32 if qt < 3 else 32 - c.SM0): emit(sm_ops(qt, p))
        if qt < 3: emit([smf(qt)] + pv_mfmas(qt))
    a("s_barrier")
    reads(early)
    a("s_nop 7\ns_branch L_attn")
    return a.lines

def recenter(c):
    a = Asm()
    for nm, qs in (("a", (2, 3)), ("b", (0, 1))):
        a(f"L_rc_{nm}:\ns_mov_b32 s{sT+6}, -120\ns_setreg_imm32_b32 hwreg(HW_REG_MODE, 4, 2), 3")
        for op in ("v_accvgpr_read_b32 v{x}, a{l}", "v_accvgpr_read_b32 v{y}, a{l1}", "v_add_f32 v{x}, v{x}, v{y}", "v_frexp_exp_i32_f32 v{f}, v{x}",
                   "v_sub_u32 v{f}, %d, v{f}" % (1 - int(c.shift)), "v_med3_i32 v{f}, v{f}, 0, s%d" % (sT + 6), "v_cvt_f32_i32 v{y}, v{f}",
                   "v_ldexp_f32 v{x}, v{x}, v{f}", "v_ldexp_f32 v{f}, 1.0, v{f}", "v_accvgpr_write_b32 a{l}, v{x}", "v_accvgpr_write_b32 a{l1}, 0",
                   "v_add_f32 v{n}, v{n}, v{y}", "v_add_f32 v{n1}, v{n1}, v{y}", "v_add_f32 v{n2}, v{n2}, v{y}", "v_add_f32 v{n3}, v{n3}, v{y}"):
            for qt in qs:
                n = NEGM + 4 * qt; h = qt & 1
                a(op.format(f=88 + h, x=90 + h, y=92 + h, l=LA(qt), l1=LA(qt) + 1, n=n, n1=n + 1, n2=n + 2, n3=n + 3))
        for qt in qs:
            sel = "op_sel:[0,1] op_sel_hi:[1,1]" if qt & 1 else "op_sel_hi:[1,0]"
            for dt in range(8):
                for h in (0, 2): a(f"v_pk_mul_f32 {vr(O(dt,qt)+h,2)}, {vr(O(dt,qt)+h,2)}, v[88:89] {sel}")
        a(f"s_setreg_imm32_b32 hwreg(HW_REG_MODE, 4, 2), 0\ns_branch L_rc_{nm}_back")
    return [l.strip() for l in a.lines]

def recenter_woven(c, lines):
    out = []; cuts = [i for i, l in enumerate(lines) if l.startswith("@rc")] + [len(lines)]
    for q in range(4):
        qt = (q + 1) & 3; n = NEGM + 4 * qt; l0 = LA(qt)
        ops = [f"v_accvgpr_read_b32 v90, a{l0}", f"v_accvgpr_read_b32 v92, a{l0+1}", "v_add_f32 v90, v90, v92", "v_frexp_exp_i32_f32 v88, v90",
               f"v_sub_u32 v88, {1 - int(c.shift)}, v88", f"v_med3_i32 v88, v88, 0, s{sT+6}", "v_cvt_f32_i32 v92, v88", "v_ldexp_f32 v90, v90, v88",
               "v_ldexp_f32 v88, 1.0, v88", f"v_accvgpr_write_b32 a{l0}, v90", f"v_accvgpr_write_b32 a{l0+1}, 0"]
        ops += [f"v_add_f32 v{n+k}, v{n+k}, v92" for k in range(4)]
        ops += [f"v_mul_f32 v{O(dt,qt)+e}, v{O(dt,qt)+e}, v88" for dt in range(8) for e in range(4)]
        gaps = []
        for l in lines[cuts[q]:cuts[q + 1]]:
            if l.startswith(("v_mfma", "v_smfmac")) or not gaps: gaps.append([l])
            else: gaps[-1].append(l)
        cost = lambda g: sum(icost(l) for l in g[1:] if not l.startswith("@")) + (4 if g[0].startswith("v_smfmac") else 0)
        real = [g for g in gaps if g[0].startswith("v_")]
        tot = 4 * len(ops) + sum(cost(g) for g in real); acc_ = 0
        for n_, g in enumerate(real):
            acc_ += cost(g)
            while ops and (acc_ < tot * (n_ + 1) / len(real) - 2 or n_ == len(real) - 1): acc_ += 4; g.append(ops.pop(0))
        out += sum(gaps, [])
    return [f"s_mov_b32 s{sT+6}, -120", "s_setreg_imm32_b32 hwreg(HW_REG_MODE, 4, 2), 3"] + out + ["s_setreg_imm32_b32 hwreg(HW_REG_MODE, 4, 2), 0"]

def resolve_deps(lines):
    return [f"v_cmp_eq_u32 vcc, {l.split()[1]}, {l.split()[1]} ;dep" if l.startswith("@dep") else l for l in lines]

def kernel_A(c):
    ws = WStream(16 if c.ksplit else 32)
    if c.ksplit: del HOLD[12]
    FSP[0] = c.fsplit
    if c.fsplit: HOLD[0], HOLD[1] = HOLD[1], HOLD[0]
    FAKE[0] = c.fakew; WFL[:] = [c.woflags, c.wqflags]
    if c.chain2 and c.adj and not c.ksplit:
        for p, pr in enumerate(make_pairs(c)):
            for h, n in enumerate(pr): SIG[n] = 2 * p + h if c.adj == 1 else (p & 3) + 4 * h + 8 * (p >> 2)
    early, att, late = attention(c, ws)
    L = gemm1(c) + ["@stamp gemm_end rt"] + epi1(c) + head(c, early) + ["@stamp loop_start rt", "L_attn:"] + att
    L += ["@stamp loop_end rt"] + tail1(c, ws)
    if late:
        late = late[0] + tail1(c, late[1], True), late[1]
        assert late[1].__dict__ == ws.__dict__
    L += tail2(c, ws)
    L, _, _ = auto_wait(resolve_deps([l.strip() for l in L]))
    L = fix_hazards(L)
    LB = []
    if c.trace:
        for t in salu_trace(L, {"s2": c.trace[0], "rfl": c.trace[1]}): print(t, file=sys.stderr)
    pos = {int(l.split()[1]): i for i, l in enumerate(L) if l.startswith("@seg")}
    k0, k1 = 1, 29
    core = lambda l: l.split()[0] if l.startswith("@") else l.split(";")[0].strip()
    def split(ls):
        out = []; w = {}
        for l in ls:
            if l.startswith("s_waitcnt"):
                for n_, v in _w.findall(l): w[n_] = min(int(v), w.get(n_, 99))
            else: out.append((l, w)); w = {}
        assert not w
        return out
    V = L; first = True
    while True:
        pos = {int(l.split()[1]): i for i, l in enumerate(V) if l.startswith("@seg")}
        trips = [split(V[pos[k]:pos[k + 4]]) for k in range(k0, k1, 4)]
        for t in trips: assert [core(x[0]) for x in t] == [core(x[0]) for x in trips[2]]
        W = []
        for col in zip(*(trips[2:3] if first else trips)):
            w = {}
            for _, x in col:
                for n_, v in x.items(): w[n_] = min(v, w.get(n_, 99))
            W.append(w)
        first = False
        U = V[:pos[k0]]
        for t in trips:
            for (l, _), w in zip(t, W):
                if w: U.append("s_waitcnt " + " ".join(f"{n_}({v})" for n_, v in sorted(w.items(), reverse=True)))
                U.append(l.replace("@chk", "@waitvm"))
        U += [l.replace("@chk", "@waitvm") for l in V[pos[k1]:]]
        V = auto_wait(U, keep=True)[0]
        if [l for l in V if not l.startswith("@")] == [l for l in U if not l.startswith("@")]: break
    L = V
    if late:
        ic, ib = V.index("@cut"), V.index("L_bar1:")
        W_ = auto_wait([l.replace("@chk", "@waitvm") for l in V[:ic + 1]] + resolve_deps([l.strip() for l in late[0]]), keep=True)[0]
        assert [l for l in W_[:W_.index("@cut")] if not l.startswith("@")] == [l for l in V[:ic] if not l.startswith("@")]
        W_ = fix_hazards(W_[W_.index("@cut") - 40:]); W_ = W_[W_.index("@cut") + 1:]
        full = V[:ic + 1] + W_ + V[ib:]
        assert auto_wait(full)[0] == full
        full = [l for l in full if not l.endswith(";dep")]
        assert not check_hazards(full) and not check_dead_loads(full), (check_hazards(full)[:3], check_dead_loads(full)[:3])
        L = V[:ib] + ["s_branch L_bar1", "L_late:"] + [l for l in W_ if not l.startswith("@stamp")] + V[ib:]
    V = [l for l in V if not l.endswith(";dep")]
    assert not check_hazards(V), check_hazards(V)[:5]
    assert not check_dead_loads(V), check_dead_loads(V)[:5]
    if c.recenter and c.rcw:
        i0 = [i for i, l in enumerate(V) if l == "@rc 0"][1]; i1 = V.index("L_rc_back:", i0)
        alt = fix_hazards(V[i0 - 40:i0] + ["@alt"] + recenter_woven(c, V[i0:i1])); alt = alt[alt.index("@alt") + 1:]
        full = V[:i0] + alt + V[i1:]
        assert auto_wait(full)[0] == full and not check_hazards(full) and not check_dead_loads(full)
        LB += ["L_rc_a:"] + [l for l in alt if not l.startswith("@")] + ["s_branch L_rc_back", "L_rc_end:"]
    L = [l for l in L if not l.endswith(";dep")]
    pos = {int(l.split()[1]): i for i, l in enumerate(L) if l.startswith("@seg")}
    body = [core(l) for l in L[pos[9]:pos[13]] if not l.startswith("@")]
    im = [i for i, l in enumerate(body) if l.startswith("v_mfma")]
    j = max(i for i, l in enumerate(body) if l.startswith(("s_add", "s_min", "s_mul", "s_xor", "s_lshl", "s_cmp", "s_csel", "s_and", "s_bitcmp")))
    cand = [i for i in im if i > j and not body[i + 1].startswith("s_")]
    body.insert(cand[1] + 1, f"s_cmp_lg_u32 s{sLOOP}, 0"); body.insert(cand[0] + 1, f"s_sub_u32 s{sLOOP}, s{sLOOP}, 1")
    if c.tripstamp: body = ["s_memrealtime s[96:97]", f"s_add_u32 s98, s{sLOOP}, 54", "s_waitcnt lgkmcnt(0)", "s_mov_b32 m0, s98", f"v_writelane_b32 v{VDG}, s96, m0"] + body
    out = L[:pos[k0]] + ["@seg 1", "L_loop:"] + body + ["s_cbranch_scc1 L_loop", "L_loop_end:"] + L[pos[k1]:]
    a = Asm()
    a("s_cmp_ge_u32 s2, 256\ns_cbranch_scc1 L_endA")
    if c.scr == 1: a("s_lshr_b32 s3, s2, 3\ns_and_b32 s3, s3, 7\ns_xor_b32 s2, s2, s3\ns_lshr_b32 s3, s2, 6\ns_xor_b32 s2, s2, s3")
    if c.scr == 2: a("s_and_b32 s3, s2, 7\ns_lshl_b32 s3, s3, 3\ns_bfe_u32 s4, s2, 0x30003\ns_and_b32 s2, s2, 0xc0\ns_or_b32 s2, s2, s3\ns_or_b32 s2, s2, s4")
    stamp = Stamps()
    stamp(c, a, "start", True)
    for l in out:
        if l.startswith("@stamp"): stamp(c, a, l.split()[1], len(l.split()) > 2)
        elif l.startswith("@seg"): stamp(c, a, "seg" + l.split()[1], l.split()[1] in ("1", "29"))
        elif l.startswith("@"): continue
        else: a(l.split(";tag")[0].rstrip())
    if c.diag:
        stamp(c, a, "final"); a("s_waitcnt vmcnt(0)"); stamp(c, a, "end", True); stamp.out(c, a, WS_ST, sWS, sW)
    if c.probe:
        stamp(c, a, "end")
        a(f"""s_nop 1
v_readlane_b32 s52, v{VDG}, 0
v_readlane_b32 s53, v{VDG}, 1
s_memrealtime s[96:97]
s_waitcnt lgkmcnt(0)
s_sub_u32 s52, s53, s52
s_mul_i32 s52, s52, 4
s_min_u32 s52, s52, 100000
s_mov_b32 s53, s96
L_probe:
s_memrealtime s[96:97]
s_waitcnt lgkmcnt(0)
s_sub_u32 s54, s96, s53
s_cmp_lt_u32 s54, s52
s_cbranch_scc1 L_probe""")
    a("L_endA:\ns_endpgm")
    if c.recenter and not c.rcw: LB += fix_hazards(recenter(c))
    for n_, l in enumerate(body):
        if l.startswith(("s_cmp", "s_bitcmp")):
            for m_ in body[n_ + 1:] + ["s_cbranch"]:
                if m_.startswith(("s_cbranch", "s_cselect")): break
                assert not m_.startswith(("s_add", "s_sub", "s_min", "s_lshl", "s_xor", "s_and", "s_cmp", "s_bitcmp")), (l, m_)
    for l in LB: a(l.split(";tag")[0].rstrip())
    for l in spin("st", ST_LOAD, CNT_OK, "L_ok_st") + spin("cnt", CNT_LOAD, CNT_OK, "L_ok_cnt") + spin("fl", FL_LOAD.replace("sc1", c.pollflags), FL_OK, "L_ok_fl", c.slp) + (spin("f2", F2_LOAD, FL_OK, "L_ok_f2", c.slp) if c.ksplit else []) + (spin("f3", F2_LOAD, FL_OK, "L_ok_f3") if c.fsplit else []): a(l)
    for l in fix_hazards([l.strip() for l in fallback(c, early)]): a(l.split(";tag")[0].rstrip())
    a("L_last:\ns_endpgm")
    return a.lines
import re
_w = re.compile(r"(vmcnt|lgkmcnt)\((\d+)\)")

HEADER = """; out = x + (softmax(LN(x) wq K^T / sqrt(128)) V wo) * silu(gelu(LN(x) w1 + b1) w2 + b2), one launch, 256 workgroups of 4 waves.
; Kernarg (104 bytes, s[0:1]): 0 A_x, 8 A_k_cache, 16 A_v_cache, 24 A_wq, 32 A_wo, 40 B_x (unused by the reference), 48 B_w1,
;     rstd * (acc - mean * colsum(W)). Each workgroup computes mean / rstd of 8 rows and hands them over through d_ws.
;     maximum: the maximum over the first 64 keys, moved once to the row sum reached so far (exact power-of-two rescale), placed
;     normal number the workgroup computes the true row maxima (L_fallback) and runs the attention again with them.
;  4. O goes to d_ws. Every workgroup owns a 64x64 output tile; two workgroups (ids b, b^4) split K of h w2 and of O wo: each computes
; Hand-offs between workgroups: write-through stores, s_waitcnt, barrier, then a counter in d_debug or a flag word in d_ws that
;   its owner cleared before that counter was raised; readers poll (bounded) and load with sc1.
; The s_cbranch_execz behind each 4 KB page start is never taken in normal flow: a visit with EXEC = 0 (branches only) fetches
;   those code lines ahead of time."""

def gen(c):
    A = kernel_A(c)
    a = Asm()
    k = NAME + "_kernel"
    a(HEADER)
    a(f"; @launch grid=(256,1,1) block=(256,1,1) lds={LDS_A}")
    a('.amdgcn_target "amdgcn-amd-amdhsa--gfx950"\n.text')
    if c.hop: a(".p2align 12")
    a(f".globl {k}\n.p2align 8\n.type {k},@function\n{k}:")
    a.lines += [re.sub(r"(?<=\S)  +", " ", l) for l in A if l.strip() != ";"]
    a('.section .rodata,"a"\n.p2align 6')
    a(kdesc(k, 512, 256))
    if c.hop:
        rc = ["L_rc_a", ("L_rc_a", "L_rc_end") if c.rcw else "L_rc_b"] if c.recenter else []
        mid = "L_bar1" if c.stagger else "L_hoq_back"
        ses = [("L_hoq", mid, "L_endA", [mid] if c.stagger else [])]
        if c.hop0: ses += [("L_hop", "L_hop_back", c.hop0, rc[c.hop0rc:]), ("L_hoo", c.hop0, mid, rc[:c.hop0rc] + (["L_late"] if c.stagger else []))]
        else: ses += [("L_hop", "L_hop_back", "L_hoq_back", rc)]
        t, n = page_hooks(a.text(), c.align, ses)
        print("page hooks", n, file=sys.stderr)
        return t
    return align8(a.text(), c.align) if c.align else a.text()

if __name__ == "__main__":
    kw = {}
    for s in sys.argv[2:]:
        k, v = s.split("=", 1); kw[k] = eval(v)
    open(sys.argv[1], "w").write(gen(Cfg(**kw)))
```

```python
import sys, math, copy
from asmlib import *
NAME = "recurrent_scan__gqa_block_cached__dense_activation_gelu__prompt"
M16 = "v_mfma_f32_16x16x32_bf16"
SMF = "v_smfmac_f32_16x16x64_bf16"

class Cfg:
    diag = False
    shift = 102.0
    SM0 = 8
    BAR = 29
    pvorder = "bshare"
    stflags = "sc1"
    ldflags = "sc1"
    NR = 16
    DO0 = 3
    ND = 8
    chain2 = True
    DU = 6
    DU0 = 6
    LL0 = 2
    LLS = 3
    adj = 1
    zig = 1
    gzig = 0
    WPS = 2
    DO = 3
    rot = 0
    rot2 = 5
    touch = 'wo'
    fakew = False
    fakeo = False
    kvflags = 'nt'
    fwflags = ''
    fhflags = 'sc1'
    FPOS = (47, 95)
    MG = 6
    align = 3
    HB = 2
    scr = 0
    tlb = 0
    rotw = 0
    PADR = 1024
    early_gate = True
    NP0 = 0
    K3E = 1
    side_late = 0
    side = []
    SLP = 6
    epoll = 0
    NEW = ((-9, -4, 4, 12, 22), (-9, -1, 7, 14, 22), (-9, -1, 16, 23, 31))
    ksplit = True
    split_bar = True
    NB2 = 7
    NB3 = 2
    f2s = False
    xbf = True
    fsplit = True
    XP3, XC3, XG3 = 100, 160, 215
    early_x = False
    lean = 3
    NL1 = 4
    xtouch = False
    FLS = 7
    KHF = 1
    CL = 2
    DF = 12
    NPOLL = -1
    XB1, XPL, XCK = 64, 128, 180
    l2end = 28
    pollall = False
    rcw = False
    tripstamp = False
    SORD = 0
    HLW = ((0, 10), (8, 24), (37, 46), (44, 56))
    fold = False
    WSK = 99
    tmap = 1
    PADW = 0
    rotx = 7
    probe = None
    last_h = None
    estonly = False
    DPOS = 56
    DSP = 4
    H30W = ((0, 30), (52, 66), (60, 76))
    H31W = ()
    HSP = 3
    NE = 3
    RS = 0
    H31 = 2
    NB1 = 0
    force_fallback = False
    trace = None
    nostamp = ('b3', 'b4', 'b5')
    codepf = True
    codepf2 = True
    GBAR = 14
    GBAR8 = 26
    STB = 6
    sat = 0
    woflags = ''
    wqflags = ''
    pg = 0
    ipg = 0
    hop = 20
    hop0 = 'L_loop_end'
    hop0rc = 1
    hopend = 'L_endA'
    palign = False
    XFULL = 9
    XFIRST = 1
    GSP0 = 4
    RSC = 16
    smtest = 0
    K2 = 1
    TP = 1
    RSPOS = 0
    GLO = 4
    G0 = 4
    nofb = False
    slp = 0
    recenter = 1 << 6
    l2n = 0
    stagger = 0
    NLATE = 10
    flagmode = 'store'
    pollflags = 'sc1'
    outflags = 'sc1'
    GSP = 4
    def __init__(self, **kw):
        for k, v in kw.items():
            assert hasattr(self, k), k
            setattr(self, k, v)

WS_O = 0x2000000
WS_H = 0x1000000
H_RT = 43 * 4096
WS_FL = 0x1800000
WS_RS = 0x1810000
WS_F2 = 0x1804000
WS_X = 0x1900000
WS_ST = 0x8000000
NS = 4
KSLOT = 16416; VCH = 4128; VSLOT = 4 * VCH
VBASE = NS * KSLOT
XBASE = KSLOT; XSLOT = 32832
WCH = 6176; WSLOT = 4 * WCH
WBASE = VBASE + VSLOT
CWBASE = WBASE + 3 * WSLOT
FLBASE = CWBASE + 768
LDS_A = FLBASE + 64
assert XBASE + XSLOT + 32768 <= WBASE and XBASE + XSLOT >= 3 * KSLOT and LDS_A <= 163840 and VBASE + NS * VSLOT <= LDS_A
VK, VV, VD, VIDX, VOA, VOB = 2, 3, 4, 5, 6, 7
SMA = 8
VDW, VL, VFE, VFO = 12, 13, 14, 15
NEGM = 16; S0 = 32; P0 = 48; O0 = 128; VXT = 96
FA = 64
VRA = 80
VPA, VONE, VPD, VDG = 86, 87, 1, 95
VX0, VX1, VXR, VWQ, VW1, VWR, VCQ, VCF, VC0, VC1, VCR, VH1 = range(16, 28)
B1F = 32; SX = 48
def S(n, i): return S0 + 4 * i if n >= 4 else O(i, n)
def P(n): return P0 + (n & 1) * 8
def O(dt, qt): return O0 + (dt * 4 + qt) * 4
def ACC(T, qt): return O0 + (T * 4 + qt) * 4 if T < 8 else 96 + ((T - 8) * 4 + qt) * 4 if T < 10 else 64 + ((T - 10) * 2 + qt) * 4
def Q(qt, ks): return (qt * 4 + ks) * 4
def KF(i, ks): return 64 + (i * 4 + ks) * 4
NVX = 2
def VF(T, u, dt): return ("v", VXT + (u * NVX + dt) * 4) if (T & 1 and dt < NVX) else ("a", 128 + u * 32 + dt * 4)
def rr(kb, n, o=0): return vr(kb[1] + o, n, kb[0])
def LA(qt): return 192 + qt * 4
def XF(kb, qt, s): return (kb & 1) * 32 + qt * 8 + s * 4
NWR = 6
def WF(n, s): return 128 + (n % NWR) * 8 + s * 4
def CF(j, s): return 64 + j * 8 + s * 4
CWA = 88
sK, sV, sWS, sX, sWQ, sF0, sF1, sDBG = 4, 8, 12, 16, 20, 24, 28, 32
sW, sHEAD, sQB, sPAR, sKM, sVM, sVO, sLOOP, sROT, sKO, sXM, sWM, sP0, sP1, sTRY, sSH = range(36, 52)
sT = 52
sWO, sXX, sW2, sOUT, sB2 = 60, 64, 68, 72, 76
sRO, sFM, sKW, sOB, sHB, sFW, sFH, sHS0, sHS1, sFLO = range(80, 90)
sGX = 3
sRT = 101; sCT = sP1
sXA, sXB = 94, 95
sTO, sTC = 94, 95; VTO = 112; sPF = sF0
sRC = 93; VCP = 94; sOS = 100
sOP = sF0
sOL, sOT = sX, sWQ
XB = VBASE + 4 * VSLOT
XT = XB + VSLOT
assert XT + 8192 <= FLBASE
def srd(b): return f"s[{b}:{b+3}]"

class Stamps:
    def __init__(self): self.names = []; self.rt = []
    def __call__(self, c, a, name, rt=False):
        if c.probe and name in c.probe:
            a(f"s_memrealtime s[96:97]\ns_waitcnt lgkmcnt(0)\nv_writelane_b32 v{VDG}, s96, {c.probe.index(name)}")
        if not c.diag or name in c.nostamp: return
        i = len(self.names); self.names.append(name); assert i < 40
        a(f"s_memtime s[96:97]\ns_waitcnt lgkmcnt(0)\nv_writelane_b32 v{VDG}, s96, {i}")
        if rt:
            a(f"s_memrealtime s[96:97]\ns_waitcnt lgkmcnt(0)\nv_writelane_b32 v{VDG}, s96, {40+len(self.rt)}"); self.rt.append(name)
    def out(self, c, a, base, ws, wave):
        if not c.diag: return
        a(f"""s_lshl_b32 s{sT}, s2, 2
s_add_u32 s{sT}, s{sT}, s{wave}
s_lshl_b32 s{sT}, s{sT}, 8
s_add_u32 s{sT}, s{sT}, {base}
v_lshlrev_b32 v1, 2, v0
buffer_store_dword v{VDG}, v1, {srd(ws)}, s{sT} offen""")

def mk_srd(a, d, lo, hi, off, size):
    if off is None: a(f"s_mov_b32 s{d}, s{lo}\ns_mov_b32 s{d+1}, s{hi}")
    else: a(f"s_add_u32 s{d}, s{lo}, {off}\ns_addc_u32 s{d+1}, s{hi}, 0")
    a(f"s_mov_b32 s{d+2}, {size}\ns_mov_b32 s{d+3}, 0x20000")

L3, L23, L4 = 28, 29, 30
RSV = 48
def setup_A(c):
    a = Asm()
    a(f"""s_load_dwordx16 s[64:79], s[0:1], 0
s_load_dwordx8 s[80:87], s[0:1], 64
s_load_dwordx2 s[88:89], s[0:1], 96
s_getpc_b64 s[90:91]
L_pc:
s_lshr_b32 s{sT}, s2, 3
s_lshl_b32 s{sT}, s{sT}, 11
v_lshrrev_b32 v{VCP}, 4, v0
v_lshl_add_u32 v{VCP}, v{VCP}, 7, s{sT}
v_min_u32 v{VCP}, L_last-L_pc, v{VCP}
global_load_dword v255, v{VCP}, s[90:91]
v_lshrrev_b32 v1, 6, v0
v_and_b32 v0, 63, v0
s_and_b32 s{sGX}, s2, 7
v_readfirstlane_b32 s{sW}, v1
s_bfe_u32 s{sQB}, s2, 0x30003
s_lshr_b32 s{sT+1}, s2, 6
s_lshl_b32 s{sHEAD}, s{sGX}, 2
s_add_u32 s{sHEAD}, s{sHEAD}, s{sT+1}
s_and_b32 s{sPAR}, s{sHEAD}, 1
s_xor_b32 s{sROT}, s{sT+1}, s{sQB}
s_and_b32 s{sROT}, s{sROT}, {c.rot}
s_and_b32 s{sT}, s{sGX}, {c.rotx}
s_xor_b32 s{sROT}, s{sROT}, s{sT}
s_lshr_b32 s{sT}, s{sHEAD}, 1
s_mul_i32 s{sT}, s{sT}, 3
s_add_u32 s{sP1}, s{sT}, 1
s_lshl_b32 s{sT+1}, s{sPAR}, 1
s_add_u32 s{sP0}, s{sT}, s{sT+1}
s_add_u32 s{sT+1}, s{sHEAD}, 11
s_cmp_lt_u32 s{sHEAD}, 22
s_cselect_b32 s{sP0}, s{sP0}, s{sT+1}
s_cselect_b32 s{sP1}, s{sP1}, 0
s_lshl_b32 s{sXM}, s{sW}, 13
s_add_u32 s{sXM}, s{sXM}, {XBASE}
s_mul_i32 s{sWM}, s{sW}, {WCH}
s_add_u32 s{sWM}, s{sWM}, {WBASE}
v_and_b32 v{L3}, 3, v0
v_bfe_u32 v{L23}, v0, 2, 2
v_lshrrev_b32 v{L4}, 4, v0
v_lshlrev_b32 v{VL}, 4, v0
s_lshl_b32 s{sT+2}, s{sQB}, 8
s_lshl_b32 s{sT+3}, s{sHEAD}, 3
s_add_u32 s{sT+2}, s{sT+2}, s{sT+3}
s_lshl_b32 s{sT+3}, s{sW}, 1
s_add_u32 s{sKO}, s{sT+2}, s{sT+3}
s_lshl_b32 s{sT+2}, s{sKO}, 10
v_add_u32 v91, s{sT+2}, v{VL}
v_and_b32 v1, 1, v{L4}
v_lshlrev_b32 v1, 1, v1
v_xor_b32 v1, v1, v{L3}
v_lshlrev_b32 v{VDW}, 4, v1
v_lshrrev_b32 v31, 2, v0
v_lshl_add_u32 v{VX0}, v31, 10, v{VDW}
s_bfe_u32 s{sT}, s{sHEAD}, 0x10001
s_lshl_b32 s{sT+1}, s{sT}, 14
v_add_u32 v{VX0}, s{sT+1}, v{VX0}
v_xor_b32 v{VX1}, 0x4000, v{VX0}
s_lshl_b32 s{sT}, s{sT}, 11
s_add_u32 s{sXA}, s{sXM}, s{sT}
s_xor_b32 s{sT}, s{sT}, 0x800
s_add_u32 s{sXB}, s{sXM}, s{sT}
s_lshl_b32 s{sT}, s{sW}, 3
v_add_u32 v1, s{sT}, v{L23}
v_lshlrev_b32 v31, 4, v{L3}
v_lshl_add_u32 v{VD}, v{L4}, 6, v31
v_lshl_add_u32 v{VWQ}, v1, 13, v{VD}
v_lshrrev_b32 v{VW1}, 5, v0
v_lshl_add_u32 v1, v{VW1}, 5, v1
v_and_b32 v{VW1}, 1, v{L4}
v_lshl_add_u32 v1, v{VW1}, 2, v1
v_mul_u32_u24 v1, 2752, v1
v_add_u32 v{VW1}, v1, v31
s_lshl_b32 s{sT}, s{sQB}, 2
s_add_u32 s{sT+1}, s{sT}, s{sW}
s_lshl_b32 s{sT}, s{sT+1}, 16""")
    a("s_waitcnt lgkmcnt(0)")
    a("@stamp karg")
    if c.tlb:
        a(f"""s_load_dword s101, s[70:71], 0
s_load_dword s101, s[76:77], 0
s_mov_b32 s{sT+1}, {WS_RS + 0x8000}
s_load_dword s101, s[88:89], s{sT+1}
s_load_dword s101, s[78:79], 0
s_load_dword s101, s[86:87], 0
s_mov_b32 s{sT+1}, 0x200000
s_load_dword s101, s[70:71], s{sT+1}""")
    mk_srd(a, sX, 64, 65, f"s{sT}", 65536)
    L = a.lines + flat(dma_x(0)[:2])
    a = Asm()
    a(f"s_lshl_b32 s{sT}, s{sHEAD}, 8")
    mk_srd(a, sWQ, 70, 71, f"s{sT}", 512 * 8192 - 8192 + 256)
    a(f"s_lshl_b32 s{sT}, s{sP0}, 6")
    mk_srd(a, sF0, 76, 77, f"s{sT}", 512 * 2752 - 2752 + 64)
    a(f"s_lshl_b32 s{sT}, s{sP1}, 6")
    mk_srd(a, sF1, 76, 77, f"s{sT}", 512 * 2752 - 2752 + 64)
    a(f"s_cmp_lt_u32 s{sHEAD}, 22\ns_cselect_b32 s{sF1+2}, s{sF1+2}, 0\ns_mov_b64 s[98:99], s[64:65]")
    return L + a.lines + flat(dma_w(0))

B1R = [96, 98, 60, 62]
def side_loads():
    return [([], f"global_load_dwordx4 {vr(RSV+4*i,4)}, v91, s[98:99] offset:{i*1024}") for i in range(2)] + \
           [([], f"global_load_dwordx2 {vr(B1R[i],2)}, v{88 + i//2}, s[92:93] offset:{(i&1)*32}") for i in range(4)]

def setup_A2(c):
    a = Asm()
    a(f"""; b1 (D layout): 4 bf16 at (pair*32 + 16a + 4g)
s_lshl_b32 s{sT}, s{sP0}, 6
s_lshl_b32 s{sT+1}, s{sP1}, 6
v_lshl_add_u32 v88, v{L4}, 3, s{sT}
v_lshl_add_u32 v89, v{L4}, 3, s{sT+1}
s_mov_b64 s[92:93], s[78:79]
s_lshl_b32 s{sT}, s{sHEAD}, 19""")
    if c.SORD >= 1:
        for l in flat(side_loads()[2:]): a(l)
    if c.SORD == 2:
        for l in flat(side_loads()[:2]): a(l)
    mk_srd(a, sK, 66, 67, f"s{sT}", 0x80000)
    mk_srd(a, sV, 68, 69, f"s{sT}", 0x80000)
    mk_srd(a, sWS, 88, 89, None, 0x10000000)
    mk_srd(a, sDBG, 86, 87, None, 256)
    if c.ksplit: a(f"""s_and_b32 s{sRT}, s{sHEAD}, 15
s_lshl_b32 s{sRT}, s{sRT}, 1
s_lshr_b32 s{sT+7}, s{sHEAD}, 4
s_add_u32 s{sRT}, s{sRT}, s{sT+7}
s_mov_b32 s{sT+7}, s{sQB}
s_lshr_b32 s{sGX}, s{sRT}, 2""")
    elif c.tmap == 0: a(f"s_mov_b32 s{sRT}, s{sHEAD}\ns_mov_b32 s{sT+7}, s{sQB}")
    else: a(f"""s_and_b32 s{sRT}, s{sHEAD}, 24
s_add_u32 s{sRT}, s{sRT}, s{sQB}
s_and_b32 s{sT+7}, s{sHEAD}, 7
s_lshr_b32 s{sGX}, s{sRT}, 2""")
    a(f"s_lshl_b32 s{sT}, s{sT+7}, 7")
    mk_srd(a, sWO, 72, 73, f"s{sT}", 4096 * 1024 - 896)
    mk_srd(a, sW2, 80, 81, f"s{sT}", 1376 * 1024 - 896)
    mk_srd(a, sB2, 82, 83, f"s{sT}", 128)
    a(f"s_lshl_b32 s{sT+1}, s{sRT}, 16\ns_add_u32 s{sT+1}, s{sT+1}, s{sT}")
    mk_srd(a, sXX, 64, 65, f"s{sT+1}", 65536 - 896)
    mk_srd(a, sOUT, 84, 85, f"s{sT+1}", 65536 - 896)
    T = 31
    a(f"""s_lshr_b32 s{sRO}, s2, 6
s_lshl_b32 s{sRO}, s{sRO}, 1
s_xor_b32 s{sRO}, s{sRO}, s{sQB}
s_and_b32 s{sRO}, s{sRO}, {c.rot2}
s_and_b32 s{sT+4}, s{sW}, {c.rotw}
s_xor_b32 s{sRO}, s{sRO}, s{sT+4}
s_lshl_b32 s{sKW}, s{sW}, {4 if c.ksplit else 5}
s_and_b32 s{sT+4}, s{sRT}, {1 if c.ksplit else 0}
s_xor_b32 s{sT+4}, s{sT+4}, {c.KHF if c.ksplit else 0}
s_lshl_b32 s{sT+4}, s{sT+4}, 6
s_add_u32 s{sKW}, s{sKW}, s{sT+4}
s_lshl_b32 s{sT+4}, s{sW}, 10
s_add_u32 s{sFM}, s{sT+4}, {XB}
s_lshl_b32 s{sOB}, s{sW}, 12
s_add_u32 s{sRO}, s{sRO}, s{sKW}
s_lshr_b32 s{sT+5}, s{sRO}, 2
s_lshl_b32 s{sT+5}, s{sT+5}, 14
s_add_u32 s{sOB}, s{sOB}, s{sT+5}
s_and_b32 s{sT+5}, s{sRO}, 3
s_lshl_b32 s{sT+5}, s{sT+5}, 10
s_add_u32 s{sOB}, s{sOB}, s{sT+5}
s_lshl_b32 s{sRO}, s{sRO}, 15
s_lshl_b32 s{sOS}, s{sHEAD}, 1
s_add_u32 s{sOS}, s{sOS}, s{sPAR}
s_lshl_b32 s{sOS}, s{sOS}, 13
s_mul_i32 s{sHB}, s{sRT}, {H_RT}
s_add_u32 s{sHB}, s{sHB}, s{sT+4}
s_add_u32 s{sHB}, s{sHB}, {WS_H}
s_lshl_b32 s{sT+4}, s{sQB}, 2
s_add_u32 s{sT+4}, s{sT+4}, s{sW}
s_mul_i32 s{sT+4}, s{sT+4}, {H_RT}
s_add_u32 s{sT+4}, s{sT+4}, {WS_H}
s_lshl_b32 s{sHS0}, s{sP0}, 12
s_add_u32 s{sHS0}, s{sHS0}, s{sT+4}
s_lshl_b32 s{sHS1}, s{sP1}, 12
s_add_u32 s{sHS1}, s{sHS1}, s{sT+4}
s_lshl_b32 s{sFLO}, s{sQB}, {c.FLS + 3}
s_lshr_b32 s{sT+4}, s{sHEAD}, 2
s_lshl_b32 s{sT+4}, s{sT+4}, {c.FLS}
s_add_u32 s{sFLO}, s{sFLO}, s{sT+4}
s_and_b32 s{sT+4}, s{sHEAD}, 3
s_lshl_b32 s{sT+4}, s{sT+4}, 2
s_add_u32 s{sFLO}, s{sFLO}, s{sT+4}
s_add_u32 s{sFLO}, s{sFLO}, {WS_FL}
s_lshr_b32 s{sT+4}, s{sW}, 1
s_lshl_b32 s{sT+4}, s{sT+4}, 4
s_lshl_b32 s{sKM}, s{sW}, 12
s_add_u32 s{sKM}, s{sKM}, s{sT+4}
s_mul_i32 s{sVM}, s{sW}, {VCH}
s_add_u32 s{sVM}, s{sVM}, {VBASE}
s_mov_b32 s{sTRY}, 0
s_mov_b32 s{sCT}, s{sT+7}
s_mov_b32 s{sSH}, {f2u(c.shift)}
@pg1
v_lshl_add_u32 v{VD}, v{L23}, 8, v{VD}
s_lshl_b32 s{sT+4}, s{sW}, 12
v_add_u32 v{VD}, s{sT+4}, v{VD}
v_and_b32 v1, 1, v{L23}
v_lshlrev_b32 v1, 1, v1
v_xor_b32 v1, v1, v{L4}
v_lshlrev_b32 v1, 4, v1
v_and_b32 v{T}, 15, v0
v_lshl_add_u32 v1, v{T}, 6, v1
v_add_u32 v{VXR}, s{sXM}, v1
s_lshl_b32 s{sT+4}, s{sW}, 7
s_add_u32 s{sT+4}, s{sT+4}, {CWBASE}
s_lshl_b32 s{sT+5}, s{sW}, 6
s_add_u32 s{sT+5}, s{sT+5}, {CWBASE+512}
v_lshl_add_u32 v{VC0}, v{T}, 2, s{sT+4}
v_lshl_add_u32 v{VC1}, v{T}, 2, s{sT+5}
v_lshlrev_b32 v{VCR}, 4, v{L4}
v_add_u32 v{VCR}, {CWBASE}, v{VCR}
s_lshl_b32 s{sT+4}, s{sPAR}, 8
v_lshl_add_u32 v92, v{T}, 3, s{sT+4}
v_xor_b32 v93, 0x100, v92
v_lshlrev_b32 v1, 3, v{L3}
v_lshl_add_u32 v1, v{L23}, 6, v1
v_mul_u32_u24 v{VWR}, {WCH}, v{L4}
v_add_u32 v{VWR}, v{VWR}, v1
v_add_u32 v{VWR}, {WBASE}, v{VWR}
v_mul_u32_u24 v{VV}, {VCH}, v{L4}
v_add_u32 v{VV}, v{VV}, v1
v_add_u32 v{VV}, {VBASE}, v{VV}
s_lshl_b32 s{sT+4}, s{sW}, 8
v_add_u32 v{VCQ}, s{sT+4}, v{VWR}
s_lshr_b32 s{sT+4}, s{sW}, 1
s_lshl_b32 s{sT+4}, s{sT+4}, 10
s_and_b32 s{sT+5}, s{sW}, 1
s_lshl_b32 s{sT+5}, s{sT+5}, 5
s_add_u32 s{sT+4}, s{sT+4}, s{sT+5}
v_add_u32 v{VCF}, s{sT+4}, v{VWR}
; wo / w2 transposed read: (g>>1)*1024 + (g&1)*256 + rk*64 + c*8 + ((ct&1)^(g&1))*32
v_lshrrev_b32 v{T}, 1, v{L4}
v_lshl_add_u32 v1, v{T}, 10, v1
v_lshl_add_u32 v{VDW}, v{T}, 6, v{VDW}
v_and_b32 v{T}, 1, v{L4}
v_lshl_add_u32 v1, v{T}, 8, v1
v_lshl_add_u32 v1, v{T}, 5, v1
v_xor_b32 v{T}, 32, v1
v_add_u32 v{VRA}, s{sKM}, v1
v_add_u32 v{VRA+1}, s{sKM}, v{T}
v_add_u32 v{VRA+2}, s{sVM}, v1
v_add_u32 v{VRA+3}, s{sVM}, v{T}
v_add_u32 v{VRA+4}, {4*VSLOT}, v{VRA+2}
v_add_u32 v{VRA+5}, {4*VSLOT}, v{VRA+3}
v_add_u32 v{VFE}, {XB}, v1
v_add_u32 v{VFO}, {XB}, v{T}
; wo / w2 DMA voffset: row r8=(l>>2)&7 (stride 1024), half = l>>5 (64B), chunk (l&3)^(2*(r8>>2))
v_bfe_u32 v{T}, v0, 2, 3
v_lshl_add_u32 v{VDW}, v{T}, 10, v{VDW}
v_and_b32 v{VPA}, {31 if c.pollall else 3 if c.ksplit else 7}, v0
v_lshlrev_b32 v{VPA}, 2, v{VPA}
v_lshrrev_b32 v1, 1, v{L23}
v_lshlrev_b32 v1, 4, v1
v_lshl_add_u32 v1, v{L23}, 12, v1
v_lshl_add_u32 v1, v{L3}, 6, v1
v_and_b32 v{VK}, 1, v{L4}
v_lshl_add_u32 v1, v{VK}, 5, v1
v_lshrrev_b32 v{VK}, 1, v{L4}
v_lshl_add_u32 v{VK}, v{VK}, 4, v1
; store voffsets (workgroups without an extra FFN pair send those stores out of range)
s_lshl_b32 s{sT+4}, s{sPAR}, 11
v_add_u32 v{VOA}, s{sT+4}, v{VL}
v_xor_b32 v{VOB}, 0x800, v{VOA}
s_cmp_lt_u32 s{sHEAD}, 22
s_cselect_b32 s{sT+4}, 0, 0x10000000
v_add_u32 v{VH1}, s{sT+4}, v{VOA}
v_or_b32 v1, s{sW}, v0
v_cmp_eq_u32 vcc, 0, v1
v_mov_b32 v1, 0x10000000
v_cndmask_b32 v{VONE}, v1, 0, vcc
; row-sum operand: ones in rows 0,1 mod 4; index picks k%4 in (0,1) / (2,3)
v_cmp_gt_u32 vcc, 2, v{L3}
v_mov_b32 v1, 0x3f803f80
v_mov_b32 v{T}, 0x44444444
v_cndmask_b32 v{SMA}, 0, v1, vcc
v_cndmask_b32 v{SMA+1}, 0, v1, vcc
v_cndmask_b32 v{SMA+2}, 0, v1, vcc
v_cndmask_b32 v{SMA+3}, 0, v1, vcc
v_cmp_eq_u32 vcc, 1, v{L3}
v_mov_b32 v{VIDX}, 0xeeeeeeee
v_cndmask_b32 v{VIDX}, v{T}, v{VIDX}, vcc""")
    for r in range(12): a(f"v_accvgpr_write_b32 a{CWA+r}, 0")
    for l in attn_init()[:24]: a(l)
    pg = f"""s_xor_b32 s{sT+4}, s{sROT}, 4
s_lshl_b32 s{sT+4}, s{sT+4}, 19
s_cmp_lt_u32 s{sW}, 2
s_cselect_b64 s[96:97], s[{sWQ}:{sWQ+1}], s[{sWS}:{sWS+1}]
s_cselect_b32 s{sT+4}, s{sT+4}, s{sHS0}
v_mov_b32 v252, s{sT+4}
global_load_dword v253, v252, s[96:97] sc1
s_cselect_b64 s[96:97], s[{sK}:{sK+1}], s[{sV}:{sV+1}]
v_mov_b32 v252, 0
global_load_dword v254, v252, s[96:97]""".split("\n") if c.pg & 1 else []
    i_ = next(i for i, l in enumerate(a.lines) if l.strip() == "@pg1")
    a.lines[i_:i_ + 1] = pg
    if c.tlb > 1:
        for d, off in ((sK, 0), (sV, 0), (sWS, f"s{sHS0}"), (sB2, 0), (sW2, 0), (sWS, f"s{sHB}"), (sWO, f"s{sRO}"), (sWS, f"s{sOS}"), (sWS, f"s{sOB}"), (sOUT, 0), (sXX, 0)):
            a(f"s_load_dword s101, s[{d}:{d+1}], {off}")
    return a.lines

def stat_stores(c):
    return [([], f"buffer_store_dwordx2 v[88:89], v1, {srd(sWS)}, s{sKO} offen sc1 ;tag=sst"),
            ([], f"buffer_store_dword v91, v{VONE}, {srd(sWS)}, s{sFLO} offen sc1 ;tag=sst")] + \
           ([([f"s_lshl_b32 s{sT}, s2, 7", f"s_add_u32 s{sT}, s{sT}, {WS_F2}"], f"buffer_store_dword v91, v{VONE}, {srd(sWS)}, s{sT} offen sc1 ;tag=sst")] if c.ksplit else [])
def row_stats(c):
    a = Asm()
    s0, s1, q0, q1 = RSV + 8, RSV + 9, RSV + 10, RSV + 11
    a(f"v_mov_b32 v{s0}, 0\nv_mov_b32 v{s1}, 0\nv_mov_b32 v{q0}, 0\nv_mov_b32 v{q1}, 0\nv_mov_b32 v1, 0x3f803f80")
    for e in range(4):
        a(f"v_dot2c_f32_bf16 v{s0}, v{RSV+e}, v1\nv_dot2c_f32_bf16 v{q0}, v{RSV+e}, v{RSV+e}")
        a(f"v_dot2c_f32_bf16 v{s1}, v{RSV+4+e}, v1\nv_dot2c_f32_bf16 v{q1}, v{RSV+4+e}, v{RSV+4+e}")
    a(f"""s_nop 2
v_permlane32_swap_b32 v{s0}, v{s1}
v_permlane32_swap_b32 v{q0}, v{q1}
v_add_f32 v{s0}, v{s0}, v{s1}
v_add_f32 v{q0}, v{q0}, v{q1}
v_mov_b32 v{s1}, v{s0}
v_mov_b32 v{q1}, v{q0}
v_permlane16_swap_b32 v{s0}, v{s1}
v_permlane16_swap_b32 v{q0}, v{q1}
v_add_f32 v{s0}, v{s0}, v{s1}
v_add_f32 v{q0}, v{q0}, v{q1}""")
    for sh in (8, 4, 2, 1):
        a(f"v_add_f32_dpp v{s0}, v{s0}, v{s0} row_ror:{sh} row_mask:0xf bank_mask:0xf\nv_add_f32_dpp v{q0}, v{q0}, v{q0} row_ror:{sh} row_mask:0xf bank_mask:0xf")
    a(f"""v_mul_f32 v88, {f2u(-1/512)}, v{s0}
v_mul_f32 v{q0}, {f2u(1/512)}, v{q0}
v_fma_f32 v{q0}, -v88, v88, v{q0}
v_max_f32 v{q0}, 0, v{q0}
v_add_f32 v{q0}, {f2u(1e-5)}, v{q0}
v_rsq_f32 v89, v{q0}
v_lshrrev_b32 v1, 5, v0
v_lshlrev_b32 v1, 3, v1
s_lshl_b32 s{sKO}, s{sKO}, 3
s_add_u32 s{sKO}, s{sKO}, {WS_RS}
v_mov_b32 v91, 0
v_mov_b32 v90, 1""")
    for i in range(8): a(f"v_lshlrev_b32 v{B1F+2*i}, 16, v{B1R[i//2]+(i&1)}\nv_and_b32 v{B1F+2*i+1}, 0xffff0000, v{B1R[i//2]+(i&1)}")
    return [l.strip() for l in a.lines]

def dma_x(kb):
    A, B = sT + 2, sT + 3
    g = []
    for qt in range(4):
        for s in range(2):
            pre = []
            if qt == 0 and s == 0:
                pre += [f"s_xor_b32 s{A}, s{sROT}, {kb}", f"s_lshl_b32 s{A}, s{A}, 7", f"s_lshl_b32 s{B}, s{sPAR}, 15",
                        f"s_add_u32 s{A}, s{A}, s{B}", f"s_xor_b32 s{B}, s{A}, 0x8000"]
            pre.append(f"s_add_u32 m0, s{sXB if qt & 1 else sXA}, {(kb & 1) * XSLOT + (qt >> 1) * 4096 + s * 960}")
            g.append((pre, f"buffer_load_dwordx4 v{VX1 if qt & 1 else VX0}, {srd(sX)}, s{B if qt >= 2 else A} offen offset:{s*64} lds ;tag=x{kb}"))
    return g
def dma_w(kb):
    A, B, C = sT + 4, sT + 5, sT + 6
    base = (kb % 3) * WSLOT
    g = []
    for i in range(4):
        s, t = i >> 1, i & 1
        if i == 0:
            pre = [f"s_xor_b32 s{C}, s{sROT}, {kb}", f"s_lshl_b32 s{A}, s{C}, 19", f"s_mul_i32 s{C}, s{C}, {64*2752}", f"s_add_u32 m0, s{sWM}, {base}"]
            so = A
        else:
            pre = [f"s_add_u32 s{B}, s{A}, {(32*s+4*t)*8192 - i*1024}"]; so = B
        g.append((pre, f"buffer_load_dwordx4 v{VWQ}, {srd(sWQ)}, s{so} offen offset:{i*1024} {WFL[1]} lds ;tag=w{kb}"))
    g.append(([f"s_add_u32 m0, s{sWM}, {base+4096}"], f"buffer_load_dwordx4 v{VW1}, {srd(sF0)}, s{C} offen lds ;tag=w{kb}"))
    g.append(([f"s_add_u32 m0, s{sWM}, {base+5120}"], f"buffer_load_dwordx4 v{VW1}, {srd(sF1)}, s{C} offen lds ;tag=w{kb}"))
    return g
WFL = ['', '']
def dma_kv(kind, tile, A=sT + 7):
    g = []
    for i in range(4):
        pre = [f"s_mov_b32 s{A}, {tile*16384}", f"s_add_u32 m0, s{sKM if kind=='K' else sVM}, {(tile%NS)*(KSLOT if kind=='K' else VSLOT)}"] if i == 0 else []
        g.append((pre, f"buffer_load_dwordx4 v{VD}, {srd(sK if kind=='K' else sV)}, s{A} offen offset:{i*1024} lds ;tag={kind}{tile}"))
    return g
def flat(g):
    out = []
    for pre, l in g: out += pre + [l]
    return out
def place_group(sc, g, lo, hi, sp=4, look=None):
    cur = lo
    for n_, (pre, l) in enumerate(g):
        start = cur
        h_ = hi - (len(g) - 1 - n_)
        l_ = min(cur + max(len(pre), sp if n_ else 1), h_)
        gp = sc.place_mem(l, l_, min(h_, l_ + look) if look is not None else h_)
        assert gp > start
        free = [x for x in range(start, gp) if not sc.sal[x]]
        free = [x for x in free if x > start or not any(m.startswith(("buffer_", "global_")) for m in sc.mem[x])]
        if len(free) < 1 and len(pre) == 1 and "m0" not in pre[0] and pre[0].startswith("s_") and not sc.sal[gp] and len(sc.mem[gp]) == 1:
            sc.sal[gp].append(pre[0])
        elif len(free) >= len(pre):
            for x, s_ in zip(free[-len(pre):] if pre else [], pre): sc.sal[x].append(s_)
        else:
            sc.post[gp - 1] += pre
        cur = gp
    return cur

def x_reads(kb):
    return [f"ds_read_b128 {ar(XF(kb,qt,s),4)}, v{VXR} offset:{(kb&1)*XSLOT+(qt*2+s)*1024}" for qt in range(4) for s in range(2)]
def w_off(kb, T, s, t):
    b = (kb % 3) * WSLOT
    return b + (2*s+t)*1024 + (T >> 1)*256 + (T & 1)*32 if T < 8 else b + 4096 + ((T-8) >> 1)*1024 + (2*s+t)*256 + (T & 1)*32
def w_reads(kb, T, n):
    return [f"ds_read_b64_tr_b16 {ar(WF(n,s)+2*t,2)}, v{VWR} offset:{w_off(kb,T,s,t)}" for s in range(2) for t in range(2)]
def c_reads(kb):
    out = []
    for j in range(3):
        for s in range(2):
            for t in range(2):
                if j < 2: out.append(f"ds_read_b64_tr_b16 {ar(CF(j,s)+2*t,2)}, v{VCQ} offset:{w_off(kb,j,s,t)}")
                else: out.append(f"ds_read_b64_tr_b16 {ar(CF(j,s)+2*t,2)}, v{VCF} offset:{w_off(kb,8,s,t)}")
    return out

CWR = [28, 88, 16, 20]
def s_count(name, off):
    return [f"s_lshl_b32 s{sT}, s{sQB}, 5", f"s_add_u32 s{sT}, s{sT}, {off}", f"s_mov_b32 s{sT+1}, 1", f"s_cmp_lg_u32 s{sW}, 0",
            f"s_cbranch_scc1 L_sc_{name}", f"s_atomic_add s{sT+1}, s[{sDBG}:{sDBG+1}], s{sT}", f"L_sc_{name}:"]
def hop(c, p="L_hop"):
    return ["s_mov_b64 exec, 0"] + sum(([f"s_cmp_eq_u32 s{sW}, {w}", f"s_cbranch_scc1 {p}{w}"] for w in range(3)), []) + [f"s_branch {p}3"] + ([".p2align 12"] if p == "L_hop" else []) + [f"{p}_back:", "s_mov_b64 exec, -1"]
def gemm1(c):
    L = setup_A(c) + ["@stamp first"] + setup_A2(c) + ["@stamp setup"] + (hop(c, "L_hoo") if c.hop and c.hop0 else [])
    no = [([], "; ")]
    g_ = [side_loads() + dma_x(0)[2:], no * 4 + dma_x(0)[2:] + side_loads()[:2], no * 6 + dma_x(0)[2:], no * 4 + side_loads()[:2] + dma_x(0)[2:]][c.SORD] + dma_w(1) + dma_x(1)[:2]
    for n_ in range(len(g_) + 2):
        if n_ == c.RSC: L += row_stats(c)
        if n_ == c.hop: L += hop(c)
        L += flat(g_[n_:n_ + 1])
    L += ["@stamp issued", "@waitvm x0"] + x_reads(0) + ["@waitvm w0 lgkm0", "s_barrier", "@stamp b0 rt"]
    TORD = [0, 1, 2, 10, 3, 4, 5, 11, 6, 7, 8, 9]
    L += w_reads(0, TORD[0], 0) + w_reads(0, TORD[1], 1)
    sc = Sched()
    first = {}; last = {}; start = {}; cwg = {}
    for kb in range(8):
        start[kb] = sc.n()
        for n, T in enumerate(TORD if kb < 7 else [0, 1, 8, 10, 9, 2, 11, 3, 4, 5, 6, 7]):
            N = kb * 12 + n
            for nq, qt in enumerate(range(4 if T < 10 else 2)):
                if c.gzig == 2 and T < 10 and (T & 1): qt = 3 - qt
                for i_ in range(2):
                    s = i_ ^ (nq & 1) if c.gzig else i_
                    d = vr(ACC(T, qt), 4)
                    g = sc.add(f"{M16} {d}, {ar(WF(N,s),4)}, {ar(XF(kb,qt,s),4)}, {'0' if kb == 0 and i_ == 0 else d}")
                    first.setdefault(N, (g, T)); last[N] = g
            j_ = n - (4 if kb < 7 else 3)
            if 0 <= j_ < 3: cwg[(kb, j_)] = sc.add(f"{SMF} {ar(CWA+4*j_,4)}, {vr(SMA,4)}, {ar(CF(j_,0),8)}, v{VIDX}")
    start[8] = sc.n()
    bar = {kb: start[kb] - c.GBAR for kb in range(1, 9)}
    bar[0] = -1; bar[8] = start[8] - c.GBAR8
    CNT2 = f"s_lshl_b32 s{sT+7}, s{sQB}, 5"
    for kb in range(8):
        lo, hi = bar[kb] + 1, bar[kb + 1]
        sc.sal[hi] += [f"@waitvm {('sst,' if kb else '') + 'w%d' % (kb+1) if kb < 7 else 'K0'} lgkm0", "s_barrier"] + ([f"@stamp b{kb+1}"] if kb < 7 else [])
        grp = []
        if kb + 1 < 8 and kb <= c.XFULL: grp += dma_x(kb + 1)[2:]
        if kb + 2 < 8 and kb > c.XFULL and c.XFIRST: grp += dma_x(kb + 2)
        if kb == 0: grp += stat_stores(c)
        if kb == 2 and not c.sat & 1: grp += [([CNT2], f"buffer_atomic_add v90, v{VONE}, {srd(sDBG)}, s{sT+7} offen offset:4 sc1")]
        if kb == 2 and c.sat & 1:
            for n_, l in enumerate(s_count("a", 4)): sc.sal[lo + min(n_, 4)].append(l)
        if kb == c.STB: grp += [([CNT2], ST_LOAD)]
        if kb + 2 < 8: grp += dma_w(kb + 2) + (dma_x(kb + 2)[:2] if kb < c.XFULL else dma_x(kb + 2) if kb == c.XFULL or not c.XFIRST else [])
        if kb == 6: grp += dma_kv("K", 0, sT + 6) + dma_kv("K", 1, sT + 6)
        if kb == 7:
            sc.post[lo + 1] += CNT_OK.split("\n") + ["s_cbranch_scc0 L_spin_st", "L_ok_st:"]
            A = sT + 6
            grp += [([f"s_lshl_b32 s{A}, s{sQB}, 2", f"s_add_u32 s{A}, s{A}, s{sW}", f"s_lshl_b32 s{A}, s{A}, 9", f"s_add_u32 s{A}, s{A}, {WS_RS}"] if qt == 0 else [],
                     f"buffer_load_dwordx2 {vr(SX+4*qt,2)}, v{92 + (qt >> 1)}, {srd(sWS)}, s{A} offen offset:{(qt&1)*128} sc1") for qt in range(4)]
            grp += dma_kv("V", 0) + (dma_kv("K", 2) if c.K2 else []) + (touches(c) if c.TP == 0 else [])
        g0 = lo + max(c.GLO, 5 if kb == 2 and c.sat & 1 else 0) if kb else c.G0
        if kb == 0 and not c.RSC: sc.post[g0 - 1] += row_stats(c)
        cur = place_group(sc, grp, g0, hi - 1, sp=min(c.GSP if kb else c.GSP0, (hi - g0 - 8) // len(grp)))
        xlast = next((g for g in range(hi, lo, -1) if any(f"tag=x{kb+1}" in m for m in sc.mem[g])), lo)
        ops = []
        for n in range(12):
            N = kb * 12 + n
            if N >= 2: ops += [(l, max(lo, last[N - NWR] if N >= NWR else 0), min(first[N][0] - 5, hi - 4)) for l in w_reads(kb, first[N][1], N)]
        ops += [(l, max(lo, 0), cwg[(kb, n_ // 4)] - 5) for n_, l in enumerate(c_reads(kb))]
        if kb + 1 < 8:
            g = next(x for x in range(max(hi - 22, xlast + 1), sc.n()) if not sc.sal[x])
            sc.sal[g].append(f"@waitvm x{kb+1}")
            if c.hop == f"x{kb+1}": sc.post[g - 1] += hop(c)
            ops += [(l, g, hi - 3) for l in x_reads(kb + 1)]
        else:
            g = cwg[(7, 2)] + 6
            for j in range(3):
                sc.valu[g + 2 * j] += [f"v_accvgpr_read_b32 v{28+j}, a{CWA+4*j}"]
                sc.valu[g + 2 * j + 1] += [f"v_accvgpr_read_b32 v31, a{CWA+4*j+1}"]
                sc.valu[g + 2 * j + 2] += [f"v_add_f32 v{28+j}, v{28+j}, v31"]
            ops += [(f"ds_write_b32 v{VC0}, v28", g + 8, hi - 3), (f"ds_write_b32 v{VC0}, v29 offset:64", g + 8, hi - 3), (f"ds_write_b32 v{VC1}, v30", g + 8, hi - 3)]
            cs = math.log2(math.e) / math.sqrt(128.0)
            for qt in range(4): sc.valu[start[8] - 5 + qt].append(f"v_mul_f32 v{SX+4*qt+2}, {f2u(cs)}, v{SX+4*qt+1}")
        sc.place_edf(ops)
    place_group(sc, dma_kv("V", 1), bar[8] + 1, start[8] - 1, sp=5)
    ops = [(f"ds_read_b128 {vr(CWR[j],4)}, v{VCR} offset:{(8+j)*64}", bar[8] + 1, start[8] - 1) for j in range(4)]
    ops += [(l, bar[8] + 1, start[8] - 1) for l in k_reads(0)]
    sc.place_edf(ops)
    g = start[7]; ls = late_scalars(c)
    while ls:
        g = next(x for x in range(g + 1, start[8]) if not sc.sal[x])
        sc.sal[g].append(ls.pop(0))
        if ls and ls[0].startswith(("s_addc", "s_subb")): sc.sal[g].append(ls.pop(0))
    print("gemm1 est cycles", sc.est(), file=sys.stderr)
    return L + sc.lines()

def touches(c, v=1, d0="a254", d1="a255"):
    if not c.touch: return []
    A, B = sT + 4, sT + 5
    return [([f"s_lshl_b32 s{A}, s2, 2", f"s_add_u32 s{A}, s{A}, s{sW}", f"s_lshl_b32 s{B}, s{A}, 5", f"s_sub_u32 s{B}, s{B}, s{sCT}",
              f"v_lshrrev_b32 v{v}, 1, v0", f"v_add_lshl_u32 v{v}, v{v}, s{B}, 7"], f"buffer_load_dword {d0}, v{v}, {srd(sWO)}, 0 offen"),
            ([f"s_mul_i32 s{B}, s{A}, 11", f"s_sub_u32 s{B}, s{B}, s{sCT}", f"v_min_u32 v{v}, 10, v0", f"v_add_lshl_u32 v{v}, v{v}, s{B}, 7"],
             f"buffer_load_dword {d1}, v{v}, {srd(sW2)}, 0 offen")][:1 if c.touch == "wo" else 2]

def sprinkle(lines, groups, every):
    out = []; groups = list(groups); k = 0
    for l in lines:
        out.append(l); k += 1
        if groups and k >= every and not l.strip().startswith(("s_cmp", "v_cmp", "s_add", "s_cselect")):
            pre, v = groups.pop(0); out += pre + [v]; k = 0
    return out + flat(groups)

def b2_init(a, v=1):
    a(f"v_lshrrev_b32 v{v}, 4, v0\nv_lshlrev_b32 v{v}, 3, v{v}")
    for ct in range(4): a(f"buffer_load_dwordx2 {vr(B2R+2*ct,2)}, v{v}, {srd(sB2)}, 0 offen offset:{ct*32}")
def attn_init():
    out = [f"v_accvgpr_write_b32 a{LA(0)+r}, 0" for r in range(16)] + [f"v_accvgpr_write_b32 a{FH(0,0)+r}, 0" for r in range(8)]
    for i in range(8): out += [f"v_lshlrev_b32 v{FA+2*i}, 16, v{B2R+i}", f"v_and_b32 v{FA+2*i+1}, 0xffff0000, v{B2R+i}"]
    return out
B2R = FA + 8
def epi1(c):
    a = Asm()
    k1 = -2.0 * math.sqrt(2.0 / math.pi) * math.log2(math.e); k2 = k1 * 0.044715
    kk = f"s[{sT+2}:{sT+3}]"
    a(f"s_mov_b32 s{sT+2}, {f2u(k2)}\ns_mov_b32 s{sT+3}, {f2u(k1)}")
    items = [(T, qt, h, vr(ACC(T, qt) + 2 * h, 2)) for T in range(8, 12) for qt in range(4 if T < 10 else 2) for h in range(2)]
    for T, qt, h, r in items: a(f"v_pk_fma_f32 {r}, {vr(CWR[T-8]+2*h,2)}, {vr(SX+4*qt,2)}, {r} op_sel_hi:[1,0,1]")
    for T, qt, h, r in items: a(f"v_pk_fma_f32 {r}, {r}, {vr(SX+4*qt,2)}, {vr(B1F+(T-8)*4+2*h,2)} op_sel:[0,1,0] op_sel_hi:[1,1,1]")
    st = []
    for T0, q0 in ((8, 0), (8, 2), (10, 0)):
        regs_ = [ACC(T0 + t, q0 + q) + e for q in range(2) for t in range(2) for e in (0, 2)]
        prs = [(r, B1F + 2 * i) for i, r in enumerate(regs_)]
        for r, t in prs: a(f"v_pk_mul_f32 {vr(t,2)}, {vr(r,2)}, {vr(r,2)}")
        for r, t in prs: a(f"v_pk_fma_f32 {vr(t,2)}, {vr(t,2)}, {kk}, {kk} op_sel:[0,0,1] op_sel_hi:[1,0,1]")
        for r, t in prs: a(f"v_pk_mul_f32 {vr(t,2)}, {vr(t,2)}, {vr(r,2)}")
        for r, t in prs: a(f"v_exp_f32 v{t}, v{t}\nv_exp_f32 v{t+1}, v{t+1}")
        for r, t in prs: a(f"v_pk_add_f32 {vr(t,2)}, {vr(t,2)}, 1.0 op_sel_hi:[1,0]")
        for r, t in prs: a(f"v_rcp_f32 v{t}, v{t}\nv_rcp_f32 v{t+1}, v{t+1}")
        for r, t in prs: a(f"v_pk_mul_f32 {vr(t,2)}, {vr(t,2)}, {vr(r,2)}")
        for i, (r, t) in enumerate(prs): a(f"v_cvt_pk_bf16_f32 v{ACC(T0, q0 + i // 4) + i % 4}, v{t}, v{t+1}")
        vo = VH1 if T0 == 10 else (VOA if q0 < 2 else VOB)
        st = [([], f"buffer_store_dwordx4 {vr(ACC(T0,q0+q),4)}, v{vo}, {srd(sWS)}, s{sHS0 if T0 == 8 else sHS1} offen offset:{q*1024} {c.stflags} ;tag=hst") for q in range(2)]
        if (T0, q0) == (8, 0): a("@waitvm V0\ns_barrier")
        if T0 == 8:
            a(st[0][1])
            if q0:
                for T in (4, 5, 6, 7): a(f"ds_read_b128 {vr(96+4*T,4)}, v{VCR} offset:{T*64}")
            a(st[1][1])
            if q0:
                for T in (0, 1, 2, 3): a(f"ds_read_b128 {vr(96+4*T,4)}, v{VCR} offset:{T*64}")
    c.last_h = st
    a("@stamp gelu")
    return a.lines

def scalar_init(c):
    out = f"""s_mov_b32 s{sVO}, {3*16384}
s_lshl_b32 s{sFW}, s{sW}, 13
s_sub_u32 s{sFW}, s{sFW}, 0x8000
s_sub_u32 s{sFH}, s{sHB}, 0x1000
s_and_b32 s{sT}, s{sRT}, {1 if c.fsplit else 0}
s_mul_i32 s{sT}, s{sT}, {21*0x1000}
s_add_u32 s{sFH}, s{sFH}, s{sT}
s_lshl_b32 s{sT}, s{sT}, 3
s_add_u32 s{sFW}, s{sFW}, s{sT}
s_mov_b32 s{sLOOP}, 7
s_mov_b32 s{sTC}, {-(c.l2end + 1 - c.l2n) * (0x100000 // max(c.l2n, 1))}
v_mov_b32 v{VPD}, 0x10000000""".split("\n")
    return [l for l in out if c.l2n or f"s{sTC}," not in l]
def late_scalars(c):
    a = Asm()
    for l in scalar_init(c)[:-1]: a(l)
    RS_ = 0x80000 + 4 * c.PADW + c.PADR
    a(f"""s_mul_i32 s{sT}, s{sRT}, {RS_}
s_mul_i32 s{sT+1}, s{sW}, {c.PADW}
s_add_u32 s{sT}, s{sT}, s{sT+1}
s_add_u32 s{sT}, s{sT}, {WS_O}""")
    mk_srd(a, sOL, sWS, sWS + 1, f"s{sT}", 0x80000)
    a(f"""s_lshl_b32 s{sT}, s{sQB}, 2
s_add_u32 s{sT}, s{sT}, s{sW}
s_mul_i32 s{sT}, s{sT}, {RS_}
s_lshr_b32 s{sT+1}, s{sHEAD}, 3
s_mul_i32 s{sT+1}, s{sT+1}, {c.PADW}
s_add_u32 s{sT}, s{sT}, s{sT+1}
s_add_u32 s{sT}, s{sT}, {WS_O}""")
    mk_srd(a, sOT, sWS, sWS + 1, f"s{sT}", 0x80000)
    if c.recenter: a(f"s_mov_b32 s{sRC}, {c.recenter}")
    if c.fsplit:
        assert c.ksplit and c.xbf and c.lean
        a(f"s_and_b32 s{sT}, s{sRT}, 1\ns_mul_i32 s{sT}, s{sT}, {2*H_RT}\ns_sub_u32 s{sDH}, {H_RT}, s{sT}")
    if c.ksplit:
        assert not c.PADW and not c.l2n
        a(f"s_xor_b32 s{sT}, s{sRT}, 1\ns_mul_i32 s{sT}, s{sT}, {RS_}\ns_add_u32 s{sT}, s{sT}, {WS_O}")
        mk_srd(a, sOP, sWS, sWS + 1, f"s{sT}", 0x80000)
    if c.l2n:
        a(f"s_and_b32 s{sT}, s{sHEAD}, 3\ns_lshl_b32 s{sT}, s{sT}, 7\ns_sub_u32 s{sPF}, s{sWO}, s{sT}\ns_subb_u32 s{sPF+1}, s{sWO+1}, 0")
    return [l.strip() for l in a.lines]
def l2_addr(c):
    R = 32 // c.l2n; sh = (64 // R).bit_length() - 1
    return [f"s_lshr_b32 s{sT}, s2, 3", f"s_mul_i32 s{sT}, s{sT}, {R * 1024}", f"s_lshl_b32 s{sT+1}, s{sW}, 20", f"s_add_u32 s{sT}, s{sT}, s{sT+1}",
            f"v_lshrrev_b32 v{VTO}, {sh}, v0", f"v_lshl_add_u32 v{VTO}, v{VTO}, 10, s{sT}", f"v_bfe_u32 v{VTO+1}, v0, {sh-2}, 2", f"v_lshl_add_u32 v{VTO}, v{VTO+1}, 7, v{VTO}"]
def fa2_init(c): return [f"v_mov_b32 v{FA2+i}, 0" for i in range(16)] if c.fsplit else []
def f_zero():
    return [([f"s_add_u32 m0, s{sFM}, {i*4096}"], f"buffer_load_dwordx4 v{VPD}, {srd(sW2)}, 0 offen lds ;tag=fz") for i in range(1 if FSP[0] else 2)]

def head(c, early):
    a = Asm()
    TQ = S0
    def weave(va, mf, mem=()):
        va = list(va); mem = list(mem); tot = sum(icost(l) for l in va); done = 0
        for n_, m in enumerate(mf):
            a(m)
            for _ in range(-(-len(mem) // (len(mf) - n_))):
                x = mem.pop(0)
                for l in ([x] if isinstance(x, str) else x[0] + [x[1]]): a(l)
            while va and done < tot * (n_ + 1) / len(mf): done += icost(va[0]); a(va.pop(0))
        for l in va: a(l)
    def corr(qt):
        it = [(T, h, vr(ACC(T, qt) + 2 * h, 2)) for T in range(8) for h in range(2)]
        for T, h, r in it: a(f"v_pk_fma_f32 {r}, {vr(96+4*T+2*h,2)}, {vr(SX+4*qt,2)}, {r} op_sel_hi:[1,0,1]")
        for T, h, r in it: a(f"v_pk_mul_f32 {r}, {r}, {vr(SX+4*qt+2,2)} op_sel_hi:[1,0]")
    def frag(qt):
        va = []
        for ks in range(4):
            t = TQ + 4 * ks; X, Y = ACC(2 * ks, qt), ACC(2 * ks + 1, qt)
            va += [f"v_cvt_pk_bf16_f32 v{t}, v{X}, v{X+1}", f"v_cvt_pk_bf16_f32 v{t+2}, v{Y}, v{Y+1}",
                   f"v_cvt_pk_bf16_f32 v{t+1}, v{X+2}, v{X+3}", f"v_cvt_pk_bf16_f32 v{t+3}, v{Y+2}, v{Y+3}"]
        for ks in range(4):
            t = TQ + 4 * ks
            va += [f"v_permlane16_swap_b32 v{t}, v{t+2}", f"v_permlane16_swap_b32 v{t+1}, v{t+3}"]
        return va + [f"v_accvgpr_write_b32 a{Q(qt,0)+e}, v{TQ+e}" for e in range(16)]
    def rowmax(qt):
        r = [S(qt, e // 4) + e % 4 for e in range(16)]; n = NEGM + 4 * qt
        va = []
        for k in range(0, 8, 2):
            for h, t in ((0, 88), (8, 89)):
                va.append(f"v_max3_f32 v{t}, v{r[h+k]}, v{r[h+k+1]}, v{t}" if k else f"v_max_f32 v{t}, v{r[h]}, v{r[h+1]}")
        va += ["v_max_f32 v88, v88, v89", "v_mov_b32 v89, v88", "v_permlane32_swap_b32 v88, v89", "v_max_f32 v88, v88, v89",
               "v_mov_b32 v89, v88", "v_permlane16_swap_b32 v88, v89", "v_max_f32 v88, v88, v89", "v_floor_f32 v88, v88",
               f"v_sub_f32 v{n}, -v88, s{sSH}"]
        return va + [f"v_add_f32 v{x}, v{x}, v{n}" for x in r] + [f"v_mov_b32 v{n+k}, v{n}" for k in (1, 2, 3)]
    def mix(x, y):
        out = []; x = list(x); y = list(y); nx, ny = len(x), len(y)
        while x or y:
            if x and (not y or (nx - len(x)) * ny <= (ny - len(y)) * nx): out.append(x.pop(0))
            else: out.append(y.pop(0))
        return out
    vob = [f"v_lshrrev_b32 v{VOB}, 3, v0", f"v_lshl_add_u32 v{VOB}, s{sW}, 4, v{VOB}", f"v_and_b32 v{VOA}, 7, v0",
           f"v_lshlrev_b32 v{VOA}, 4, v{VOA}", f"v_lshl_add_u32 v{VOB}, v{VOB}, 10, v{VOA}"]
    sm = lambda n, upto=32: sum((sm_ops(n, p) for p in range(upto)), [])
    qk = lambda n: qk_mfmas(n, czero=True)
    pv = lambda n: [smf(n)] + pv_mfmas(n)
    vr0 = v_reads(0)
    ini = attn_init()
    a(scalar_init(c)[-1])
    if c.smtest:
        a(f"v_and_b32 v88, 15, v0\nv_cmp_gt_u32 vcc, {c.smtest}, v88")
        for r in range(4): a(f"v_cndmask_b32 v{SMA+r}, 0, v{SMA+r}, vcc")
    b = Asm(); b2_init(b, 90)
    for l in flat(c.last_h) + b.lines[:2]: a(l)
    corr(0)
    for l in frag(0): a(l)
    a("@stamp h0")
    corr(1); weave(frag(1), qk(0), mix(f_zero() + b.lines[2:], vr0[:14]))
    a("@stamp h1")
    kv3 = ([] if c.K2 else dma_kv("K", 2)) + dma_kv("V", 2) + dma_kv("K", 3) + dma_kv("V", 3)
    bar = f"""s_lshl_b32 s{sT}, s{sQB}, 5
v_mov_b32 v90, 1
@waitvm K1,V1,hst,fz lgkm0
s_barrier
buffer_atomic_add v90, v{VONE}, {srd(sDBG)}, s{sT} offen sc1
@stamp hb"""
    if c.sat & 2: bar = "\n".join(s_count("b", 0)[:4] + ["@waitvm K1,V1,hst,fz lgkm0", "s_barrier"] + s_count("b", 0)[4:])
    corr(2); weave(mix(rowmax(0), frag(2)), qk(1), vr0[14:] if c.HB == 2 else vr0[14:28])
    a("@stamp h2")
    corr(3)
    if c.HB == 2: a(bar)
    weave(mix(rowmax(1) + ini[24:], sm(0) + frag(3)), qk(2), ([] if c.HB == 2 else vr0[28:]) + sum(([x, "; "] for x in kv3[:len(kv3) // 2]), []))
    a("@stamp h3")
    if c.HB == 3: a(bar)
    weave(mix((fa2_init(c) or ["s_nop 0"] * 6) + rowmax(2), sm(1)), qk(3) + pv(0), sum(([x, "; ", "; ", "; "] for x in kv3[len(kv3) // 2:]), []))
    a("@stamp h4")
    h_ = len(early) // 2
    weave(mix(rowmax(3), sm(2)), pv(1), early[:h_] + (touches(c, 91, 'v92', 'v93') if c.TP else []) +
          ([([f"s_lshl_b32 s{sT+4}, s{sT+4}, 12", f"s_add_u32 s{sT+4}, s{sT+4}, {WS_X}", "v_lshlrev_b32 v91, 6, v0"], f"buffer_load_dword v93, v91, {srd(sWS)}, s{sT+4} offen sc1")] if c.xtouch else []))
    weave(vob + (l2_addr(c) if c.l2n else []) + sm(3, 32 - c.SM0), pv(2), early[h_:])
    return a.lines

SLOTS = {"X": ("V", XB)}
for _i in range(4): SLOTS[f"K{_i}"] = ("K", _i * KSLOT); SLOTS[f"V{_i}"] = ("V", VBASE + _i * VSLOT)
FAKE = [False]
SIG = {n: n for n in range(32)}
def make_pairs(c):
    Ls = list(range(c.NR, 32)); Hs = list(range(c.NR)); NP = 16 - c.ND // 2
    nll = len(Ls) - NP; assert nll >= 0
    llpos = {c.LL0 + c.LLS * k_ for k_ in range(nll)}; assert all(p < NP for p in llpos)
    return [(Hs.pop(0), Hs.pop(0)) if p >= NP else (Ls.pop(0), Ls.pop(0)) if p in llpos else (Ls.pop(0), Hs.pop(0)) for p in range(16)]
def t_wload(n, slot):
    A = sT + 2
    kind, base = SLOTS[slot]
    pre = [f"s_xor_b32 s{A}, s{sRO}, {SIG[n] << 15}",
           f"s_add_u32 m0, s{sKM if kind == 'K' else sVM}, {base if kind == 'K' else base - VBASE}"]
    g = []
    for i in range(4):
        if i: pre = [f"s_add_u32 s{A}, s{A}, 7168"]
        g.append((pre, f"buffer_load_dwordx4 v{VDW}, {srd(sWO)}, s{A} offen offset:{i*1024} {WFL[0]} lds ;tag=t{n}"))
    return g
def t_bload(c, n, dst):
    B = sT + 3
    return [([f"s_xor_b32 s{B}, s{sOB}, {((SIG[n] >> 2) << 14) + ((SIG[n] & 3) << 10) + (j << 12)}"],
             f"buffer_load_dwordx4 {dst(j)}, v{VL}, {srd(sOL)}, s{B} offen {c.ldflags} ;tag=b{n}") for j in range(4)]
def t_reads(slot, dst):
    kind, base = SLOTS[slot]
    r = VRA + (4 if slot == "X" else 0 if kind == "K" else 2)
    off = 0 if slot == "X" else base if kind == "K" else base - VBASE
    return [f"ds_read_b64_tr_b16 {dst(ct, t)}, v{r + (ct & 1)} offset:{off + t*2048 + (ct>>1)*512}" for ct in range(4) for t in range(2)]
def quads(k, b): return [(k, b + 4 * i) for i in range(4)]
HOLD = [quads("v", 112), quads("a", 240), quads("a", 208), quads("a", 224), [("a", 128), ("a", 132), ("a", 160), ("a", 164)]] + \
       [quads("a", b) for b in (64, 80, 96, 112, 136)] + [[("a", 152), ("a", 156), ("a", 168), ("a", 172)]] + \
       [quads("a", 176), quads("v", 96), quads("a", 192)] + [quads("a", b) for b in (0, 16, 32, 48)]
def hold(i): return lambda ct, t=None: rr(HOLD[i][ct], 4) if t is None else rr(HOLD[i][ct], 2, 2 * t)
class WStream:
    def __init__(self, total=32): self.slot = {}; self.nxt = 0; self.held = 0; self.total = total
    def fill(self, sl):
        if self.nxt >= self.total: return []
        n = self.nxt; self.nxt += 1; self.slot[n] = sl
        return t_wload(n, sl)
    def take(self):
        n = self.held; self.held += 1
        return f"@waitvm t{n}", t_reads(self.slot[n], hold(n)), f"@dep {HOLD[n][3][0]}{HOLD[n][3][1] + 3}", self.slot[n]
FAF = 208
def FH(buf, i): return 224 + buf * 8 + i * 4
FSP = [False]; FA2 = 112; sDH, sH2 = 94, 95
def f_loads(c, gam, buf, nk):
    g = []
    if c.fsplit:
        w = [f"s_add_u32 s{sFW}, s{sFW}, 0x8000"] if nk == 2 else [f"s_lshl_b32 s{sFW}, s{sW}, 13", f"s_add_u32 s{sFW}, s{sFW}, {42*0x8000}"]
        g.append((w + [f"s_add_u32 m0, s{sFM}, {buf*8192}"], f"buffer_load_dwordx4 v{VDW}, {srd(sW2)}, s{sFW} offen {c.fwflags} lds ;tag=f{gam}"))
        g.append(([f"s_add_u32 s{sFH}, s{sFH}, 0x1000" if nk == 2 else f"s_add_u32 s{sFH}, s{sHB}, {42*0x1000}"],
                  f"buffer_load_dwordx4 {ar(FH(buf,0),4)}, v{VL}, {srd(sWS)}, s{sFH} offen {c.fhflags} ;tag=f{gam}"))
        if nk == 2: g.append(([f"s_add_u32 s{sH2}, s{sFH}, s{sDH}"], f"buffer_load_dwordx4 {ar(FH(buf,1),4)}, v{VL}, {srd(sWS)}, s{sH2} offen {c.fhflags} ;tag=f{gam}"))
        return g
    for i in range(nk):
        g.append(([f"s_add_u32 s{sFW}, s{sFW}, 0x8000", f"s_add_u32 m0, s{sFM}, {buf*8192 + i*4096}"],
                  f"buffer_load_dwordx4 v{VDW}, {srd(sW2)}, s{sFW} offen {c.fwflags} lds ;tag=f{gam}"))
        g.append(([f"s_add_u32 s{sFH}, s{sFH}, 0x1000"],
                  f"buffer_load_dwordx4 {ar(FH(buf,i),4)}, v{VL}, {srd(sWS)}, s{sFH} offen {c.fhflags} ;tag=f{gam}"))
    return g
def f_part(buf, nk, g):
    it = [(2*g, 0), (2*g, 1), (2*g+1, 1), (2*g+1, 0)] if nk == 2 else [(ct, 0) for ct in range(4)]
    if FSP[0] and nk == 2:
        rd = [f"ds_read_b64_tr_b16 {ar(FAF+4*ct+2*t,2)}, v{VFO if ct & 1 else VFE} offset:{buf*8192 + t*2048 + (ct>>1)*512}" for ct in (2*g, 2*g+1) for t in range(2)]
        return rd, [f"{M16} {vr((FA2 if i else FA)+4*ct,4)}, {ar(FAF+4*ct,4)}, {ar(FH(buf,i),4)}, {vr((FA2 if i else FA)+4*ct,4)}" for ct, i in it]
    FB = 240 if g else FAF
    rd = [f"ds_read_b64_tr_b16 {ar(FB+4*n+2*t,2)}, v{VFO if ct & 1 else VFE} offset:{buf*8192 + i*4096 + t*2048 + (ct>>1)*512}" for n, (ct, i) in enumerate(it) for t in range(2)]
    return rd, [f"{M16} {vr(FA+4*ct,4)}, {ar(FB+4*n,4)}, {ar(FH(buf,i),4)}, {vr(FA+4*ct,4)}" for n, (ct, i) in enumerate(it)]
def f_group(k):
    if k == 0: return (-1, 0, 2)
    if k == 29: return (21, 1, 1)
    if 1 <= k <= 28 and (k - 1) % 4: return (3 * ((k - 1) // 4) + (k - 1) % 4 - 1, 1 if (k - 1) % 4 == 2 else 0, 2)
    return None

def spin(name, load, okcmp, back, slp=0):
    return f"""L_spin_{name}:
s_mov_b32 s{sT+6}, 0x40000
L_spin_{name}_l:{chr(10) + 's_sleep %d' % slp if slp else ''}
{load}
s_waitcnt vmcnt(0)
{okcmp}
s_cbranch_scc1 {back}
s_sub_u32 s{sT+6}, s{sT+6}, 1
s_cmp_lg_u32 s{sT+6}, 0
s_cbranch_scc1 L_spin_{name}_l
s_branch {back}""".split("\n")
CNT_LOAD = f"buffer_load_dword v{VPD}, off, {srd(sDBG)}, s{sT+7} sc1"
ST_LOAD = f"buffer_load_dword v{VPD}, off, {srd(sDBG)}, s{sT+7} offset:4 sc1"
CNT_OK = f"v_cmp_le_u32 vcc, 32, v{VPD}\ns_nop 0\ns_cmp_eq_u64 vcc, -1"
FL_LOAD = f"buffer_load_dword v{VPD}, v{VPA}, {srd(sWS)}, s{sT+7} offen sc1"
FL_OK = f"v_cmp_eq_u32 vcc, 1, v{VPD}\ns_nop 0\ns_cmp_eq_u64 vcc, -1"

QKO = [(i, 3 - k if i & 1 else k) for i in range(4) for k in range(4)]
PVO = [(dt, u ^ (dt & 1)) for dt in range(8) for u in range(2)]
def k_reads(T):
    return [f"ds_read_b128 {ar(KF(i,ks),4)}, v{VK} offset:{(T % NS)*KSLOT + i*1024 + ks*256}" for i, ks in QKO]
def v_reads(T):
    return [f"ds_read_b64_tr_b16 {rr(VF(T,u,dt),2,2*t)}, v{VV} offset:{(T % NS)*VSLOT + (2*u+t)*1024 + (dt>>1)*256 + (dt&1)*32}" for dt, u in PVO for t in range(2)]
def qk_mfmas(n, czero=False):
    qt = n & 3
    return [f"{M16} {vr(S(n,i),4)}, {ar(KF(i,ks),4)}, {ar(Q(qt,ks),4)}, " + (vr(S(n,i),4) if g & 3 else "0" if czero else vr(NEGM+qt*4,4)) for g, (i, ks) in enumerate(QKO)]
def pv_mfmas(n):
    qt = n & 3
    return [f"{M16} {vr(O(dt,qt),4)}, {rr(VF(n>>2,u,dt),4)}, {vr(P(n)+4*u,4)}, " + (vr(O(dt,qt),4) if n >= 4 or g & 1 else "0") for g, (dt, u) in enumerate(PVO)]
def smf(n): return f"{SMF} {ar(LA(n&3),4)}, {vr(SMA,4)}, {vr(P(n),8)}, v{VIDX}"
def sm_ops(n, p):
    e = p // 2
    if p < 0 or e >= 16: return []
    r = S(n, e // 4) + e % 4
    if p % 2 == 0: return [f"v_exp_f32 v{r}, v{r}"]
    return [f"v_cvt_pk_bf16_f32 v{P(n)+e//2}, v{r-1}, v{r}"] if e % 2 else []
def o_finish(c, qt, packed):
    L_, RC, MX = NEGM + 4 * qt, NEGM + 4 * qt + 2, NEGM + 4 * qt + 1
    va = [[f"v_accvgpr_read_b32 v{L_}, a{LA(qt)}", f"v_accvgpr_read_b32 v{RC}, a{LA(qt)+1}", f"v_add_f32 v{L_}, v{L_}, v{RC}", f"v_rcp_f32 v{RC}, v{L_}"], [], [], []]
    st = []
    for m in range(4):
        src = [O(2*m, qt) + e for e in range(4)] + [O(2*m+1, qt) + e for e in range(4)]
        for i in range(0, 8, 2):
            r = src[i]
            va[m].append(f"v_maximum3_f32 v{MX}, |v{r}|, |v{r+1}|, " + (f"v{MX}" if m or i else "0"))
            if packed: va[m].append(f"v_pk_mul_f32 {vr(r,2)}, {vr(r,2)}, {vr(RC,2)} op_sel_hi:[1,0]")
            else: va[m] += [f"v_mul_f32 v{r}, v{r}, v{RC}", f"v_mul_f32 v{r+1}, v{r+1}, v{RC}"]
        va[m] += [f"v_cvt_pk_bf16_f32 v{src[e]}, v{src[2*e]}, v{src[2*e+1]}" for e in range(4)]
        st.append(f"buffer_store_dwordx4 {vr(src[0],4)}, v{VL}, {srd(sOT)}, s{sT} offen offset:{m*1024} {c.stflags} ;tag=ost")
    va[0].insert(0, f"s_xor_b32 s{sT}, s{sOS}, {qt << 12}")
    return va, st

def attention(c, ws):
    sc = Sched(); idx = {}; fidx = {}
    for G in range(2 * 32 + c.BAR + 1, 129 * 32):
        n, g = divmod(G, 32)
        m = (qk_mfmas(n)[g] if n < 128 else None) if g < 16 else pv_mfmas(n - 1)[g - 16]
        idx[G] = sc.add(m)
        for nn in (n - 1, n):
            if nn < 128: sc.valu[idx[G]] += sm_ops(nn, G - 32 * nn - c.SM0)
        if g == 15: sc.add(smf(n - 1))
        k = G // 128
        fc = f_group(k - 1) if k >= 1 else (0, 0, 2)
        if fc:
            for h in range(fc[2]):
                if G - 128 * k == c.FPOS[h]:
                    for n_, m in enumerate(f_part(fc[1], fc[2], h)[1]): fidx[(k, h, n_)] = sc.add(m)
    def spread(lines, g0, g1):
        gaps = list(range(g0, g1 + 1)); lines = list(lines)
        tot = sum(icost(l) for l in lines) + sum(sc.cost(x) for x in gaps); acc_ = 0; last = g0
        for n_, x in enumerate(gaps):
            acc_ += sc.cost(x)
            while lines and (acc_ < tot * (n_ + 1) / len(gaps) - 2 or n_ == len(gaps) - 1):
                acc_ += icost(lines[0]); sc.valu[x].append(lines.pop(0)); last = x
        return last
    for k in range(1, 32):
        B = 128 * k
        lo = idx[B - 64 + c.BAR + 1]; nb = idx[B + 64 + c.BAR]; hi = nb - 4; end = nb - 1
        fg = f_group(k); p = (k - 1) % 4
        tags = f"V{k+1},K{k+1}" + (f",f{fg[0]}" if fg else "")
        if k < 31: sc.sal[nb] += [f"@waitvm {tags} lgkm0", "s_barrier"]
        if k <= 29: sc.post[idx[B + 32] - 1].append(f"@seg {k}")
        if k >= 30:
            for q_ in (-32, 32, 64, 96)[:2 if k == 30 else 4]: sc.post[idx[B + q_] - 1].append(f"@stamp p{(B + q_) // 32}")
        if c.recenter and c.rcw and k <= 28 and p == 1:
            sc.sal[idx[B] - 2].append(f"s_bitcmp1_b32 s{sRC}, s{sLOOP}")
            sc.post[idx[B] - 1] += ["s_cbranch_scc1 L_rc_a", "@rc 0"]
            for q_ in (1, 2, 3): sc.post[idx[B + 32 * q_] - 1].append(f"@rc {q_}")
            sc.post[idx[B + 128] - 1].append("L_rc_back:")
        if c.recenter and not c.rcw and k <= 29:
            for nm, p_, g_ in (("a", 0, 64), ("b", 1, 0)):
                if p == p_:
                    sc.sal[idx[B + g_] - 2].append(f"s_bitcmp1_b32 s{sRC}, s{sLOOP}")
                    sc.post[idx[B + g_] - 1] += [f"s_cbranch_scc1 L_rc_{nm}", f"L_rc_{nm}_back:"]
        if fg and k <= 28: place_group(sc, f_loads(c, *fg), idx[B], end)
        elif k <= 29 and c.codepf2: place_group(sc, [([], f"global_load_dword v{VOA}, v{VCP}, s[90:91]")], idx[B], end)
        if p == 1 and k <= 28: sc.post[idx[B - 3]] += CNT_OK.split("\n") + ["s_cbranch_scc0 L_spin_cnt", "L_ok_cnt:"]
        dm = []
        if k <= 29:
            for kind, sM, SL, d in (("K", sKM, KSLOT, sK), ("V", sVM, VSLOT, sV)):
                dm += [(([f"s_add_u32 s{sVO}, s{sVO}, 0x4000"] if kind == "K" else []) + [f"s_add_u32 m0, s{sM}, {((k+3)%NS)*SL}"] if i == 0 else [],
                        f"buffer_load_dwordx4 v{VD}, {srd(d)}, s{sVO} offen offset:{i*1024} {c.kvflags} lds ;tag={kind}{k+3}") for i in range(4)]
            if p == 0: dm = [([f"s_lshl_b32 s{sT+7}, s{sGX}, 5"], CNT_LOAD)] + dm
            if c.l2n:
                dm.append(([f"s_add_u32 s{sTC}, s{sTC}, {0x100000 // c.l2n}", f"s_cmp_lt_u32 s{sTC}, 0x100000", f"s_cselect_b32 s{sPF+2}, {4096*1024-512}, 0", f"s_cselect_b32 s{sTO}, s{sTC}, 0"],
                           f"buffer_load_dword v{VTO+1}, v{VTO}, {srd(sPF)}, s{sTO} offen"))
            place_group(sc, dm, idx[B + c.DPOS], end, sp=c.DSP)
        ops = [(l, max(lo, idx[B - 32 + g]), idx[B + g] - c.MG) for g, l in enumerate(k_reads(k))]
        ops += [(l, lo if PVO[n_ // 2][0] < NVX else idx[B + 16 + n_ // 2], idx[B + 48 + n_ // 2] - c.MG) for n_, l in enumerate(v_reads(k))]
        fc = f_group(k - 1)
        if fc:
            for h in range(fc[2]):
                ops += [(l, idx[B], min(fidx[(k, h, n_ // 2)] - c.MG, hi)) for n_, l in enumerate(f_part(fc[1], fc[2], h)[0])]
        if k == 29:
            sc.place_edf(ops); ops = []
            for pre, l in dm + [([f"s_bitcmp1_b32 s{sRC}, s{sLOOP}", "s_cbranch_scc1 L_rc_a"], "L_rc_a_back:")]:
                for x in range(idx[B + 32], nb):
                    for lst in (sc.sal[x], sc.mem[x], sc.post[x]):
                        for y in pre + [l]:
                            if y in lst: lst.remove(y)
        def hold_in(g0, g1, vm, sp=4):
            w, rd, dep, sl = ws.take()
            g0 = next(x for x in range(g0, g1) if not sc.sal[x]); sc.sal[g0].append(w)
            ops.extend((l, g0, g1) for l in rd)
            g2 = next(x for x in range(max(g1 + 3, vm), end) if not sc.sal[x]); sc.sal[g2].append(dep)
            return place_group(sc, ws.fill(sl), g2, end, sp, 1 if sp == 2 else None)
        pg = [([], f"buffer_load_dword v{90+i}, off, {srd(d)}, {o} sc1") for i, (d, o) in enumerate(((sOT, f"s{sOS}"), (sOL, f"s{sOB}"), (sOUT, 0)))] if c.pg & 2 else []
        if k == 29: place_group(sc, pg + f_loads(c, *fg) + ws.fill("K0") + ws.fill("V0"), idx[B + (33 if pg else 40)], end, sp=3 if pg else 4)
        xt = [([f"s_lshl_b32 s{sT+4}, s{sW}, 11", f"s_add_u32 m0, s{sT+4}, {XT}"], f"buffer_load_dwordx4 v{VOB}, {srd(sXX)}, 0 offen lds ;tag=xt"),
              ([f"s_mov_b32 s{sT+4}, 7168"], f"buffer_load_dwordx4 v{VOB}, {srd(sXX)}, s{sT+4} offen offset:1024 lds ;tag=xt")]
        if k == 30:
            cur = place_group(sc, ws.fill("K1") + ws.fill("V1") + xt, lo, end)
            if c.fsplit:
                g_ = spread([f"v_cvt_pk_bf16_f32 v{FA2+e}, v{FA2+2*e}, v{FA2+2*e+1}" for e in range(8)], idx[B - 24], idx[B - 8])
                A_ = sT + 5
                cur = place_group(sc, [([f"s_lshl_b32 s{A_}, s2, 2", f"s_add_u32 s{A_}, s{A_}, s{sW}", f"s_lshl_b32 s{A_}, s{A_}, 12", f"s_add_u32 s{A_}, s{A_}, {WS_X}"] if i == 0 else [],
                                        f"buffer_store_dwordx4 {vr(FA2+4*i,4)}, v{VL}, {srd(sWS)}, s{A_} offen offset:{2048+i*1024} sc1 ;tag=ost") for i in range(2)], max(cur, g_), end)
                assert cur < idx[B + c.H30W[1][0]]
            for g0, g1 in c.H30W: cur = hold_in(idx[B + g0], idx[B + g1], cur, c.HSP)
        if k == 31:
            cur = place_group(sc, ws.fill("K2") + ws.fill("V2") + ws.fill("X"), lo, end)
            if c.K3E:
                g_ = next(x for x in range(idx[B + 13], end) if not sc.sal[x]); sc.sal[g_] += ["s_waitcnt lgkmcnt(0)", "s_barrier"]
                cur = place_group(sc, ws.fill("K3"), max(cur, g_), end)
            for g0, g1 in c.H31W: cur = hold_in(idx[B + g0], idx[B + g1], cur)
        if ops: sc.place_edf(ops)
    late = None
    if c.stagger:
        cut = idx[126 * 32]; scA, wsA = sc, ws
        assert not any(m.startswith("buffer_") for x in range(cut, sc.n()) for m in sc.mem[x])
        sc, ws = copy.deepcopy(scA), copy.deepcopy(wsA); ops = []; end = sc.n() - 1; cur = cut
        for g0, g1 in c.HLW: cur = hold_in(idx[126 * 32 + g0], idx[126 * 32 + g1], cur)
        sc.place_edf(ops)
        for lst in (sc.mf, sc.sal, sc.mem, sc.valu, sc.post): del lst[:cut]
        late = (sc.lines(), ws); sc, ws = scA, wsA
        sc.sal[cut - 2].append(f"s_bitcmp1_b32 s2, {c.stagger}")
        sc.post[cut - 1] += ["s_cbranch_scc1 L_late", "@cut"]
    if c.NE: sc.sal[idx[(129 - c.NE) * 32 + min(c.NEW[0][0], 0)] - 1].append("s_setreg_imm32_b32 hwreg(HW_REG_MODE, 4, 2), 3")
    for qt in range(c.NE):
        n = 129 - c.NE + qt
        va, st = o_finish(c, qt, False)
        cuts = [idx[32 * n + g] for g in c.NEW[min(qt, 1) if n < 128 else 2]]
        for m in range(4):
            spread(va[m], cuts[m], cuts[m + 1] - 1); sc.mem[cuts[m + 1]].append(st[m])
    ge = lambda x: max(16, 16 - sc.budget(x) + sc.cost(x)) if sc.mf[x] else sc.cost(x)
    pe = [sum(ge(x) - (16 if sc.mf[x] else 0) for x in range(idx[32 * n], idx[32 * n + 31] + 1)) for n in list(range(37, 53)) + list(range(117, 129))]
    print("attention est cycles", sc.est(), "overflow per period", pe, file=sys.stderr)
    g4 = idx[128]
    if c.estonly: return pe
    early = sum((sc.mem[x] for x in range(g4)), [])
    assert all(l.startswith("ds_read") for l in early) and not any(sc.sal[x] or sc.post[x] for x in range(g4))
    for lst in (sc.mf, sc.sal, sc.mem, sc.valu, sc.post): del lst[:g4]
    return early, sc.lines(), late

class Pump:
    def __init__(self, a, ws): self.a = a; self.ws = ws; self.pend = []; self.nxt = None
    def busy(self): return bool(self.pend or self.nxt)
    def __call__(self, nload, limit):
        a, ws = self.a, self.ws
        for _ in range(nload):
            if not self.pend:
                prev = self.nxt; self.nxt = None
                if ws.held < limit:
                    w, rd, dep, sl = ws.take(); a(w)
                    for l in rd: a(l)
                    self.nxt = (dep, sl)
                if prev:
                    g = ws.fill(prev[1])
                    if g: a(prev[0]); self.pend.extend(g)
            if self.pend:
                pre, l = self.pend.pop(0)
                for x in pre + [l]: a(x)

def gate(c, plain=False, TT=48):
    G = FA
    b = Asm()
    b(f"""v_lshrrev_b32 v31, 4, v0
v_lshlrev_b32 v31, 3, v31
v_and_b32 v30, 15, v0
s_lshl_b32 s{sT}, s{sW}, 11
s_add_u32 s{sT}, s{sT}, {XT}
v_lshl_add_u32 v29, v30, 7, v31
v_add_u32 v29, s{sT}, v29
v_mul_u32_u24 v30, 144, v30
v_add3_u32 v30, v30, v31, s{sKM}
v_lshrrev_b32 v31, 3, v0
v_mul_u32_u24 v31, 144, v31
v_and_b32 v28, 7, v0
v_lshl_add_u32 v31, v28, 4, v31
v_add_u32 v31, s{sKM}, v31""")
    if plain:
        n0 = len(b.lines)
        for op in ("v_mul_f32 v{t}, %s, v{g}" % f2u(-math.log2(math.e)), "v_exp_f32 v{t}, v{t}", "v_add_f32 v{t}, 1.0, v{t}", "v_rcp_f32 v{t}, v{t}", "v_mul_f32 v{g}, v{g}, v{t}"):
            for i in range(16): b(op.format(t=TT + i, g=G + i))
        return b.lines[:n0], [l.strip() for l in b.lines[n0:]]
    for i in range(16): b(f"v_mul_f32 v{TT+i}, {f2u(-math.log2(math.e))}, v{G+i}")
    for i in range(16): b(f"v_exp_f32 v{TT+i}, v{TT+i}")
    for i in range(0, 16, 2): b(f"v_pk_add_f32 {vr(TT+i,2)}, {vr(TT+i,2)}, 1.0 op_sel_hi:[1,0]")
    for i in range(16): b(f"v_rcp_f32 v{TT+i}, v{TT+i}")
    for i in range(0, 16, 2): b(f"v_pk_mul_f32 {vr(G+i,2)}, {vr(G+i,2)}, {vr(TT+i,2)}")
    return b.lines

def tail1(c, ws, late=False):
    a = Asm()
    T = 88; EX = S0
    pump = Pump(a, ws)
    if not c.NE: a("s_setreg_imm32_b32 hwreg(HW_REG_MODE, 4, 2), 3")
    if not c.split_bar: pump(1, c.NB1)
    for qt in range(0 if late else c.NE, 4):
        va, st = o_finish(c, qt, True)
        for m in range(4):
            for l in va[m] + [st[m]]: a(l)
    pump(c.NP0, c.NB1)
    if not c.early_gate:
        while pump.busy() or ws.held < c.NB1: pump(1, c.NB1)
    a(f"s_mov_b32 s{sT+4}, 0x100\ns_mov_b64 s[{sT+6}:{sT+7}], -1")
    for qt in range(4):
        for r in (NEGM + 4 * qt, NEGM + 4 * qt + 1, NEGM + 4 * qt + 2):
            a(f"v_cmp_class_f32 vcc, v{r}, s{sT+4}\ns_and_b64 s[{sT+6}:{sT+7}], s[{sT+6}:{sT+7}], vcc")
    a(f"s_cmp_eq_u64 s[{sT+6}:{sT+7}], -1\ns_cselect_b32 s{sT+4}, 0, 1")
    if c.force_fallback: a(f"s_mov_b32 s{sT+4}, 1")
    if c.nofb: a(f"s_mov_b32 s{sT+4}, 0")
    a(f"""s_lshl_b32 s{sT+5}, s{sW}, 2
s_add_u32 s{sT+5}, s{sT+5}, {FLBASE}
v_mov_b32 v{T}, s{sT+5}
v_mov_b32 v{T+1}, s{sT+4}
ds_write_b32 v{T}, v{T+1}
s_setreg_imm32_b32 hwreg(HW_REG_MODE, 4, 2), 0
v_mov_b32 v{EX+8}, {FLBASE}
v_mov_b32 v{EX+9}, 1
s_lshl_b32 s{sT+7}, s{sGX}, 7
s_add_u32 s{sT+7}, s{sT+7}, s{sKW}
s_lshl_b32 s{sT+7}, s{sT+7}, {c.FLS - 4}
s_add_u32 s{sT+7}, s{sT+7}, {WS_FL}""")
    if c.early_gate and not c.lean:
        for l in gate(c): a(l)
    if c.lean & 2: pass
    elif c.hop and late:
        for l in hop(c, "L_hoq")[:-2] + ["L_late_back:"]: a(l)
    elif c.hop:
        for l in hop(c, "L_hoq"): a(l)
        if c.stagger: a(f"s_bitcmp1_b32 s2, {c.stagger}\ns_cbranch_scc1 L_late_back")
    if c.ksplit and c.NPOLL >= 0:
        pump(c.NPOLL, c.NB1); a(FL_LOAD)
    while pump.busy() or ws.held < c.NB1: pump(1, c.NB1)
    if c.split_bar: a("s_waitcnt lgkmcnt(0)")
    else: a("@waitvm ost lgkm0")
    return [l.strip() for l in a.lines]

def tail2(c, ws):
    a = Asm()
    SA = 128; AB = S0; XR = 16; G = FA; TT = 48; EX = AB
    def acc(ct, j): return SA + (j * 4 + ct) * 4
    def abuf(n): return lambda ct, t=None: vr(AB + (n & 1) * 16 + ct * 4, 4) if t is None else vr(AB + (n & 1) * 16 + ct * 4 + 2 * t, 2)
    def emit(ls):
        for l in ls: a(l)
    pump = Pump(a, ws)
    a(f"""L_bar1:
s_barrier
ds_read_b128 {vr(EX+12,4)}, v{EX+8}
v_or3_b32 v{EX+12}, v{EX+12}, v{EX+13}, v{EX+14}
v_or_b32 v{EX+12}, v{EX+12}, v{EX+15}
v_readfirstlane_b32 s{sT+4}, v{EX+12}
s_andn2_b32 s{sT+4}, s{sT+4}, s{sTRY}
s_cmp_lg_u32 s{sT+4}, 0
s_cbranch_scc1 L_fallback
""")
    freed = ["V3"] + ([] if c.K3E else ["K3"])
    if c.split_bar:
        while ws.held < c.NB2:
            w, rd, dep, sl = ws.take(); emit([w] + rd); freed.append(sl)
        if c.early_x: emit(t3_setup(c))
        a("s_waitcnt lgkmcnt(0)")
        if c.epoll == 1: a(FL_LOAD)
        for _ in range(c.NB3): emit(flat(ws.fill(freed.pop(0))))
        if c.epoll == 2: a(FL_LOAD)
        a("@waitvm ost\ns_barrier")
        if c.epoll == 3: a(FL_LOAD)
    a("@stamp bar1 rt")
    if c.flagmode == "store": a(f"buffer_store_dword v{EX+9}, v{VONE}, {srd(sWS)}, s{sFLO} offen sc1")
    elif c.flagmode == "vatomic": a(f"buffer_atomic_add v{EX+9}, v{VONE}, {srd(sWS)}, s{sFLO} offen sc1")
    elif c.flagmode == "satomic":
        a(f"""s_cmp_lg_u32 s{sW}, 0
s_cbranch_scc1 L_noflag
s_mov_b32 s{sT+5}, 1
s_atomic_add s{sT+5}, s[{sWS}:{sWS+1}], s{sFLO}
L_noflag:""")
    if c.ksplit:
        for sl in freed: pump.pend.extend(ws.fill(sl))
        if c.NPOLL < 0 and not c.epoll: pump(-c.NPOLL - 1, 16); a(FL_LOAD)
        if c.lean:
            assert ws.nxt == 16 and not c.early_x
            pump(min(c.NL1, len(pump.pend)), 16)
            if c.lean & 2 and c.hop: emit(hop(c, "L_hoq"))
            side = [gate(c, True)[0], t3_setup(c)]
            while ws.held < 7 + c.K3E + len(c.H30W) + len(c.H31W):
                w, rd, dep, sl = ws.take(); side.append([w] + rd)
            if c.side_late: c.side = sum(side[c.side_late - 1:], []); side = side[:c.side_late - 1]
            for x in side:
                emit(x)
                if pump.pend: pump(1, 16)
        while pump.pend or ws.nxt < 16: pump(1, 16)
        return a.lines + tail3(c, ws)
    pump.pend.extend(ws.fill("V3"))
    if not c.early_gate:
        for n_, l in enumerate(gate(c)):
            if n_ % 8 == 0: pump(1, c.NR)
            a(l)
    while ws.held < c.NR: pump(1, c.NR)
    a(FL_LOAD.replace("sc1", c.pollflags))
    while pump.busy(): pump(1, c.NR)
    a("@waitvm xt")
    for ct in range(4): a(f"ds_read_b64 {vr(XR+2*ct,2)}, v29 offset:{ct*32}")
    a("@stamp held rt")
    a(FL_OK + ("\ns_cbranch_scc0 L_spin_fl" if c.flagmode != "none" else "") + "\nL_ok_fl:")
    a("@stamp flags rt")
    if c.chain2:
        ND = c.ND; assert ND % 2 == 0 and 4 <= ND <= 14
        NP = 16 - ND // 2; pairs = make_pairs(c)
        units = [(p, j) for p in range(16) for j in range(4) if j or p < NP] + [(p, 0) for p in range(NP, 16)]
        NU = len(units); NM = NU - ND // 2
        frag = lambda u, h: vr(192 + ((2 * u + h) % 16) * 4, 4)
        def uload(u):
            p, j = units[u]
            return [t_bload(c, pairs[p][h], lambda jj: frag(u, h))[j] for h in range(2)]
        free = [quads("v", AB), quads("v", AB + 16)]; home = {n: HOLD[n] for n in range(c.NR)}
        def areads(n):
            home[n] = free.pop(0)
            return t_reads(ws.slot[n], lambda ct, t: rr(home[n][ct], 2, 2 * t))
        for u in range(c.DU0): emit(flat(uload(u)))
        a(f"@waitvm t{pairs[0][0]}")
        emit(areads(pairs[0][0]))
        L = a.lines
        sc = Sched(); nu = c.DU0; wq = []; pstart = {}; rds = []
        for u, (p, j) in enumerate(units):
            st = sc.n()
            for ct in range(4):
                for k_ in range(2):
                    h = k_ ^ (ct & 1); d = vr(acc(ct, j), 4)
                    sc.add(f"{M16} {d}, {rr(home[pairs[p][h]][ct], 4)}, {frag(u, h)}, {'0' if p == 0 and k_ == 0 else d}")
            if p not in pstart:
                pstart[p] = st
                if p: free.extend(home[n] for n in pairs[p - 1] if p - 1 < NP)
                for n in pairs[p]:
                    if n >= c.NR and ws.nxt < 32:
                        sc.sal[st].append(f"@dep {home[n][3][0]}{home[n][3][1] + 3}"); wq += ws.fill(ws.slot[n])
                nl_ = [n for n in pairs[p + 1] if n >= c.NR] if p < 15 else []
                if nl_:
                    assert not any(f"tag=t{n}" == l.split(";")[-1] for _, l in wq for n in nl_), p
                    sc.sal[st].append("@waitvm " + ",".join(f"t{n}" for n in nl_))
                    rds.append((st, sum((areads(n) for n in nl_), [])))
                if p in (1, 5, 9): sc.sal[st].append(f"@stamp o{2*p if p > 5 else 2*p-1}")
            grp = []
            if nu < NU and nu <= u + c.DU: grp += uload(nu); nu += 1
            if wq and u % c.WSK != c.WSK - 1: grp.append(wq.pop(0))
            elif wq: pass
            elif nu < NU and nu <= u + c.DU: grp += uload(nu); nu += 1
            if grp: place_group(sc, grp, st, st + 7, sp=(1 if len(grp) > 3 else 2))
        assert not wq
        for st, rd in rds: sc.place_edf([(l, st, st + 27) for l in rd])
        st0 = {32: 8 * NM}; N1 = "x"; st0["x"] = pstart[NP]
    else:
        RING = [192, 208, 224, 240]
        ND = c.ND; N1 = 32 - max(ND, 3)
        assert c.DO < len(RING) and ND <= 8
        lds_steps = list(range(c.NR, 32)); held_steps = list(range(c.NR))
        steps = []; li = hi_ = 0
        for i in range(32):
            if li < len(lds_steps) and (li * N1 <= i * len(lds_steps) or hi_ >= c.NR - (32 - N1)): steps.append(lds_steps[li]); li += 1
            else: steps.append(held_steps[hi_]); hi_ += 1
        lpos = {n: k_ for k_, n in enumerate(lds_steps)}
        assert steps[0] in lpos and all(n < c.NR for n in steps[N1:]) and 0 in steps[:24] and 1 in steps[:24]
        def ring(i): return lambda j: vr(RING[i % (c.DO + 1)] + 4 * j, 4) if j or i < 32 - ND else rr((HOLD[0] + HOLD[1])[i - 32 + ND], 4)
        def bload(i):
            g = t_bload(c, steps[i], ring(i))
            return g if i < 32 - ND else g[1:]
        for i in range(c.DO0): emit(flat(bload(i)))
        a(f"@waitvm t{steps[0]}")
        emit(t_reads(ws.slot[steps[0]], abuf(0)))
        L = a.lines
        sc = Sched(); st0 = []
        def mf(i, ct, j):
            n = steps[i]; A = abuf(lpos[n]) if n in lpos else hold(n); d = vr(acc(ct, j), 4)
            return sc.add(f"{M16} {d}, {A(ct)}, {ring(i)(j)}, {'0' if i == 0 else d}")
        for i in range(32):
            st0.append(sc.n())
            order = [(ct, j) for ct in range(4) for j in range(4)] if i < 31 else [(ct, j) for j in (1, 2, 3, 0) for ct in range(4)]
            for ct, j in order:
                if j or i < 32 - ND: mf(i, ct, j)
        st0.append(sc.n())
        for i in range(32 - ND, 32):
            for ct in range(4): mf(i, ct, 0)
        nb = c.DO0
        wq = []
        dq = [t_bload(c, steps[i], ring(i))[0] for i in range(32 - ND, 32)]
        for i, n in enumerate(steps):
            st, en = st0[i], st0[i + 1] - 1
            grp = []
            if nb < 32 and nb <= i + c.DO: grp += bload(nb); nb += 1
            elif nb == 32: k_ = -(-len(dq) // (32 - i)); grp += dq[:k_]; dq = dq[k_:]
            if n in lpos and ws.nxt < 32:
                sc.sal[st].append(f"@dep v{AB + (lpos[n] & 1) * 16 + 15}")
                wq += ws.fill(ws.slot[n])
            k_ = min(len(wq), c.WPS)
            grp += wq[:k_]; wq = wq[k_:]
            if not k_ and nb < 32 and nb <= i + c.DO: grp += bload(nb); nb += 1
            if i in (1, 9, 18): sc.sal[st].append(f"@stamp o{i}")
            if grp: place_group(sc, grp, st, en, sp=(1 if len(grp) > 6 else 2 if len(grp) > 4 else 3))
            if i + 1 < 32 and steps[i + 1] in lpos:
                assert not any(f"tag=t{steps[i+1]}" == l.split(";")[-1] for _, l in wq + grp), i
                sc.sal[st].append(f"@waitvm t{steps[i+1]}")
                cur = st
                for l in t_reads(ws.slot[steps[i + 1]], abuf(lpos[steps[i + 1]])): cur = sc.place_mem(l, cur, en - 1)
        assert not wq and not dq
    b = Asm()
    for j in range(1, 4):
        b(f"""s_add_u32 s{sT}, s{sVM}, {(j-1)*VSLOT}
v_add_u32 v{EX+j-1}, s{sT}, v{VL}
s_xor_b32 s{sT}, s{sW}, {j}
s_mul_i32 s{sT}, s{sT}, {VCH}
s_add_u32 s{sT}, s{sT}, {VBASE+(j-1)*VSLOT}
v_add_u32 v{EX+4+j-1}, s{sT}, v{VL}""")
    XU = EX + 16
    for i in range(8): b(f"v_lshlrev_b32 v{XU+2*i}, 16, v{XR+i}\nv_and_b32 v{XU+2*i+1}, 0xffff0000, v{XR+i}")
    for n_, l in enumerate(b.lines): sc.valu[st0[N1] + n_].append(l.strip())
    wr = [f"ds_write_b128 v{EX+j-1}, {vr(acc(ct,j),4)} offset:{ct*1024}" for j in range(1, 4) for ct in range(4)]
    rd = [f"ds_read_b128 {vr(acc(ct,j),4)}, v{EX+4+j-1} offset:{ct*1024}" for ct in range(4) for j in range(1, 4)]
    a = Asm()
    if ND >= 4:
        g = st0[32] - (10 if c.chain2 else 4)
        for n_, l in enumerate(wr):
            if c.chain2 and n_ in (4, 8): g = max(g, st0[32] - (4 if n_ == 4 else -2))
            sc.mem[g].append(l); g += 1
        g = min(g + 3, sc.n() - 1)
        sc.sal[g] += ["@stamp oproj rt", "s_waitcnt lgkmcnt(0)", "s_barrier"]
        g_rd = g
        for l in rd: sc.mem[g].append(l); g = min(g + 1, sc.n() - 1)
        if c.fold:
            va = []
            for ct in range(4):
                p1, p2, p3 = acc(ct, 1), acc(ct, 2), acc(ct, 3)
                va += [f"v_add_f32 v{p1+e}, v{p1+e}, v{p2+e}" for e in range(4)] + [f"v_add_f32 v{p1+e}, v{p1+e}, v{p3+e}" for e in range(4)]
                va += [f"v_fmac_f32 v{XU+4*ct+e}, v{p1+e}, v{G+4*ct+e}" for e in range(4)]
            gaps = list(range(min(g_rd + 8, sc.n() - 1), sc.n()))
            for n_, l in enumerate(va): sc.valu[gaps[n_ * len(gaps) // len(va)]].append(l)
    else:
        a("@stamp oproj rt")
        emit(wr + ["s_waitcnt lgkmcnt(0)", "s_barrier"] + rd)
    L += sc.lines()
    for j in (2, 3) if not c.fold else ():
        for ct in range(4):
            for h in (0, 2): a(f"v_pk_add_f32 {vr(acc(ct,1)+h,2)}, {vr(acc(ct,1)+h,2)}, {vr(acc(ct,j)+h,2)}")
    for cp in (0, 2):
        it = [(acc(ct, 0) + h, acc(ct, 1) + h, 4 * ct + h) for ct in (cp, cp + 1) for h in (0, 2)]
        for r, p, o in it if not c.fold else (): a(f"v_pk_add_f32 {vr(r,2)}, {vr(r,2)}, {vr(p,2)}")
        for r, p, o in it: a(f"v_pk_fma_f32 {vr(r,2)}, {vr(r,2)}, {vr(G+o,2)}, {vr(XU+o,2)}")
        for r, p, o in it: a(f"v_cvt_pk_bf16_f32 v{XR+o//2}, v{r}, v{r+1}")
        for ct in (cp, cp + 1): a(f"ds_write_b64 v30, {vr(XR+2*ct,2)} offset:{ct*32}")
    a(f"s_mov_b32 s{sT}, 8192")
    for i in range(2): a(f"ds_read_b128 {vr(SA+4*i,4)}, v31 offset:{i*8*144}")
    for i in range(2): a(f"buffer_store_dwordx4 {vr(SA+4*i,4)}, v{VOB}, {srd(sOUT)}, {'s%d' % sT if i else 0} offen {c.outflags}")
    return L + a.lines

F2_LOAD = f"buffer_load_dword v{VPD}, off, {srd(sWS)}, s{sT+7} sc1"
def t3_setup(c):
    a = Asm(); XR = 16; EX = S0; XU = EX + 16
    a("@waitvm xt")
    for ct in range(4): a(f"ds_read_b64 {vr(XR+2*ct,2)}, v29 offset:{ct*32}")
    for j in range(1, 4):
        a(f"""s_add_u32 s{sT}, s{sVM}, {(j-1)*VSLOT}
v_add_u32 v{EX+j-1}, s{sT}, v{VL}
s_xor_b32 s{sT}, s{sW}, {j}
s_mul_i32 s{sT}, s{sT}, {VCH}
s_add_u32 s{sT}, s{sT}, {VBASE+(j-1)*VSLOT}
v_add_u32 v{EX+4+j-1}, s{sT}, v{VL}""")
    sXS, sXL, sF2 = sT, sT + 1, sT + 4
    a(f"""s_lshl_b32 s{sXS}, s2, 2
s_add_u32 s{sXS}, s{sXS}, s{sW}
s_lshl_b32 s{sXS}, s{sXS}, 12
s_add_u32 s{sXS}, s{sXS}, {WS_X}
s_xor_b32 s{sXL}, s{sXS}, {4 << 14}
s_lshl_b32 s{sF2}, s2, 7
s_add_u32 s{sF2}, s{sF2}, {WS_F2}""")
    for i in range(8): a(f"v_lshlrev_b32 v{XU+2*i}, 16, v{XR+i}\nv_and_b32 v{XU+2*i+1}, 0xffff0000, v{XR+i}")
    return a.lines
def tail3(c, ws):
    assert ws.nxt == 16 and c.early_gate
    a = Asm()
    SA = 128; XR = 16; G = FA; EX = S0; XU = EX + 16; PP = 96; CL = c.CL
    def acc(ct, j): return SA + (j * 4 + ct) * 4
    def emit(ls):
        for l in ls: a(l)
    a("@stamp held rt")
    a(FL_OK + "\ns_cbranch_scc0 L_spin_fl\nL_ok_fl:")
    a("@stamp flags rt")
    fr = [(ps, j, n) for ps in range(2) for j in (1, 2, 3, 0) for n in range(16)]
    RG = [("v", 192 + 4 * i) for i in range(16)] + HOLD[16]
    frag = lambda f: rr(RG[f % 20], 4)
    def fload(f):
        ps, j, n = fr[f]; pre, l = t_bload(c, n, lambda jj: frag(f))[j]
        return pre, (l if ps else l.replace(srd(sOL), srd(sOP)))
    for f in range(c.DF):
        if f == c.SLP: emit(c.side)
        emit(flat([fload(f)]))
    while ws.held < 16:
        w, rd, dep, sl = ws.take(); emit([w] + rd)
    sXS, sXL, sF2 = sT, sT + 1, sT + 4
    if not c.early_x and not c.lean: emit(t3_setup(c))
    a(f"s_xor_b32 s{sT+7}, s{sFLO}, {4 << c.FLS}" if c.fsplit else f"s_xor_b32 s{sT+7}, s{sF2}, {4 << 7}")
    L = a.lines
    sc = Sched()
    for f0 in range(0, 128, CL):
        ps, j, n0 = fr[f0]
        for ct in range(4):
            for k_ in range(CL):
                h = CL - 1 - k_ if ct & 1 else k_; d = vr(acc(ct, j), 4)
                sc.add(f"{M16} {d}, {rr(HOLD[n0+h][ct], 4)}, {frag(f0+h)}, {'0' if n0 == 0 and k_ == 0 else d}")
    assert c.DF + CL <= 20
    for f0 in range(0, 128, CL):
        grp = [fload(f) for f in range(f0 + c.DF, min(f0 + c.DF + CL, 128))]
        if grp: place_group(sc, grp, 4 * f0, 4 * f0 + 4 * CL - 1, sp=4)
    for g in (1, 64, 192, 256, 320, 384, 448): sc.sal[g].append(f"@stamp g{g}")
    def put(lines, g, step=1):
        for l in lines: g = sc.place_mem(l, g, g + 3) + step
        return g
    def vput(lines, g0, g1):
        for n_, l in enumerate(lines): sc.valu[g0 + n_ * (g1 - g0) // len(lines)].append(l)
    def salat(g, lines):
        g = next(x for x in range(g, sc.n()) if not sc.sal[x]); sc.sal[g] += lines; return g
    if c.fsplit:
        put([F2_LOAD], c.XP3)
        sc.post[c.XC3] += FL_OK.split("\n") + ["s_cbranch_scc0 L_spin_f3", "L_ok_f3:", f"s_xor_b32 s{sT+7}, s{sF2}, {4 << 7}"]
        put([f"buffer_load_dwordx4 {vr(PP+8+4*i,4)}, v{VL}, {srd(sWS)}, s{sXL} offen offset:{2048+i*1024} sc1" for i in range(2)], c.XC3 + 1)
    for ps in range(2):
        B = 256 * ps
        if ps:
            vput([f"v_add_f32 v{acc(0,0)+e}, v{acc(0,0)+e}, v{acc(0,3)+e}" for e in range(16)], B + 4, B + 12)
            NX = 2 if c.xbf else 4
            if c.xbf: vput([f"v_cvt_pk_bf16_f32 v{acc(0,0)+e}, v{acc(0,0)+2*e}, v{acc(0,0)+2*e+1}" for e in range(8)], B + 12, B + 16)
            put([f"buffer_store_dwordx4 {vr(acc(ct,0),4)}, v{VL}, {srd(sWS)}, s{sXS} offen offset:{ct*1024} sc1 ;tag=xst" for ct in range(NX)], B + (16 if c.xbf else 12))
            gb = salat(B + c.XB1, ["@waitvm xst lgkm0", "s_barrier"])
            if c.f2s: sc.sal[gb] += [f"s_mov_b32 s{sT+5}, 1", f"s_cmp_lg_u32 s{sW}, 0", "s_cbranch_scc1 L_nof2", f"s_atomic_add s{sT+5}, s[{sWS}:{sWS+1}], s{sF2}", "L_nof2:"]
            else: put([f"buffer_store_dword v{EX+9}, v{VONE}, {srd(sWS)}, s{sF2} offen sc1"], gb)
            put([F2_LOAD], B + c.XPL)
            sc.post[B + c.XCK] += FL_OK.split("\n") + ["s_cbranch_scc0 L_spin_f2", "L_ok_f2:"]
            put([f"buffer_load_dwordx4 {vr(PP+16-4*NX+4*ct,4)}, v{VL}, {srd(sWS)}, s{sXL} offen offset:{ct*1024} sc1" for ct in range(NX)], B + c.XCK + 1)
            if c.xbf: vput(sum(([f"v_lshlrev_b32 v{PP+2*i}, 16, v{PP+8+i}", f"v_and_b32 v{PP+2*i+1}, 0xffff0000, v{PP+8+i}"] for i in range(8)), []), B + 240, B + 256)
        for j in range(1, 4):
            g = put([f"ds_write_b128 v{EX+j-1}, {vr(acc(ct,j),4)} offset:{ct*1024}" for ct in range(4)], max(B + 64 * j + 4, gb + 1 if ps else 0), 2)
        g = salat(g + 3, (["@stamp oproj rt"] if ps else []) + ["s_waitcnt lgkmcnt(0)", "s_barrier"])
        g = put([f"ds_read_b128 {vr(acc(ct,j),4)}, v{EX+4+j-1} offset:{ct*1024}" for ct in range(4) for j in range(1, 4)], g)
        va = [f"v_add_f32 v{acc(ct,3)+e}, v{acc(ct,3)+e}, v{acc(ct,j)+e}" for ct in range(4) for j in (1, 2) for e in range(4)]
        vput(va, g - 4, B + 254)
    if c.lean:
        g = 8; va = gate(c, True, PP)[1]
        if c.fsplit:
            g = c.XG3
            va = sum(([f"v_lshlrev_b32 v{PP+2*i}, 16, v{PP+8+i}", f"v_and_b32 v{PP+2*i+1}, 0xffff0000, v{PP+8+i}"] for i in range(8)), []) + \
                 [f"v_add_f32 v{G+i}, v{G+i}, v{PP+i}" for i in range(16)] + va
        for l in va:
            g = next(x for x in range(g, 256 + c.XCK) if sc.cost(x) + icost(l) <= 8); sc.valu[g].append(l); g += 1
    L += sc.lines()
    a = Asm()
    for ct in range(4):
        for h in (0, 2): a(f"v_pk_add_f32 {vr(acc(ct,3)+h,2)}, {vr(acc(ct,3)+h,2)}, {vr(PP+4*ct+h,2)}")
    for cp in (0, 2):
        it = [(acc(ct, 0) + h, acc(ct, 3) + h, 4 * ct + h) for ct in (cp, cp + 1) for h in (0, 2)]
        for r, p, o in it: a(f"v_pk_add_f32 {vr(r,2)}, {vr(r,2)}, {vr(p,2)}")
        for r, p, o in it: a(f"v_pk_fma_f32 {vr(r,2)}, {vr(r,2)}, {vr(G+o,2)}, {vr(XU+o,2)}")
        for r, p, o in it: a(f"v_cvt_pk_bf16_f32 v{XR+o//2}, v{r}, v{r+1}")
        for ct in (cp, cp + 1): a(f"ds_write_b64 v30, {vr(XR+2*ct,2)} offset:{ct*32}")
    a(f"s_mov_b32 s{sT}, 8192")
    for i in range(2): a(f"ds_read_b128 {vr(SA+4*i,4)}, v31 offset:{i*8*144}")
    for i in range(2): a(f"buffer_store_dwordx4 {vr(SA+4*i,4)}, v{VOB}, {srd(sOUT)}, {'s%d' % sT if i else 0} offen {c.outflags}")
    return L + a.lines

def fallback(c, early):
    a = Asm()
    T = 88; U = P0
    def emit(ls):
        for l in ls: a(l)
    def reads(ls):
        for i in range(0, len(ls), 8): emit(ls[i:i + 8] + ["s_waitcnt lgkmcnt(0)"])
    a(f"L_fallback:\ns_mov_b32 s{sTRY}, 1\ns_mov_b32 s{sRC}, 0\ns_mov_b32 s{sLOOP}, 0")
    for qt in range(4): a(f"v_mov_b32 v{T+qt}, 0xff800000")
    a(f"""L_fb_loop:
s_waitcnt vmcnt(0) lgkmcnt(0)
s_barrier
s_mov_b32 m0, s{sKM}
s_nop 0""")
    for i in range(4): a(f"buffer_load_dwordx4 v{VD}, {srd(sK)}, s{sLOOP} offen offset:{i*1024} lds")
    a("s_waitcnt vmcnt(0)\ns_barrier")
    reads(k_reads(0))
    for qt in range(4): emit(qk_mfmas(qt, True))
    a("s_nop 7")
    for qt in range(4):
        for e in range(0, 16, 2): a(f"v_max3_f32 v{T+qt}, v{T+qt}, v{S(qt,e//4)+e%4}, v{S(qt,e//4)+e%4+1}")
    a(f"s_add_u32 s{sLOOP}, s{sLOOP}, 0x4000\ns_cmp_lt_u32 s{sLOOP}, 0x80000\ns_cbranch_scc1 L_fb_loop")
    for sw in ("v_permlane32_swap_b32", "v_permlane16_swap_b32"):
        for qt in range(4): a(f"v_mov_b32 v{U+qt}, v{T+qt}")
        for qt in range(4): a(f"{sw} v{T+qt}, v{U+qt}")
        for qt in range(4): a(f"v_max_f32 v{T+qt}, v{T+qt}, v{U+qt}")
    a("s_barrier")
    for t in range(4): emit(flat(dma_kv("K", t) + dma_kv("V", t)))
    b2_init(a)
    emit(scalar_init(c) + flat(f_zero()) + (l2_addr(c) if c.l2n else []))
    a("s_waitcnt vmcnt(0)\ns_barrier")
    reads(k_reads(0) + v_reads(0))
    emit(attn_init() + fa2_init(c))
    for qt in range(4):
        for k in range(4): a(f"v_sub_f32 v{NEGM+qt*4+k}, 0, v{T+qt}")
    for qt in range(4): emit(qk_mfmas(qt))
    for qt in range(4):
        for p in range(32 if qt < 3 else 32 - c.SM0): emit(sm_ops(qt, p))
        if qt < 3: emit([smf(qt)] + pv_mfmas(qt))
    a("s_barrier")
    reads(early)
    a("s_nop 7\ns_branch L_attn")
    return a.lines

def recenter(c):
    a = Asm()
    for nm, qs in (("a", (2, 3)), ("b", (0, 1))):
        a(f"L_rc_{nm}:\ns_mov_b32 s{sT+6}, -120\ns_setreg_imm32_b32 hwreg(HW_REG_MODE, 4, 2), 3")
        for op in ("v_accvgpr_read_b32 v{x}, a{l}", "v_accvgpr_read_b32 v{y}, a{l1}", "v_add_f32 v{x}, v{x}, v{y}", "v_frexp_exp_i32_f32 v{f}, v{x}",
                   "v_sub_u32 v{f}, %d, v{f}" % (1 - int(c.shift)), "v_med3_i32 v{f}, v{f}, 0, s%d" % (sT + 6), "v_cvt_f32_i32 v{y}, v{f}",
                   "v_ldexp_f32 v{x}, v{x}, v{f}", "v_ldexp_f32 v{f}, 1.0, v{f}", "v_accvgpr_write_b32 a{l}, v{x}", "v_accvgpr_write_b32 a{l1}, 0",
                   "v_add_f32 v{n}, v{n}, v{y}", "v_add_f32 v{n1}, v{n1}, v{y}", "v_add_f32 v{n2}, v{n2}, v{y}", "v_add_f32 v{n3}, v{n3}, v{y}"):
            for qt in qs:
                n = NEGM + 4 * qt; h = qt & 1
                a(op.format(f=88 + h, x=90 + h, y=92 + h, l=LA(qt), l1=LA(qt) + 1, n=n, n1=n + 1, n2=n + 2, n3=n + 3))
        for qt in qs:
            sel = "op_sel:[0,1] op_sel_hi:[1,1]" if qt & 1 else "op_sel_hi:[1,0]"
            for dt in range(8):
                for h in (0, 2): a(f"v_pk_mul_f32 {vr(O(dt,qt)+h,2)}, {vr(O(dt,qt)+h,2)}, v[88:89] {sel}")
        a(f"s_setreg_imm32_b32 hwreg(HW_REG_MODE, 4, 2), 0\ns_branch L_rc_{nm}_back")
    return [l.strip() for l in a.lines]

def recenter_woven(c, lines):
    out = []; cuts = [i for i, l in enumerate(lines) if l.startswith("@rc")] + [len(lines)]
    for q in range(4):
        qt = (q + 1) & 3; n = NEGM + 4 * qt; l0 = LA(qt)
        ops = [f"v_accvgpr_read_b32 v90, a{l0}", f"v_accvgpr_read_b32 v92, a{l0+1}", "v_add_f32 v90, v90, v92", "v_frexp_exp_i32_f32 v88, v90",
               f"v_sub_u32 v88, {1 - int(c.shift)}, v88", f"v_med3_i32 v88, v88, 0, s{sT+6}", "v_cvt_f32_i32 v92, v88", "v_ldexp_f32 v90, v90, v88",
               "v_ldexp_f32 v88, 1.0, v88", f"v_accvgpr_write_b32 a{l0}, v90", f"v_accvgpr_write_b32 a{l0+1}, 0"]
        ops += [f"v_add_f32 v{n+k}, v{n+k}, v92" for k in range(4)]
        ops += [f"v_mul_f32 v{O(dt,qt)+e}, v{O(dt,qt)+e}, v88" for dt in range(8) for e in range(4)]
        gaps = []
        for l in lines[cuts[q]:cuts[q + 1]]:
            if l.startswith(("v_mfma", "v_smfmac")) or not gaps: gaps.append([l])
            else: gaps[-1].append(l)
        cost = lambda g: sum(icost(l) for l in g[1:] if not l.startswith("@")) + (4 if g[0].startswith("v_smfmac") else 0)
        real = [g for g in gaps if g[0].startswith("v_")]
        tot = 4 * len(ops) + sum(cost(g) for g in real); acc_ = 0
        for n_, g in enumerate(real):
            acc_ += cost(g)
            while ops and (acc_ < tot * (n_ + 1) / len(real) - 2 or n_ == len(real) - 1): acc_ += 4; g.append(ops.pop(0))
        out += sum(gaps, [])
    return [f"s_mov_b32 s{sT+6}, -120", "s_setreg_imm32_b32 hwreg(HW_REG_MODE, 4, 2), 3"] + out + ["s_setreg_imm32_b32 hwreg(HW_REG_MODE, 4, 2), 0"]

def resolve_deps(lines):
    return [f"v_cmp_eq_u32 vcc, {l.split()[1]}, {l.split()[1]} ;dep" if l.startswith("@dep") else l for l in lines]

def kernel_A(c):
    ws = WStream(16 if c.ksplit else 32)
    if c.ksplit: del HOLD[12]
    FSP[0] = c.fsplit
    if c.fsplit: HOLD[0], HOLD[1] = HOLD[1], HOLD[0]
    FAKE[0] = c.fakew; WFL[:] = [c.woflags, c.wqflags]
    if c.chain2 and c.adj and not c.ksplit:
        for p, pr in enumerate(make_pairs(c)):
            for h, n in enumerate(pr): SIG[n] = 2 * p + h if c.adj == 1 else (p & 3) + 4 * h + 8 * (p >> 2)
    early, att, late = attention(c, ws)
    L = gemm1(c) + ["@stamp gemm_end rt"] + epi1(c) + head(c, early) + ["@stamp loop_start rt", "L_attn:"] + att
    L += ["@stamp loop_end rt"] + tail1(c, ws)
    if late:
        late = late[0] + tail1(c, late[1], True), late[1]
        assert late[1].__dict__ == ws.__dict__
    L += tail2(c, ws)
    L, _, _ = auto_wait(resolve_deps([l.strip() for l in L]))
    L = fix_hazards(L)
    LB = []
    if c.trace:
        for t in salu_trace(L, {"s2": c.trace[0], "rfl": c.trace[1]}): print(t, file=sys.stderr)
    pos = {int(l.split()[1]): i for i, l in enumerate(L) if l.startswith("@seg")}
    k0, k1 = 1, 29
    core = lambda l: l.split()[0] if l.startswith("@") else l.split(";")[0].strip()
    def split(ls):
        out = []; w = {}
        for l in ls:
            if l.startswith("s_waitcnt"):
                for n_, v in _w.findall(l): w[n_] = min(int(v), w.get(n_, 99))
            else: out.append((l, w)); w = {}
        assert not w
        return out
    V = L; first = True
    while True:
        pos = {int(l.split()[1]): i for i, l in enumerate(V) if l.startswith("@seg")}
        trips = [split(V[pos[k]:pos[k + 4]]) for k in range(k0, k1, 4)]
        for t in trips: assert [core(x[0]) for x in t] == [core(x[0]) for x in trips[2]]
        W = []
        for col in zip(*(trips[2:3] if first else trips)):
            w = {}
            for _, x in col:
                for n_, v in x.items(): w[n_] = min(v, w.get(n_, 99))
            W.append(w)
        first = False
        U = V[:pos[k0]]
        for t in trips:
            for (l, _), w in zip(t, W):
                if w: U.append("s_waitcnt " + " ".join(f"{n_}({v})" for n_, v in sorted(w.items(), reverse=True)))
                U.append(l.replace("@chk", "@waitvm"))
        U += [l.replace("@chk", "@waitvm") for l in V[pos[k1]:]]
        V = auto_wait(U, keep=True)[0]
        if [l for l in V if not l.startswith("@")] == [l for l in U if not l.startswith("@")]: break
    L = V
    if late:
        ic, ib = V.index("@cut"), V.index("L_bar1:")
        W_ = auto_wait([l.replace("@chk", "@waitvm") for l in V[:ic + 1]] + resolve_deps([l.strip() for l in late[0]]), keep=True)[0]
        assert [l for l in W_[:W_.index("@cut")] if not l.startswith("@")] == [l for l in V[:ic] if not l.startswith("@")]
        W_ = fix_hazards(W_[W_.index("@cut") - 40:]); W_ = W_[W_.index("@cut") + 1:]
        full = V[:ic + 1] + W_ + V[ib:]
        assert auto_wait(full)[0] == full
        full = [l for l in full if not l.endswith(";dep")]
        assert not check_hazards(full) and not check_dead_loads(full), (check_hazards(full)[:3], check_dead_loads(full)[:3])
        L = V[:ib] + ["s_branch L_bar1", "L_late:"] + [l for l in W_ if not l.startswith("@stamp")] + V[ib:]
    V = [l for l in V if not l.endswith(";dep")]
    assert not check_hazards(V), check_hazards(V)[:5]
    assert not check_dead_loads(V), check_dead_loads(V)[:5]
    if c.recenter and c.rcw:
        i0 = [i for i, l in enumerate(V) if l == "@rc 0"][1]; i1 = V.index("L_rc_back:", i0)
        alt = fix_hazards(V[i0 - 40:i0] + ["@alt"] + recenter_woven(c, V[i0:i1])); alt = alt[alt.index("@alt") + 1:]
        full = V[:i0] + alt + V[i1:]
        assert auto_wait(full)[0] == full and not check_hazards(full) and not check_dead_loads(full)
        LB += ["L_rc_a:"] + [l for l in alt if not l.startswith("@")] + ["s_branch L_rc_back", "L_rc_end:"]
    L = [l for l in L if not l.endswith(";dep")]
    pos = {int(l.split()[1]): i for i, l in enumerate(L) if l.startswith("@seg")}
    body = [core(l) for l in L[pos[9]:pos[13]] if not l.startswith("@")]
    im = [i for i, l in enumerate(body) if l.startswith("v_mfma")]
    j = max(i for i, l in enumerate(body) if l.startswith(("s_add", "s_min", "s_mul", "s_xor", "s_lshl", "s_cmp", "s_csel", "s_and", "s_bitcmp")))
    cand = [i for i in im if i > j and not body[i + 1].startswith("s_")]
    body.insert(cand[1] + 1, f"s_cmp_lg_u32 s{sLOOP}, 0"); body.insert(cand[0] + 1, f"s_sub_u32 s{sLOOP}, s{sLOOP}, 1")
    if c.tripstamp: body = ["s_memrealtime s[96:97]", f"s_add_u32 s98, s{sLOOP}, 54", "s_waitcnt lgkmcnt(0)", "s_mov_b32 m0, s98", f"v_writelane_b32 v{VDG}, s96, m0"] + body
    out = L[:pos[k0]] + ["@seg 1", "L_loop:"] + body + ["s_cbranch_scc1 L_loop", "L_loop_end:"] + L[pos[k1]:]
    a = Asm()
    a("s_cmp_ge_u32 s2, 256\ns_cbranch_scc1 L_endA")
    if c.scr == 1: a("s_lshr_b32 s3, s2, 3\ns_and_b32 s3, s3, 7\ns_xor_b32 s2, s2, s3\ns_lshr_b32 s3, s2, 6\ns_xor_b32 s2, s2, s3")
    if c.scr == 2: a("s_and_b32 s3, s2, 7\ns_lshl_b32 s3, s3, 3\ns_bfe_u32 s4, s2, 0x30003\ns_and_b32 s2, s2, 0xc0\ns_or_b32 s2, s2, s3\ns_or_b32 s2, s2, s4")
    stamp = Stamps()
    stamp(c, a, "start", True)
    for l in out:
        if l.startswith("@stamp"): stamp(c, a, l.split()[1], len(l.split()) > 2)
        elif l.startswith("@seg"): stamp(c, a, "seg" + l.split()[1], l.split()[1] in ("1", "29"))
        elif l.startswith("@"): continue
        else: a(l.split(";tag")[0].rstrip())
    if c.diag:
        stamp(c, a, "final"); a("s_waitcnt vmcnt(0)"); stamp(c, a, "end", True); stamp.out(c, a, WS_ST, sWS, sW)
    if c.probe:
        stamp(c, a, "end")
        a(f"""s_nop 1
v_readlane_b32 s52, v{VDG}, 0
v_readlane_b32 s53, v{VDG}, 1
s_memrealtime s[96:97]
s_waitcnt lgkmcnt(0)
s_sub_u32 s52, s53, s52
s_mul_i32 s52, s52, 4
s_min_u32 s52, s52, 100000
s_mov_b32 s53, s96
L_probe:
s_memrealtime s[96:97]
s_waitcnt lgkmcnt(0)
s_sub_u32 s54, s96, s53
s_cmp_lt_u32 s54, s52
s_cbranch_scc1 L_probe""")
    a("L_endA:\ns_endpgm")
    if c.recenter and not c.rcw: LB += fix_hazards(recenter(c))
    for n_, l in enumerate(body):
        if l.startswith(("s_cmp", "s_bitcmp")):
            for m_ in body[n_ + 1:] + ["s_cbranch"]:
                if m_.startswith(("s_cbranch", "s_cselect")): break
                assert not m_.startswith(("s_add", "s_sub", "s_min", "s_lshl", "s_xor", "s_and", "s_cmp", "s_bitcmp")), (l, m_)
    for l in LB: a(l.split(";tag")[0].rstrip())
    for l in spin("st", ST_LOAD, CNT_OK, "L_ok_st") + spin("cnt", CNT_LOAD, CNT_OK, "L_ok_cnt") + spin("fl", FL_LOAD.replace("sc1", c.pollflags), FL_OK, "L_ok_fl", c.slp) + (spin("f2", F2_LOAD, FL_OK, "L_ok_f2", c.slp) if c.ksplit else []) + (spin("f3", F2_LOAD, FL_OK, "L_ok_f3") if c.fsplit else []): a(l)
    for l in fix_hazards([l.strip() for l in fallback(c, early)]): a(l.split(";tag")[0].rstrip())
    a("L_last:\ns_endpgm")
    return a.lines
import re
_w = re.compile(r"(vmcnt|lgkmcnt)\((\d+)\)")

HEADER = """; out = x + (softmax(LN(x) wq K^T / sqrt(128)) V wo) * silu(gelu(LN(x) w1 + b1) w2 + b2), one launch, 256 workgroups of 4 waves.
; Kernarg (104 bytes, s[0:1]): 0 A_x, 8 A_k_cache, 16 A_v_cache, 24 A_wq, 32 A_wo, 40 B_x (unused by the reference), 48 B_w1,
;     rstd * (acc - mean * colsum(W)). Each workgroup computes mean / rstd of 8 rows and hands them over through d_ws.
;     maximum: the maximum over the first 64 keys, moved once to the row sum reached so far (exact power-of-two rescale), placed
;     normal number the workgroup computes the true row maxima (L_fallback) and runs the attention again with them.
;  4. O goes to d_ws. Every workgroup owns a 64x64 output tile; two workgroups (ids b, b^4) split K of h w2 and of O wo: each computes
; Hand-offs between workgroups: write-through stores, s_waitcnt, barrier, then a counter in d_debug or a flag word in d_ws that
;   its owner cleared before that counter was raised; readers poll (bounded) and load with sc1.
; The s_cbranch_execz behind each 4 KB page start is never taken in normal flow: a visit with EXEC = 0 (branches only) fetches
;   those code lines ahead of time."""

def gen(c):
    A = kernel_A(c)
    a = Asm()
    k = NAME + "_kernel"
    a(HEADER)
    a(f"; @launch grid=(256,1,1) block=(256,1,1) lds={LDS_A}")
    a('.amdgcn_target "amdgcn-amd-amdhsa--gfx950"\n.text')
    if c.hop: a(".p2align 12")
    a(f".globl {k}\n.p2align 8\n.type {k},@function\n{k}:")
    a.lines += [re.sub(r"(?<=\S)  +", " ", l) for l in A if l.strip() != ";"]
    a('.section .rodata,"a"\n.p2align 6')
    a(kdesc(k, 512, 256))
    if c.hop:
        rc = ["L_rc_a", ("L_rc_a", "L_rc_end") if c.rcw else "L_rc_b"] if c.recenter else []
        mid = "L_bar1" if c.stagger else "L_hoq_back"
        ses = [("L_hoq", mid, "L_endA", [mid] if c.stagger else [])]
        if c.hop0: ses += [("L_hop", "L_hop_back", c.hop0, rc[c.hop0rc:]), ("L_hoo", c.hop0, mid, rc[:c.hop0rc] + (["L_late"] if c.stagger else []))]
        else: ses += [("L_hop", "L_hop_back", "L_hoq_back", rc)]
        t, n = page_hooks(a.text(), c.align, ses)
        print("page hooks", n, file=sys.stderr)
        return t
    return align8(a.text(), c.align) if c.align else a.text()

if __name__ == "__main__":
    kw = {}
    for s in sys.argv[2:]:
        k, v = s.split("=", 1); kw[k] = eval(v)
    open(sys.argv[1], "w").write(gen(Cfg(**kw)))
```

```python
import sys, math, copy
from asmlib import *
NAME = "recurrent_scan__gqa_block_cached__dense_activation_gelu__prompt"
M16 = "v_mfma_f32_16x16x32_bf16"
SMF = "v_smfmac_f32_16x16x64_bf16"

class Cfg:
    diag = False
    shift = 102.0
    SM0 = 8
    BAR = 29
    pvorder = "bshare"
    stflags = "sc1"
    ldflags = "sc1"
    NR = 16
    DO0 = 3
    ND = 8
    chain2 = True
    DU = 6
    DU0 = 6
    LL0 = 2
    LLS = 3
    adj = 1
    zig = 1
    gzig = 0
    WPS = 2
    DO = 3
    rot = 0
    rot2 = 5
    touch = 'wo'
    fakew = False
    fakeo = False
    kvflags = 'nt'
    fwflags = ''
    fhflags = 'sc1'
    FPOS = (47, 95)
    MG = 6
    align = 3
    HB = 2
    scr = 0
    tlb = 0
    rotw = 0
    PADR = 1024
    early_gate = True
    NP0 = 0
    K3E = 1
    denorm = True
    GB = 0
    FWE = 1
    FHT = 1
    side_late = 0
    side = []
    SLP = 6
    epoll = 0
    NEW = ((-9, -4, 4, 12, 22), (-9, -1, 7, 14, 22), (-9, -1, 16, 23, 31))
    ksplit = True
    split_bar = True
    NB2 = 7
    NB3 = 2
    f2s = False
    xbf = True
    fsplit = True
    XP3, XC3, XG3 = 100, 160, 215
    early_x = False
    lean = 3
    NL1 = 4
    xtouch = False
    FLS = 7
    KHF = 1
    CL = 2
    DF = 12
    NPOLL = -1
    XB1, XPL, XCK = 64, 128, 180
    l2end = 28
    pollall = False
    rcw = False
    tripstamp = False
    SORD = 0
    HLW = ((0, 10), (8, 24), (37, 46), (44, 56))
    fold = False
    WSK = 99
    tmap = 1
    PADW = 0
    rotx = 7
    probe = None
    last_h = None
    estonly = False
    DPOS = 56
    DSP = 4
    H30W = ((0, 30), (52, 66), (60, 76))
    H31W = ()
    HSP = 3
    NE = 3
    RS = 0
    H31 = 2
    NB1 = 0
    force_fallback = False
    trace = None
    nostamp = ('b3', 'b4', 'b5')
    codepf = True
    codepf2 = True
    GBAR = 14
    GBAR8 = 26
    STB = 6
    sat = 0
    woflags = ''
    wqflags = ''
    pg = 0
    ipg = 0
    hop = 20
    hop0 = 'L_loop_end'
    hop0rc = 1
    hopend = 'L_endA'
    palign = False
    XFULL = 9
    XFIRST = 1
    GSP0 = 4
    RSC = 16
    smtest = 0
    K2 = 1
    TP = 1
    RSPOS = 0
    GLO = 4
    G0 = 4
    nofb = False
    slp = 0
    recenter = 1 << 6
    l2n = 0
    stagger = 0
    NLATE = 10
    flagmode = 'store'
    pollflags = 'sc1'
    outflags = 'sc1'
    GSP = 4
    def __init__(self, **kw):
        for k, v in kw.items():
            assert hasattr(self, k), k
            setattr(self, k, v)

WS_O = 0x2000000
WS_H = 0x1000000
H_RT = 43 * 4096
WS_FL = 0x1800000
WS_RS = 0x1810000
WS_F2 = 0x1804000
WS_X = 0x1900000
WS_ST = 0x8000000
NS = 4
KSLOT = 16416; VCH = 4128; VSLOT = 4 * VCH
VBASE = NS * KSLOT
XBASE = KSLOT; XSLOT = 32832
WCH = 6176; WSLOT = 4 * WCH
WBASE = VBASE + VSLOT
CWBASE = WBASE + 3 * WSLOT
FLBASE = CWBASE + 768
LDS_A = FLBASE + 64
assert XBASE + XSLOT + 32768 <= WBASE and XBASE + XSLOT >= 3 * KSLOT and LDS_A <= 163840 and VBASE + NS * VSLOT <= LDS_A
VK, VV, VD, VIDX, VOA, VOB = 2, 3, 4, 5, 6, 7
SMA = 8
VDW, VL, VFE, VFO = 12, 13, 14, 15
NEGM = 16; S0 = 32; P0 = 48; O0 = 128; VXT = 96
FA = 64
VRA = 80
VPA, VONE, VPD, VDG = 86, 87, 1, 95
VX0, VX1, VXR, VWQ, VW1, VWR, VCQ, VCF, VC0, VC1, VCR, VH1 = range(16, 28)
B1F = 32; SX = 48
def S(n, i): return S0 + 4 * i if n >= 4 else O(i, n)
def P(n): return P0 + (n & 1) * 8
def O(dt, qt): return O0 + (dt * 4 + qt) * 4
def ACC(T, qt): return O0 + (T * 4 + qt) * 4 if T < 8 else 96 + ((T - 8) * 4 + qt) * 4 if T < 10 else 64 + ((T - 10) * 2 + qt) * 4
def Q(qt, ks): return (qt * 4 + ks) * 4
def KF(i, ks): return 64 + (i * 4 + ks) * 4
NVX = 2
def VF(T, u, dt): return ("v", VXT + (u * NVX + dt) * 4) if (T & 1 and dt < NVX) else ("a", 128 + u * 32 + dt * 4)
def rr(kb, n, o=0): return vr(kb[1] + o, n, kb[0])
def LA(qt): return 192 + qt * 4
def XF(kb, qt, s): return (kb & 1) * 32 + qt * 8 + s * 4
NWR = 6
def WF(n, s): return 128 + (n % NWR) * 8 + s * 4
def CF(j, s): return 64 + j * 8 + s * 4
CWA = 88
sK, sV, sWS, sX, sWQ, sF0, sF1, sDBG = 4, 8, 12, 16, 20, 24, 28, 32
sW, sHEAD, sQB, sPAR, sKM, sVM, sVO, sLOOP, sROT, sKO, sXM, sWM, sP0, sP1, sTRY, sSH = range(36, 52)
sT = 52
sWO, sXX, sW2, sOUT, sB2 = 60, 64, 68, 72, 76
sRO, sFM, sKW, sOB, sHB, sFW, sFH, sHS0, sHS1, sFLO = range(80, 90)
sGX = 3
sRT = 101; sCT = sP1
sXA, sXB = 94, 95
sTO, sTC = 94, 95; VTO = 112; sPF = sF0
sRC = 93; VCP = 94; sOS = 100
sOP = sF0
sOL, sOT = sX, sWQ
XB = VBASE + 4 * VSLOT
XT = XB + VSLOT
assert XT + 8192 <= FLBASE
def srd(b): return f"s[{b}:{b+3}]"

class Stamps:
    def __init__(self): self.names = []; self.rt = []
    def __call__(self, c, a, name, rt=False):
        if c.probe and name in c.probe:
            a(f"s_memrealtime s[96:97]\ns_waitcnt lgkmcnt(0)\nv_writelane_b32 v{VDG}, s96, {c.probe.index(name)}")
        if not c.diag or name in c.nostamp: return
        i = len(self.names); self.names.append(name); assert i < 40, name
        a(f"s_memtime s[96:97]\ns_waitcnt lgkmcnt(0)\nv_writelane_b32 v{VDG}, s96, {i}")
        if rt:
            a(f"s_memrealtime s[96:97]\ns_waitcnt lgkmcnt(0)\nv_writelane_b32 v{VDG}, s96, {40+len(self.rt)}"); self.rt.append(name)
    def out(self, c, a, base, ws, wave):
        if not c.diag: return
        a(f"""s_lshl_b32 s{sT}, s2, 2
s_add_u32 s{sT}, s{sT}, s{wave}
s_lshl_b32 s{sT}, s{sT}, 8
s_add_u32 s{sT}, s{sT}, {base}
v_lshlrev_b32 v1, 2, v0
buffer_store_dword v{VDG}, v1, {srd(ws)}, s{sT} offen""")

def mk_srd(a, d, lo, hi, off, size):
    if off is None: a(f"s_mov_b32 s{d}, s{lo}\ns_mov_b32 s{d+1}, s{hi}")
    else: a(f"s_add_u32 s{d}, s{lo}, {off}\ns_addc_u32 s{d+1}, s{hi}, 0")
    a(f"s_mov_b32 s{d+2}, {size}\ns_mov_b32 s{d+3}, 0x20000")

L3, L23, L4 = 28, 29, 30
RSV = 48
def setup_A(c):
    a = Asm()
    a(f"""s_load_dwordx16 s[64:79], s[0:1], 0
s_load_dwordx8 s[80:87], s[0:1], 64
s_load_dwordx2 s[88:89], s[0:1], 96
s_getpc_b64 s[90:91]
L_pc:
s_lshr_b32 s{sT}, s2, 3
s_lshl_b32 s{sT}, s{sT}, 11
v_lshrrev_b32 v{VCP}, 4, v0
v_lshl_add_u32 v{VCP}, v{VCP}, 7, s{sT}
v_min_u32 v{VCP}, L_last-L_pc, v{VCP}
global_load_dword v255, v{VCP}, s[90:91]
v_lshrrev_b32 v1, 6, v0
v_and_b32 v0, 63, v0
s_and_b32 s{sGX}, s2, 7
v_readfirstlane_b32 s{sW}, v1
s_bfe_u32 s{sQB}, s2, 0x30003
s_lshr_b32 s{sT+1}, s2, 6
s_lshl_b32 s{sHEAD}, s{sGX}, 2
s_add_u32 s{sHEAD}, s{sHEAD}, s{sT+1}
s_and_b32 s{sPAR}, s{sHEAD}, 1
s_xor_b32 s{sROT}, s{sT+1}, s{sQB}
s_and_b32 s{sROT}, s{sROT}, {c.rot}
s_and_b32 s{sT}, s{sGX}, {c.rotx}
s_xor_b32 s{sROT}, s{sROT}, s{sT}
s_lshr_b32 s{sT}, s{sHEAD}, 1
s_mul_i32 s{sT}, s{sT}, 3
s_add_u32 s{sP1}, s{sT}, 1
s_lshl_b32 s{sT+1}, s{sPAR}, 1
s_add_u32 s{sP0}, s{sT}, s{sT+1}
s_add_u32 s{sT+1}, s{sHEAD}, 11
s_cmp_lt_u32 s{sHEAD}, 22
s_cselect_b32 s{sP0}, s{sP0}, s{sT+1}
s_cselect_b32 s{sP1}, s{sP1}, 0
s_lshl_b32 s{sXM}, s{sW}, 13
s_add_u32 s{sXM}, s{sXM}, {XBASE}
s_mul_i32 s{sWM}, s{sW}, {WCH}
s_add_u32 s{sWM}, s{sWM}, {WBASE}
v_and_b32 v{L3}, 3, v0
v_bfe_u32 v{L23}, v0, 2, 2
v_lshrrev_b32 v{L4}, 4, v0
v_lshlrev_b32 v{VL}, 4, v0
s_lshl_b32 s{sT+2}, s{sQB}, 8
s_lshl_b32 s{sT+3}, s{sHEAD}, 3
s_add_u32 s{sT+2}, s{sT+2}, s{sT+3}
s_lshl_b32 s{sT+3}, s{sW}, 1
s_add_u32 s{sKO}, s{sT+2}, s{sT+3}
s_lshl_b32 s{sT+2}, s{sKO}, 10
v_add_u32 v91, s{sT+2}, v{VL}
v_and_b32 v1, 1, v{L4}
v_lshlrev_b32 v1, 1, v1
v_xor_b32 v1, v1, v{L3}
v_lshlrev_b32 v{VDW}, 4, v1
v_lshrrev_b32 v31, 2, v0
v_lshl_add_u32 v{VX0}, v31, 10, v{VDW}
s_bfe_u32 s{sT}, s{sHEAD}, 0x10001
s_lshl_b32 s{sT+1}, s{sT}, 14
v_add_u32 v{VX0}, s{sT+1}, v{VX0}
v_xor_b32 v{VX1}, 0x4000, v{VX0}
s_lshl_b32 s{sT}, s{sT}, 11
s_add_u32 s{sXA}, s{sXM}, s{sT}
s_xor_b32 s{sT}, s{sT}, 0x800
s_add_u32 s{sXB}, s{sXM}, s{sT}
s_lshl_b32 s{sT}, s{sW}, 3
v_add_u32 v1, s{sT}, v{L23}
v_lshlrev_b32 v31, 4, v{L3}
v_lshl_add_u32 v{VD}, v{L4}, 6, v31
v_lshl_add_u32 v{VWQ}, v1, 13, v{VD}
v_lshrrev_b32 v{VW1}, 5, v0
v_lshl_add_u32 v1, v{VW1}, 5, v1
v_and_b32 v{VW1}, 1, v{L4}
v_lshl_add_u32 v1, v{VW1}, 2, v1
v_mul_u32_u24 v1, 2752, v1
v_add_u32 v{VW1}, v1, v31
s_lshl_b32 s{sT}, s{sQB}, 2
s_add_u32 s{sT+1}, s{sT}, s{sW}
s_lshl_b32 s{sT}, s{sT+1}, 16""")
    a("s_waitcnt lgkmcnt(0)")
    a("@stamp karg")
    if c.tlb:
        a(f"""s_load_dword s101, s[70:71], 0
s_load_dword s101, s[76:77], 0
s_mov_b32 s{sT+1}, {WS_RS + 0x8000}
s_load_dword s101, s[88:89], s{sT+1}
s_load_dword s101, s[78:79], 0
s_load_dword s101, s[86:87], 0
s_mov_b32 s{sT+1}, 0x200000
s_load_dword s101, s[70:71], s{sT+1}""")
    mk_srd(a, sX, 64, 65, f"s{sT}", 65536)
    L = a.lines + flat(dma_x(0)[:2])
    a = Asm()
    a(f"s_lshl_b32 s{sT}, s{sHEAD}, 8")
    mk_srd(a, sWQ, 70, 71, f"s{sT}", 512 * 8192 - 8192 + 256)
    a(f"s_lshl_b32 s{sT}, s{sP0}, 6")
    mk_srd(a, sF0, 76, 77, f"s{sT}", 512 * 2752 - 2752 + 64)
    a(f"s_lshl_b32 s{sT}, s{sP1}, 6")
    mk_srd(a, sF1, 76, 77, f"s{sT}", 512 * 2752 - 2752 + 64)
    a(f"s_cmp_lt_u32 s{sHEAD}, 22\ns_cselect_b32 s{sF1+2}, s{sF1+2}, 0\ns_mov_b64 s[98:99], s[64:65]")
    return L + a.lines + flat(dma_w(0))

B1R = [96, 98, 60, 62]
def side_loads():
    return [([], f"global_load_dwordx4 {vr(RSV+4*i,4)}, v91, s[98:99] offset:{i*1024}") for i in range(2)] + \
           [([], f"global_load_dwordx2 {vr(B1R[i],2)}, v{88 + i//2}, s[92:93] offset:{(i&1)*32}") for i in range(4)]

def setup_A2(c):
    a = Asm()
    a(f"""; b1 (D layout): 4 bf16 at (pair*32 + 16a + 4g)
s_lshl_b32 s{sT}, s{sP0}, 6
s_lshl_b32 s{sT+1}, s{sP1}, 6
v_lshl_add_u32 v88, v{L4}, 3, s{sT}
v_lshl_add_u32 v89, v{L4}, 3, s{sT+1}
s_mov_b64 s[92:93], s[78:79]
s_lshl_b32 s{sT}, s{sHEAD}, 19""")
    if c.SORD >= 1:
        for l in flat(side_loads()[2:]): a(l)
    if c.SORD == 2:
        for l in flat(side_loads()[:2]): a(l)
    mk_srd(a, sK, 66, 67, f"s{sT}", 0x80000)
    mk_srd(a, sV, 68, 69, f"s{sT}", 0x80000)
    mk_srd(a, sWS, 88, 89, None, 0x10000000)
    mk_srd(a, sDBG, 86, 87, None, 256)
    if c.ksplit: a(f"""s_and_b32 s{sRT}, s{sHEAD}, 15
s_lshl_b32 s{sRT}, s{sRT}, 1
s_lshr_b32 s{sT+7}, s{sHEAD}, 4
s_add_u32 s{sRT}, s{sRT}, s{sT+7}
s_mov_b32 s{sT+7}, s{sQB}
s_lshr_b32 s{sGX}, s{sRT}, 2""")
    elif c.tmap == 0: a(f"s_mov_b32 s{sRT}, s{sHEAD}\ns_mov_b32 s{sT+7}, s{sQB}")
    else: a(f"""s_and_b32 s{sRT}, s{sHEAD}, 24
s_add_u32 s{sRT}, s{sRT}, s{sQB}
s_and_b32 s{sT+7}, s{sHEAD}, 7
s_lshr_b32 s{sGX}, s{sRT}, 2""")
    a(f"s_lshl_b32 s{sT}, s{sT+7}, 7")
    mk_srd(a, sWO, 72, 73, f"s{sT}", 4096 * 1024 - 896)
    mk_srd(a, sW2, 80, 81, f"s{sT}", 1376 * 1024 - 896)
    mk_srd(a, sB2, 82, 83, f"s{sT}", 128)
    a(f"s_lshl_b32 s{sT+1}, s{sRT}, 16\ns_add_u32 s{sT+1}, s{sT+1}, s{sT}")
    mk_srd(a, sXX, 64, 65, f"s{sT+1}", 65536 - 896)
    mk_srd(a, sOUT, 84, 85, f"s{sT+1}", 65536 - 896)
    T = 31
    a(f"""s_lshr_b32 s{sRO}, s2, 6
s_lshl_b32 s{sRO}, s{sRO}, 1
s_xor_b32 s{sRO}, s{sRO}, s{sQB}
s_and_b32 s{sRO}, s{sRO}, {c.rot2}
s_and_b32 s{sT+4}, s{sW}, {c.rotw}
s_xor_b32 s{sRO}, s{sRO}, s{sT+4}
s_lshl_b32 s{sKW}, s{sW}, {4 if c.ksplit else 5}
s_and_b32 s{sT+4}, s{sRT}, {1 if c.ksplit else 0}
s_xor_b32 s{sT+4}, s{sT+4}, {c.KHF if c.ksplit else 0}
s_lshl_b32 s{sT+4}, s{sT+4}, 6
s_add_u32 s{sKW}, s{sKW}, s{sT+4}
s_lshl_b32 s{sT+4}, s{sW}, 10
s_add_u32 s{sFM}, s{sT+4}, {XB}
s_lshl_b32 s{sOB}, s{sW}, 12
s_add_u32 s{sRO}, s{sRO}, s{sKW}
s_lshr_b32 s{sT+5}, s{sRO}, 2
s_lshl_b32 s{sT+5}, s{sT+5}, 14
s_add_u32 s{sOB}, s{sOB}, s{sT+5}
s_and_b32 s{sT+5}, s{sRO}, 3
s_lshl_b32 s{sT+5}, s{sT+5}, 10
s_add_u32 s{sOB}, s{sOB}, s{sT+5}
s_lshl_b32 s{sRO}, s{sRO}, 15
s_lshl_b32 s{sOS}, s{sHEAD}, 1
s_add_u32 s{sOS}, s{sOS}, s{sPAR}
s_lshl_b32 s{sOS}, s{sOS}, 13
s_mul_i32 s{sHB}, s{sRT}, {H_RT}
s_add_u32 s{sHB}, s{sHB}, s{sT+4}
s_add_u32 s{sHB}, s{sHB}, {WS_H}
s_lshl_b32 s{sT+4}, s{sQB}, 2
s_add_u32 s{sT+4}, s{sT+4}, s{sW}
s_mul_i32 s{sT+4}, s{sT+4}, {H_RT}
s_add_u32 s{sT+4}, s{sT+4}, {WS_H}
s_lshl_b32 s{sHS0}, s{sP0}, 12
s_add_u32 s{sHS0}, s{sHS0}, s{sT+4}
s_lshl_b32 s{sHS1}, s{sP1}, 12
s_add_u32 s{sHS1}, s{sHS1}, s{sT+4}
s_lshl_b32 s{sFLO}, s{sQB}, {c.FLS + 3}
s_lshr_b32 s{sT+4}, s{sHEAD}, 2
s_lshl_b32 s{sT+4}, s{sT+4}, {c.FLS}
s_add_u32 s{sFLO}, s{sFLO}, s{sT+4}
s_and_b32 s{sT+4}, s{sHEAD}, 3
s_lshl_b32 s{sT+4}, s{sT+4}, 2
s_add_u32 s{sFLO}, s{sFLO}, s{sT+4}
s_add_u32 s{sFLO}, s{sFLO}, {WS_FL}
s_lshr_b32 s{sT+4}, s{sW}, 1
s_lshl_b32 s{sT+4}, s{sT+4}, 4
s_lshl_b32 s{sKM}, s{sW}, 12
s_add_u32 s{sKM}, s{sKM}, s{sT+4}
s_mul_i32 s{sVM}, s{sW}, {VCH}
s_add_u32 s{sVM}, s{sVM}, {VBASE}
s_mov_b32 s{sTRY}, 0
s_mov_b32 s{sCT}, s{sT+7}
s_mov_b32 s{sSH}, {f2u(c.shift)}
@pg1
v_lshl_add_u32 v{VD}, v{L23}, 8, v{VD}
s_lshl_b32 s{sT+4}, s{sW}, 12
v_add_u32 v{VD}, s{sT+4}, v{VD}
v_and_b32 v1, 1, v{L23}
v_lshlrev_b32 v1, 1, v1
v_xor_b32 v1, v1, v{L4}
v_lshlrev_b32 v1, 4, v1
v_and_b32 v{T}, 15, v0
v_lshl_add_u32 v1, v{T}, 6, v1
v_add_u32 v{VXR}, s{sXM}, v1
s_lshl_b32 s{sT+4}, s{sW}, 7
s_add_u32 s{sT+4}, s{sT+4}, {CWBASE}
s_lshl_b32 s{sT+5}, s{sW}, 6
s_add_u32 s{sT+5}, s{sT+5}, {CWBASE+512}
v_lshl_add_u32 v{VC0}, v{T}, 2, s{sT+4}
v_lshl_add_u32 v{VC1}, v{T}, 2, s{sT+5}
v_lshlrev_b32 v{VCR}, 4, v{L4}
v_add_u32 v{VCR}, {CWBASE}, v{VCR}
s_lshl_b32 s{sT+4}, s{sPAR}, 8
v_lshl_add_u32 v92, v{T}, 3, s{sT+4}
v_xor_b32 v93, 0x100, v92
v_lshlrev_b32 v1, 3, v{L3}
v_lshl_add_u32 v1, v{L23}, 6, v1
v_mul_u32_u24 v{VWR}, {WCH}, v{L4}
v_add_u32 v{VWR}, v{VWR}, v1
v_add_u32 v{VWR}, {WBASE}, v{VWR}
v_mul_u32_u24 v{VV}, {VCH}, v{L4}
v_add_u32 v{VV}, v{VV}, v1
v_add_u32 v{VV}, {VBASE}, v{VV}
s_lshl_b32 s{sT+4}, s{sW}, 8
v_add_u32 v{VCQ}, s{sT+4}, v{VWR}
s_lshr_b32 s{sT+4}, s{sW}, 1
s_lshl_b32 s{sT+4}, s{sT+4}, 10
s_and_b32 s{sT+5}, s{sW}, 1
s_lshl_b32 s{sT+5}, s{sT+5}, 5
s_add_u32 s{sT+4}, s{sT+4}, s{sT+5}
v_add_u32 v{VCF}, s{sT+4}, v{VWR}
; wo / w2 transposed read: (g>>1)*1024 + (g&1)*256 + rk*64 + c*8 + ((ct&1)^(g&1))*32
v_lshrrev_b32 v{T}, 1, v{L4}
v_lshl_add_u32 v1, v{T}, 10, v1
v_lshl_add_u32 v{VDW}, v{T}, 6, v{VDW}
v_and_b32 v{T}, 1, v{L4}
v_lshl_add_u32 v1, v{T}, 8, v1
v_lshl_add_u32 v1, v{T}, 5, v1
v_xor_b32 v{T}, 32, v1
v_add_u32 v{VRA}, s{sKM}, v1
v_add_u32 v{VRA+1}, s{sKM}, v{T}
v_add_u32 v{VRA+2}, s{sVM}, v1
v_add_u32 v{VRA+3}, s{sVM}, v{T}
v_add_u32 v{VRA+4}, {4*VSLOT}, v{VRA+2}
v_add_u32 v{VRA+5}, {4*VSLOT}, v{VRA+3}
v_add_u32 v{VFE}, {XB}, v1
v_add_u32 v{VFO}, {XB}, v{T}
; wo / w2 DMA voffset: row r8=(l>>2)&7 (stride 1024), half = l>>5 (64B), chunk (l&3)^(2*(r8>>2))
v_bfe_u32 v{T}, v0, 2, 3
v_lshl_add_u32 v{VDW}, v{T}, 10, v{VDW}
v_and_b32 v{VPA}, {31 if c.pollall else 3 if c.ksplit else 7}, v0
v_lshlrev_b32 v{VPA}, 2, v{VPA}
v_lshrrev_b32 v1, 1, v{L23}
v_lshlrev_b32 v1, 4, v1
v_lshl_add_u32 v1, v{L23}, 12, v1
v_lshl_add_u32 v1, v{L3}, 6, v1
v_and_b32 v{VK}, 1, v{L4}
v_lshl_add_u32 v1, v{VK}, 5, v1
v_lshrrev_b32 v{VK}, 1, v{L4}
v_lshl_add_u32 v{VK}, v{VK}, 4, v1
; store voffsets (workgroups without an extra FFN pair send those stores out of range)
s_lshl_b32 s{sT+4}, s{sPAR}, 11
v_add_u32 v{VOA}, s{sT+4}, v{VL}
v_xor_b32 v{VOB}, 0x800, v{VOA}
s_cmp_lt_u32 s{sHEAD}, 22
s_cselect_b32 s{sT+4}, 0, 0x10000000
v_add_u32 v{VH1}, s{sT+4}, v{VOA}
v_or_b32 v1, s{sW}, v0
v_cmp_eq_u32 vcc, 0, v1
v_mov_b32 v1, 0x10000000
v_cndmask_b32 v{VONE}, v1, 0, vcc
; row-sum operand: ones in rows 0,1 mod 4; index picks k%4 in (0,1) / (2,3)
v_cmp_gt_u32 vcc, 2, v{L3}
v_mov_b32 v1, 0x3f803f80
v_mov_b32 v{T}, 0x44444444
v_cndmask_b32 v{SMA}, 0, v1, vcc
v_cndmask_b32 v{SMA+1}, 0, v1, vcc
v_cndmask_b32 v{SMA+2}, 0, v1, vcc
v_cndmask_b32 v{SMA+3}, 0, v1, vcc
v_cmp_eq_u32 vcc, 1, v{L3}
v_mov_b32 v{VIDX}, 0xeeeeeeee
v_cndmask_b32 v{VIDX}, v{T}, v{VIDX}, vcc""")
    for r in range(12): a(f"v_accvgpr_write_b32 a{CWA+r}, 0")
    for l in attn_init()[:24]: a(l)
    pg = f"""s_xor_b32 s{sT+4}, s{sROT}, 4
s_lshl_b32 s{sT+4}, s{sT+4}, 19
s_cmp_lt_u32 s{sW}, 2
s_cselect_b64 s[96:97], s[{sWQ}:{sWQ+1}], s[{sWS}:{sWS+1}]
s_cselect_b32 s{sT+4}, s{sT+4}, s{sHS0}
v_mov_b32 v252, s{sT+4}
global_load_dword v253, v252, s[96:97] sc1
s_cselect_b64 s[96:97], s[{sK}:{sK+1}], s[{sV}:{sV+1}]
v_mov_b32 v252, 0
global_load_dword v254, v252, s[96:97]""".split("\n") if c.pg & 1 else []
    i_ = next(i for i, l in enumerate(a.lines) if l.strip() == "@pg1")
    a.lines[i_:i_ + 1] = pg
    if c.tlb > 1:
        for d, off in ((sK, 0), (sV, 0), (sWS, f"s{sHS0}"), (sB2, 0), (sW2, 0), (sWS, f"s{sHB}"), (sWO, f"s{sRO}"), (sWS, f"s{sOS}"), (sWS, f"s{sOB}"), (sOUT, 0), (sXX, 0)):
            a(f"s_load_dword s101, s[{d}:{d+1}], {off}")
    return a.lines

def stat_stores(c):
    return [([], f"buffer_store_dwordx2 v[88:89], v1, {srd(sWS)}, s{sKO} offen sc1 ;tag=sst"),
            ([], f"buffer_store_dword v91, v{VONE}, {srd(sWS)}, s{sFLO} offen sc1 ;tag=sst")] + \
           ([([f"s_lshl_b32 s{sT}, s2, 7", f"s_add_u32 s{sT}, s{sT}, {WS_F2}"], f"buffer_store_dword v91, v{VONE}, {srd(sWS)}, s{sT} offen sc1 ;tag=sst")] if c.ksplit else [])
def row_stats(c):
    a = Asm()
    s0, s1, q0, q1 = RSV + 8, RSV + 9, RSV + 10, RSV + 11
    a(f"v_mov_b32 v{s0}, 0\nv_mov_b32 v{s1}, 0\nv_mov_b32 v{q0}, 0\nv_mov_b32 v{q1}, 0\nv_mov_b32 v1, 0x3f803f80")
    for e in range(4):
        a(f"v_dot2c_f32_bf16 v{s0}, v{RSV+e}, v1\nv_dot2c_f32_bf16 v{q0}, v{RSV+e}, v{RSV+e}")
        a(f"v_dot2c_f32_bf16 v{s1}, v{RSV+4+e}, v1\nv_dot2c_f32_bf16 v{q1}, v{RSV+4+e}, v{RSV+4+e}")
    a(f"""s_nop 2
v_permlane32_swap_b32 v{s0}, v{s1}
v_permlane32_swap_b32 v{q0}, v{q1}
v_add_f32 v{s0}, v{s0}, v{s1}
v_add_f32 v{q0}, v{q0}, v{q1}
v_mov_b32 v{s1}, v{s0}
v_mov_b32 v{q1}, v{q0}
v_permlane16_swap_b32 v{s0}, v{s1}
v_permlane16_swap_b32 v{q0}, v{q1}
v_add_f32 v{s0}, v{s0}, v{s1}
v_add_f32 v{q0}, v{q0}, v{q1}""")
    for sh in (8, 4, 2, 1):
        a(f"v_add_f32_dpp v{s0}, v{s0}, v{s0} row_ror:{sh} row_mask:0xf bank_mask:0xf\nv_add_f32_dpp v{q0}, v{q0}, v{q0} row_ror:{sh} row_mask:0xf bank_mask:0xf")
    a(f"""v_mul_f32 v88, {f2u(-1/512)}, v{s0}
v_mul_f32 v{q0}, {f2u(1/512)}, v{q0}
v_fma_f32 v{q0}, -v88, v88, v{q0}
v_max_f32 v{q0}, 0, v{q0}
v_add_f32 v{q0}, {f2u(1e-5)}, v{q0}
v_rsq_f32 v89, v{q0}
v_lshrrev_b32 v1, 5, v0
v_lshlrev_b32 v1, 3, v1
s_lshl_b32 s{sKO}, s{sKO}, 3
s_add_u32 s{sKO}, s{sKO}, {WS_RS}
v_mov_b32 v91, 0
v_mov_b32 v90, 1""")
    for i in range(8): a(f"v_lshlrev_b32 v{B1F+2*i}, 16, v{B1R[i//2]+(i&1)}\nv_and_b32 v{B1F+2*i+1}, 0xffff0000, v{B1R[i//2]+(i&1)}")
    return [l.strip() for l in a.lines]

def dma_x(kb):
    A, B = sT + 2, sT + 3
    g = []
    for qt in range(4):
        for s in range(2):
            pre = []
            if qt == 0 and s == 0:
                pre += [f"s_xor_b32 s{A}, s{sROT}, {kb}", f"s_lshl_b32 s{A}, s{A}, 7", f"s_lshl_b32 s{B}, s{sPAR}, 15",
                        f"s_add_u32 s{A}, s{A}, s{B}", f"s_xor_b32 s{B}, s{A}, 0x8000"]
            pre.append(f"s_add_u32 m0, s{sXB if qt & 1 else sXA}, {(kb & 1) * XSLOT + (qt >> 1) * 4096 + s * 960}")
            g.append((pre, f"buffer_load_dwordx4 v{VX1 if qt & 1 else VX0}, {srd(sX)}, s{B if qt >= 2 else A} offen offset:{s*64} lds ;tag=x{kb}"))
    return g
def dma_w(kb):
    A, B, C = sT + 4, sT + 5, sT + 6
    base = (kb % 3) * WSLOT
    g = []
    for i in range(4):
        s, t = i >> 1, i & 1
        if i == 0:
            pre = [f"s_xor_b32 s{C}, s{sROT}, {kb}", f"s_lshl_b32 s{A}, s{C}, 19", f"s_mul_i32 s{C}, s{C}, {64*2752}", f"s_add_u32 m0, s{sWM}, {base}"]
            so = A
        else:
            pre = [f"s_add_u32 s{B}, s{A}, {(32*s+4*t)*8192 - i*1024}"]; so = B
        g.append((pre, f"buffer_load_dwordx4 v{VWQ}, {srd(sWQ)}, s{so} offen offset:{i*1024} {WFL[1]} lds ;tag=w{kb}"))
    g.append(([f"s_add_u32 m0, s{sWM}, {base+4096}"], f"buffer_load_dwordx4 v{VW1}, {srd(sF0)}, s{C} offen lds ;tag=w{kb}"))
    g.append(([f"s_add_u32 m0, s{sWM}, {base+5120}"], f"buffer_load_dwordx4 v{VW1}, {srd(sF1)}, s{C} offen lds ;tag=w{kb}"))
    return g
WFL = ['', '']
def dma_kv(kind, tile, A=sT + 7):
    g = []
    for i in range(4):
        pre = [f"s_mov_b32 s{A}, {tile*16384}", f"s_add_u32 m0, s{sKM if kind=='K' else sVM}, {(tile%NS)*(KSLOT if kind=='K' else VSLOT)}"] if i == 0 else []
        g.append((pre, f"buffer_load_dwordx4 v{VD}, {srd(sK if kind=='K' else sV)}, s{A} offen offset:{i*1024} lds ;tag={kind}{tile}"))
    return g
def flat(g):
    out = []
    for pre, l in g: out += pre + [l]
    return out
def place_group(sc, g, lo, hi, sp=4, look=None):
    cur = lo
    for n_, (pre, l) in enumerate(g):
        start = cur
        h_ = hi - (len(g) - 1 - n_)
        l_ = min(cur + max(len(pre), sp if n_ else 1), h_)
        gp = sc.place_mem(l, l_, min(h_, l_ + look) if look is not None else h_)
        assert gp > start
        free = [x for x in range(start, gp) if not sc.sal[x]]
        free = [x for x in free if x > start or not any(m.startswith(("buffer_", "global_")) for m in sc.mem[x])]
        if len(free) < 1 and len(pre) == 1 and "m0" not in pre[0] and pre[0].startswith("s_") and not sc.sal[gp] and len(sc.mem[gp]) == 1:
            sc.sal[gp].append(pre[0])
        elif len(free) >= len(pre):
            for x, s_ in zip(free[-len(pre):] if pre else [], pre): sc.sal[x].append(s_)
        else:
            sc.post[gp - 1] += pre
        cur = gp
    return cur

def x_reads(kb):
    return [f"ds_read_b128 {ar(XF(kb,qt,s),4)}, v{VXR} offset:{(kb&1)*XSLOT+(qt*2+s)*1024}" for qt in range(4) for s in range(2)]
def w_off(kb, T, s, t):
    b = (kb % 3) * WSLOT
    return b + (2*s+t)*1024 + (T >> 1)*256 + (T & 1)*32 if T < 8 else b + 4096 + ((T-8) >> 1)*1024 + (2*s+t)*256 + (T & 1)*32
def w_reads(kb, T, n):
    return [f"ds_read_b64_tr_b16 {ar(WF(n,s)+2*t,2)}, v{VWR} offset:{w_off(kb,T,s,t)}" for s in range(2) for t in range(2)]
def c_reads(kb):
    out = []
    for j in range(3):
        for s in range(2):
            for t in range(2):
                if j < 2: out.append(f"ds_read_b64_tr_b16 {ar(CF(j,s)+2*t,2)}, v{VCQ} offset:{w_off(kb,j,s,t)}")
                else: out.append(f"ds_read_b64_tr_b16 {ar(CF(j,s)+2*t,2)}, v{VCF} offset:{w_off(kb,8,s,t)}")
    return out

CWR = [28, 88, 16, 20]
def s_count(name, off):
    return [f"s_lshl_b32 s{sT}, s{sQB}, 5", f"s_add_u32 s{sT}, s{sT}, {off}", f"s_mov_b32 s{sT+1}, 1", f"s_cmp_lg_u32 s{sW}, 0",
            f"s_cbranch_scc1 L_sc_{name}", f"s_atomic_add s{sT+1}, s[{sDBG}:{sDBG+1}], s{sT}", f"L_sc_{name}:"]
def hop(c, p="L_hop"):
    return ["s_mov_b64 exec, 0"] + sum(([f"s_cmp_eq_u32 s{sW}, {w}", f"s_cbranch_scc1 {p}{w}"] for w in range(3)), []) + [f"s_branch {p}3"] + ([".p2align 12"] if p == "L_hop" else []) + [f"{p}_back:", "s_mov_b64 exec, -1"]
def gemm1(c):
    L = setup_A(c) + ["@stamp first"] + setup_A2(c) + ["@stamp setup"] + (hop(c, "L_hoo") if c.hop and c.hop0 else [])
    no = [([], "; ")]
    g_ = [side_loads() + dma_x(0)[2:], no * 4 + dma_x(0)[2:] + side_loads()[:2], no * 6 + dma_x(0)[2:], no * 4 + side_loads()[:2] + dma_x(0)[2:]][c.SORD] + dma_w(1) + dma_x(1)[:2]
    for n_ in range(len(g_) + 2):
        if n_ == c.RSC: L += row_stats(c)
        if n_ == c.hop: L += hop(c)
        L += flat(g_[n_:n_ + 1])
    L += ["@stamp issued", "@waitvm x0"] + x_reads(0) + ["@waitvm w0 lgkm0", "s_barrier", "@stamp b0 rt"]
    TORD = [0, 1, 2, 10, 3, 4, 5, 11, 6, 7, 8, 9]
    L += w_reads(0, TORD[0], 0) + w_reads(0, TORD[1], 1)
    sc = Sched()
    first = {}; last = {}; start = {}; cwg = {}
    for kb in range(8):
        start[kb] = sc.n()
        for n, T in enumerate(TORD if kb < 7 else [0, 1, 8, 10, 9, 2, 11, 3, 4, 5, 6, 7]):
            N = kb * 12 + n
            for nq, qt in enumerate(range(4 if T < 10 else 2)):
                if c.gzig == 2 and T < 10 and (T & 1): qt = 3 - qt
                for i_ in range(2):
                    s = i_ ^ (nq & 1) if c.gzig else i_
                    d = vr(ACC(T, qt), 4)
                    g = sc.add(f"{M16} {d}, {ar(WF(N,s),4)}, {ar(XF(kb,qt,s),4)}, {'0' if kb == 0 and i_ == 0 else d}")
                    first.setdefault(N, (g, T)); last[N] = g
            j_ = n - (4 if kb < 7 else 3)
            if 0 <= j_ < 3: cwg[(kb, j_)] = sc.add(f"{SMF} {ar(CWA+4*j_,4)}, {vr(SMA,4)}, {ar(CF(j_,0),8)}, v{VIDX}")
    start[8] = sc.n()
    bar = {kb: start[kb] - c.GBAR for kb in range(1, 9)}
    bar[0] = -1; bar[8] = start[8] - c.GBAR8
    CNT2 = f"s_lshl_b32 s{sT+7}, s{sQB}, 5"
    for kb in range(8):
        lo, hi = bar[kb] + 1, bar[kb + 1]
        sc.sal[hi] += [f"@waitvm {('sst,' if kb else '') + 'w%d' % (kb+1) if kb < 7 else 'K0'} lgkm0", "s_barrier"] + ([f"@stamp b{kb+1}"] if kb < 7 else [])
        grp = []
        if kb + 1 < 8 and kb <= c.XFULL: grp += dma_x(kb + 1)[2:]
        if kb + 2 < 8 and kb > c.XFULL and c.XFIRST: grp += dma_x(kb + 2)
        if kb == 0: grp += stat_stores(c)
        if kb == 2 and not c.sat & 1: grp += [([CNT2], f"buffer_atomic_add v90, v{VONE}, {srd(sDBG)}, s{sT+7} offen offset:4 sc1")]
        if kb == 2 and c.sat & 1:
            for n_, l in enumerate(s_count("a", 4)): sc.sal[lo + min(n_, 4)].append(l)
        if kb == c.STB: grp += [([CNT2], ST_LOAD)]
        if kb + 2 < 8: grp += dma_w(kb + 2) + (dma_x(kb + 2)[:2] if kb < c.XFULL else dma_x(kb + 2) if kb == c.XFULL or not c.XFIRST else [])
        if kb == 6: grp += dma_kv("K", 0, sT + 6) + dma_kv("K", 1, sT + 6)
        if kb == 7:
            sc.post[lo + 1] += CNT_OK.split("\n") + ["s_cbranch_scc0 L_spin_st", "L_ok_st:"]
            A = sT + 6
            grp += [([f"s_lshl_b32 s{A}, s{sQB}, 2", f"s_add_u32 s{A}, s{A}, s{sW}", f"s_lshl_b32 s{A}, s{A}, 9", f"s_add_u32 s{A}, s{A}, {WS_RS}"] if qt == 0 else [],
                     f"buffer_load_dwordx2 {vr(SX+4*qt,2)}, v{92 + (qt >> 1)}, {srd(sWS)}, s{A} offen offset:{(qt&1)*128} sc1") for qt in range(4)]
            grp += dma_kv("V", 0) + (dma_kv("K", 2) if c.K2 else []) + (touches(c) if c.TP == 0 else [])
        g0 = lo + max(c.GLO, 5 if kb == 2 and c.sat & 1 else 0) if kb else c.G0
        if kb == 0 and not c.RSC: sc.post[g0 - 1] += row_stats(c)
        cur = place_group(sc, grp, g0, hi - 1, sp=min(c.GSP if kb else c.GSP0, (hi - g0 - 8) // len(grp)))
        xlast = next((g for g in range(hi, lo, -1) if any(f"tag=x{kb+1}" in m for m in sc.mem[g])), lo)
        ops = []
        for n in range(12):
            N = kb * 12 + n
            if N >= 2: ops += [(l, max(lo, last[N - NWR] if N >= NWR else 0), min(first[N][0] - 5, hi - 4)) for l in w_reads(kb, first[N][1], N)]
        ops += [(l, max(lo, 0), cwg[(kb, n_ // 4)] - 5) for n_, l in enumerate(c_reads(kb))]
        if kb + 1 < 8:
            g = next(x for x in range(max(hi - 22, xlast + 1), sc.n()) if not sc.sal[x])
            sc.sal[g].append(f"@waitvm x{kb+1}")
            if c.hop == f"x{kb+1}": sc.post[g - 1] += hop(c)
            ops += [(l, g, hi - 3) for l in x_reads(kb + 1)]
        else:
            g = cwg[(7, 2)] + 6
            for j in range(3):
                sc.valu[g + 2 * j] += [f"v_accvgpr_read_b32 v{28+j}, a{CWA+4*j}"]
                sc.valu[g + 2 * j + 1] += [f"v_accvgpr_read_b32 v31, a{CWA+4*j+1}"]
                sc.valu[g + 2 * j + 2] += [f"v_add_f32 v{28+j}, v{28+j}, v31"]
            ops += [(f"ds_write_b32 v{VC0}, v28", g + 8, hi - 3), (f"ds_write_b32 v{VC0}, v29 offset:64", g + 8, hi - 3), (f"ds_write_b32 v{VC1}, v30", g + 8, hi - 3)]
            cs = math.log2(math.e) / math.sqrt(128.0)
            for qt in range(4): sc.valu[start[8] - 5 + qt].append(f"v_mul_f32 v{SX+4*qt+2}, {f2u(cs)}, v{SX+4*qt+1}")
        sc.place_edf(ops)
    place_group(sc, dma_kv("V", 1), bar[8] + 1, start[8] - 1, sp=5)
    ops = [(f"ds_read_b128 {vr(CWR[j],4)}, v{VCR} offset:{(8+j)*64}", bar[8] + 1, start[8] - 1) for j in range(4)]
    ops += [(l, bar[8] + 1, start[8] - 1) for l in k_reads(0)]
    sc.place_edf(ops)
    g = start[7]; ls = late_scalars(c)
    while ls:
        g = next(x for x in range(g + 1, start[8]) if not sc.sal[x])
        sc.sal[g].append(ls.pop(0))
        if ls and ls[0].startswith(("s_addc", "s_subb")): sc.sal[g].append(ls.pop(0))
    print("gemm1 est cycles", sc.est(), file=sys.stderr)
    return L + sc.lines()

def touches(c, v=1, d0="a254", d1="a255"):
    if not c.touch: return []
    A, B = sT + 4, sT + 5
    return [([f"s_lshl_b32 s{A}, s2, 2", f"s_add_u32 s{A}, s{A}, s{sW}", f"s_lshl_b32 s{B}, s{A}, 5", f"s_sub_u32 s{B}, s{B}, s{sCT}",
              f"v_lshrrev_b32 v{v}, 1, v0", f"v_add_lshl_u32 v{v}, v{v}, s{B}, 7"], f"buffer_load_dword {d0}, v{v}, {srd(sWO)}, 0 offen"),
            ([f"s_mul_i32 s{B}, s{A}, 11", f"s_sub_u32 s{B}, s{B}, s{sCT}", f"v_min_u32 v{v}, 10, v0", f"v_add_lshl_u32 v{v}, v{v}, s{B}, 7"],
             f"buffer_load_dword {d1}, v{v}, {srd(sW2)}, 0 offen")][:1 if c.touch == "wo" else 2]

def sprinkle(lines, groups, every):
    out = []; groups = list(groups); k = 0
    for l in lines:
        out.append(l); k += 1
        if groups and k >= every and not l.strip().startswith(("s_cmp", "v_cmp", "s_add", "s_cselect")):
            pre, v = groups.pop(0); out += pre + [v]; k = 0
    return out + flat(groups)

def b2_init(a, v=1):
    a(f"v_lshrrev_b32 v{v}, 4, v0\nv_lshlrev_b32 v{v}, 3, v{v}")
    for ct in range(4): a(f"buffer_load_dwordx2 {vr(B2R+2*ct,2)}, v{v}, {srd(sB2)}, 0 offen offset:{ct*32}")
def attn_init():
    out = [f"v_accvgpr_write_b32 a{LA(0)+r}, 0" for r in range(16)] + [f"v_accvgpr_write_b32 a{FH(0,0)+r}, 0" for r in range(8)]
    for i in range(8): out += [f"v_lshlrev_b32 v{FA+2*i}, 16, v{B2R+i}", f"v_and_b32 v{FA+2*i+1}, 0xffff0000, v{B2R+i}"]
    return out
B2R = FA + 8
def epi1(c):
    a = Asm()
    k1 = -2.0 * math.sqrt(2.0 / math.pi) * math.log2(math.e); k2 = k1 * 0.044715
    kk = f"s[{sT+2}:{sT+3}]"
    a(f"s_mov_b32 s{sT+2}, {f2u(k2)}\ns_mov_b32 s{sT+3}, {f2u(k1)}")
    items = [(T, qt, h, vr(ACC(T, qt) + 2 * h, 2)) for T in range(8, 12) for qt in range(4 if T < 10 else 2) for h in range(2)]
    for T, qt, h, r in items: a(f"v_pk_fma_f32 {r}, {vr(CWR[T-8]+2*h,2)}, {vr(SX+4*qt,2)}, {r} op_sel_hi:[1,0,1]")
    for T, qt, h, r in items: a(f"v_pk_fma_f32 {r}, {r}, {vr(SX+4*qt,2)}, {vr(B1F+(T-8)*4+2*h,2)} op_sel:[0,1,0] op_sel_hi:[1,1,1]")
    st = []
    for T0, q0 in ((8, 0), (8, 2), (10, 0)):
        a(f"@stamp ga{T0+q0//2}")
        regs_ = [ACC(T0 + t, q0 + q) + e for q in range(2) for t in range(2) for e in (0, 2)]
        prs = [(r, B1F + 2 * i) for i, r in enumerate(regs_)]
        for r, t in prs: a(f"v_pk_mul_f32 {vr(t,2)}, {vr(r,2)}, {vr(r,2)}")
        for r, t in prs: a(f"v_pk_fma_f32 {vr(t,2)}, {vr(t,2)}, {kk}, {kk} op_sel:[0,0,1] op_sel_hi:[1,0,1]")
        for r, t in prs: a(f"v_pk_mul_f32 {vr(t,2)}, {vr(t,2)}, {vr(r,2)}")
        for r, t in prs: a(f"v_exp_f32 v{t}, v{t}\nv_exp_f32 v{t+1}, v{t+1}")
        for r, t in prs: a(f"v_pk_add_f32 {vr(t,2)}, {vr(t,2)}, 1.0 op_sel_hi:[1,0]")
        for r, t in prs: a(f"v_rcp_f32 v{t}, v{t}\nv_rcp_f32 v{t+1}, v{t+1}")
        for r, t in prs: a(f"v_pk_mul_f32 {vr(t,2)}, {vr(t,2)}, {vr(r,2)}")
        for i, (r, t) in enumerate(prs): a(f"v_cvt_pk_bf16_f32 v{ACC(T0, q0 + i // 4) + i % 4}, v{t}, v{t+1}")
        vo = VH1 if T0 == 10 else (VOA if q0 < 2 else VOB)
        st = [([], f"buffer_store_dwordx4 {vr(ACC(T0,q0+q),4)}, v{vo}, {srd(sWS)}, s{sHS0 if T0 == 8 else sHS1} offen offset:{q*1024} {c.stflags} ;tag=hst") for q in range(2)]
        a(f"@stamp gb{T0+q0//2}")
        if (T0, q0) == (8, c.GB): a("@waitvm V0\ns_barrier")
        if T0 == 8:
            a(st[0][1])
            if q0:
                for T in (4, 5, 6, 7): a(f"ds_read_b128 {vr(96+4*T,4)}, v{VCR} offset:{T*64}")
            a(st[1][1])
            if q0:
                for T in (0, 1, 2, 3): a(f"ds_read_b128 {vr(96+4*T,4)}, v{VCR} offset:{T*64}")
    c.last_h = st
    a("@stamp gelu")
    return a.lines

def scalar_init(c):
    out = f"""s_mov_b32 s{sVO}, {3*16384}
s_lshl_b32 s{sFW}, s{sW}, 13
s_sub_u32 s{sFW}, s{sFW}, 0x8000
s_sub_u32 s{sFH}, s{sHB}, 0x1000
s_and_b32 s{sT}, s{sRT}, {1 if c.fsplit else 0}
s_mul_i32 s{sT}, s{sT}, {21*0x1000}
s_add_u32 s{sFH}, s{sFH}, s{sT}
s_lshl_b32 s{sT}, s{sT}, 3
s_add_u32 s{sFW}, s{sFW}, s{sT}
s_mov_b32 s{sLOOP}, 7
s_mov_b32 s{sTC}, {-(c.l2end + 1 - c.l2n) * (0x100000 // max(c.l2n, 1))}
v_mov_b32 v{VPD}, 0x10000000""".split("\n")
    return [l for l in out if c.l2n or f"s{sTC}," not in l]
def late_scalars(c):
    a = Asm()
    for l in scalar_init(c)[:-1]: a(l)
    RS_ = 0x80000 + 4 * c.PADW + c.PADR
    a(f"""s_mul_i32 s{sT}, s{sRT}, {RS_}
s_mul_i32 s{sT+1}, s{sW}, {c.PADW}
s_add_u32 s{sT}, s{sT}, s{sT+1}
s_add_u32 s{sT}, s{sT}, {WS_O}""")
    mk_srd(a, sOL, sWS, sWS + 1, f"s{sT}", 0x80000)
    a(f"""s_lshl_b32 s{sT}, s{sQB}, 2
s_add_u32 s{sT}, s{sT}, s{sW}
s_mul_i32 s{sT}, s{sT}, {RS_}
s_lshr_b32 s{sT+1}, s{sHEAD}, 3
s_mul_i32 s{sT+1}, s{sT+1}, {c.PADW}
s_add_u32 s{sT}, s{sT}, s{sT+1}
s_add_u32 s{sT}, s{sT}, {WS_O}""")
    mk_srd(a, sOT, sWS, sWS + 1, f"s{sT}", 0x80000)
    if c.recenter: a(f"s_mov_b32 s{sRC}, {c.recenter}")
    if c.fsplit:
        assert c.ksplit and c.xbf and c.lean
        a(f"s_and_b32 s{sT}, s{sRT}, 1\ns_mul_i32 s{sT}, s{sT}, {2*H_RT}\ns_sub_u32 s{sDH}, {H_RT}, s{sT}")
    if c.ksplit:
        assert not c.PADW and not c.l2n
        a(f"s_xor_b32 s{sT}, s{sRT}, 1\ns_mul_i32 s{sT}, s{sT}, {RS_}\ns_add_u32 s{sT}, s{sT}, {WS_O}")
        mk_srd(a, sOP, sWS, sWS + 1, f"s{sT}", 0x80000)
    if c.l2n:
        a(f"s_and_b32 s{sT}, s{sHEAD}, 3\ns_lshl_b32 s{sT}, s{sT}, 7\ns_sub_u32 s{sPF}, s{sWO}, s{sT}\ns_subb_u32 s{sPF+1}, s{sWO+1}, 0")
    return [l.strip() for l in a.lines]
def l2_addr(c):
    R = 32 // c.l2n; sh = (64 // R).bit_length() - 1
    return [f"s_lshr_b32 s{sT}, s2, 3", f"s_mul_i32 s{sT}, s{sT}, {R * 1024}", f"s_lshl_b32 s{sT+1}, s{sW}, 20", f"s_add_u32 s{sT}, s{sT}, s{sT+1}",
            f"v_lshrrev_b32 v{VTO}, {sh}, v0", f"v_lshl_add_u32 v{VTO}, v{VTO}, 10, s{sT}", f"v_bfe_u32 v{VTO+1}, v0, {sh-2}, 2", f"v_lshl_add_u32 v{VTO}, v{VTO+1}, 7, v{VTO}"]
def fa2_init(c): return [f"v_mov_b32 v{FA2+i}, 0" for i in range(16)] if c.fsplit else []
def f_zero():
    return [([f"s_add_u32 m0, s{sFM}, {i*4096}"], f"buffer_load_dwordx4 v{VPD}, {srd(sW2)}, 0 offen lds ;tag=fz") for i in range(1 if FSP[0] else 2)]

def head(c, early):
    a = Asm()
    TQ = S0
    def weave(va, mf, mem=()):
        va = list(va); mem = list(mem); tot = sum(icost(l) for l in va); done = 0
        for n_, m in enumerate(mf):
            a(m)
            for _ in range(-(-len(mem) // (len(mf) - n_))):
                x = mem.pop(0)
                for l in ([x] if isinstance(x, str) else x[0] + [x[1]]): a(l)
            while va and done < tot * (n_ + 1) / len(mf): done += icost(va[0]); a(va.pop(0))
        for l in va: a(l)
    def corr(qt):
        it = [(T, h, vr(ACC(T, qt) + 2 * h, 2)) for T in range(8) for h in range(2)]
        for T, h, r in it: a(f"v_pk_fma_f32 {r}, {vr(96+4*T+2*h,2)}, {vr(SX+4*qt,2)}, {r} op_sel_hi:[1,0,1]")
        for T, h, r in it: a(f"v_pk_mul_f32 {r}, {r}, {vr(SX+4*qt+2,2)} op_sel_hi:[1,0]")
    def frag(qt):
        va = []
        for ks in range(4):
            t = TQ + 4 * ks; X, Y = ACC(2 * ks, qt), ACC(2 * ks + 1, qt)
            va += [f"v_cvt_pk_bf16_f32 v{t}, v{X}, v{X+1}", f"v_cvt_pk_bf16_f32 v{t+2}, v{Y}, v{Y+1}",
                   f"v_cvt_pk_bf16_f32 v{t+1}, v{X+2}, v{X+3}", f"v_cvt_pk_bf16_f32 v{t+3}, v{Y+2}, v{Y+3}"]
        for ks in range(4):
            t = TQ + 4 * ks
            va += [f"v_permlane16_swap_b32 v{t}, v{t+2}", f"v_permlane16_swap_b32 v{t+1}, v{t+3}"]
        return va + [f"v_accvgpr_write_b32 a{Q(qt,0)+e}, v{TQ+e}" for e in range(16)]
    def rowmax(qt):
        r = [S(qt, e // 4) + e % 4 for e in range(16)]; n = NEGM + 4 * qt
        va = []
        for k in range(0, 8, 2):
            for h, t in ((0, 88), (8, 89)):
                va.append(f"v_max3_f32 v{t}, v{r[h+k]}, v{r[h+k+1]}, v{t}" if k else f"v_max_f32 v{t}, v{r[h]}, v{r[h+1]}")
        va += ["v_max_f32 v88, v88, v89", "v_mov_b32 v89, v88", "v_permlane32_swap_b32 v88, v89", "v_max_f32 v88, v88, v89",
               "v_mov_b32 v89, v88", "v_permlane16_swap_b32 v88, v89", "v_max_f32 v88, v88, v89", "v_floor_f32 v88, v88",
               f"v_sub_f32 v{n}, -v88, s{sSH}"]
        return va + [f"v_add_f32 v{x}, v{x}, v{n}" for x in r] + [f"v_mov_b32 v{n+k}, v{n}" for k in (1, 2, 3)]
    def mix(x, y):
        out = []; x = list(x); y = list(y); nx, ny = len(x), len(y)
        while x or y:
            if x and (not y or (nx - len(x)) * ny <= (ny - len(y)) * nx): out.append(x.pop(0))
            else: out.append(y.pop(0))
        return out
    vob = [f"v_lshrrev_b32 v{VOB}, 3, v0", f"v_lshl_add_u32 v{VOB}, s{sW}, 4, v{VOB}", f"v_and_b32 v{VOA}, 7, v0",
           f"v_lshlrev_b32 v{VOA}, 4, v{VOA}", f"v_lshl_add_u32 v{VOB}, v{VOB}, 10, v{VOA}"]
    sm = lambda n, upto=32: sum((sm_ops(n, p) for p in range(upto)), [])
    qk = lambda n: qk_mfmas(n, czero=True)
    pv = lambda n: [smf(n)] + pv_mfmas(n)
    vr0 = v_reads(0)
    ini = attn_init()
    a(scalar_init(c)[-1])
    if c.smtest:
        a(f"v_and_b32 v88, 15, v0\nv_cmp_gt_u32 vcc, {c.smtest}, v88")
        for r in range(4): a(f"v_cndmask_b32 v{SMA+r}, 0, v{SMA+r}, vcc")
    b = Asm(); b2_init(b, 90)
    for l in flat(c.last_h) + b.lines[:2]: a(l)
    corr(0)
    for l in frag(0): a(l)
    a("@stamp h0")
    corr(1); weave(frag(1), qk(0), mix(f_zero() + b.lines[2:], vr0[:14]))
    a("@stamp h1")
    kv3 = ([] if c.K2 else dma_kv("K", 2)) + dma_kv("V", 2) + dma_kv("K", 3) + dma_kv("V", 3)
    bar = f"""s_lshl_b32 s{sT}, s{sQB}, 5
v_mov_b32 v90, 1
@waitvm K1,V1,hst,fz lgkm0
s_barrier
buffer_atomic_add v90, v{VONE}, {srd(sDBG)}, s{sT} offen sc1
@stamp hb"""
    if c.sat & 2: bar = "\n".join(s_count("b", 0)[:4] + ["@waitvm K1,V1,hst,fz lgkm0", "s_barrier"] + s_count("b", 0)[4:])
    corr(2); weave(mix(rowmax(0), frag(2)), qk(1), vr0[14:] if c.HB == 2 else vr0[14:28])
    a("@stamp h2")
    corr(3)
    if c.HB == 2: a(bar)
    weave(mix(rowmax(1) + ini[24:], sm(0) + frag(3)), qk(2), ([] if c.HB == 2 else vr0[28:]) + sum(([x, "; "] for x in kv3[:len(kv3) // 2]), []))
    a("@stamp h3")
    if c.HB == 3: a(bar)
    weave(mix((fa2_init(c) or ["s_nop 0"] * 6) + rowmax(2), sm(1)), qk(3) + pv(0), sum(([x, "; ", "; ", "; "] for x in kv3[len(kv3) // 2:]), []))
    a("@stamp h4")
    h_ = len(early) // 2
    weave(mix(rowmax(3), sm(2)), pv(1), early[:h_] + (touches(c, 91, 'v92', 'v93') if c.TP else []) +
          ([([f"s_lshl_b32 s{sT+4}, s{sT+4}, 12", f"s_add_u32 s{sT+4}, s{sT+4}, {WS_X}", "v_lshlrev_b32 v91, 6, v0"], f"buffer_load_dword v93, v91, {srd(sWS)}, s{sT+4} offen sc1")] if c.xtouch else []))
    weave(vob + (l2_addr(c) if c.l2n else []) + sm(3, 32 - c.SM0), pv(2), early[h_:])
    return a.lines

SLOTS = {"X": ("V", XB)}
for _i in range(4): SLOTS[f"K{_i}"] = ("K", _i * KSLOT); SLOTS[f"V{_i}"] = ("V", VBASE + _i * VSLOT)
FAKE = [False]
SIG = {n: n for n in range(32)}
def make_pairs(c):
    Ls = list(range(c.NR, 32)); Hs = list(range(c.NR)); NP = 16 - c.ND // 2
    nll = len(Ls) - NP; assert nll >= 0
    llpos = {c.LL0 + c.LLS * k_ for k_ in range(nll)}; assert all(p < NP for p in llpos)
    return [(Hs.pop(0), Hs.pop(0)) if p >= NP else (Ls.pop(0), Ls.pop(0)) if p in llpos else (Ls.pop(0), Hs.pop(0)) for p in range(16)]
def t_wload(n, slot):
    A = sT + 2
    kind, base = SLOTS[slot]
    pre = [f"s_xor_b32 s{A}, s{sRO}, {SIG[n] << 15}",
           f"s_add_u32 m0, s{sKM if kind == 'K' else sVM}, {base if kind == 'K' else base - VBASE}"]
    g = []
    for i in range(4):
        if i: pre = [f"s_add_u32 s{A}, s{A}, 7168"]
        g.append((pre, f"buffer_load_dwordx4 v{VDW}, {srd(sWO)}, s{A} offen offset:{i*1024} {WFL[0]} lds ;tag=t{n}"))
    return g
def t_bload(c, n, dst):
    B = sT + 3
    return [([f"s_xor_b32 s{B}, s{sOB}, {((SIG[n] >> 2) << 14) + ((SIG[n] & 3) << 10) + (j << 12)}"],
             f"buffer_load_dwordx4 {dst(j)}, v{VL}, {srd(sOL)}, s{B} offen {c.ldflags} ;tag=b{n}") for j in range(4)]
def t_reads(slot, dst):
    kind, base = SLOTS[slot]
    r = VRA + (4 if slot == "X" else 0 if kind == "K" else 2)
    off = 0 if slot == "X" else base if kind == "K" else base - VBASE
    return [f"ds_read_b64_tr_b16 {dst(ct, t)}, v{r + (ct & 1)} offset:{off + t*2048 + (ct>>1)*512}" for ct in range(4) for t in range(2)]
def quads(k, b): return [(k, b + 4 * i) for i in range(4)]
HOLD = [quads("v", 112), quads("a", 240), quads("a", 208), quads("a", 224), [("a", 128), ("a", 132), ("a", 160), ("a", 164)]] + \
       [quads("a", b) for b in (64, 80, 96, 112, 136)] + [[("a", 152), ("a", 156), ("a", 168), ("a", 172)]] + \
       [quads("a", 176), quads("v", 96), quads("a", 192)] + [quads("a", b) for b in (0, 16, 32, 48)]
def hold(i): return lambda ct, t=None: rr(HOLD[i][ct], 4) if t is None else rr(HOLD[i][ct], 2, 2 * t)
class WStream:
    def __init__(self, total=32): self.slot = {}; self.nxt = 0; self.held = 0; self.total = total
    def fill(self, sl):
        if self.nxt >= self.total: return []
        n = self.nxt; self.nxt += 1; self.slot[n] = sl
        return t_wload(n, sl)
    def take(self):
        n = self.held; self.held += 1
        return f"@waitvm t{n}", t_reads(self.slot[n], hold(n)), f"@dep {HOLD[n][3][0]}{HOLD[n][3][1] + 3}", self.slot[n]
FAF = 208
def FH(buf, i): return 224 + buf * 8 + i * 4
FSP = [False]; FA2 = 112; sDH, sH2 = 94, 95
def f_loads(c, gam, buf, nk):
    g = []
    if c.fsplit:
        w = [f"s_add_u32 s{sFW}, s{sFW}, 0x8000"] if nk == 2 else [f"s_lshl_b32 s{sFW}, s{sW}, 13", f"s_add_u32 s{sFW}, s{sFW}, {42*0x8000}"]
        g.append((w + [f"s_add_u32 m0, s{sFM}, {buf*8192}"], f"buffer_load_dwordx4 v{VDW}, {srd(sW2)}, s{sFW} offen {c.fwflags} lds ;tag=f{gam}"))
        g.append(([f"s_add_u32 s{sFH}, s{sFH}, 0x1000" if nk == 2 else f"s_add_u32 s{sFH}, s{sHB}, {42*0x1000}"],
                  f"buffer_load_dwordx4 {ar(FH(buf,0),4)}, v{VL}, {srd(sWS)}, s{sFH} offen {c.fhflags} ;tag={'h' if c.FHT else 'f'}{gam}"))
        if nk == 2: g.append(([f"s_add_u32 s{sH2}, s{sFH}, s{sDH}"], f"buffer_load_dwordx4 {ar(FH(buf,1),4)}, v{VL}, {srd(sWS)}, s{sH2} offen {c.fhflags} ;tag={'h' if c.FHT else 'f'}{gam}"))
        return g
    for i in range(nk):
        g.append(([f"s_add_u32 s{sFW}, s{sFW}, 0x8000", f"s_add_u32 m0, s{sFM}, {buf*8192 + i*4096}"],
                  f"buffer_load_dwordx4 v{VDW}, {srd(sW2)}, s{sFW} offen {c.fwflags} lds ;tag=f{gam}"))
        g.append(([f"s_add_u32 s{sFH}, s{sFH}, 0x1000"],
                  f"buffer_load_dwordx4 {ar(FH(buf,i),4)}, v{VL}, {srd(sWS)}, s{sFH} offen {c.fhflags} ;tag=f{gam}"))
    return g
def f_part(buf, nk, g):
    it = [(2*g, 0), (2*g, 1), (2*g+1, 1), (2*g+1, 0)] if nk == 2 else [(ct, 0) for ct in range(4)]
    if FSP[0] and nk == 2:
        rd = [f"ds_read_b64_tr_b16 {ar(FAF+4*ct+2*t,2)}, v{VFO if ct & 1 else VFE} offset:{buf*8192 + t*2048 + (ct>>1)*512}" for ct in (2*g, 2*g+1) for t in range(2)]
        return rd, [f"{M16} {vr((FA2 if i else FA)+4*ct,4)}, {ar(FAF+4*ct,4)}, {ar(FH(buf,i),4)}, {vr((FA2 if i else FA)+4*ct,4)}" for ct, i in it]
    FB = 240 if g else FAF
    rd = [f"ds_read_b64_tr_b16 {ar(FB+4*n+2*t,2)}, v{VFO if ct & 1 else VFE} offset:{buf*8192 + i*4096 + t*2048 + (ct>>1)*512}" for n, (ct, i) in enumerate(it) for t in range(2)]
    return rd, [f"{M16} {vr(FA+4*ct,4)}, {ar(FB+4*n,4)}, {ar(FH(buf,i),4)}, {vr(FA+4*ct,4)}" for n, (ct, i) in enumerate(it)]
def f_group(k):
    if k == 0: return (-1, 0, 2)
    if k == 29: return (21, 1, 1)
    if 1 <= k <= 28 and (k - 1) % 4: return (3 * ((k - 1) // 4) + (k - 1) % 4 - 1, 1 if (k - 1) % 4 == 2 else 0, 2)
    return None

def spin(name, load, okcmp, back, slp=0):
    return f"""L_spin_{name}:
s_mov_b32 s{sT+6}, 0x40000
L_spin_{name}_l:{chr(10) + 's_sleep %d' % slp if slp else ''}
{load}
s_waitcnt vmcnt(0)
{okcmp}
s_cbranch_scc1 {back}
s_sub_u32 s{sT+6}, s{sT+6}, 1
s_cmp_lg_u32 s{sT+6}, 0
s_cbranch_scc1 L_spin_{name}_l
s_branch {back}""".split("\n")
CNT_LOAD = f"buffer_load_dword v{VPD}, off, {srd(sDBG)}, s{sT+7} sc1"
ST_LOAD = f"buffer_load_dword v{VPD}, off, {srd(sDBG)}, s{sT+7} offset:4 sc1"
CNT_OK = f"v_cmp_le_u32 vcc, 32, v{VPD}\ns_nop 0\ns_cmp_eq_u64 vcc, -1"
FL_LOAD = f"buffer_load_dword v{VPD}, v{VPA}, {srd(sWS)}, s{sT+7} offen sc1"
FL_OK = f"v_cmp_eq_u32 vcc, 1, v{VPD}\ns_nop 0\ns_cmp_eq_u64 vcc, -1"

QKO = [(i, 3 - k if i & 1 else k) for i in range(4) for k in range(4)]
PVO = [(dt, u ^ (dt & 1)) for dt in range(8) for u in range(2)]
def k_reads(T):
    return [f"ds_read_b128 {ar(KF(i,ks),4)}, v{VK} offset:{(T % NS)*KSLOT + i*1024 + ks*256}" for i, ks in QKO]
def v_reads(T):
    return [f"ds_read_b64_tr_b16 {rr(VF(T,u,dt),2,2*t)}, v{VV} offset:{(T % NS)*VSLOT + (2*u+t)*1024 + (dt>>1)*256 + (dt&1)*32}" for dt, u in PVO for t in range(2)]
def qk_mfmas(n, czero=False):
    qt = n & 3
    return [f"{M16} {vr(S(n,i),4)}, {ar(KF(i,ks),4)}, {ar(Q(qt,ks),4)}, " + (vr(S(n,i),4) if g & 3 else "0" if czero else vr(NEGM+qt*4,4)) for g, (i, ks) in enumerate(QKO)]
def pv_mfmas(n):
    qt = n & 3
    return [f"{M16} {vr(O(dt,qt),4)}, {rr(VF(n>>2,u,dt),4)}, {vr(P(n)+4*u,4)}, " + (vr(O(dt,qt),4) if n >= 4 or g & 1 else "0") for g, (dt, u) in enumerate(PVO)]
def smf(n): return f"{SMF} {ar(LA(n&3),4)}, {vr(SMA,4)}, {vr(P(n),8)}, v{VIDX}"
def sm_ops(n, p):
    e = p // 2
    if p < 0 or e >= 16: return []
    r = S(n, e // 4) + e % 4
    if p % 2 == 0: return [f"v_exp_f32 v{r}, v{r}"]
    return [f"v_cvt_pk_bf16_f32 v{P(n)+e//2}, v{r-1}, v{r}"] if e % 2 else []
def o_finish(c, qt, packed):
    L_, RC, MX = NEGM + 4 * qt, NEGM + 4 * qt + 2, NEGM + 4 * qt + 1
    va = [[f"v_accvgpr_read_b32 v{L_}, a{LA(qt)}", f"v_accvgpr_read_b32 v{RC}, a{LA(qt)+1}", f"v_add_f32 v{L_}, v{L_}, v{RC}", f"v_rcp_f32 v{RC}, v{L_}"], [], [], []]
    st = []
    for m in range(4):
        src = [O(2*m, qt) + e for e in range(4)] + [O(2*m+1, qt) + e for e in range(4)]
        for i in range(0, 8, 2):
            r = src[i]
            va[m].append(f"v_maximum3_f32 v{MX}, |v{r}|, |v{r+1}|, " + (f"v{MX}" if m or i else "0"))
            if packed: va[m].append(f"v_pk_mul_f32 {vr(r,2)}, {vr(r,2)}, {vr(RC,2)} op_sel_hi:[1,0]")
            else: va[m] += [f"v_mul_f32 v{r}, v{r}, v{RC}", f"v_mul_f32 v{r+1}, v{r+1}, v{RC}"]
        va[m] += [f"v_cvt_pk_bf16_f32 v{src[e]}, v{src[2*e]}, v{src[2*e+1]}" for e in range(4)]
        st.append(f"buffer_store_dwordx4 {vr(src[0],4)}, v{VL}, {srd(sOT)}, s{sT} offen offset:{m*1024} {c.stflags} ;tag=ost")
    va[0].insert(0, f"s_xor_b32 s{sT}, s{sOS}, {qt << 12}")
    return va, st

def attention(c, ws):
    sc = Sched(); idx = {}; fidx = {}
    for G in range(2 * 32 + c.BAR + 1, 129 * 32):
        n, g = divmod(G, 32)
        m = (qk_mfmas(n)[g] if n < 128 else None) if g < 16 else pv_mfmas(n - 1)[g - 16]
        idx[G] = sc.add(m)
        for nn in (n - 1, n):
            if nn < 128: sc.valu[idx[G]] += sm_ops(nn, G - 32 * nn - c.SM0)
        if g == 15: sc.add(smf(n - 1))
        k = G // 128
        fc = f_group(k - 1) if k >= 1 else (0, 0, 2)
        if fc:
            for h in range(fc[2]):
                if G - 128 * k == c.FPOS[h]:
                    for n_, m in enumerate(f_part(fc[1], fc[2], h)[1]): fidx[(k, h, n_)] = sc.add(m)
    def spread(lines, g0, g1):
        gaps = list(range(g0, g1 + 1)); lines = list(lines)
        tot = sum(icost(l) for l in lines) + sum(sc.cost(x) for x in gaps); acc_ = 0; last = g0
        for n_, x in enumerate(gaps):
            acc_ += sc.cost(x)
            while lines and (acc_ < tot * (n_ + 1) / len(gaps) - 2 or n_ == len(gaps) - 1):
                acc_ += icost(lines[0]); sc.valu[x].append(lines.pop(0)); last = x
        return last
    for k in range(1, 32):
        B = 128 * k
        lo = idx[B - 64 + c.BAR + 1]; nb = idx[B + 64 + c.BAR]; hi = nb - 4; end = nb - 1
        fg = f_group(k); p = (k - 1) % 4
        tags = f"V{k+1},K{k+1}" + (f",f{fg[0]}" if fg else "")
        if k < 31: sc.sal[nb] += [f"@waitvm {tags} lgkm0", "s_barrier"]
        if k <= 29: sc.post[idx[B + 32] - 1].append(f"@seg {k}")
        if k >= 30:
            for q_ in (-64, -32, 0, 32, 64, 96, 128)[:4 if k == 30 else 7]: sc.post[idx[B + q_] - 1].append(f"@stamp p{(B + q_) // 32}")
        if c.recenter and c.rcw and k <= 28 and p == 1:
            sc.sal[idx[B] - 2].append(f"s_bitcmp1_b32 s{sRC}, s{sLOOP}")
            sc.post[idx[B] - 1] += ["s_cbranch_scc1 L_rc_a", "@rc 0"]
            for q_ in (1, 2, 3): sc.post[idx[B + 32 * q_] - 1].append(f"@rc {q_}")
            sc.post[idx[B + 128] - 1].append("L_rc_back:")
        if c.recenter and not c.rcw and k <= 29:
            for nm, p_, g_ in (("a", 0, 64), ("b", 1, 0)):
                if p == p_:
                    sc.sal[idx[B + g_] - 2].append(f"s_bitcmp1_b32 s{sRC}, s{sLOOP}")
                    sc.post[idx[B + g_] - 1] += [f"s_cbranch_scc1 L_rc_{nm}", f"L_rc_{nm}_back:"]
        if fg and k <= 28 and c.FWE:
            fl = f_loads(c, *fg); place_group(sc, fl[:1], lo, end); place_group(sc, fl[1:], idx[B], end)
        elif fg and k <= 28: place_group(sc, f_loads(c, *fg), idx[B], end)
        elif k <= 29 and c.codepf2: place_group(sc, [([], f"global_load_dword v{VOA}, v{VCP}, s[90:91]")], idx[B], end)
        if p == 1 and k <= 28: sc.post[idx[B - 3]] += CNT_OK.split("\n") + ["s_cbranch_scc0 L_spin_cnt", "L_ok_cnt:"]
        dm = []
        if k <= 29:
            for kind, sM, SL, d in (("K", sKM, KSLOT, sK), ("V", sVM, VSLOT, sV)):
                dm += [(([f"s_add_u32 s{sVO}, s{sVO}, 0x4000"] if kind == "K" else []) + [f"s_add_u32 m0, s{sM}, {((k+3)%NS)*SL}"] if i == 0 else [],
                        f"buffer_load_dwordx4 v{VD}, {srd(d)}, s{sVO} offen offset:{i*1024} {c.kvflags} lds ;tag={kind}{k+3}") for i in range(4)]
            if p == 0: dm = [([f"s_lshl_b32 s{sT+7}, s{sGX}, 5"], CNT_LOAD)] + dm
            if c.l2n:
                dm.append(([f"s_add_u32 s{sTC}, s{sTC}, {0x100000 // c.l2n}", f"s_cmp_lt_u32 s{sTC}, 0x100000", f"s_cselect_b32 s{sPF+2}, {4096*1024-512}, 0", f"s_cselect_b32 s{sTO}, s{sTC}, 0"],
                           f"buffer_load_dword v{VTO+1}, v{VTO}, {srd(sPF)}, s{sTO} offen"))
            place_group(sc, dm, idx[B + c.DPOS], end, sp=c.DSP)
        ops = [(l, max(lo, idx[B - 32 + g]), idx[B + g] - c.MG) for g, l in enumerate(k_reads(k))]
        ops += [(l, lo if PVO[n_ // 2][0] < NVX else idx[B + 16 + n_ // 2], idx[B + 48 + n_ // 2] - c.MG) for n_, l in enumerate(v_reads(k))]
        fc = f_group(k - 1)
        if fc:
            for h in range(fc[2]):
                ops += [(l, idx[B], min(fidx[(k, h, n_ // 2)] - c.MG, hi)) for n_, l in enumerate(f_part(fc[1], fc[2], h)[0])]
        if k == 29:
            sc.place_edf(ops); ops = []
            for pre, l in dm + [([f"s_bitcmp1_b32 s{sRC}, s{sLOOP}", "s_cbranch_scc1 L_rc_a"], "L_rc_a_back:")]:
                for x in range(idx[B + 32], nb):
                    for lst in (sc.sal[x], sc.mem[x], sc.post[x]):
                        for y in pre + [l]:
                            if y in lst: lst.remove(y)
        def hold_in(g0, g1, vm, sp=4):
            w, rd, dep, sl = ws.take()
            g0 = next(x for x in range(g0, g1) if not sc.sal[x]); sc.sal[g0].append(w)
            ops.extend((l, g0, g1) for l in rd)
            g2 = next(x for x in range(max(g1 + 3, vm), end) if not sc.sal[x]); sc.sal[g2].append(dep)
            return place_group(sc, ws.fill(sl), g2, end, sp, 1 if sp == 2 else None)
        pg = [([], f"buffer_load_dword v{90+i}, off, {srd(d)}, {o} sc1") for i, (d, o) in enumerate(((sOT, f"s{sOS}"), (sOL, f"s{sOB}"), (sOUT, 0)))] if c.pg & 2 else []
        if k == 29: place_group(sc, pg + f_loads(c, *fg) + ws.fill("K0") + ws.fill("V0"), idx[B + (33 if pg else 40)], end, sp=3 if pg else 4)
        xt = [([f"s_lshl_b32 s{sT+4}, s{sW}, 11", f"s_add_u32 m0, s{sT+4}, {XT}"], f"buffer_load_dwordx4 v{VOB}, {srd(sXX)}, 0 offen lds ;tag=xt"),
              ([f"s_mov_b32 s{sT+4}, 7168"], f"buffer_load_dwordx4 v{VOB}, {srd(sXX)}, s{sT+4} offen offset:1024 lds ;tag=xt")]
        if k == 30:
            cur = place_group(sc, ws.fill("K1") + ws.fill("V1") + xt, lo, end)
            if c.fsplit:
                g_ = spread([f"v_cvt_pk_bf16_f32 v{FA2+e}, v{FA2+2*e}, v{FA2+2*e+1}" for e in range(8)], idx[B - 24], idx[B - 8])
                A_ = sT + 5
                cur = place_group(sc, [([f"s_lshl_b32 s{A_}, s2, 2", f"s_add_u32 s{A_}, s{A_}, s{sW}", f"s_lshl_b32 s{A_}, s{A_}, 12", f"s_add_u32 s{A_}, s{A_}, {WS_X}"] if i == 0 else [],
                                        f"buffer_store_dwordx4 {vr(FA2+4*i,4)}, v{VL}, {srd(sWS)}, s{A_} offen offset:{2048+i*1024} sc1 ;tag=ost") for i in range(2)], max(cur, g_), end)
                assert cur < idx[B + c.H30W[1][0]]
            for g0, g1 in c.H30W: cur = hold_in(idx[B + g0], idx[B + g1], cur, c.HSP)
        if k == 31:
            cur = place_group(sc, ws.fill("K2") + ws.fill("V2") + ws.fill("X"), lo, end)
            if c.K3E:
                g_ = next(x for x in range(idx[B + 13], end) if not sc.sal[x]); sc.sal[g_] += ["s_waitcnt lgkmcnt(0)", "s_barrier"]
                cur = place_group(sc, ws.fill("K3"), max(cur, g_), end)
            for g0, g1 in c.H31W: cur = hold_in(idx[B + g0], idx[B + g1], cur)
        if ops: sc.place_edf(ops)
    late = None
    if c.stagger:
        cut = idx[126 * 32]; scA, wsA = sc, ws
        assert not any(m.startswith("buffer_") for x in range(cut, sc.n()) for m in sc.mem[x])
        sc, ws = copy.deepcopy(scA), copy.deepcopy(wsA); ops = []; end = sc.n() - 1; cur = cut
        for g0, g1 in c.HLW: cur = hold_in(idx[126 * 32 + g0], idx[126 * 32 + g1], cur)
        sc.place_edf(ops)
        for lst in (sc.mf, sc.sal, sc.mem, sc.valu, sc.post): del lst[:cut]
        late = (sc.lines(), ws); sc, ws = scA, wsA
        sc.sal[cut - 2].append(f"s_bitcmp1_b32 s2, {c.stagger}")
        sc.post[cut - 1] += ["s_cbranch_scc1 L_late", "@cut"]
    if c.NE: sc.sal[idx[(129 - c.NE) * 32 + min(c.NEW[0][0], 0)] - 1].append("s_setreg_imm32_b32 hwreg(HW_REG_MODE, 4, 2), 3")
    for qt in range(c.NE):
        n = 129 - c.NE + qt
        va, st = o_finish(c, qt, False)
        cuts = [idx[32 * n + g] for g in c.NEW[min(qt, 1) if n < 128 else 2]]
        for m in range(4):
            spread(va[m], cuts[m], cuts[m + 1] - 1); sc.mem[cuts[m + 1]].append(st[m])
    ge = lambda x: max(16, 16 - sc.budget(x) + sc.cost(x)) if sc.mf[x] else sc.cost(x)
    pe = [sum(ge(x) - (16 if sc.mf[x] else 0) for x in range(idx[32 * n], idx[32 * n + 31] + 1)) for n in list(range(37, 53)) + list(range(117, 129))]
    print("attention est cycles", sc.est(), "overflow per period", pe, file=sys.stderr)
    g4 = idx[128]
    if c.estonly: return pe
    early = sum((sc.mem[x] for x in range(g4)), [])
    assert all(l.startswith("ds_read") for l in early) and not any(sc.sal[x] or sc.post[x] for x in range(g4))
    for lst in (sc.mf, sc.sal, sc.mem, sc.valu, sc.post): del lst[:g4]
    return early, sc.lines(), late

class Pump:
    def __init__(self, a, ws): self.a = a; self.ws = ws; self.pend = []; self.nxt = None
    def busy(self): return bool(self.pend or self.nxt)
    def __call__(self, nload, limit):
        a, ws = self.a, self.ws
        for _ in range(nload):
            if not self.pend:
                prev = self.nxt; self.nxt = None
                if ws.held < limit:
                    w, rd, dep, sl = ws.take(); a(w)
                    for l in rd: a(l)
                    self.nxt = (dep, sl)
                if prev:
                    g = ws.fill(prev[1])
                    if g: a(prev[0]); self.pend.extend(g)
            if self.pend:
                pre, l = self.pend.pop(0)
                for x in pre + [l]: a(x)

def gate(c, plain=False, TT=48):
    G = FA
    b = Asm()
    b(f"""v_lshrrev_b32 v31, 4, v0
v_lshlrev_b32 v31, 3, v31
v_and_b32 v30, 15, v0
s_lshl_b32 s{sT}, s{sW}, 11
s_add_u32 s{sT}, s{sT}, {XT}
v_lshl_add_u32 v29, v30, 7, v31
v_add_u32 v29, s{sT}, v29
v_mul_u32_u24 v30, 144, v30
v_add3_u32 v30, v30, v31, s{sKM}
v_lshrrev_b32 v31, 3, v0
v_mul_u32_u24 v31, 144, v31
v_and_b32 v28, 7, v0
v_lshl_add_u32 v31, v28, 4, v31
v_add_u32 v31, s{sKM}, v31""")
    if plain:
        n0 = len(b.lines)
        for op in ("v_mul_f32 v{t}, %s, v{g}" % f2u(-math.log2(math.e)), "v_exp_f32 v{t}, v{t}", "v_add_f32 v{t}, 1.0, v{t}", "v_rcp_f32 v{t}, v{t}", "v_mul_f32 v{g}, v{g}, v{t}"):
            for i in range(16): b(op.format(t=TT + i, g=G + i))
        return b.lines[:n0], [l.strip() for l in b.lines[n0:]]
    for i in range(16): b(f"v_mul_f32 v{TT+i}, {f2u(-math.log2(math.e))}, v{G+i}")
    for i in range(16): b(f"v_exp_f32 v{TT+i}, v{TT+i}")
    for i in range(0, 16, 2): b(f"v_pk_add_f32 {vr(TT+i,2)}, {vr(TT+i,2)}, 1.0 op_sel_hi:[1,0]")
    for i in range(16): b(f"v_rcp_f32 v{TT+i}, v{TT+i}")
    for i in range(0, 16, 2): b(f"v_pk_mul_f32 {vr(G+i,2)}, {vr(G+i,2)}, {vr(TT+i,2)}")
    return b.lines

def tail1(c, ws, late=False):
    a = Asm()
    T = 88; EX = S0
    pump = Pump(a, ws)
    if not c.NE: a("s_setreg_imm32_b32 hwreg(HW_REG_MODE, 4, 2), 3")
    if not c.split_bar: pump(1, c.NB1)
    for qt in range(0 if late else c.NE, 4):
        va, st = o_finish(c, qt, True)
        for m in range(4):
            for l in va[m] + [st[m]]: a(l)
    pump(c.NP0, c.NB1)
    if not c.early_gate:
        while pump.busy() or ws.held < c.NB1: pump(1, c.NB1)
    a(f"s_mov_b32 s{sT+4}, 0x100\ns_mov_b64 s[{sT+6}:{sT+7}], -1")
    for qt in range(4):
        for r in (NEGM + 4 * qt, NEGM + 4 * qt + 1, NEGM + 4 * qt + 2):
            a(f"v_cmp_class_f32 vcc, v{r}, s{sT+4}" if r % 4 else f"v_cmp_le_f32 vcc, {f2u(2.0 ** (-c.shift - 1))}, v{r}")
            a(f"s_and_b64 s[{sT+6}:{sT+7}], s[{sT+6}:{sT+7}], vcc")
    a(f"s_cmp_eq_u64 s[{sT+6}:{sT+7}], -1\ns_cselect_b32 s{sT+4}, 0, 1")
    if c.force_fallback: a(f"s_mov_b32 s{sT+4}, 1")
    if c.nofb: a(f"s_mov_b32 s{sT+4}, 0")
    a(f"""s_lshl_b32 s{sT+5}, s{sW}, 2
s_add_u32 s{sT+5}, s{sT+5}, {FLBASE}
v_mov_b32 v{T}, s{sT+5}
v_mov_b32 v{T+1}, s{sT+4}
ds_write_b32 v{T}, v{T+1}
s_setreg_imm32_b32 hwreg(HW_REG_MODE, 4, 2), 0
v_mov_b32 v{EX+8}, {FLBASE}
v_mov_b32 v{EX+9}, 1
s_lshl_b32 s{sT+7}, s{sGX}, 7
s_add_u32 s{sT+7}, s{sT+7}, s{sKW}
s_lshl_b32 s{sT+7}, s{sT+7}, {c.FLS - 4}
s_add_u32 s{sT+7}, s{sT+7}, {WS_FL}""")
    if c.early_gate and not c.lean:
        for l in gate(c): a(l)
    if c.lean & 2: pass
    elif c.hop and late:
        for l in hop(c, "L_hoq")[:-2] + ["L_late_back:"]: a(l)
    elif c.hop:
        for l in hop(c, "L_hoq"): a(l)
        if c.stagger: a(f"s_bitcmp1_b32 s2, {c.stagger}\ns_cbranch_scc1 L_late_back")
    if c.ksplit and c.NPOLL >= 0:
        pump(c.NPOLL, c.NB1); a(FL_LOAD)
    while pump.busy() or ws.held < c.NB1: pump(1, c.NB1)
    if c.split_bar: a("s_waitcnt lgkmcnt(0)")
    else: a("@waitvm ost lgkm0")
    return [l.strip() for l in a.lines]

def tail2(c, ws):
    a = Asm()
    SA = 128; AB = S0; XR = 16; G = FA; TT = 48; EX = AB
    def acc(ct, j): return SA + (j * 4 + ct) * 4
    def abuf(n): return lambda ct, t=None: vr(AB + (n & 1) * 16 + ct * 4, 4) if t is None else vr(AB + (n & 1) * 16 + ct * 4 + 2 * t, 2)
    def emit(ls):
        for l in ls: a(l)
    pump = Pump(a, ws)
    a(f"""L_bar1:
s_barrier
ds_read_b128 {vr(EX+12,4)}, v{EX+8}
v_or3_b32 v{EX+12}, v{EX+12}, v{EX+13}, v{EX+14}
v_or_b32 v{EX+12}, v{EX+12}, v{EX+15}
v_readfirstlane_b32 s{sT+4}, v{EX+12}
s_andn2_b32 s{sT+4}, s{sT+4}, s{sTRY}
s_cmp_lg_u32 s{sT+4}, 0
s_cbranch_scc1 L_fallback
""")
    freed = ["V3"] + ([] if c.K3E else ["K3"])
    if c.split_bar:
        while ws.held < c.NB2:
            w, rd, dep, sl = ws.take(); emit([w] + rd); freed.append(sl)
        if c.early_x: emit(t3_setup(c))
        a("s_waitcnt lgkmcnt(0)")
        if c.epoll == 1: a(FL_LOAD)
        for _ in range(c.NB3): emit(flat(ws.fill(freed.pop(0))))
        if c.epoll == 2: a(FL_LOAD)
        a("@waitvm ost\ns_barrier")
        if c.epoll == 3: a(FL_LOAD)
    a("@stamp bar1 rt")
    if c.flagmode == "store": a(f"buffer_store_dword v{EX+9}, v{VONE}, {srd(sWS)}, s{sFLO} offen sc1")
    elif c.flagmode == "vatomic": a(f"buffer_atomic_add v{EX+9}, v{VONE}, {srd(sWS)}, s{sFLO} offen sc1")
    elif c.flagmode == "satomic":
        a(f"""s_cmp_lg_u32 s{sW}, 0
s_cbranch_scc1 L_noflag
s_mov_b32 s{sT+5}, 1
s_atomic_add s{sT+5}, s[{sWS}:{sWS+1}], s{sFLO}
L_noflag:""")
    if c.ksplit:
        for sl in freed: pump.pend.extend(ws.fill(sl))
        if c.NPOLL < 0 and not c.epoll: pump(-c.NPOLL - 1, 16); a(FL_LOAD)
        if c.lean:
            assert ws.nxt == 16 and not c.early_x
            pump(min(c.NL1, len(pump.pend)), 16)
            if c.lean & 2 and c.hop: emit(hop(c, "L_hoq"))
            side = [gate(c, True)[0], t3_setup(c)]
            while ws.held < 7 + c.K3E + len(c.H30W) + len(c.H31W):
                w, rd, dep, sl = ws.take(); side.append([w] + rd)
            if c.side_late: c.side = sum(side[c.side_late - 1:], []); side = side[:c.side_late - 1]
            for x in side:
                emit(x)
                if pump.pend: pump(1, 16)
        while pump.pend or ws.nxt < 16: pump(1, 16)
        return a.lines + tail3(c, ws)
    pump.pend.extend(ws.fill("V3"))
    if not c.early_gate:
        for n_, l in enumerate(gate(c)):
            if n_ % 8 == 0: pump(1, c.NR)
            a(l)
    while ws.held < c.NR: pump(1, c.NR)
    a(FL_LOAD.replace("sc1", c.pollflags))
    while pump.busy(): pump(1, c.NR)
    a("@waitvm xt")
    for ct in range(4): a(f"ds_read_b64 {vr(XR+2*ct,2)}, v29 offset:{ct*32}")
    a("@stamp held rt")
    a(FL_OK + ("\ns_cbranch_scc0 L_spin_fl" if c.flagmode != "none" else "") + "\nL_ok_fl:")
    a("@stamp flags rt")
    if c.chain2:
        ND = c.ND; assert ND % 2 == 0 and 4 <= ND <= 14
        NP = 16 - ND // 2; pairs = make_pairs(c)
        units = [(p, j) for p in range(16) for j in range(4) if j or p < NP] + [(p, 0) for p in range(NP, 16)]
        NU = len(units); NM = NU - ND // 2
        frag = lambda u, h: vr(192 + ((2 * u + h) % 16) * 4, 4)
        def uload(u):
            p, j = units[u]
            return [t_bload(c, pairs[p][h], lambda jj: frag(u, h))[j] for h in range(2)]
        free = [quads("v", AB), quads("v", AB + 16)]; home = {n: HOLD[n] for n in range(c.NR)}
        def areads(n):
            home[n] = free.pop(0)
            return t_reads(ws.slot[n], lambda ct, t: rr(home[n][ct], 2, 2 * t))
        for u in range(c.DU0): emit(flat(uload(u)))
        a(f"@waitvm t{pairs[0][0]}")
        emit(areads(pairs[0][0]))
        L = a.lines
        sc = Sched(); nu = c.DU0; wq = []; pstart = {}; rds = []
        for u, (p, j) in enumerate(units):
            st = sc.n()
            for ct in range(4):
                for k_ in range(2):
                    h = k_ ^ (ct & 1); d = vr(acc(ct, j), 4)
                    sc.add(f"{M16} {d}, {rr(home[pairs[p][h]][ct], 4)}, {frag(u, h)}, {'0' if p == 0 and k_ == 0 else d}")
            if p not in pstart:
                pstart[p] = st
                if p: free.extend(home[n] for n in pairs[p - 1] if p - 1 < NP)
                for n in pairs[p]:
                    if n >= c.NR and ws.nxt < 32:
                        sc.sal[st].append(f"@dep {home[n][3][0]}{home[n][3][1] + 3}"); wq += ws.fill(ws.slot[n])
                nl_ = [n for n in pairs[p + 1] if n >= c.NR] if p < 15 else []
                if nl_:
                    assert not any(f"tag=t{n}" == l.split(";")[-1] for _, l in wq for n in nl_), p
                    sc.sal[st].append("@waitvm " + ",".join(f"t{n}" for n in nl_))
                    rds.append((st, sum((areads(n) for n in nl_), [])))
                if p in (1, 5, 9): sc.sal[st].append(f"@stamp o{2*p if p > 5 else 2*p-1}")
            grp = []
            if nu < NU and nu <= u + c.DU: grp += uload(nu); nu += 1
            if wq and u % c.WSK != c.WSK - 1: grp.append(wq.pop(0))
            elif wq: pass
            elif nu < NU and nu <= u + c.DU: grp += uload(nu); nu += 1
            if grp: place_group(sc, grp, st, st + 7, sp=(1 if len(grp) > 3 else 2))
        assert not wq
        for st, rd in rds: sc.place_edf([(l, st, st + 27) for l in rd])
        st0 = {32: 8 * NM}; N1 = "x"; st0["x"] = pstart[NP]
    else:
        RING = [192, 208, 224, 240]
        ND = c.ND; N1 = 32 - max(ND, 3)
        assert c.DO < len(RING) and ND <= 8
        lds_steps = list(range(c.NR, 32)); held_steps = list(range(c.NR))
        steps = []; li = hi_ = 0
        for i in range(32):
            if li < len(lds_steps) and (li * N1 <= i * len(lds_steps) or hi_ >= c.NR - (32 - N1)): steps.append(lds_steps[li]); li += 1
            else: steps.append(held_steps[hi_]); hi_ += 1
        lpos = {n: k_ for k_, n in enumerate(lds_steps)}
        assert steps[0] in lpos and all(n < c.NR for n in steps[N1:]) and 0 in steps[:24] and 1 in steps[:24]
        def ring(i): return lambda j: vr(RING[i % (c.DO + 1)] + 4 * j, 4) if j or i < 32 - ND else rr((HOLD[0] + HOLD[1])[i - 32 + ND], 4)
        def bload(i):
            g = t_bload(c, steps[i], ring(i))
            return g if i < 32 - ND else g[1:]
        for i in range(c.DO0): emit(flat(bload(i)))
        a(f"@waitvm t{steps[0]}")
        emit(t_reads(ws.slot[steps[0]], abuf(0)))
        L = a.lines
        sc = Sched(); st0 = []
        def mf(i, ct, j):
            n = steps[i]; A = abuf(lpos[n]) if n in lpos else hold(n); d = vr(acc(ct, j), 4)
            return sc.add(f"{M16} {d}, {A(ct)}, {ring(i)(j)}, {'0' if i == 0 else d}")
        for i in range(32):
            st0.append(sc.n())
            order = [(ct, j) for ct in range(4) for j in range(4)] if i < 31 else [(ct, j) for j in (1, 2, 3, 0) for ct in range(4)]
            for ct, j in order:
                if j or i < 32 - ND: mf(i, ct, j)
        st0.append(sc.n())
        for i in range(32 - ND, 32):
            for ct in range(4): mf(i, ct, 0)
        nb = c.DO0
        wq = []
        dq = [t_bload(c, steps[i], ring(i))[0] for i in range(32 - ND, 32)]
        for i, n in enumerate(steps):
            st, en = st0[i], st0[i + 1] - 1
            grp = []
            if nb < 32 and nb <= i + c.DO: grp += bload(nb); nb += 1
            elif nb == 32: k_ = -(-len(dq) // (32 - i)); grp += dq[:k_]; dq = dq[k_:]
            if n in lpos and ws.nxt < 32:
                sc.sal[st].append(f"@dep v{AB + (lpos[n] & 1) * 16 + 15}")
                wq += ws.fill(ws.slot[n])
            k_ = min(len(wq), c.WPS)
            grp += wq[:k_]; wq = wq[k_:]
            if not k_ and nb < 32 and nb <= i + c.DO: grp += bload(nb); nb += 1
            if i in (1, 9, 18): sc.sal[st].append(f"@stamp o{i}")
            if grp: place_group(sc, grp, st, en, sp=(1 if len(grp) > 6 else 2 if len(grp) > 4 else 3))
            if i + 1 < 32 and steps[i + 1] in lpos:
                assert not any(f"tag=t{steps[i+1]}" == l.split(";")[-1] for _, l in wq + grp), i
                sc.sal[st].append(f"@waitvm t{steps[i+1]}")
                cur = st
                for l in t_reads(ws.slot[steps[i + 1]], abuf(lpos[steps[i + 1]])): cur = sc.place_mem(l, cur, en - 1)
        assert not wq and not dq
    b = Asm()
    for j in range(1, 4):
        b(f"""s_add_u32 s{sT}, s{sVM}, {(j-1)*VSLOT}
v_add_u32 v{EX+j-1}, s{sT}, v{VL}
s_xor_b32 s{sT}, s{sW}, {j}
s_mul_i32 s{sT}, s{sT}, {VCH}
s_add_u32 s{sT}, s{sT}, {VBASE+(j-1)*VSLOT}
v_add_u32 v{EX+4+j-1}, s{sT}, v{VL}""")
    XU = EX + 16
    for i in range(8): b(f"v_lshlrev_b32 v{XU+2*i}, 16, v{XR+i}\nv_and_b32 v{XU+2*i+1}, 0xffff0000, v{XR+i}")
    for n_, l in enumerate(b.lines): sc.valu[st0[N1] + n_].append(l.strip())
    wr = [f"ds_write_b128 v{EX+j-1}, {vr(acc(ct,j),4)} offset:{ct*1024}" for j in range(1, 4) for ct in range(4)]
    rd = [f"ds_read_b128 {vr(acc(ct,j),4)}, v{EX+4+j-1} offset:{ct*1024}" for ct in range(4) for j in range(1, 4)]
    a = Asm()
    if ND >= 4:
        g = st0[32] - (10 if c.chain2 else 4)
        for n_, l in enumerate(wr):
            if c.chain2 and n_ in (4, 8): g = max(g, st0[32] - (4 if n_ == 4 else -2))
            sc.mem[g].append(l); g += 1
        g = min(g + 3, sc.n() - 1)
        sc.sal[g] += ["@stamp oproj rt", "s_waitcnt lgkmcnt(0)", "s_barrier"]
        g_rd = g
        for l in rd: sc.mem[g].append(l); g = min(g + 1, sc.n() - 1)
        if c.fold:
            va = []
            for ct in range(4):
                p1, p2, p3 = acc(ct, 1), acc(ct, 2), acc(ct, 3)
                va += [f"v_add_f32 v{p1+e}, v{p1+e}, v{p2+e}" for e in range(4)] + [f"v_add_f32 v{p1+e}, v{p1+e}, v{p3+e}" for e in range(4)]
                va += [f"v_fmac_f32 v{XU+4*ct+e}, v{p1+e}, v{G+4*ct+e}" for e in range(4)]
            gaps = list(range(min(g_rd + 8, sc.n() - 1), sc.n()))
            for n_, l in enumerate(va): sc.valu[gaps[n_ * len(gaps) // len(va)]].append(l)
    else:
        a("@stamp oproj rt")
        emit(wr + ["s_waitcnt lgkmcnt(0)", "s_barrier"] + rd)
    L += sc.lines()
    for j in (2, 3) if not c.fold else ():
        for ct in range(4):
            for h in (0, 2): a(f"v_pk_add_f32 {vr(acc(ct,1)+h,2)}, {vr(acc(ct,1)+h,2)}, {vr(acc(ct,j)+h,2)}")
    for cp in (0, 2):
        it = [(acc(ct, 0) + h, acc(ct, 1) + h, 4 * ct + h) for ct in (cp, cp + 1) for h in (0, 2)]
        for r, p, o in it if not c.fold else (): a(f"v_pk_add_f32 {vr(r,2)}, {vr(r,2)}, {vr(p,2)}")
        for r, p, o in it: a(f"v_pk_fma_f32 {vr(r,2)}, {vr(r,2)}, {vr(G+o,2)}, {vr(XU+o,2)}")
        for r, p, o in it: a(f"v_cvt_pk_bf16_f32 v{XR+o//2}, v{r}, v{r+1}")
        for ct in (cp, cp + 1): a(f"ds_write_b64 v30, {vr(XR+2*ct,2)} offset:{ct*32}")
    a(f"s_mov_b32 s{sT}, 8192")
    for i in range(2): a(f"ds_read_b128 {vr(SA+4*i,4)}, v31 offset:{i*8*144}")
    for i in range(2): a(f"buffer_store_dwordx4 {vr(SA+4*i,4)}, v{VOB}, {srd(sOUT)}, {'s%d' % sT if i else 0} offen {c.outflags}")
    return L + a.lines

F2_LOAD = f"buffer_load_dword v{VPD}, off, {srd(sWS)}, s{sT+7} sc1"
def t3_setup(c):
    a = Asm(); XR = 16; EX = S0; XU = EX + 16
    a("@waitvm xt")
    for ct in range(4): a(f"ds_read_b64 {vr(XR+2*ct,2)}, v29 offset:{ct*32}")
    for j in range(1, 4):
        a(f"""s_add_u32 s{sT}, s{sVM}, {(j-1)*VSLOT}
v_add_u32 v{EX+j-1}, s{sT}, v{VL}
s_xor_b32 s{sT}, s{sW}, {j}
s_mul_i32 s{sT}, s{sT}, {VCH}
s_add_u32 s{sT}, s{sT}, {VBASE+(j-1)*VSLOT}
v_add_u32 v{EX+4+j-1}, s{sT}, v{VL}""")
    sXS, sXL, sF2 = sT, sT + 1, sT + 4
    a(f"""s_lshl_b32 s{sXS}, s2, 2
s_add_u32 s{sXS}, s{sXS}, s{sW}
s_lshl_b32 s{sXS}, s{sXS}, 12
s_add_u32 s{sXS}, s{sXS}, {WS_X}
s_xor_b32 s{sXL}, s{sXS}, {4 << 14}
s_lshl_b32 s{sF2}, s2, 7
s_add_u32 s{sF2}, s{sF2}, {WS_F2}""")
    for i in range(8): a(f"v_lshlrev_b32 v{XU+2*i}, 16, v{XR+i}\nv_and_b32 v{XU+2*i+1}, 0xffff0000, v{XR+i}")
    return a.lines
def tail3(c, ws):
    assert ws.nxt == 16 and c.early_gate
    a = Asm()
    SA = 128; XR = 16; G = FA; EX = S0; XU = EX + 16; PP = 96; CL = c.CL
    def acc(ct, j): return SA + (j * 4 + ct) * 4
    def emit(ls):
        for l in ls: a(l)
    a("@stamp held rt")
    a(FL_OK + "\ns_cbranch_scc0 L_spin_fl\nL_ok_fl:")
    a("@stamp flags rt")
    fr = [(ps, j, n) for ps in range(2) for j in (1, 2, 3, 0) for n in range(16)]
    RG = [("v", 192 + 4 * i) for i in range(16)] + HOLD[16]
    frag = lambda f: rr(RG[f % 20], 4)
    def fload(f):
        ps, j, n = fr[f]; pre, l = t_bload(c, n, lambda jj: frag(f))[j]
        return pre, (l if ps else l.replace(srd(sOL), srd(sOP)))
    for f in range(c.DF):
        if f == c.SLP: emit(c.side)
        emit(flat([fload(f)]))
    while ws.held < 16:
        w, rd, dep, sl = ws.take(); emit([w] + rd)
    sXS, sXL, sF2 = sT, sT + 1, sT + 4
    if not c.early_x and not c.lean: emit(t3_setup(c))
    a(f"s_xor_b32 s{sT+7}, s{sFLO}, {4 << c.FLS}" if c.fsplit else f"s_xor_b32 s{sT+7}, s{sF2}, {4 << 7}")
    L = a.lines
    sc = Sched()
    for f0 in range(0, 128, CL):
        ps, j, n0 = fr[f0]
        for ct in range(4):
            for k_ in range(CL):
                h = CL - 1 - k_ if ct & 1 else k_; d = vr(acc(ct, j), 4)
                sc.add(f"{M16} {d}, {rr(HOLD[n0+h][ct], 4)}, {frag(f0+h)}, {'0' if n0 == 0 and k_ == 0 else d}")
    assert c.DF + CL <= 20
    for f0 in range(0, 128, CL):
        grp = [fload(f) for f in range(f0 + c.DF, min(f0 + c.DF + CL, 128))]
        if grp: place_group(sc, grp, 4 * f0, 4 * f0 + 4 * CL - 1, sp=4)
    for g in (1, 64, 192, 256, 320, 384, 448): sc.sal[g].append(f"@stamp g{g}")
    def put(lines, g, step=1):
        for l in lines: g = sc.place_mem(l, g, g + 3) + step
        return g
    def vput(lines, g0, g1):
        for n_, l in enumerate(lines): sc.valu[g0 + n_ * (g1 - g0) // len(lines)].append(l)
    def salat(g, lines):
        g = next(x for x in range(g, sc.n()) if not sc.sal[x]); sc.sal[g] += lines; return g
    if c.fsplit:
        put([F2_LOAD], c.XP3)
        sc.post[c.XC3] += FL_OK.split("\n") + ["s_cbranch_scc0 L_spin_f3", "L_ok_f3:", f"s_xor_b32 s{sT+7}, s{sF2}, {4 << 7}"]
        put([f"buffer_load_dwordx4 {vr(PP+8+4*i,4)}, v{VL}, {srd(sWS)}, s{sXL} offen offset:{2048+i*1024} sc1" for i in range(2)], c.XC3 + 1)
    for ps in range(2):
        B = 256 * ps
        if ps:
            vput([f"v_add_f32 v{acc(0,0)+e}, v{acc(0,0)+e}, v{acc(0,3)+e}" for e in range(16)], B + 4, B + 12)
            NX = 2 if c.xbf else 4
            if c.xbf: vput([f"v_cvt_pk_bf16_f32 v{acc(0,0)+e}, v{acc(0,0)+2*e}, v{acc(0,0)+2*e+1}" for e in range(8)], B + 12, B + 16)
            put([f"buffer_store_dwordx4 {vr(acc(ct,0),4)}, v{VL}, {srd(sWS)}, s{sXS} offen offset:{ct*1024} sc1 ;tag=xst" for ct in range(NX)], B + (16 if c.xbf else 12))
            gb = salat(B + c.XB1, ["@waitvm xst lgkm0", "s_barrier"])
            if c.f2s: sc.sal[gb] += [f"s_mov_b32 s{sT+5}, 1", f"s_cmp_lg_u32 s{sW}, 0", "s_cbranch_scc1 L_nof2", f"s_atomic_add s{sT+5}, s[{sWS}:{sWS+1}], s{sF2}", "L_nof2:"]
            else: put([f"buffer_store_dword v{EX+9}, v{VONE}, {srd(sWS)}, s{sF2} offen sc1"], gb)
            put([F2_LOAD], B + c.XPL)
            sc.post[B + c.XCK] += FL_OK.split("\n") + ["s_cbranch_scc0 L_spin_f2", "L_ok_f2:"]
            put([f"buffer_load_dwordx4 {vr(PP+16-4*NX+4*ct,4)}, v{VL}, {srd(sWS)}, s{sXL} offen offset:{ct*1024} sc1" for ct in range(NX)], B + c.XCK + 1)
            if c.xbf: vput(sum(([f"v_lshlrev_b32 v{PP+2*i}, 16, v{PP+8+i}", f"v_and_b32 v{PP+2*i+1}, 0xffff0000, v{PP+8+i}"] for i in range(8)), []), B + 240, B + 256)
        for j in range(1, 4):
            g = put([f"ds_write_b128 v{EX+j-1}, {vr(acc(ct,j),4)} offset:{ct*1024}" for ct in range(4)], max(B + 64 * j + 4, gb + 1 if ps else 0), 2)
        g = salat(g + 3, (["@stamp oproj rt"] if ps else []) + ["s_waitcnt lgkmcnt(0)", "s_barrier"])
        g = put([f"ds_read_b128 {vr(acc(ct,j),4)}, v{EX+4+j-1} offset:{ct*1024}" for ct in range(4) for j in range(1, 4)], g)
        va = [f"v_add_f32 v{acc(ct,3)+e}, v{acc(ct,3)+e}, v{acc(ct,j)+e}" for ct in range(4) for j in (1, 2) for e in range(4)]
        vput(va, g - 4, B + 254)
    if c.lean:
        g = 8; va = gate(c, True, PP)[1]
        if c.fsplit:
            g = c.XG3
            va = sum(([f"v_lshlrev_b32 v{PP+2*i}, 16, v{PP+8+i}", f"v_and_b32 v{PP+2*i+1}, 0xffff0000, v{PP+8+i}"] for i in range(8)), []) + \
                 [f"v_add_f32 v{G+i}, v{G+i}, v{PP+i}" for i in range(16)] + va
        for l in va:
            g = next(x for x in range(g, 256 + c.XCK) if sc.cost(x) + icost(l) <= 8); sc.valu[g].append(l); g += 1
    L += sc.lines()
    a = Asm()
    for ct in range(4):
        for h in (0, 2): a(f"v_pk_add_f32 {vr(acc(ct,3)+h,2)}, {vr(acc(ct,3)+h,2)}, {vr(PP+4*ct+h,2)}")
    for cp in (0, 2):
        it = [(acc(ct, 0) + h, acc(ct, 3) + h, 4 * ct + h) for ct in (cp, cp + 1) for h in (0, 2)]
        for r, p, o in it: a(f"v_pk_add_f32 {vr(r,2)}, {vr(r,2)}, {vr(p,2)}")
        for r, p, o in it: a(f"v_pk_fma_f32 {vr(r,2)}, {vr(r,2)}, {vr(G+o,2)}, {vr(XU+o,2)}")
        for r, p, o in it: a(f"v_cvt_pk_bf16_f32 v{XR+o//2}, v{r}, v{r+1}")
        for ct in (cp, cp + 1): a(f"ds_write_b64 v30, {vr(XR+2*ct,2)} offset:{ct*32}")
    a(f"s_mov_b32 s{sT}, 8192")
    for i in range(2): a(f"ds_read_b128 {vr(SA+4*i,4)}, v31 offset:{i*8*144}")
    for i in range(2): a(f"buffer_store_dwordx4 {vr(SA+4*i,4)}, v{VOB}, {srd(sOUT)}, {'s%d' % sT if i else 0} offen {c.outflags}")
    return L + a.lines

def fallback(c, early):
    a = Asm()
    T = 88; U = P0
    def emit(ls):
        for l in ls: a(l)
    def reads(ls):
        for i in range(0, len(ls), 8): emit(ls[i:i + 8] + ["s_waitcnt lgkmcnt(0)"])
    a(f"L_fallback:\ns_mov_b32 s{sTRY}, 1\ns_mov_b32 s{sRC}, 0\ns_mov_b32 s{sLOOP}, 0")
    for qt in range(4): a(f"v_mov_b32 v{T+qt}, 0xff800000")
    a(f"""L_fb_loop:
s_waitcnt vmcnt(0) lgkmcnt(0)
s_barrier
s_mov_b32 m0, s{sKM}
s_nop 0""")
    for i in range(4): a(f"buffer_load_dwordx4 v{VD}, {srd(sK)}, s{sLOOP} offen offset:{i*1024} lds")
    a("s_waitcnt vmcnt(0)\ns_barrier")
    reads(k_reads(0))
    for qt in range(4): emit(qk_mfmas(qt, True))
    a("s_nop 7")
    for qt in range(4):
        for e in range(0, 16, 2): a(f"v_max3_f32 v{T+qt}, v{T+qt}, v{S(qt,e//4)+e%4}, v{S(qt,e//4)+e%4+1}")
    a(f"s_add_u32 s{sLOOP}, s{sLOOP}, 0x4000\ns_cmp_lt_u32 s{sLOOP}, 0x80000\ns_cbranch_scc1 L_fb_loop")
    for sw in ("v_permlane32_swap_b32", "v_permlane16_swap_b32"):
        for qt in range(4): a(f"v_mov_b32 v{U+qt}, v{T+qt}")
        for qt in range(4): a(f"{sw} v{T+qt}, v{U+qt}")
        for qt in range(4): a(f"v_max_f32 v{T+qt}, v{T+qt}, v{U+qt}")
    a("s_barrier")
    for t in range(4): emit(flat(dma_kv("K", t) + dma_kv("V", t)))
    b2_init(a)
    emit(scalar_init(c) + flat(f_zero()) + (l2_addr(c) if c.l2n else []))
    a("s_waitcnt vmcnt(0)\ns_barrier")
    reads(k_reads(0) + v_reads(0))
    emit(attn_init() + fa2_init(c))
    for qt in range(4):
        for k in range(4): a(f"v_sub_f32 v{NEGM+qt*4+k}, 0, v{T+qt}")
    for qt in range(4): emit(qk_mfmas(qt))
    for qt in range(4):
        for p in range(32 if qt < 3 else 32 - c.SM0): emit(sm_ops(qt, p))
        if qt < 3: emit([smf(qt)] + pv_mfmas(qt))
    a("s_barrier")
    reads(early)
    a("s_nop 7\ns_branch L_attn")
    return a.lines

def recenter(c):
    a = Asm()
    for nm, qs in (("a", (2, 3)), ("b", (0, 1))):
        a(f"L_rc_{nm}:\ns_mov_b32 s{sT+6}, -120\ns_setreg_imm32_b32 hwreg(HW_REG_MODE, 4, 2), 3")
        for op in ("v_accvgpr_read_b32 v{x}, a{l}", "v_accvgpr_read_b32 v{y}, a{l1}", "v_add_f32 v{x}, v{x}, v{y}", "v_frexp_exp_i32_f32 v{f}, v{x}",
                   "v_sub_u32 v{f}, %d, v{f}" % (1 - int(c.shift)), "v_med3_i32 v{f}, v{f}, 0, s%d" % (sT + 6), "v_cvt_f32_i32 v{y}, v{f}",
                   "v_ldexp_f32 v{x}, v{x}, v{f}", "v_ldexp_f32 v{f}, 1.0, v{f}", "v_accvgpr_write_b32 a{l}, v{x}", "v_accvgpr_write_b32 a{l1}, 0",
                   "v_add_f32 v{n}, v{n}, v{y}", "v_add_f32 v{n1}, v{n1}, v{y}", "v_add_f32 v{n2}, v{n2}, v{y}", "v_add_f32 v{n3}, v{n3}, v{y}"):
            for qt in qs:
                n = NEGM + 4 * qt; h = qt & 1
                a(op.format(f=88 + h, x=90 + h, y=92 + h, l=LA(qt), l1=LA(qt) + 1, n=n, n1=n + 1, n2=n + 2, n3=n + 3))
        for qt in qs:
            sel = "op_sel:[0,1] op_sel_hi:[1,1]" if qt & 1 else "op_sel_hi:[1,0]"
            for dt in range(8):
                for h in (0, 2): a(f"v_pk_mul_f32 {vr(O(dt,qt)+h,2)}, {vr(O(dt,qt)+h,2)}, v[88:89] {sel}")
        a(f"s_setreg_imm32_b32 hwreg(HW_REG_MODE, 4, 2), 0\ns_branch L_rc_{nm}_back")
    return [l.strip() for l in a.lines]

def recenter_woven(c, lines):
    out = []; cuts = [i for i, l in enumerate(lines) if l.startswith("@rc")] + [len(lines)]
    for q in range(4):
        qt = (q + 1) & 3; n = NEGM + 4 * qt; l0 = LA(qt)
        ops = [f"v_accvgpr_read_b32 v90, a{l0}", f"v_accvgpr_read_b32 v92, a{l0+1}", "v_add_f32 v90, v90, v92", "v_frexp_exp_i32_f32 v88, v90",
               f"v_sub_u32 v88, {1 - int(c.shift)}, v88", f"v_med3_i32 v88, v88, 0, s{sT+6}", "v_cvt_f32_i32 v92, v88", "v_ldexp_f32 v90, v90, v88",
               "v_ldexp_f32 v88, 1.0, v88", f"v_accvgpr_write_b32 a{l0}, v90", f"v_accvgpr_write_b32 a{l0+1}, 0"]
        ops += [f"v_add_f32 v{n+k}, v{n+k}, v92" for k in range(4)]
        ops += [f"v_mul_f32 v{O(dt,qt)+e}, v{O(dt,qt)+e}, v88" for dt in range(8) for e in range(4)]
        gaps = []
        for l in lines[cuts[q]:cuts[q + 1]]:
            if l.startswith(("v_mfma", "v_smfmac")) or not gaps: gaps.append([l])
            else: gaps[-1].append(l)
        cost = lambda g: sum(icost(l) for l in g[1:] if not l.startswith("@")) + (4 if g[0].startswith("v_smfmac") else 0)
        real = [g for g in gaps if g[0].startswith("v_")]
        tot = 4 * len(ops) + sum(cost(g) for g in real); acc_ = 0
        for n_, g in enumerate(real):
            acc_ += cost(g)
            while ops and (acc_ < tot * (n_ + 1) / len(real) - 2 or n_ == len(real) - 1): acc_ += 4; g.append(ops.pop(0))
        out += sum(gaps, [])
    return [f"s_mov_b32 s{sT+6}, -120", "s_setreg_imm32_b32 hwreg(HW_REG_MODE, 4, 2), 3"] + out + ["s_setreg_imm32_b32 hwreg(HW_REG_MODE, 4, 2), 0"]

def resolve_deps(lines):
    return [f"v_cmp_eq_u32 vcc, {l.split()[1]}, {l.split()[1]} ;dep" if l.startswith("@dep") else l for l in lines]

def kernel_A(c):
    ws = WStream(16 if c.ksplit else 32)
    if c.ksplit: del HOLD[12]
    FSP[0] = c.fsplit
    if c.fsplit: HOLD[0], HOLD[1] = HOLD[1], HOLD[0]
    FAKE[0] = c.fakew; WFL[:] = [c.woflags, c.wqflags]
    if c.chain2 and c.adj and not c.ksplit:
        for p, pr in enumerate(make_pairs(c)):
            for h, n in enumerate(pr): SIG[n] = 2 * p + h if c.adj == 1 else (p & 3) + 4 * h + 8 * (p >> 2)
    early, att, late = attention(c, ws)
    L = gemm1(c) + ["@stamp gemm_end rt"] + epi1(c) + head(c, early) + ["@stamp loop_start rt", "L_attn:"] + att
    L += ["@stamp loop_end rt"] + tail1(c, ws)
    if late:
        late = late[0] + tail1(c, late[1], True), late[1]
        assert late[1].__dict__ == ws.__dict__
    L += tail2(c, ws)
    L, _, _ = auto_wait(resolve_deps([l.strip() for l in L if not (c.denorm and "s_setreg" in l)]))
    L = fix_hazards(L)
    LB = []
    if c.trace:
        for t in salu_trace(L, {"s2": c.trace[0], "rfl": c.trace[1]}): print(t, file=sys.stderr)
    pos = {int(l.split()[1]): i for i, l in enumerate(L) if l.startswith("@seg")}
    k0, k1 = 1, 29
    core = lambda l: l.split()[0] if l.startswith("@") else l.split(";")[0].strip()
    def split(ls):
        out = []; w = {}
        for l in ls:
            if l.startswith("s_waitcnt"):
                for n_, v in _w.findall(l): w[n_] = min(int(v), w.get(n_, 99))
            else: out.append((l, w)); w = {}
        assert not w
        return out
    V = L; first = True
    while True:
        pos = {int(l.split()[1]): i for i, l in enumerate(V) if l.startswith("@seg")}
        trips = [split(V[pos[k]:pos[k + 4]]) for k in range(k0, k1, 4)]
        for t in trips: assert [core(x[0]) for x in t] == [core(x[0]) for x in trips[2]]
        W = []
        for col in zip(*(trips[2:3] if first else trips)):
            w = {}
            for _, x in col:
                for n_, v in x.items(): w[n_] = min(v, w.get(n_, 99))
            W.append(w)
        first = False
        U = V[:pos[k0]]
        for t in trips:
            for (l, _), w in zip(t, W):
                if w: U.append("s_waitcnt " + " ".join(f"{n_}({v})" for n_, v in sorted(w.items(), reverse=True)))
                U.append(l.replace("@chk", "@waitvm"))
        U += [l.replace("@chk", "@waitvm") for l in V[pos[k1]:]]
        V = auto_wait(U, keep=True)[0]
        if [l for l in V if not l.startswith("@")] == [l for l in U if not l.startswith("@")]: break
    L = V
    if late:
        ic, ib = V.index("@cut"), V.index("L_bar1:")
        W_ = auto_wait([l.replace("@chk", "@waitvm") for l in V[:ic + 1]] + resolve_deps([l.strip() for l in late[0]]), keep=True)[0]
        assert [l for l in W_[:W_.index("@cut")] if not l.startswith("@")] == [l for l in V[:ic] if not l.startswith("@")]
        W_ = fix_hazards(W_[W_.index("@cut") - 40:]); W_ = W_[W_.index("@cut") + 1:]
        full = V[:ic + 1] + W_ + V[ib:]
        assert auto_wait(full)[0] == full
        full = [l for l in full if not l.endswith(";dep")]
        assert not check_hazards(full) and not check_dead_loads(full), (check_hazards(full)[:3], check_dead_loads(full)[:3])
        L = V[:ib] + ["s_branch L_bar1", "L_late:"] + [l for l in W_ if not l.startswith("@stamp")] + V[ib:]
    V = [l for l in V if not l.endswith(";dep")]
    assert not check_hazards(V), check_hazards(V)[:5]
    assert not check_dead_loads(V), check_dead_loads(V)[:5]
    if c.recenter and c.rcw:
        i0 = [i for i, l in enumerate(V) if l == "@rc 0"][1]; i1 = V.index("L_rc_back:", i0)
        alt = fix_hazards(V[i0 - 40:i0] + ["@alt"] + recenter_woven(c, V[i0:i1])); alt = alt[alt.index("@alt") + 1:]
        full = V[:i0] + alt + V[i1:]
        assert auto_wait(full)[0] == full and not check_hazards(full) and not check_dead_loads(full)
        LB += ["L_rc_a:"] + [l for l in alt if not l.startswith("@")] + ["s_branch L_rc_back", "L_rc_end:"]
    L = [l for l in L if not l.endswith(";dep")]
    pos = {int(l.split()[1]): i for i, l in enumerate(L) if l.startswith("@seg")}
    body = [core(l) for l in L[pos[9]:pos[13]] if not l.startswith("@")]
    im = [i for i, l in enumerate(body) if l.startswith("v_mfma")]
    j = max(i for i, l in enumerate(body) if l.startswith(("s_add", "s_min", "s_mul", "s_xor", "s_lshl", "s_cmp", "s_csel", "s_and", "s_bitcmp")))
    cand = [i for i in im if i > j and not body[i + 1].startswith("s_")]
    body.insert(cand[1] + 1, f"s_cmp_lg_u32 s{sLOOP}, 0"); body.insert(cand[0] + 1, f"s_sub_u32 s{sLOOP}, s{sLOOP}, 1")
    if c.tripstamp: body = ["s_memrealtime s[96:97]", f"s_add_u32 s98, s{sLOOP}, 54", "s_waitcnt lgkmcnt(0)", "s_mov_b32 m0, s98", f"v_writelane_b32 v{VDG}, s96, m0"] + body
    out = L[:pos[k0]] + ["@seg 1", "L_loop:"] + body + ["s_cbranch_scc1 L_loop", "L_loop_end:"] + L[pos[k1]:]
    a = Asm()
    a("s_cmp_ge_u32 s2, 256\ns_cbranch_scc1 L_endA")
    if c.scr == 1: a("s_lshr_b32 s3, s2, 3\ns_and_b32 s3, s3, 7\ns_xor_b32 s2, s2, s3\ns_lshr_b32 s3, s2, 6\ns_xor_b32 s2, s2, s3")
    if c.scr == 2: a("s_and_b32 s3, s2, 7\ns_lshl_b32 s3, s3, 3\ns_bfe_u32 s4, s2, 0x30003\ns_and_b32 s2, s2, 0xc0\ns_or_b32 s2, s2, s3\ns_or_b32 s2, s2, s4")
    stamp = Stamps()
    stamp(c, a, "start", True)
    for l in out:
        if l.startswith("@stamp"): stamp(c, a, l.split()[1], len(l.split()) > 2)
        elif l.startswith("@seg"): stamp(c, a, "seg" + l.split()[1], l.split()[1] in ("1", "29"))
        elif l.startswith("@"): continue
        else: a(l.split(";tag")[0].rstrip())
    if c.diag:
        stamp(c, a, "final"); a("s_waitcnt vmcnt(0)"); stamp(c, a, "end", True); stamp.out(c, a, WS_ST, sWS, sW)
    if c.probe:
        stamp(c, a, "end")
        a(f"""s_nop 1
v_readlane_b32 s52, v{VDG}, 0
v_readlane_b32 s53, v{VDG}, 1
s_memrealtime s[96:97]
s_waitcnt lgkmcnt(0)
s_sub_u32 s52, s53, s52
s_mul_i32 s52, s52, 4
s_min_u32 s52, s52, 100000
s_mov_b32 s53, s96
L_probe:
s_memrealtime s[96:97]
s_waitcnt lgkmcnt(0)
s_sub_u32 s54, s96, s53
s_cmp_lt_u32 s54, s52
s_cbranch_scc1 L_probe""")
    a("L_endA:\ns_endpgm")
    if c.recenter and not c.rcw: LB += fix_hazards([l for l in recenter(c) if not (c.denorm and "s_setreg" in l)])
    for n_, l in enumerate(body):
        if l.startswith(("s_cmp", "s_bitcmp")):
            for m_ in body[n_ + 1:] + ["s_cbranch"]:
                if m_.startswith(("s_cbranch", "s_cselect")): break
                assert not m_.startswith(("s_add", "s_sub", "s_min", "s_lshl", "s_xor", "s_and", "s_cmp", "s_bitcmp")), (l, m_)
    for l in LB: a(l.split(";tag")[0].rstrip())
    for l in spin("st", ST_LOAD, CNT_OK, "L_ok_st") + spin("cnt", CNT_LOAD, CNT_OK, "L_ok_cnt") + spin("fl", FL_LOAD.replace("sc1", c.pollflags), FL_OK, "L_ok_fl", c.slp) + (spin("f2", F2_LOAD, FL_OK, "L_ok_f2", c.slp) if c.ksplit else []) + (spin("f3", F2_LOAD, FL_OK, "L_ok_f3") if c.fsplit else []): a(l)
    for l in fix_hazards([l.strip() for l in fallback(c, early)]): a(l.split(";tag")[0].rstrip())
    a("L_last:\ns_endpgm")
    return a.lines
import re
_w = re.compile(r"(vmcnt|lgkmcnt)\((\d+)\)")

HEADER = """; out = x + (softmax(LN(x) wq K^T / sqrt(128)) V wo) * silu(gelu(LN(x) w1 + b1) w2 + b2), one launch, 256 workgroups of 4 waves.
; Kernarg (104 bytes, s[0:1]): 0 A_x, 8 A_k_cache, 16 A_v_cache, 24 A_wq, 32 A_wo, 40 B_x (unused by the reference), 48 B_w1,
;     rstd * (acc - mean * colsum(W)). Each workgroup computes mean / rstd of 8 rows and hands them over through d_ws.
;     maximum: the maximum over the first 64 keys, moved once to the row sum reached so far (exact power-of-two rescale), placed
;     max|O| must be normal numbers; otherwise the workgroup computes the true row maxima (L_fallback) and runs the attention again with them.
;  4. O goes to d_ws. Every workgroup owns a 64x64 output tile; two workgroups (ids b, b^4) split K of h w2 and of O wo: each computes
; Hand-offs between workgroups: write-through stores, s_waitcnt, barrier, then a counter in d_debug or a flag word in d_ws that
;   its owner cleared before that counter was raised; readers poll (bounded) and load with sc1.
; The s_cbranch_execz behind each 4 KB page start is never taken in normal flow: a visit with EXEC = 0 (branches only) fetches
;   those code lines ahead of time."""

def gen(c):
    A = kernel_A(c)
    a = Asm()
    k = NAME + "_kernel"
    a(HEADER)
    a(f"; @launch grid=(256,1,1) block=(256,1,1) lds={LDS_A}")
    a('.amdgcn_target "amdgcn-amd-amdhsa--gfx950"\n.text')
    if c.hop: a(".p2align 12")
    a(f".globl {k}\n.p2align 8\n.type {k},@function\n{k}:")
    a.lines += [re.sub(r"(?<=\S)  +", " ", l) for l in A if l.strip() != ";" and not (c.denorm and "s_setreg" in l)]
    a('.section .rodata,"a"\n.p2align 6')
    a(kdesc(k, 512, 256).replace(".end_amdhsa_kernel", "  .amdhsa_float_denorm_mode_32 3\n.end_amdhsa_kernel") if c.denorm else kdesc(k, 512, 256))
    if c.hop:
        rc = ["L_rc_a", ("L_rc_a", "L_rc_end") if c.rcw else "L_rc_b"] if c.recenter else []
        mid = "L_bar1" if c.stagger else "L_hoq_back"
        ses = [("L_hoq", mid, "L_endA", [mid] if c.stagger else [])]
        if c.hop0: ses += [("L_hop", "L_hop_back", c.hop0, rc[c.hop0rc:]), ("L_hoo", c.hop0, mid, rc[:c.hop0rc] + (["L_late"] if c.stagger else []))]
        else: ses += [("L_hop", "L_hop_back", "L_hoq_back", rc)]
        t, n = page_hooks(a.text(), c.align, ses)
        print("page hooks", n, file=sys.stderr)
        return t
    return align8(a.text(), c.align) if c.align else a.text()

if __name__ == "__main__":
    kw = {}
    for s in sys.argv[2:]:
        k, v = s.split("=", 1); kw[k] = eval(v)
    open(sys.argv[1], "w").write(gen(Cfg(**kw)))
```
